```python
import torch

def _softmax(x, axis=-1):
    return torch.softmax(x, dim=axis)
def _gelu(x):
    return torch.nn.functional.gelu(x, approximate="tanh")
def _silu(x):
    return torch.nn.functional.silu(x)
def _sigmoid(x):
    return torch.sigmoid(x)
def _layernorm(x, axis=-1, eps=1e-5):
    m = x.mean(dim=axis, keepdim=True)
    v = x.var(dim=axis, keepdim=True, unbiased=False)
    return (x - m) / torch.sqrt(v + eps)
def _scatter_add(tgt, idx, src, axis=0):
    return tgt.clone().index_add_(axis, idx, src)
def _segment_sum(src, seg, n):
    out = torch.zeros((n,) + src.shape[1:], dtype=src.dtype)
    return out.index_add_(0, seg, src)
def _pad(x, pw):
    flat = tuple(v for pair in reversed(pw) for v in pair)
    return torch.nn.functional.pad(x, flat)

kernel_name = 'sequential_preLN__linear_attn_block__moe_arch_mod__prompt'

def setup_inputs():

    _w = (lambda a: (lambda t: t.to(torch.bfloat16) if t.is_floating_point() else t)(torch.as_tensor(a)))
    def _A_setup():
        B, S, D = 1, 2048, 576
        return {
            "x": _w((lambda *s: torch.randn(*s, dtype=torch.bfloat16) * 0.05)(B, S, D)),
            "wqkv": _w((lambda *s: torch.randn(*s, dtype=torch.bfloat16) * 0.2)(D, 3 * D)),
            "wo": _w((lambda *s: torch.randn(*s, dtype=torch.bfloat16) * 0.2)(D, D)),
        }
    _A_in = _A_setup()

    def _B_setup():
        B, S, D, F, C = 1, 2048, 576, 4608, 2
        return {
            "x": _w((lambda *s: torch.randn(*s, dtype=torch.bfloat16) * 0.05)(B, S, D)),
            "w_r": _w((lambda *s: torch.randn(*s, dtype=torch.bfloat16) * 0.2)(D)),
            "w_gate": _w((lambda *s: torch.randn(*s, dtype=torch.bfloat16) * 0.2)(D, F)),
            "w_up": _w((lambda *s: torch.randn(*s, dtype=torch.bfloat16) * 0.2)(D, F)),
            "w_down": _w((lambda *s: torch.randn(*s, dtype=torch.bfloat16) * 0.2)(F, D)),
        }
    _B_in = _B_setup()

    return {
        "A_x": _A_in["x"],
        "A_wqkv": _A_in["wqkv"],
        "A_wo": _A_in["wo"],
        "B_x": _B_in["x"],
        "B_w_r": _B_in["w_r"],
        "B_w_gate": _B_in["w_gate"],
        "B_w_up": _B_in["w_up"],
        "B_w_down": _B_in["w_down"],
    }

def reference(A_x, A_wqkv, A_wo, B_x, B_w_r, B_w_gate, B_w_up, B_w_down):
    def _A_ref(x, wqkv, wo):
        B, S, D = x.shape
        H = 32; Dh = D // H
        qkv = (lambda x, *d: x.permute(*d))((x @ wqkv).reshape(B, S, 3, H, Dh), 2, 0, 3, 1, 4)
        q, k, v = qkv[0], qkv[1], qkv[2]
        phi = lambda t: torch.where(t > 0, t + 1, torch.exp(t)) + 1e-6
        pq, pk = phi(q), phi(k)
        kv = torch.einsum("bhsd,bhse->bhde", pk, v)
        z = torch.einsum("bhsd->bhd", pk)
        num = torch.einsum("bhqd,bhde->bhqe", pq, kv)
        den = torch.einsum("bhqd,bhd->bhq", pq, z)[..., None] + 1e-6
        o = num / den
        return (lambda x, *d: x.permute(*d))(o, 0, 2, 1, 3).reshape(B, S, D) @ wo

    def _B_ref(x, w_r, w_gate, w_up, w_down):
        B, S, D = x.shape
        C = 2
        r = x @ w_r
        idx = torch.argsort(-r, axis=-1)[:, :C]
        idx_e = (lambda x, n, axis: torch.repeat_interleave(x, n, dim=axis))(idx.reshape(B, C, 1), D, axis=2)
        x_sel = (lambda x, i, axis: torch.take_along_dim(x, i, dim=axis))(x, idx_e, axis=1)
        g = _silu(x_sel @ w_gate)
        u = x_sel @ w_up
        y = (g * u) @ w_down
        r_sel = _sigmoid((lambda x, i, axis: torch.take_along_dim(x, i, dim=axis))(r, idx, axis=1))
        y = y * r_sel.reshape(B, C, 1)
        b_off = (torch.arange(B) * S).reshape(B, 1)
        flat_idx = (idx + b_off).reshape(B * C)
        zero = (x * 0.0).reshape(B * S, D)
        upd = _scatter_add(zero, flat_idx, y.reshape(B * C, D), axis=0)
        return x + upd.reshape(B, S, D)

    x = A_x
    h = x + _A_ref(_layernorm(x, axis=-1), A_wqkv, A_wo)
    h2 = h + _B_ref(_layernorm(h, axis=-1), B_w_r, B_w_gate, B_w_up, B_w_down)
    return h2
```

```python
class Asm:
    def __init__(self):
        self.L = []
        self.uid = 0
    def e(self, s):
        for ln in s.split("\n"):
            ln = ln.strip()
            if ln: self.L.append(("" if ln.endswith(":") else "  ") + ln)
    def c(self, s): self.L.append("  ; " + s)
    def lab(self, name): self.L.append(name + ":")
    def new(self, base):
        self.uid += 1
        return f"{base}_{self.uid}"
    def text(self): return "\n".join(self.L) + "\n"

def vr(a, n=1):
    return f"v{a}" if n == 1 else f"v[{a}:{a+n-1}]"
def sr(a, n=1):
    return f"s{a}" if n == 1 else f"s[{a}:{a+n-1}]"

def interleave(main, fill, per_gap, start=0):
    out = []
    fi = 0
    for i, m in enumerate(main):
        out.append(m)
        if i >= start:
            for _ in range(per_gap):
                if fi < len(fill):
                    out.append(fill[fi]); fi += 1
    out.extend(fill[fi:])
    return out
```

```python
import re
TRANS = ("v_exp_f32","v_log_f32","v_rcp_f32","v_rsq_f32","v_sqrt_f32","v_sin_f32","v_cos_f32")
def regs(tok):
    tok = tok.strip()
    tok = re.sub(r"^-|^abs\(|\)$|\|", "", tok)
    m = re.fullmatch(r"([vsa])(\d+)", tok)
    if m: return {(m.group(1), int(m.group(2)))}
    m = re.fullmatch(r"([vsa])\[(\d+):(\d+)\]", tok)
    if m: return {(m.group(1), i) for i in range(int(m.group(2)), int(m.group(3))+1)}
    if tok == "vcc": return {("s", 106), ("s", 107)}
    if tok == "vcc_lo": return {("s",106)}
    if tok == "vcc_hi": return {("s",107)}
    if tok == "exec": return {("s", 126), ("s", 127)}
    if tok == "m0": return {("s", 124)}
    return set()
class I:
    def __init__(self, line):
        self.line = line
        s = line.split(";")[0].strip()
        self.label = s.endswith(":")
        self.dir = s.startswith(".") or not s
        self.op = ""; self.w = set(); self.r = set(); self.srcc = set(); self.ab = set(); self.sdata = set()
        if self.label or self.dir: return
        p = s.split(None, 1)
        self.op = op = p[0]
        rest = p[1] if len(p) > 1 else ""
        ops = [x.strip() for x in re.split(r",\s*(?![^\[]*\])", rest)]
        last = ops[-1].split() if ops else []
        self.mods = " ".join(last[1:]) if last else ""
        if last: ops[-1] = last[0]
        self.ops = ops
        R = [regs(o) for o in ops]
        self.mfma = op.startswith("v_mfma")
        self.valu = op.startswith("v_") and not self.mfma
        self.vmem = op.startswith(("buffer_", "global_"))
        self.ds = op.startswith("ds_")
        self.salu = op.startswith("s_")
        self.dpp = "_dpp" in op or "row_" in s or "quad_perm" in s
        self.perm = op.startswith("v_permlane")
        self.trans = op.replace("_e64","").replace("_e32","") in TRANS
        self.dot = op.startswith("v_dot")
        self.rl = op.startswith(("v_readlane", "v_readfirstlane"))
        if self.mfma:
            self.w = R[0]; self.ab = R[1] | R[2]; self.srcc = R[3]; self.r = self.ab | self.srcc
        elif self.valu:
            if self.perm: self.w = R[0] | R[1]; self.r = R[0] | R[1]
            else:
                self.w = set(R[0]); self.r = set().union(*R[1:]) if len(R) > 1 else set()
                if op.startswith(("v_fmac", "v_dot2c", "v_writelane")) or self.dpp: self.r |= R[0]
                if op.startswith(("v_add_co", "v_sub_co", "v_addc_co", "v_subb_co")): self.w |= R[1]; self.r = set().union(*R[2:])
                if op.startswith("v_cmpx"): self.w |= regs("exec")
        elif self.vmem:
            if "store" in op or "atomic" in op:
                self.r = set().union(*R)
                self.sdata = R[0] if op.startswith("buffer") else R[1]
                if not ("x3" in op or "x4" in op): self.sdata = set()
            elif " lds" in " " + self.mods or "load_lds" in op:
                self.r = set().union(*R) | regs("m0"); self.dma = True
            else:
                self.w = R[0]; self.r = set().union(*R[1:])
        elif self.ds:
            if op.startswith(("ds_read", "ds_bpermute", "ds_permute", "ds_swizzle")) or "_rtn_" in op: self.w = R[0]; self.r = set().union(*R[1:])
            else: self.r = set().union(*R)
        elif self.salu:
            if op.startswith(("s_cmp", "s_cbranch", "s_branch", "s_waitcnt", "s_nop", "s_barrier", "s_sleep", "s_setprio", "s_endpgm")):
                self.r = set().union(*R) if R else set()
            else:
                self.w = R[0] if R else set(); self.r = set().union(*R[1:]) if len(R) > 1 else set()
                if "saveexec" in op: self.w |= regs("exec")
    def states(self):
        if self.op == "s_nop": return int(self.ops[0], 0) + 1
        return 1
def need(p, c):
    n = 0
    V = lambda S: {x for x in S if x[0] in "va"}
    S = lambda S_: {x for x in S_ if x[0] == "s"}
    if p.valu:
        if c.mfma and V(p.w) & c.r: n = max(n, 2)
        if c.valu and (c.dpp or c.perm) and V(p.w) & c.r: n = max(n, 2)
        if c.valu and c.rl and V(p.w) & c.r: n = max(n, 1)
        if p.trans and c.valu and V(p.w) & c.r: n = max(n, 1)
        if p.dot and (c.valu or c.vmem or c.ds) and V(p.w) & (c.r | c.w) and c.op != p.op: n = max(n, 3)
        if ("sdwa" in p.op) and c.valu and V(p.w) & c.r: n = max(n, 1)
        sw = S(p.w)
        if sw:
            if c.valu and sw & c.r: n = max(n, 4 if c.op.startswith(("v_readlane","v_writelane")) else 2)
            if c.vmem and sw & c.r: n = max(n, 5)
            if c.salu and sw & c.r: n = max(n, 1)
            if sw & regs("exec") and (c.mfma or c.perm or c.rl): n = max(n, 4)
            if sw & regs("exec") and c.valu and c.dpp: n = max(n, 5)
    if p.mfma:
        if c.mfma:
            if p.w & c.ab: n = max(n, 8)
            if p.w & c.srcc and (p.w != c.srcc or p.op != c.op): n = max(n, 6)
        elif (c.valu or c.vmem or c.ds) and p.w & (c.r | c.w): n = max(n, 8)
        if c.valu and p.srcc & c.w: n = max(n, 3)
    if p.vmem and p.sdata and (c.valu or c.mfma) and p.sdata & c.w: n = max(n, 2)
    if p.vmem and p.sdata and (c.vmem or c.ds) and p.sdata & c.w: n = max(n, 1)
    if p.salu and regs("m0") & p.w and getattr(c, "dma", False): n = max(n, 1)
    return n
def fix(lines, verbose=False):
    ins = [I(l) for l in lines]
    changed = True
    total = 0
    while changed:
        changed = False
        lab = {x.line.strip()[:-1]: i for i, x in enumerate(ins) if x.label}
        jumps = {}
        for i, x in enumerate(ins):
            if x.op.startswith(("s_cbranch", "s_branch")) and x.ops[0] in lab: jumps.setdefault(lab[x.ops[0]], []).append(i)
        def back(i, dist, seen):
            j = i - 1
            while j >= 0 and dist < 9:
                x = ins[j]
                if x.label:
                    for src in jumps.get(j, []):
                        if (src, dist) not in seen:
                            seen.add((src, dist))
                            yield from back(src, dist + 1, seen)
                elif not x.dir:
                    if x.op in ("s_branch", "s_endpgm"): return
                    yield x, dist
                    dist += x.states()
                j -= 1
        for i, c in enumerate(ins):
            if c.label or c.dir or c.op == "s_nop": continue
            add = 0
            for p, d in back(i, 0, set()):
                add = max(add, need(p, c) - d)
            if add > 0:
                if verbose: print("hazard: +%d before %s" % (add, c.line.strip()))
                ins.insert(i, I(f"  s_nop {add-1}"))
                total += 1
                changed = True
                break
    return [x.line for x in ins], total
```

```python
import sys, struct
from asmlib import *
import hazard

NAME = "sequential_preLN__linear_attn_block__moe_arch_mod__prompt_kernel"
KVP = 0
OB  = KVP + 16*8*3072
ST  = OB + 128*16*1152
KEY = ST + 128*9*256
CAND = KEY + 8192
YP  = CAND + 128*2*2304
RESET_END = YP + 72*4608
assert RESET_END <= 4<<20
XST = 4<<20
CS  = XST + 16384
TS_OFF = 0x8000000
XS = 32768; STG = XS + 16384; NBUF = 3
L_WO = 0; L_KVRED = 73728; L_PQ = 110592
L_RS = 147456; L_MRS = L_RS + 1024; L_CS = L_MRS + 1024; L_KT = L_CS + 1024; L_SW = L_KT + 1536
L_STAGE = L_KVRED
F_WG = 0; F_WU = 73728; F_WD = 0; F_HN = 147456; F_ACT = F_HN + 2560; F_KEYS = F_ACT + 256; F_RED = F_KEYS + 256
SPIN = 1 << 17
def f2u(x): return struct.unpack("<I", struct.pack("<f", x))[0]
LOG2E = 1.4426950408889634

def gen(stamps=False):
    a = Asm()
    e = a.e
    def stamp(i):
        if stamps: e(f"s_memrealtime s[{72+2*i}:{73+2*i}]")
    def fin():
        if stamps:
            e("s_waitcnt vmcnt(0) lgkmcnt(0)")
            e("s_mov_b64 exec, -1")
            e(f"s_lshl_b32 s44, s2, 3\n s_add_u32 s44, s44, s3\n s_lshl_b32 s44, s44, 6\n s_add_u32 s44, s44, {TS_OFF}\n v_mov_b32 v2, 0")
            for i in range(15):
                e(f"v_mov_b32 v3, s{72+2*i}\n buffer_store_dword v3, v2, s[36:39], s44 offen offset:{4*i}")
        e("s_endpgm")
    def srd(d, p, n):
        e(f"s_mov_b32 s{d}, s{p}\n s_mov_b32 s{d+1}, s{p+1}\n s_mov_b32 s{d+2}, {n}\n s_mov_b32 s{d+3}, 0x20000")
    def rowmax(d, s):
        e(f"v_max_u32_dpp v{d}, v{s}, v{s} quad_perm:[1,0,3,2] row_mask:0xf bank_mask:0xf")
        e(f"v_max_u32_dpp v{d}, v{d}, v{d} quad_perm:[2,3,0,1] row_mask:0xf bank_mask:0xf")
        e(f"v_max_u32_dpp v{d}, v{d}, v{d} row_half_mirror row_mask:0xf bank_mask:0xf")
        e(f"v_max_u32_dpp v{d}, v{d}, v{d} row_mirror row_mask:0xf bank_mask:0xf")
    def rowsum(d):
        for m in ("quad_perm:[1,0,3,2]", "quad_perm:[2,3,0,1]", "row_half_mirror", "row_mirror"):
            e(f"v_add_f32_dpp v{d}, v{d}, v{d} {m} row_mask:0xf bank_mask:0xf")
    def xsum(d, t, which, op="v_add_f32"):
        e(f"v_mov_b32 v{t}, v{d}\n v_permlane{which}_swap_b32 v{d}, v{t}\n {op} v{d}, v{d}, v{t}")

    a.lab(NAME)
    e("""
s_load_dwordx16 s[4:19], s[0:1], 0
s_load_dwordx4 s[20:23], s[0:1], 64
s_load_dwordx2 s[24:25], s[0:1], 80
""")
    if stamps:
        for i in range(1, 15): e(f"s_mov_b64 s[{72+2*i}:{73+2*i}], 0")
    stamp(0)
    e(f"""
v_lshrrev_b32 v2, 6, v0
v_and_b32 v1, 63, v0
s_cmp_ge_u32 s2, 256
v_readfirstlane_b32 s3, v2
s_cbranch_scc1 L_end
s_and_b32 s26, s2, 7
s_lshr_b32 s27, s2, 3          ; slot
s_lshr_b32 s45, s26, 1         ; rbg
s_and_b32 s46, s2, 1           ; half
v_and_b32 v13, 15, v1
v_lshrrev_b32 v14, 4, v1
s_and_b32 s54, s3, 3           ; w
s_cmp_ge_u32 s27, 16
s_cbranch_scc1 L_B
s_and_b32 s47, s27, 7
s_lshl_b32 s48, s46, 3
s_add_u32 s48, s48, s47        ; hp
s_lshr_b32 s49, s27, 3
s_lshl_b32 s50, s45, 1
s_add_u32 s50, s50, s49        ; rb (0..7)
s_mul_i32 s51, s48, 72
s_and_b32 s52, s51, 8
s_and_b32 s51, s51, -16        ; a0
s_mov_b32 s53, s27
s_cmp_lt_u32 s3, 4
s_cbranch_scc1 L_compute
""")
    e(f"""
s_setprio 2
s_lshl_b32 s55, s50, 5
s_add_u32 s55, s55, s54
s_lshl_b32 s55, s55, 3
v_lshrrev_b32 v2, 3, v1
v_add_u32 v2, s55, v2
v_mul_u32_u24 v16, 1152, v2
s_and_b32 s56, s54, 1
s_lshl_b32 s57, s56, 2
v_add_u32 v3, s57, v14
v_and_b32 v2, 7, v1
v_xor_b32 v2, v2, v3
v_lshl_add_u32 v16, v2, 4, v16
v_lshrrev_b32 v2, 1, v13
v_xor_b32 v2, v2, v3
v_and_b32 v3, 1, v1
v_lshl_add_u32 v2, v2, 1, v3
v_min_u32 v2, 14, v2
v_mul_u32_u24 v3, 52, v2
v_lshrrev_b32 v3, 8, v3
v_lshlrev_b32 v2, 4, v2
v_xor_b32 v15, 1, v3
v_lshrrev_b32 v4, 1, v3
v_sub_u32 v15, v15, v4
v_mul_u32_u24 v15, 1152, v15
v_mul_u32_u24 v3, 80, v3
v_sub_u32 v2, v2, v3
s_lshl_b32 s55, s54, 3
v_add_u32 v3, s55, v14
v_mul_u32_u24 v3, 3456, v3
v_add3_u32 v17, v2, v3, v15
s_lshl_b32 s41, s54, 10
s_mov_b32 s55, 0
s_mov_b32 s56, s51
s_mov_b32 s43, 0
s_mov_b32 s44, -1
s_mov_b32 s30, 2359296
s_mov_b32 s31, 0x20000
s_mov_b32 s34, 1990656
s_mov_b32 s35, 0x20000
s_waitcnt lgkmcnt(0)
s_mov_b32 s28, s4
s_mov_b32 s29, s5
s_mov_b32 s32, s6
s_mov_b32 s33, s7
""")
    a.lab("L_hloop")
    e("s_mov_b32 s57, s55")
    for i in range(8):
        if i < 4:
            e(f"s_add_u32 m0, s41, {XS + i*4096}\n s_add_u32 s58, s56, {((i>>1)*32 + (i&1)*4)*3456}")
            e("buffer_load_dwordx4 v17, s[32:35], s58 offen lds")
        e(f"s_add_u32 m0, s41, {i*4096}")
        if i: e(f"s_add_u32 s57, s57, {2*18432}")
        e("buffer_load_dwordx4 v16, s[28:31], s57 offen lds")
    e(f"""
s_add_u32 s55, s55, 128
s_add_u32 s56, s56, {64*3456}
s_add_u32 s43, s43, 1
s_add_u32 s41, s41, {STG}
s_cmp_eq_u32 s43, {NBUF}
s_cselect_b32 s57, {NBUF*STG}, 0
s_cselect_b32 s43, 0, s43
s_sub_u32 s41, s41, s57
s_add_u32 s44, s44, 1
s_cmp_eq_u32 s44, 0
s_cbranch_scc1 L_hloop
s_cmp_eq_u32 s44, 8
s_cbranch_scc1 L_htail
s_waitcnt vmcnt(12)
s_barrier
s_cmp_lg_u32 s44, 2
s_cbranch_scc1 L_hloop
""")
    e("s_setprio 0")
    e(f"""
v_lshl_add_u32 v2, s54, 6, v1      ; n = 64w + lane
s_lshl_b32 s57, s50, 10
s_add_u32 s60, s57, {XST}
v_lshlrev_b32 v18, 2, v2
v_min_u32 v3, 107, v2
v_mul_u32_u24 v4, 1821, v3
v_lshrrev_b32 v4, 16, v4           ; sec = c/36
v_xor_b32 v5, 1, v4
v_lshrrev_b32 v6, 1, v4
v_sub_u32 v5, v5, v6
v_mul_u32_u24 v5, 576, v5
v_mul_u32_u24 v4, 36, v4
v_sub_u32 v3, v3, v4
v_add_u32 v3, v3, v5
v_lshlrev_b32 v19, 2, v3
s_mul_i32 s61, s48, 144
s_add_u32 s61, s61, {CS}
""")
    e(f"""
v_cmp_gt_u32 vcc, 190, v2
v_cndmask_b32 v3, 0, v2, vcc       ; gamma or 0
v_cndmask_b32 v23, 0, -1, vcc
v_mov_b32 v24, v23
v_mul_u32_u24 v4, 13108, v3
v_lshrrev_b32 v4, 16, v4           ; col
v_mul_u32_u24 v5, 5, v4
v_sub_u32 v5, v3, v5               ; i
v_cmp_le_u32 vcc, 18, v4
v_cndmask_b32 v6, 0, 1, vcc        ; head for col<36
v_cmp_le_u32 vcc, 36, v4
v_subrev_u32 v7, 36, v4
v_cndmask_b32 v6, v6, v7, vcc      ; head
v_cndmask_b32 v4, v4, 36, vcc      ; e (36 = ones column)
v_lshl_add_u32 v7, v6, 2, v5       ; delta = i + 4*head
v_add_u32 v4, 72, v4               ; tile column index 72+e
v_lshrrev_b32 v8, 4, v4
v_subrev_u32 v8, 4, v8             ; TB-4
v_and_b32 v4, 15, v4               ; lane col
v_lshrrev_b32 v9, 2, v7            ; TA
v_mad_u32_u24 v8, v9, 3, v8
v_and_b32 v9, 3, v7
v_lshl_add_u32 v4, v9, 4, v4
v_lshlrev_b32 v4, 4, v4
v_lshl_add_u32 v22, v8, 10, v4
v_add_u32 v22, {L_KVRED}, v22      ; lds source
v_cmp_eq_u32 vcc, 4, v7
v_cndmask_b32 v8, -1, 0, vcc       ; 0 when delta==4
v_subrev_u32 v9, 1, v6             ; head0: -1, head1: 0
v_or_b32 v9, v9, v8
v_and_b32 v23, v23, v9             ; lo mask
v_sub_u32 v9, 0, v6
v_or_b32 v9, v9, v8
v_and_b32 v24, v24, v9             ; hi mask
v_lshlrev_b32 v25, 4, v2           ; gamma*16
v_lshlrev_b32 v26, 3, v2
v_add_u32 v26, {L_KT}, v26
s_mul_i32 s62, s48, {8*3072}       ; KVP base of this hp
""".replace("v_cndmask_b32 v23, 0, -1, vcc", "v_cndmask_b32_e64 v23, 0, -1, vcc").replace("v_cndmask_b32 v6, 0, 1, vcc", "v_cndmask_b32_e64 v6, 0, 1, vcc").replace("v_cndmask_b32 v4, v4, 36, vcc", "v_cndmask_b32_e64 v4, v4, 36, vcc").replace("v_cndmask_b32 v8, -1, 0, vcc", "v_cndmask_b32_e64 v8, -1, 0, vcc"))
    def wo_setup():
        e(f"""
s_cmp_ge_u32 s53, 9
s_cselect_b32 s57, 9, 0
s_sub_u32 s63, s53, s57            ; cb
v_lshrrev_b32 v2, 3, v1            ; rr
v_and_b32 v3, 7, v1
v_bfe_u32 v4, v1, 4, 2
v_lshlrev_b32 v4, 1, v4
v_xor_b32 v3, v3, v4
v_lshlrev_b32 v3, 4, v3
s_lshl_b32 s57, s63, 7
v_add_u32 v3, s57, v3
v_lshrrev_b32 v4, 2, v2
v_and_b32 v5, 3, v2
v_mad_u32_u24 v6, v4, 10, v5
s_and_b32 s57, s54, 1
s_mul_i32 s58, s57, 18
s_lshr_b32 s59, s54, 1
s_lshl_b32 s42, s59, 2
s_add_u32 s58, s58, s42
v_add_u32 v6, s58, v6
v_mul_u32_u24 v6, 1152, v6
v_add_u32 v20, v6, v3
v_mul_u32_u24 v4, 72, v4
v_bfe_u32 v5, v2, 1, 1
v_mad_u32_u24 v4, v5, 18, v4
v_and_b32 v5, 1, v2
v_add_u32 v4, v4, v5
s_mul_i32 s57, s57, 144
s_mul_i32 s59, s59, 36
s_add_u32 s57, s57, s59
s_add_u32 s57, s57, 8
v_add_u32 v4, s57, v4
v_mul_u32_u24 v4, 1152, v4
v_add_u32 v21, v4, v3
""")
    def wo_dma(tag):
        srd(68, 8, 663552)
        e(f"""
s_lshl_b32 s57, s54, 10
s_mov_b32 s58, 0
L_wod{tag}:
s_mov_b32 m0, s57
s_add_u32 s57, s57, 4096
buffer_load_dwordx4 v20, s[68:71], s58 offen lds
s_add_u32 s58, s58, {36*1152}
s_cmp_lt_u32 s58, {16*36*1152}
s_cbranch_scc1 L_wod{tag}
s_mov_b32 m0, s57
s_add_u32 s57, s57, 4096
buffer_load_dwordx4 v21, s[68:71], 0 offen lds
s_mov_b32 m0, s57
s_mov_b32 s58, {288*1152}
buffer_load_dwordx4 v21, s[68:71], s58 offen lds
""")
    def sw_calc():
        srd(68, 12, 1152)
        e("v_lshlrev_b32 v2, 2, v1")
        for i in range(5): e(f"buffer_load_dword v{30+i}, v2, s[68:71], 0 offen offset:{256*i}")
        e("v_mov_b32 v3, 0\n s_mov_b32 s57, 0x3f803f80\n s_waitcnt vmcnt(0)")
        for i in range(5): e(f"v_dot2c_f32_bf16 v3, s57, v{30+i}")
        rowsum(3); xsum(3, 4, 16); xsum(3, 4, 32)
        e(f"v_mov_b32 v4, {L_SW}\n ds_write_b32 v4, v3")
    def flags_wait(tag, issued, fv=27, av=28):
        e(f"s_mov_b32 s59, 0")
        if issued: e(f"s_branch L_fl1{tag}")
        e(f"""
L_fl0{tag}:
buffer_load_dword v{fv}, v{av}, s[64:67], 0 offen sc1
L_fl1{tag}:
s_waitcnt vmcnt(0)
v_cmp_ne_u32 vcc, 0x10001, v{fv}
s_cbranch_vccz L_fl2{tag}
s_add_u32 s59, s59, 1
s_cmp_lt_u32 s59, {SPIN}
s_cbranch_scc1 L_fl0{tag}
L_fl2{tag}:
""")
    wo_setup()
    e("v_lshlrev_b32 v28, 2, v1\n s_branch L_hloop")
    a.lab("L_htail")
    srd(36, 24, 0x10000000)
    srd(64, 22, 256)
    e("buffer_load_dword v27, v28, s[64:67], 0 offen sc1\n s_waitcnt vmcnt(13)\n s_barrier")
    flags_wait("a", True)
    e(f"""
buffer_load_dword v30, v18, s[36:39], s60 offen sc1
s_add_u32 s60, s60, 8192
buffer_load_dword v31, v18, s[36:39], s60 offen sc1
buffer_load_dword v32, v19, s[36:39], s61 offen sc1
s_add_u32 s61, s61, 6912
buffer_load_dword v33, v19, s[36:39], s61 offen sc1
s_add_u32 s61, s61, 6912
buffer_load_dword v34, v19, s[36:39], s61 offen sc1
s_add_u32 s61, s61, 6912
buffer_load_dword v35, v19, s[36:39], s61 offen sc1
s_barrier
""")
    e(f"""
v_add_u32 v18, {L_RS}, v18
s_waitcnt vmcnt(0)
v_add_f32 v32, v32, v33
v_add_f32 v34, v34, v35
v_add_f32 v32, v32, v34
ds_write_b32 v18, v30
ds_write_b32 v18, v31 offset:1024
ds_write_b32 v18, v32 offset:2048
s_waitcnt lgkmcnt(0)
s_barrier
""")
    stamp(1)
    wo_dma("a")
    e("s_cmp_lg_u32 s54, 3\n s_cbranch_scc1 L_hpub")
    sw_calc()
    e("s_waitcnt vmcnt(0) lgkmcnt(0)\n s_barrier\n s_barrier\n s_branch L_s3pre")
    a.lab("L_hpub")
    e("s_waitcnt vmcnt(0)\n s_barrier")
    for i in range(4): e(f"ds_read_b128 v[{32+4*i}:{35+4*i}], v22 offset:{9216*i}")
    e(f"s_mul_i32 s57, s50, 3072\n s_add_u32 s57, s57, s62\n s_waitcnt lgkmcnt(0)")
    e("v_pk_add_f32 v[32:33], v[32:33], v[36:37]\n v_pk_add_f32 v[34:35], v[34:35], v[38:39]\n v_pk_add_f32 v[40:41], v[40:41], v[44:45]\n v_pk_add_f32 v[42:43], v[42:43], v[46:47]")
    e("v_pk_add_f32 v[32:33], v[32:33], v[40:41]\n v_pk_add_f32 v[34:35], v[34:35], v[42:43]")
    for i in range(4): e(f"v_min_u32 v{32+i}, -2, v{32+i}")
    e("buffer_store_dwordx4 v[32:35], v25, s[36:39], s57 offen sc1")
    stamp(2)
    e("s_mov_b32 s59, 0\n s_waitcnt vmcnt(0)")
    a.lab("L_hA")
    e("s_mov_b32 s57, s62")
    for i in range(8):
        e(f"buffer_load_dwordx4 v[{32+4*i}:{35+4*i}], v25, s[36:39], s57 offen sc1")
        if i < 7: e("s_add_u32 s57, s57, 3072")
    e("s_waitcnt vmcnt(0)")
    e("v_max3_u32 v2, v32, v33, v34")
    for i in range(35, 63, 2): e(f"v_max3_u32 v2, v2, v{i}, v{i+1}")
    e(f"""
v_max_u32 v2, v2, v63
v_cmp_eq_u32 vcc, -1, v2
s_cbranch_vccz L_hA2
s_add_u32 s59, s59, 1
s_cmp_lt_u32 s59, {SPIN}
s_cbranch_scc1 L_hA
L_hA2:
""")
    for st in (16, 8, 4):
        for i in range(0, st, 2): e(f"v_pk_add_f32 v[{32+i}:{33+i}], v[{32+i}:{33+i}], v[{32+st+i}:{33+st+i}]")
    e("""
v_cvt_pk_bf16_f32 v32, v32, v33
v_cvt_pk_bf16_f32 v33, v34, v35
v_and_b32 v32, v32, v23
v_and_b32 v33, v33, v24
ds_write_b64 v26, v[32:33]
s_waitcnt lgkmcnt(0)
s_barrier
""")
    stamp(3)
    e("s_branch L_s3pre")

    a.lab("L_compute")
    e(f"""
v_lshrrev_b32 v15, 1, v13
v_xor_b32 v15, v15, v14
v_lshlrev_b32 v15, 4, v15
v_lshl_add_u32 v4, v13, 7, v15
s_lshl_b32 s55, s54, 13
v_add_u32 v4, s55, v4
v_xor_b32 v5, 64, v4
v_lshrrev_b32 v2, 2, v13
v_lshl_add_u32 v2, v14, 2, v2
v_and_b32 v3, 3, v13
v_and_b32 v15, 7, v2
v_lshlrev_b32 v15, 5, v15
v_lshlrev_b32 v2, 8, v2
v_add_u32 v2, {XS}, v2
v_add_u32 v16, 3, v3
v_and_b32 v16, 4, v16
v_lshlrev_b32 v16, 1, v16
v_and_b32 v17, 2, v3
v_lshlrev_b32 v17, 2, v17
v_lshlrev_b32 v3, 3, v3
v_add_u32 v3, s52, v3
""")
    for T in range(7):
        secs = [min((4*T+c)//9, 2) for c in range(4)]
        e(f"v_add_u32 v{6+T}, {32*T + 8*secs[0]}, v3")
        if T == 2: e(f"v_add_u32 v{6+T}, v{6+T}, v16")
        if T == 4: e(f"v_add_u32 v{6+T}, v{6+T}, v17")
        e(f"v_xor_b32 v{6+T}, v{6+T}, v15\n v_add_u32 v{6+T}, v{6+T}, v2")
    e(f"""
v_lshrrev_b32 v16, 3, v13          ; head
v_bfe_u32 v17, v13, 2, 1           ; odd
v_and_b32 v18, 3, v13              ; r
v_mul_u32_u24 v19, 18, v16
v_mad_u32_u24 v19, v17, 10, v19
v_add_u32 v19, v19, v18
v_add_u32 v20, 4, v19              ; tau=1
v_add_u32 v21, 8, v19
v_add_u32 v22, 36, v16
v_cmp_eq_u32 vcc, 2, v18
v_cndmask_b32 v21, v21, v22, vcc
v_cndmask_b32_e64 v23, 0, 1, vcc
v_lshl_add_u32 v22, v17, 2, v18
v_cmp_gt_u32 vcc, 2, v22
v_cndmask_b32_e64 v23, v23, 1, vcc
v_lshlrev_b32 v22, 2, v16
v_sub_u32 v22, v14, v22            ; g' - 4*head
v_mov_b32 v25, {L_KT + 190*8}
""")
    for tau in range(3):
        for t in range(3):
            d = 240 + tau*3 + t
            e(f"v_add_u32 v24, {4*t}, v22\n v_mad_u32_u24 v{d}, v{19+tau}, 5, v24\n v_lshlrev_b32 v{d}, 3, v{d}\n v_add_u32 v{d}, {L_KT}, v{d}\n v_cmp_gt_u32 vcc, 5, v24\n v_cndmask_b32 v{d}, v25, v{d}, vcc")
            if tau == 2: e(f"v_cmp_eq_u32 vcc, 1, v23\n v_cndmask_b32 v{d}, v25, v{d}, vcc")
    e(f"""
s_lshl_b32 s55, s54, 8
s_add_u32 s55, s55, {L_RS}
v_lshl_add_u32 v249, v14, 4, s55
v_lshlrev_b32 v250, 2, v13
v_add_u32 v250, {L_CS}, v250
v_cmp_le_u32 vcc, 12, v13
v_cndmask_b32_e64 v251, 0, -1, vcc
s_mul_i32 s55, s54, 6144
s_add_u32 s55, s55, {L_PQ}
v_lshlrev_b32 v252, 5, v13
v_lshl_add_u32 v252, v14, 3, v252
v_add_u32 v252, s55, v252
v_lshlrev_b32 v254, 3, v13
v_add_u32 v254, s55, v254
v_lshl_add_u32 v253, v14, 7, v254
s_mul_i32 s55, s54, 9216
s_add_u32 s55, s55, {L_KVRED}
v_lshl_add_u32 v255, v1, 4, s55
""")
    ACC = 16; F = [128, 172]
    for i in range(112): e(f"v_mov_b32 v{ACC+i}, 0")
    def reads(fs, kk):
        r = [f"ds_read_b128 v[{F[fs]+4*j}:{F[fs]+4*j+3}], v{4+kk} offset:{j*2048}" for j in range(4)]
        for T in range(7):
            for hf in range(2):
                d = F[fs]+16+4*T+2*hf
                r.append(f"ds_read_b64_tr_b16 v[{d}:{d+1}], v{6+T} offset:{(kk*32+hf*16)*256}")
        return r
    def acc(j, T): return ACC + (j*7+T)*4
    def mfmas(fs):
        m = []
        for T in range(7):
            for j in range(4):
                c = acc(j, T); b = F[fs]+16+4*T
                m.append(f"v_mfma_f32_16x16x32_bf16 v[{c}:{c+3}], v[{F[fs]+4*j}:{F[fs]+4*j+3}], v[{b}:{b+3}], v[{c}:{c+3}]")
        return m
    def weave(m, r, extra):
        out = []
        for i, x in enumerate(m):
            out.append(x)
            if i < len(r): out.append(r[i])
            if i in extra: out.extend(extra[i])
        return out
    e(f"s_mov_b32 s55, 0\n s_mov_b32 s56, 0\n s_mov_b32 s58, {STG}\n s_waitcnt lgkmcnt(0)")
    srd(36, 24, 0x10000000)
    srd(28, 4, 2359296)
    e("s_barrier")
    stamp(1)
    for r in reads(0, 0): e(r)
    e("s_waitcnt lgkmcnt(0)\n s_branch L_cloop\n .p2align 3")
    a.lab("L_cloop2")
    for x in weave(mfmas(1), reads(0, 0), {}): e(x)
    e("s_waitcnt lgkmcnt(0)")
    a.lab("L_cloop")
    ex = {0: ["s_add_u32 s56, s56, 1", f"s_cmp_eq_u32 s56, {NBUF}"], 1: [f"s_cselect_b32 s57, {(-(NBUF-1)*STG) & 0xffffffff}, s58", "s_cselect_b32 s56, 0, s56"],
          2: ["v_add_u32 v4, s57, v4"], 4: ["v_add_u32 v5, s57, v5"], 22: ["s_add_u32 s55, s55, 1", "s_cmp_lt_u32 s55, 9"]}
    for T in range(7): ex.setdefault(6+2*T, []).append(f"v_add_u32 v{6+T}, s57, v{6+T}")
    for x in weave(mfmas(0), reads(1, 1), ex): e(x)
    e("s_waitcnt lgkmcnt(0)\n s_barrier\n s_cbranch_scc1 L_cloop2")
    RS, MRS, CSR = 128, 144, 160
    tr = [f"ds_read_b128 v[{RS+4*j}:{RS+4*j+3}], v249 offset:{64*j}" for j in range(4)] + [f"ds_read_b128 v[{MRS+4*j}:{MRS+4*j+3}], v249 offset:{1024+64*j}" for j in range(4)]
    tr += [f"ds_read_b32 v{CSR+T}, v250 offset:{64*T}" for T in range(7)]
    C1 = 1.000001
    tr += [f"v_mov_b32 v168, {f2u(C1):#x}", f"v_mov_b32 v169, {f2u(LOG2E):#x}", f"v_mov_b32 v170, {f2u(-LOG2E*C1):#x}", f"v_mov_b32 v171, {f2u(1e-6):#x}", "v_mov_b32 v2, 0x3f803f80"]
    for x in weave(mfmas(1), tr, {}): e(x)
    e("s_waitcnt lgkmcnt(0)")
    stamp(2)
    def bc(r):
        return (f"v[{r&~1}:{(r&~1)+1}]", r & 1)
    TMP = 204
    def phi(j, T, dst):
        c = acc(j, T); p, s_ = bc(CSR+T)
        for h in range(2):
            e(f"v_pk_fma_f32 v[{TMP+2*h}:{TMP+2*h+1}], v[{MRS+4*j+2*h}:{MRS+4*j+2*h+1}], {p}, v[168:169] op_sel:[0,{s_},0] op_sel_hi:[1,{s_},0]")
        for h in range(2):
            e(f"v_pk_fma_f32 v[{TMP+2*h}:{TMP+2*h+1}], v[{c+2*h}:{c+2*h+1}], v[{RS+4*j+2*h}:{RS+4*j+2*h+1}], v[{TMP+2*h}:{TMP+2*h+1}]")
        for h in range(2):
            e(f"v_pk_fma_f32 v[{TMP+4+2*h}:{TMP+5+2*h}], v[{TMP+2*h}:{TMP+2*h+1}], v[168:169], v[170:171] op_sel:[0,1,0] op_sel_hi:[1,1,0]")
        for q in range(4): e(f"v_exp_f32_e64 v{TMP+4+q}, v{TMP+4+q} clamp")
        for h in range(2):
            e(f"v_pk_add_f32 v[{TMP+4+2*h}:{TMP+5+2*h}], v[{TMP+4+2*h}:{TMP+5+2*h}], v[170:171] op_sel:[0,1] op_sel_hi:[1,1]")
        for q in range(4): e(f"v_max_f32 v{TMP+q}, v{TMP+q}, v{TMP+4+q}")
        for h in range(2): e(f"v_cvt_pk_bf16_f32 v{dst+h}, v{TMP+2*h}, v{TMP+2*h+1}")
    def lin(j, T, dst):
        c = acc(j, T); p, s_ = bc(CSR+T)
        for h in range(2):
            e(f"v_pk_mul_f32 v[{TMP+8+2*h}:{TMP+9+2*h}], v[{MRS+4*j+2*h}:{MRS+4*j+2*h+1}], {p} op_sel:[0,{s_}] op_sel_hi:[1,{s_}]")
        for h in range(2):
            e(f"v_pk_fma_f32 v[{TMP+8+2*h}:{TMP+9+2*h}], v[{c+2*h}:{c+2*h+1}], v[{RS+4*j+2*h}:{RS+4*j+2*h+1}], v[{TMP+8+2*h}:{TMP+9+2*h}]")
        for h in range(2): e(f"v_cvt_pk_bf16_f32 v{dst+h}, v{TMP+8+2*h}, v{TMP+9+2*h}")
    PK = 216; KVA = 172
    pairs = [(0,0),(0,1),(0,2),(1,0),(1,1),(1,2),(2,1),(2,2)]
    for jp in range(2):
        for jj in range(2):
            j = 2*jp + jj
            for T in range(3): phi(j, T, PK + 4*T + 2*jj)
            e(f"ds_write_b64 v252, v[{PK+8+2*jj}:{PK+9+2*jj}] offset:{j*1536}")
            for T in range(3): lin(j, 4+T, PK + 12 + 4*T + 2*jj)
            for h in range(2): e(f"v_bfi_b32 v{PK+20+2*jj+h}, v251, v2, v{PK+20+2*jj+h}")
        for n, (ta, tb) in enumerate(pairs):
            c = KVA + 4*n
            e(f"v_mfma_f32_16x16x32_bf16 v[{c}:{c+3}], v[{PK+4*ta}:{PK+4*ta+3}], v[{PK+12+4*tb}:{PK+15+4*tb}], " + ("0" if jp == 0 else f"v[{c}:{c+3}]"))
    for n, (ta, tb) in enumerate(pairs):
        e(f"ds_write_b128 v255, v[{KVA+4*n}:{KVA+4*n+3}] offset:{(ta*3+tb)*1024}")
    e("s_waitcnt lgkmcnt(0)\n s_barrier")
    stamp(3)
    for j in range(4):
        for T in (3, 4):
            d = PK + (j*2 + T-3)*2
            phi(j, T, d)
            e(f"ds_write_b64 v252, v[{d}:{d+1}] offset:{j*1536 + (T-2)*512}")
    PQ = 16
    e("s_waitcnt lgkmcnt(0)")
    for j in range(4):
        for t in range(2): e(f"ds_read_b64_tr_b16 v[{PQ+6*j+2*t}:{PQ+6*j+2*t+1}], v253 offset:{j*1536 + (4+16*t)*32}")
        e(f"ds_read_b64_tr_b16 v[{PQ+6*j+4}:{PQ+6*j+5}], v254 offset:{j*1536 + 36*32}")
    KA = 44
    e(f"v_mov_b32 v{PQ+24}, 0\n v_mov_b32 v{PQ+25}, 0")
    for tau in range(3): e(f"v_mov_b32 v{KA+8*tau+6}, 0\n v_mov_b32 v{KA+8*tau+7}, 0")
    e(f"""
v_lshlrev_b32 v6, 4, v1
v_lshlrev_b32 v7, 3, v13
v_lshl_add_u32 v7, v14, 1, v7
v_add_u32 v7, 1024, v7
v_and_b32 v8, 1, v14
v_lshl_or_b32 v7, v8, 31, v7
s_lshl_b32 s55, s50, 4
s_lshl_b32 s56, s54, 2
s_add_u32 s55, s55, s56
s_lshl_b32 s55, s55, 4
s_add_u32 s55, s55, s48
s_mul_i32 s55, s55, 1152
s_add_u32 s55, s55, {OB}
s_waitcnt lgkmcnt(0)
""")
    stamp(4)
    e("s_barrier")
    stamp(5)
    for tau in range(3):
        for t in range(3): e(f"ds_read_b64 v[{KA+8*tau+2*t}:{KA+8*tau+2*t+1}], v{240+tau*3+t}")
    e("s_waitcnt lgkmcnt(0)")
    D = 68
    for half in range(2):
        for j in range(4):
            for tau in range(3):
                c = D + 12*j + 4*tau
                e(f"v_mfma_f32_16x16x32_bf16 v[{c}:{c+3}], v[{KA+8*tau+4*half}:{KA+8*tau+4*half+3}], v[{PQ+6*j+4*half}:{PQ+6*j+4*half+3}], " + ("0" if half == 0 else f"v[{c}:{c+3}]"))
    for j in range(4):
        c = D + 12*j
        e(f"v_cvt_pk_bf16_f32 v{c+10}, v{c+10}, v{c+10}\n v_and_b32 v{c+10}, 0xffff0000, v{c+10}\n v_add_f32 v{c+10}, v171, v{c+10}\n v_rcp_f32 v{c+10}, v{c+10}")
    for j in range(4):
        c = D + 12*j; o = 116 + 6*j
        for h in range(5): e(f"v_pk_mul_f32 v[{c+2*h}:{c+2*h+1}], v[{c+2*h}:{c+2*h+1}], v[{c+10}:{c+11}] op_sel_hi:[1,0]")
        for h in range(5): e(f"v_cvt_pk_bf16_f32 v{o+h}, v{c+2*h}, v{c+2*h+1}")
        for h in range(5): e(f"v_min_u32 v{o+h}, -2, v{o+h}")
        e(f"buffer_store_dwordx4 v[{o}:{o+3}], v6, s[36:39], s55 offen sc1\n buffer_store_dword v{o+4}, v7, s[36:39], s55 offen sc1")
        if j < 3: e(f"s_add_u32 s55, s55, {16*1152}")
    stamp(6)

    a.lab("L_s3pre")
    OF = 16; AC = 88; BR = 104; XR = 216; WR = 224
    e(f"""
s_cmp_ge_u32 s53, 9
s_cselect_b32 s57, 9, 0
s_cselect_b32 s58, 8, 0
s_sub_u32 s63, s53, s57            ; cb
s_lshl_b32 s60, s26, 4
s_add_u32 s60, s60, s58
s_add_u32 s60, s60, s3             ; tb
v_lshrrev_b32 v2, 2, v13
v_lshl_add_u32 v2, v14, 2, v2      ; rho
v_bfe_u32 v3, v2, 1, 2
v_lshlrev_b32 v2, 7, v2
v_and_b32 v4, 3, v13
v_lshl_add_u32 v2, v4, 3, v2
v_lshlrev_b32 v3, 5, v3
v_add_u32 v8, v2, v3
v_xor_b32 v9, 32, v8
v_xor_b32 v10, 64, v8
v_xor_b32 v11, 96, v8
v_mul_u32_u24 v4, 1152, v13
v_lshl_add_u32 v4, v14, 3, v4
s_mul_i32 s61, s60, {16*1152}
s_lshl_b32 s57, s63, 7
s_add_u32 s61, s61, s57
v_lshlrev_b32 v5, 3, v14
""")
    srd(68, 12, 1152)
    for T in range(4):
        e(f"buffer_load_dwordx2 v[{XR+2*T}:{XR+2*T+1}], v4, s[28:31], s61 offen offset:{32*T}")
        e(f"buffer_load_dwordx2 v[{WR+2*T}:{WR+2*T+1}], v5, s[68:71], s57 offen offset:{32*T}")
    NPRE = 7
    def bread(k):
        r = []
        for T in range(4):
            for hf in range(2):
                d = BR + (k % NPRE)*16 + 4*T + 2*hf
                off = (k*32 + hf*16)*128
                reg = 8+T
                if off > 65535: off -= 65536 - 0; reg = 232+T
                r.append(f"ds_read_b64_tr_b16 v[{d}:{d+1}], v{reg} offset:{off}")
        return r
    for k in range(NPRE):
        for x in bread(k): e(x)
    for T in range(4): e(f"v_add_u32 v{232+T}, 0x10000, v{8+T}")
    e(f"""
v_mov_b32 v2, {L_SW}
ds_read_b32 v236, v2
v_lshlrev_b32 v6, 4, v1
v_mul_u32_u24 v7, 2304, v14
v_lshl_add_u32 v7, v13, 3, v7
s_mul_i32 s62, s60, {16*1152}
s_add_u32 s62, s62, {OB}
""")
    for i in range(16): e(f"v_mov_b32 v{AC+i}, 0")
    e(f"""
s_cmp_lt_u32 s27, 16
s_cbranch_scc1 L_oload
v_mul_u32_u24 v2, 1152, v13
s_mov_b32 s59, 0
L_ohint:
s_sleep 2
buffer_load_dword v3, v2, s[36:39], s62 offen offset:1024 sc1
s_waitcnt vmcnt(0)
v_cmp_ne_u32 vcc, -1, v3
s_cbranch_vccnz L_oload
s_add_u32 s59, s59, 1
s_cmp_lt_u32 s59, {SPIN}
s_cbranch_scc1 L_ohint
L_oload:
s_waitcnt vmcnt(0) lgkmcnt(0)
""")
    stamp(7)
    groups = [[0,1,2,3],[4,5,6,7],[8,9,10,11],[12,13,14,15],[16,17]]
    def oloads(g):
        r = []
        for k in g:
            if k < 16:
                r.append(f"s_add_u32 s57, s62, {k*1152}\n buffer_load_dwordx4 v[{OF+4*k}:{OF+4*k+3}], v6, s[36:39], s57 offen sc1")
            else:
                u = k-16
                r.append(f"s_add_u32 s57, s62, {8*u*1152}\n buffer_load_dwordx2 v[{OF+4*k}:{OF+4*k+1}], v7, s[36:39], s57 offen offset:1024 sc1\n buffer_load_dwordx2 v[{OF+4*k+2}:{OF+4*k+3}], v7, s[36:39], s57 offen offset:{1024+1152} sc1")
        return r
    for g in groups:
        for x in oloads(g): e(x)
    def ocheck(g):
        rs_ = list(range(OF+4*g[0], OF+4*g[-1]+4))
        e(f"v_max3_u32 v2, v{rs_[0]}, v{rs_[1]}, v{rs_[2]}")
        for i in range(3, len(rs_)-1, 2): e(f"v_max3_u32 v2, v2, v{rs_[i]}, v{rs_[i+1]}")
        e(f"v_max_u32 v2, v2, v{rs_[-1]}\n v_cmp_eq_u32 vcc, -1, v2")
    e("s_mov_b32 s59, 0")
    pending = 0
    for gi, g in enumerate(groups):
        e(f"s_waitcnt vmcnt({16-4*gi})")
        ocheck(g)
        e(f"s_cbranch_vccnz L_oretry{gi}")
        a.lab(f"L_ook{gi}")
        for k in g:
            if k >= NPRE:
                later = min(k+NPRE-1, 17) - k
                e(f"s_waitcnt lgkmcnt({min(8*later, 15)})")
            m = []
            for T in range(4):
                b = BR + (k % NPRE)*16 + 4*T
                m.append(f"v_mfma_f32_16x16x32_bf16 v[{AC+4*T}:{AC+4*T+3}], v[{b}:{b+3}], v[{OF+4*k}:{OF+4*k+3}], v[{AC+4*T}:{AC+4*T+3}]")
            r = bread(k+NPRE) if k+NPRE < 18 else []
            for T in range(4):
                e(m[T])
                for x in r[2*T:2*T+2]: e(x)
    stamp(8)
    HP = 104; HF = 112
    for i in range(8): e(f"v_cvt_pk_bf16_f32 v{HP+i}, v{AC+2*i}, v{AC+2*i+1}")
    for i in range(8):
        e(f"v_lshlrev_b32 v{AC+2*i}, 16, v{HP+i}\n v_and_b32 v{AC+2*i+1}, 0xffff0000, v{HP+i}\n v_lshlrev_b32 v{HF+2*i}, 16, v{XR+i}\n v_and_b32 v{HF+2*i+1}, 0xffff0000, v{XR+i}")
    for i in range(8): e(f"v_pk_add_f32 v[{HF+2*i}:{HF+2*i+1}], v[{HF+2*i}:{HF+2*i+1}], v[{AC+2*i}:{AC+2*i+1}]")
    for i in range(8): e(f"v_cvt_pk_bf16_f32 v{HP+i}, v{HF+2*i}, v{HF+2*i+1}")
    e("v_mov_b32 v16, 0\n v_mov_b32 v17, 0\n v_mov_b32 v18, 0\n v_mov_b32 v19, 0\n s_mov_b32 s57, 0x3f803f80")
    for i in range(8):
        e(f"v_dot2c_f32_bf16 v16, s57, v{HP+i}\n v_dot2c_f32_bf16 v17, v{HP+i}, v{HP+i}\n v_dot2c_f32_bf16 v18, v{WR+i}, v{HP+i}")
    for wh in (16, 32):
        for q in range(3): e(f"v_mov_b32 v{20+q}, v{16+q}")
        for q in range(3): e(f"v_permlane{wh}_swap_b32 v{16+q}, v{20+q}")
        for q in range(3): e(f"v_add_f32 v{16+q}, v{16+q}, v{20+q}")
    for q in range(3): e(f"v_min_u32 v{16+q}, -2, v{16+q}")
    e(f"""
s_mul_i32 s62, s60, {9*256}
s_add_u32 s62, s62, {ST}
s_lshl_b32 s57, s63, 8
s_add_u32 s57, s57, s62
s_mov_b64 exec, 0xffff
buffer_store_dwordx4 v[16:19], v6, s[36:39], s57 offen sc1
s_mov_b64 exec, -1
""")
    stamp(9)
    for i in range(8): e(f"v_lshlrev_b32 v{HF+2*i}, 16, v{HP+i}\n v_and_b32 v{HF+2*i+1}, 0xffff0000, v{HP+i}")
    e(f"""
v_lshlrev_b32 v7, 4, v13
s_lshl_b32 s57, s3, 12
s_add_u32 s57, s57, {L_STAGE}
v_lshlrev_b32 v8, 7, v13
v_lshl_add_u32 v8, v14, 3, v8
v_add_u32 v8, s57, v8
v_lshl_add_u32 v9, v1, 4, s57
v_lshrrev_b32 v10, 3, v1
v_mul_u32_u24 v10, 1152, v10
v_and_b32 v11, 7, v1
v_lshl_add_u32 v10, v11, 4, v10
v_lshl_add_u32 v12, s60, 4, v13    ; token
s_mov_b32 s59, 0
s_waitcnt vmcnt(0)
L_c1:
buffer_load_dwordx4 v[20:23], v6, s[36:39], s62 offen sc1
buffer_load_dwordx4 v[24:27], v6, s[36:39], s62 offen offset:1024 sc1
buffer_load_dwordx4 v[28:31], v7, s[36:39], s62 offen offset:2048 sc1
s_waitcnt vmcnt(0)
v_max3_u32 v2, v20, v21, v22
v_max3_u32 v2, v2, v24, v25
v_max3_u32 v2, v2, v26, v28
v_max3_u32 v2, v2, v29, v30
v_cmp_eq_u32 vcc, -1, v2
s_cbranch_vccz L_c1ok
s_add_u32 s59, s59, 1
s_cmp_lt_u32 s59, {SPIN}
s_cbranch_scc1 L_c1
L_c1ok:
""")
    stamp(10)
    for q in range(3): e(f"v_add_f32 v{16+q}, v{20+q}, v{24+q}")
    for wh in (16, 32):
        for q in range(3): e(f"v_mov_b32 v{20+q}, v{16+q}")
        for q in range(3): e(f"v_permlane{wh}_swap_b32 v{16+q}, v{20+q}")
        for q in range(3): e(f"v_add_f32 v{16+q}, v{16+q}, v{20+q}")
    for q in range(3): e(f"v_add_f32 v{16+q}, v{16+q}, v{28+q}")
    inv = f2u(1.0/576)
    e(f"""
v_mul_f32 v16, {inv:#x}, v16        ; mean
v_mul_f32 v17, {inv:#x}, v17
v_fma_f32 v17, -v16, v16, v17       ; var
v_max_f32 v17, 0, v17
v_cvt_pk_bf16_f32 v20, v16, v17
v_lshlrev_b32 v16, 16, v20
v_and_b32 v17, 0xffff0000, v20
v_add_f32 v17, {f2u(1e-5):#x}, v17
v_cvt_pk_bf16_f32 v17, v17, v17
v_and_b32 v17, 0xffff0000, v17
v_sqrt_f32 v17, v17
v_fma_f32 v18, -v16, v236, v18
v_cvt_pk_bf16_f32 v17, v17, v17
v_and_b32 v17, 0xffff0000, v17
v_rcp_f32 v17, v17
v_mul_f32 v18, v18, v17
v_cvt_pk_bf16_f32 v18, v18, v18
v_ashrrev_i32 v20, 31, v18
v_or_b32 v20, 0x80000000, v20
v_xor_b32 v18, v18, v20
v_and_b32 v18, 0xffff0000, v18
v_sub_u32 v20, 2047, v12
v_or_b32 v18, v18, v20              ; key
s_cmp_lg_u32 s63, 0
s_cbranch_scc1 L_nokey
v_lshlrev_b32 v20, 2, v12
s_mov_b32 s57, {KEY}
s_mov_b64 exec, 0xffff
buffer_store_dword v18, v20, s[36:39], s57 offen sc1
s_mov_b64 exec, -1
L_nokey:
""")
    stamp(11)
    NP = 32; NF = 40
    for i in range(8): e(f"v_pk_add_f32 v[{NF+2*i}:{NF+2*i+1}], v[{HF+2*i}:{HF+2*i+1}], v[16:17] op_sel_hi:[1,0] neg_lo:[0,1] neg_hi:[0,1]")
    for i in range(8): e(f"v_cvt_pk_bf16_f32 v{NP+i}, v{NF+2*i}, v{NF+2*i+1}")
    for i in range(8): e(f"v_lshlrev_b32 v{NF+2*i}, 16, v{NP+i}\n v_and_b32 v{NF+2*i+1}, 0xffff0000, v{NP+i}")
    for i in range(8): e(f"v_pk_mul_f32 v[{NF+2*i}:{NF+2*i+1}], v[{NF+2*i}:{NF+2*i+1}], v[16:17] op_sel:[0,1] op_sel_hi:[1,1]")
    for i in range(8): e(f"v_cvt_pk_bf16_f32 v{NP+i}, v{NF+2*i}, v{NF+2*i+1}")
    for T in range(4): e(f"ds_write_b64 v8, v[{NP+2*T}:{NP+2*T+1}] offset:{32*T}")
    for T in range(4): e(f"ds_write_b64 v8, v[{HP+2*T}:{HP+2*T+1}] offset:{2048+32*T}")
    rowmax(20, 18)
    e("v_cmp_eq_u32 vcc, v18, v20\n v_cndmask_b32_e64 v21, v18, 0, vcc")
    rowmax(22, 21)
    e(f"""
v_cmp_gt_u32 vcc, 8, v1
v_cndmask_b32 v20, v22, v20, vcc
v_not_b32 v20, v20
v_and_b32 v20, 15, v20
v_lshlrev_b32 v20, 7, v20
v_lshl_add_u32 v20, v11, 4, v20
s_lshl_b32 s57, s3, 12
s_add_u32 s57, s57, {L_STAGE}
v_add_u32 v20, s57, v20
s_waitcnt lgkmcnt(0)
ds_read_b128 v[24:27], v20
ds_read_b128 v[28:31], v20 offset:2048
v_bfe_u32 v21, v1, 3, 1
v_mul_u32_u24 v21, 2304, v21
v_lshl_add_u32 v21, v11, 4, v21
s_mul_i32 s62, s60, 4608
s_lshl_b32 s57, s63, 7
s_add_u32 s62, s62, s57
s_add_u32 s62, s62, {CAND}
s_waitcnt lgkmcnt(0)
""")
    for q in range(8): e(f"v_min_u32 v{24+q}, -2, v{24+q}")
    e("s_mov_b64 exec, 0xffff\n buffer_store_dwordx4 v[24:27], v21, s[36:39], s62 offen sc1\n s_mov_b64 exec, -1")
    for i in range(8): e(f"v_lshlrev_b32 v{NF+2*i}, 16, v{NP+i}\n v_and_b32 v{NF+2*i+1}, 0xffff0000, v{NP+i}")
    for i in range(8): e(f"v_pk_add_f32 v[{NF+2*i}:{NF+2*i+1}], v[{NF+2*i}:{NF+2*i+1}], v[{HF+2*i}:{HF+2*i+1}]")
    for i in range(8): e(f"v_cvt_pk_bf16_f32 v{NP+i}, v{NF+2*i}, v{NF+2*i+1}")
    for T in range(4): e(f"ds_write_b64 v8, v[{NP+2*T}:{NP+2*T+1}] offset:{32*T}")
    srd(68, 20, 2359296)
    e(f"""
s_waitcnt lgkmcnt(0)
ds_read_b128 v[40:43], v9
ds_read_b128 v[44:47], v9 offset:1024
s_add_u32 s57, s61, {8*1152}
s_waitcnt lgkmcnt(0)
buffer_store_dwordx4 v[40:43], v10, s[68:71], s61 offen sc1
buffer_store_dwordx4 v[44:47], v10, s[68:71], s57 offen sc1
s_waitcnt vmcnt(0)
s_mov_b64 exec, 0xffff
buffer_store_dwordx4 v[28:31], v21, s[36:39], s62 offen offset:1152 sc1
""")
    stamp(12)
    fin()
    for gi, g in enumerate(groups):
        a.lab(f"L_oretry{gi}")
        e(f"s_add_u32 s59, s59, 1\n s_cmp_ge_u32 s59, {SPIN}\n s_cbranch_scc1 L_ook{gi}")
        for x in oloads(g): e(x)
        e("s_waitcnt vmcnt(0)")
        ocheck(g)
        e(f"s_cbranch_vccnz L_oretry{gi}\n s_branch L_ook{gi}")

    a.lab("L_B")
    e(f"""
s_sub_u32 s47, s27, 16             ; h
s_cmp_lg_u32 s3, 0
s_cbranch_scc1 L_B1
v_min_u32 v2, 59, v1
v_mul_u32_u24 v3, 4370, v2
v_lshrrev_b32 v3, 16, v3
v_mul_u32_u24 v4, 15, v3
v_sub_u32 v4, v2, v4
v_mul_u32_u24 v5, 52, v4
v_lshrrev_b32 v5, 8, v5
v_mul_u32_u24 v2, 3456, v3
v_lshl_add_u32 v2, v4, 7, v2
v_lshl_add_u32 v2, v5, 9, v2
v_and_b32 v3, 31, v1
v_mul_u32_u24 v3, 1152, v3
v_lshrrev_b32 v4, 5, v1
v_lshl_add_u32 v3, v4, 7, v3
s_mul_i32 s56, s47, {4*3456}
s_lshl_b32 s57, s46, 9
s_add_u32 s56, s56, s57
s_lshl_b32 s55, s45, 4
s_add_u32 s55, s55, s47
s_mul_i32 s55, s55, {32*1152}
s_waitcnt lgkmcnt(0)
""")
    srd(28, 4, 2359296); srd(32, 6, 1990656)
    for s_ in range(9):
        if s_ % 2 == 0: e(f"buffer_load_dword v6, v3, s[28:31], s55 offen offset:{128*s_}")
        e("buffer_load_dword v6, v2, s[32:35], s56 offen")
        if s_ < 8: e(f"s_add_u32 s56, s56, {64*3456}")
    e("s_branch L_B2")
    a.lab("L_B1")
    e("s_waitcnt lgkmcnt(0)")
    srd(28, 4, 2359296); srd(32, 6, 1990656)
    e(f"""
s_cmp_lg_u32 s3, 1
s_cbranch_scc1 L_B2
s_cmp_lt_u32 s27, 29
s_cbranch_scc1 L_B2
s_getpc_b64 s[40:41]
L_pc:
s_sub_u32 s40, s40, L_pc-{NAME}
s_subb_u32 s41, s41, 0
s_sub_u32 s57, s27, 29
s_lshl_b32 s57, s57, 13
v_lshl_add_u32 v2, v1, 7, s57
v_min_u32 v2, L_codeend-{NAME}-4, v2
global_load_dword v6, v2, s[40:41]
L_B2:
""")
    srd(36, 24, 0x10000000)
    srd(64, 22, 256)
    e(f"""
s_lshl_b32 s48, s26, 4
s_add_u32 s48, s48, s47            ; b (0..127)
v_mov_b32 v8, -1
v_mov_b32 v9, -1
v_mov_b32 v10, -1
v_mov_b32 v11, -1
v_lshlrev_b32 v12, 4, v1
s_lshl_b32 s57, s48, 3
s_add_u32 s57, s57, s3
s_lshl_b32 s57, s57, 12
v_and_b32 v2, 31, v1
v_lshlrev_b32 v2, 2, v2
v_lshrrev_b32 v3, 5, v1
v_mad_u32_u24 v4, v3, s58, v2
s_barrier
""".replace("v_mad_u32_u24 v4, v3, s58, v2", "v_mul_u32_u24 v4, 1152, v3\n v_add_u32 v4, v4, v2\n v_mul_u32_u24 v5, 3456, v3\n v_add_u32 v5, v5, v2"))
    for i in range(4): e(f"buffer_store_dwordx4 v[8:11], v12, s[36:39], s57 offen offset:{1024*i} sc1")
    e(f"s_lshl_b32 s55, s48, 3\n s_add_u32 s55, s55, s3\n s_mul_i32 s56, s55, 2304")
    for j in range(9): e(f"buffer_load_dword v{16+j}, v4, s[28:31], s56 offen offset:{128*j}")
    e(f"""
s_min_u32 s49, s48, 107
s_mul_i32 s50, s49, 2428
s_lshr_b32 s50, s50, 16            ; q
s_mul_i32 s51, s50, 27
s_sub_u32 s51, s49, s51            ; lc
s_mul_i32 s56, s50, 144
s_mul_i32 s57, s3, 18
s_add_u32 s56, s56, s57
s_mul_i32 s56, s56, 3456
s_lshl_b32 s57, s51, 7
s_add_u32 s56, s56, s57
""")
    for j in range(9):
        e(f"buffer_load_dword v{26+j}, v5, s[32:35], s56 offen")
        if j < 8: e(f"s_add_u32 s56, s56, 6912")
    e("s_waitcnt vmcnt(9)")
    for j in range(9): e(f"v_lshlrev_b32 v{36+2*j}, 16, v{16+j}\n v_and_b32 v{37+2*j}, 0xffff0000, v{16+j}")
    e("v_pk_add_f32 v[16:17], v[36:37], v[38:39]")
    for j in range(2, 9): e(f"v_pk_add_f32 v[16:17], v[16:17], v[{36+2*j}:{37+2*j}]")
    e("v_add_f32 v16, v16, v17")
    rowsum(16); xsum(16, 17, 16)
    e(f"v_mul_f32 v16, {inv:#x}, v16\n v_mov_b32 v18, 0\n v_mov_b32 v19, 0")
    for j in range(9): e(f"v_pk_add_f32 v[{36+2*j}:{37+2*j}], v[{36+2*j}:{37+2*j}], v[16:17] op_sel_hi:[1,0] neg_lo:[0,1] neg_hi:[0,1]")
    for j in range(9): e(f"v_pk_fma_f32 v[18:19], v[{36+2*j}:{37+2*j}], v[{36+2*j}:{37+2*j}], v[18:19]")
    e("v_add_f32 v18, v18, v19")
    rowsum(18); xsum(18, 17, 16)
    e(f"""
v_mul_f32 v18, {inv:#x}, v18
v_cvt_pk_bf16_f32 v20, v16, v18
v_lshlrev_b32 v16, 16, v20
v_and_b32 v18, 0xffff0000, v20
v_add_f32 v18, {f2u(1e-5):#x}, v18
v_cvt_pk_bf16_f32 v18, v18, v18
v_and_b32 v18, 0xffff0000, v18
v_sqrt_f32 v18, v18
v_cvt_pk_bf16_f32 v18, v18, v18
v_and_b32 v18, 0xffff0000, v18
v_rcp_f32 v18, v18
v_lshlrev_b32 v20, 2, v3
v_mul_f32_e64 v19, -v16, v18
s_lshl_b32 s56, s55, 3
s_add_u32 s56, s56, {XST}
s_add_u32 s57, s56, 8192
s_mov_b32 s58, 1
s_mov_b32 s59, 1
s_mov_b64 exec, s[58:59]
buffer_store_dword v18, v20, s[36:39], s56 offen sc1
buffer_store_dword v19, v20, s[36:39], s57 offen sc1
s_mov_b64 exec, -1
s_waitcnt vmcnt(2)
""")
    for j in range(9): e(f"v_lshlrev_b32 v{36+2*j}, 16, v{26+j}\n v_and_b32 v{37+2*j}, 0xffff0000, v{26+j}")
    e("v_pk_add_f32 v[16:17], v[36:37], v[38:39]")
    for j in range(2, 9): e(f"v_pk_add_f32 v[16:17], v[16:17], v[{36+2*j}:{37+2*j}]")
    e(f"""
s_lshl_b32 s56, s3, 9
s_add_u32 s56, s56, {F_RED}
v_lshl_add_u32 v20, v1, 3, s56
ds_write_b64 v20, v[16:17]
s_waitcnt lgkmcnt(0)
s_barrier
s_cmp_lg_u32 s3, 0
s_cbranch_scc1 L_B3
v_lshlrev_b32 v20, 2, v1
v_add_u32 v21, {F_RED}, v20
""")
    for i in range(16): e(f"ds_read_b32 v{36+i}, v21 offset:{256*i}")
    e("s_waitcnt lgkmcnt(0)")
    for st in (8, 4, 2):
        for i in range(0, st, 2): e(f"v_pk_add_f32 v[{36+i}:{37+i}], v[{36+i}:{37+i}], v[{36+st+i}:{37+st+i}]")
    e(f"""
v_add_f32 v36, v36, v37
s_mul_i32 s56, s50, 6912
s_lshl_b32 s57, s51, 8
s_add_u32 s56, s56, s57
s_add_u32 s56, s56, {CS}
buffer_store_dword v36, v20, s[36:39], s56 offen sc1
L_B3:
s_waitcnt vmcnt(0)
s_barrier
s_cmp_lg_u32 s3, 0
s_cbranch_scc1 L_B4
v_mov_b32 v20, 1
s_lshl_b32 s56, s48, 1
v_mov_b32 v21, s56
s_mov_b64 exec, 1
buffer_store_short v20, v21, s[64:67], 0 offen sc1
s_mov_b64 exec, -1
L_B4:
""")
    stamp(1)
    e("s_cmp_lt_u32 s27, 25\n s_cbranch_scc1 L_F")
    srd(68, 8, 663552)
    e(f"""
s_sub_u32 s56, s27, 25
s_lshl_b32 s56, s56, 3
s_add_u32 s56, s56, s3
s_lshl_b32 s56, s56, 13
v_lshlrev_b32 v2, 7, v1
buffer_load_dword v6, v2, s[68:71], s56 offen
s_add_u32 s56, s56, {56*8192}
buffer_load_dword v6, v2, s[68:71], s56 offen
s_cmp_lt_u32 s27, 27
s_cbranch_scc1 L_HS3
""")
    fin()
    a.lab("L_HS3")
    e("s_sub_u32 s53, s27, 9\n v_lshlrev_b32 v28, 2, v1")
    flags_wait("h", False)
    e("s_cmp_lt_u32 s3, 4\n s_cbranch_scc1 L_HS3b")
    wo_setup(); wo_dma("h")
    e("s_cmp_lg_u32 s54, 3\n s_cbranch_scc1 L_HS3b")
    sw_calc()
    a.lab("L_HS3b")
    e("s_waitcnt vmcnt(0) lgkmcnt(0)\n s_barrier\n s_branch L_s3pre")

    a.lab("L_F")
    srd(32, 14, 5308416); srd(68, 16, 5308416)
    e(f"""
s_mul_i32 s48, s26, 9
s_add_u32 s48, s48, s47            ; fi
v_lshrrev_b32 v2, 3, v1            ; rr
v_and_b32 v3, 7, v1
v_xor_b32 v3, v3, v2
v_lshlrev_b32 v3, 4, v3
v_lshrrev_b32 v4, 2, v2
v_and_b32 v5, 3, v2
v_lshl_add_u32 v4, v4, 3, v5
s_and_b32 s56, s54, 1
s_lshl_b32 s56, s56, 4
s_lshr_b32 s57, s54, 1
s_lshl_b32 s57, s57, 2
s_add_u32 s56, s56, s57
v_add_u32 v4, s56, v4              ; k local
v_mul_u32_u24 v4, 9216, v4
v_add_u32 v4, v4, v3
s_lshl_b32 s56, s48, 7
s_lshl_b32 s57, s54, 10
s_cmp_lt_u32 s3, 4
s_cbranch_scc1 L_Fg
s_mov_b32 s32, s16
s_mov_b32 s33, s17
s_add_u32 s57, s57, {F_WU}
L_Fg:
s_mov_b32 s58, 0
L_Fl:
s_mov_b32 m0, s57
s_add_u32 s57, s57, 4096
buffer_load_dwordx4 v4, s[32:35], s56 offen nt lds
s_add_u32 s56, s56, {32*9216}
s_add_u32 s58, s58, 1
s_cmp_lt_u32 s58, 18
s_cbranch_scc1 L_Fl
v_lshrrev_b32 v2, 2, v13
v_lshl_add_u32 v2, v14, 2, v2      ; rho
v_and_b32 v3, 7, v2
v_xor_b32 v3, s3, v3
v_lshlrev_b32 v3, 4, v3
v_lshl_add_u32 v3, v2, 7, v3
v_and_b32 v4, 1, v13
v_lshl_add_u32 v3, v4, 3, v3
v_bfe_u32 v4, v13, 1, 1
s_mov_b32 s56, {F_WU}
v_mad_u32_u24 v5, v4, s56, v3
v_add_u32 v6, 0x9000, v5
s_waitcnt vmcnt(0)
s_barrier
""")
    GW = 16; DW = 88
    for k in range(18):
        for hf in range(2):
            off = (k*32+hf*16)*128
            reg = 5
            if k >= 9: off -= 0x9000; reg = 6
            e(f"ds_read_b64_tr_b16 v[{GW+4*k+2*hf}:{GW+4*k+2*hf+1}], v{reg} offset:{off}")
    srd(32, 18, 5308416)
    e(f"""
s_and_b32 s56, s3, 1
s_lshl_b32 s56, s56, 4
s_bfe_u32 s57, s3, 0x10001
s_lshl_b32 s57, s57, 2
s_add_u32 s56, s56, s57
s_lshr_b32 s57, s3, 2
s_lshl_b32 s57, s57, 5
s_add_u32 s56, s56, s57
s_lshl_b32 s57, s48, 6
s_add_u32 s56, s56, s57
s_mul_i32 s56, s56, 1152
s_mul_i32 s57, s3, 9216
v_lshlrev_b32 v2, 4, v1
v_lshrrev_b32 v3, 5, v1
v_mul_u32_u24 v3, 4608, v3
v_add_u32 v3, v3, v2
s_waitcnt lgkmcnt(0)
s_barrier
""")
    for t in range(9):
        e(f"s_add_u32 m0, s57, {t*1024}\n s_add_u32 s58, s56, {t*1024 + (4608 if t > 4 else 0)}\n buffer_load_dwordx4 v{3 if t == 4 else 2}, s[32:35], s58 offen nt lds")
    e(f"""
v_lshrrev_b32 v2, 2, v13
v_lshl_add_u32 v2, v14, 2, v2
v_mul_u32_u24 v2, 1152, v2
v_and_b32 v3, 3, v13
v_lshl_add_u32 v2, v3, 3, v2
s_lshl_b32 s56, s3, 5
v_add_u32 v5, s56, v2
s_min_u32 s56, s3, 3
s_lshl_b32 s56, s56, 5
v_add_u32 v6, s56, v2
v_lshlrev_b32 v251, 2, v1
""")
    flags_wait("f", False, 250, 251)
    e("s_barrier")
    for i in range(5):
        for k in range(2):
            for hf in range(2):
                d = DW + 8*i + 4*k + 2*hf
                e(f"ds_read_b64_tr_b16 v[{d}:{d+1}], v{6 if i == 4 else 5} offset:{(k*32+hf*16)*1152 + 256*i}")
    e(f"""
v_lshlrev_b32 v7, 4, v0            ; tid*16
v_and_b32 v2, 1, v13
v_mul_u32_u24 v8, 1168, v2
v_lshl_add_u32 v8, v14, 4, v8
v_add_u32 v8, {F_HN}, v8
v_lshlrev_b32 v9, 7, v2
v_lshl_add_u32 v10, v14, 4, v9
v_add_u32 v10, {F_ACT}, v10
v_lshl_add_u32 v9, v14, 3, v9
s_lshl_b32 s56, s3, 4
s_add_u32 s56, s56, {F_ACT}
v_add_u32 v9, s56, v9
v_mul_u32_u24 v11, 2304, v2
v_lshl_add_u32 v11, v14, 4, v11    ; y voffset
s_lshl_b32 s56, s3, 5
s_add_u32 s56, s56, {F_KEYS}
v_lshl_add_u32 v12, v14, 3, s56
v_add_u32 v15, {F_KEYS}, v251
v_cmp_le_u32 vcc, 72, v0
v_cndmask_b32_e64 v128, 0, 1, vcc
v_mul_u32_u24 v129, 1152, v128
v_sub_u32 v129, v7, v129
v_lshl_add_u32 v130, v128, 4, v7
v_add_u32 v130, {F_HN}, v130
s_mul_i32 s60, s48, 4608
s_lshl_b32 s56, s3, 6
s_add_u32 s60, s60, s56
s_add_u32 s60, s60, {YP}
s_mov_b32 s57, {KEY}
s_mov_b32 s59, 0
s_waitcnt lgkmcnt(0)
""")
    stamp(2)
    e(f"""
L_k0:
buffer_load_dwordx4 v[132:135], v7, s[36:39], s57 offen sc1
s_waitcnt vmcnt(0)
v_max3_u32 v2, v132, v133, v134
v_max_u32 v2, v2, v135
v_cmp_eq_u32 vcc, -1, v2
s_cbranch_vccz L_k1
s_sleep 1
s_add_u32 s59, s59, 1
s_cmp_lt_u32 s59, {SPIN}
s_cbranch_scc1 L_k0
L_k1:
""")
    stamp(3)
    e("""
v_max_u32 v136, v132, v133
v_min_u32 v137, v132, v133
v_max_u32 v138, v134, v135
v_min_u32 v139, v134, v135
v_min_u32 v3, v136, v138
v_max3_u32 v3, v3, v137, v139
""")
    rowmax(136, 2)
    e("v_cmp_eq_u32 vcc, v2, v136\n v_cndmask_b32 v2, v2, v3, vcc")
    rowmax(137, 2)
    e("ds_write_b64 v12, v[136:137]\n s_waitcnt lgkmcnt(0)\n s_barrier\n ds_read_b32 v2, v15\n s_waitcnt lgkmcnt(0)")
    def wavemax(sd, src):
        rowmax(136, src)
        e(f"v_readlane_b32 s{sd}, v136, 0\n v_readlane_b32 s56, v136, 16\n v_readlane_b32 s57, v136, 32\n v_readlane_b32 s58, v136, 48")
        e(f"s_max_u32 s{sd}, s{sd}, s56\n s_max_u32 s57, s57, s58\n s_max_u32 s{sd}, s{sd}, s57")
    wavemax(50, 2)
    e("v_cmp_ne_u32 vcc, s50, v2\n v_cndmask_b32 v2, 0, v2, vcc")
    wavemax(51, 2)
    e(f"""
s_and_b32 s52, s50, 0x7ff
s_sub_u32 s52, 2047, s52           ; token 0
s_and_b32 s53, s51, 0x7ff
s_sub_u32 s53, 2047, s53           ; token 1
s_lshr_b32 s56, s52, 4
s_lshr_b32 s57, s53, 4
s_cmp_eq_u32 s56, s57
s_cselect_b32 s58, 2304, 0
s_mul_i32 s61, s56, 4608
s_mul_i32 s62, s57, 4608
s_add_u32 s62, s62, s58
s_cmp_ge_u32 s3, 3
s_cbranch_scc1 L_f2
s_sub_u32 s56, s62, s61
v_mul_lo_u32 v2, v128, s56
v_add_u32 v2, v2, v129
v_add_u32 v2, s61, v2
v_cmp_gt_u32 vcc, 144, v0
s_mov_b64 exec, vcc
s_mov_b32 s57, {CAND}
s_mov_b32 s59, 0
L_f0:
buffer_load_dwordx4 v[132:135], v2, s[36:39], s57 offen sc1
s_waitcnt vmcnt(0)
v_max3_u32 v3, v132, v133, v134
v_max_u32 v3, v3, v135
v_cmp_eq_u32 vcc, -1, v3
s_cbranch_vccz L_f1
s_add_u32 s59, s59, 1
s_cmp_lt_u32 s59, {SPIN}
s_cbranch_scc1 L_f0
L_f1:
ds_write_b128 v130, v[132:135]
s_mov_b64 exec, -1
s_waitcnt lgkmcnt(0)
L_f2:
s_barrier
""")
    stamp(4)
    HB = 140
    for k in range(18): e(f"ds_read_b128 v[{HB+4*k}:{HB+4*k+3}], v8 offset:{64*k}")
    for k in range(18):
        e(f"s_waitcnt lgkmcnt({min(17-k,15)})")
        e(f"v_mfma_f32_16x16x32_bf16 v[132:135], v[{GW+4*k}:{GW+4*k+3}], v[{HB+4*k}:{HB+4*k+3}], " + ("0" if k == 0 else "v[132:135]"))
    e("""
v_cvt_pk_bf16_f32 v136, v132, v133
v_cvt_pk_bf16_f32 v137, v134, v135
v_mov_b32 v138, v136
v_mov_b32 v139, v137
v_permlane32_swap_b32 v136, v138
v_permlane32_swap_b32 v137, v139
""")
    for h in range(2):
        e(f"v_lshlrev_b32 v{140+2*h}, 16, v{136+h}\n v_and_b32 v{141+2*h}, 0xffff0000, v{136+h}\n v_lshlrev_b32 v{144+2*h}, 16, v{138+h}\n v_and_b32 v{145+2*h}, 0xffff0000, v{138+h}")
    for q in range(4): e(f"v_mul_f32 v{148+q}, {f2u(-LOG2E):#x}, v{140+q}")
    for q in range(4): e(f"v_exp_f32 v{148+q}, v{148+q}")
    for q in range(4): e(f"v_add_f32 v{148+q}, 1.0, v{148+q}")
    for q in range(4): e(f"v_rcp_f32 v{148+q}, v{148+q}")
    for q in range(4): e(f"v_mul_f32 v{140+q}, v{140+q}, v{148+q}")
    for h in range(2): e(f"v_cvt_pk_bf16_f32 v{136+h}, v{140+2*h}, v{141+2*h}")
    for h in range(2): e(f"v_lshlrev_b32 v{140+2*h}, 16, v{136+h}\n v_and_b32 v{141+2*h}, 0xffff0000, v{136+h}")
    for q in range(4): e(f"v_mul_f32 v{140+q}, v{140+q}, v{144+q}")
    for h in range(2): e(f"v_cvt_pk_bf16_f32 v{136+h}, v{140+2*h}, v{141+2*h}")
    e(f"""
s_mov_b64 exec, 0x30003
ds_write_b64 v9, v[136:137]
s_mov_b64 exec, -1
s_waitcnt lgkmcnt(0)
s_barrier
ds_read_b128 v[140:143], v10
ds_read_b128 v[144:147], v10 offset:64
s_waitcnt lgkmcnt(0)
""")
    for k in range(2):
        for i in range(5):
            c = 148 + 4*i
            e(f"v_mfma_f32_16x16x32_bf16 v[{c}:{c+3}], v[{DW+8*i+4*k}:{DW+8*i+4*k+3}], v[{140+4*k}:{143+4*k}], " + ("0" if k == 0 else f"v[{c}:{c+3}]"))
    e("s_mov_b32 s56, 0x30003\n s_mov_b32 s57, 0x30003\n s_mov_b64 exec, s[56:57]")
    for i in range(5):
        c = 148 + 4*i
        if i == 4: e("s_cmp_ge_u32 s3, 4\n s_cbranch_scc1 L_y1")
        for q in range(4): e(f"v_min_u32 v{c+q}, -2, v{c+q}")
        e(f"buffer_store_dwordx4 v[{c}:{c+3}], v11, s[36:39], s60 offen offset:{512*i} sc1")
    a.lab("L_y1")
    e("s_mov_b64 exec, -1")
    stamp(5)
    e("s_cmp_lg_u32 s3, 7\n s_cbranch_scc1 L_fin\n s_cmp_ge_u32 s48, 36\n s_cbranch_scc1 L_fin")
    e(f"""
s_cmp_ge_u32 s48, 18
s_cselect_b32 s50, s51, s50
s_cselect_b32 s52, s53, s52
s_cselect_b32 s61, s62, s61
s_cselect_b32 s56, 18, 0
s_sub_u32 s56, s48, s56
s_lshl_b32 s56, s56, 6
s_add_u32 s61, s61, s56
s_add_u32 s61, s61, {CAND}
s_mul_i32 s52, s52, 1152
s_add_u32 s52, s52, s56
s_lshl_b32 s62, s48, 7
s_add_u32 s62, s62, {YP}
v_and_b32 v2, 7, v1
v_lshlrev_b32 v4, 3, v2
v_lshrrev_b32 v3, 3, v1
v_mul_u32_u24 v3, 4608, v3
v_lshl_add_u32 v3, v2, 4, v3
s_ashr_i32 s56, s50, 31
s_not_b32 s56, s56
s_or_b32 s56, s56, 0x80000000
s_xor_b32 s56, s56, s50
s_and_b32 s56, s56, 0xffff0000
v_mov_b32 v5, {f2u(-LOG2E):#x}
v_mul_f32 v5, s56, v5
v_exp_f32 v5, v5
v_add_f32 v5, 1.0, v5
v_rcp_f32 v5, v5
v_cvt_pk_bf16_f32 v5, v5, v5
v_and_b32 v5, 0xffff0000, v5
s_mov_b32 s59, 0
s_waitcnt vmcnt(0)
L_d0:
s_mov_b32 s57, s62
""")
    for i in range(9):
        e(f"buffer_load_dwordx4 v[{16+4*i}:{19+4*i}], v3, s[36:39], s57 offen sc1")
        if i < 8: e(f"s_add_u32 s57, s57, {8*4608}")
    e("buffer_load_dwordx2 v[52:53], v4, s[36:39], s61 offen sc1\n buffer_load_dwordx2 v[54:55], v4, s[36:39], s61 offen offset:1152 sc1\n s_waitcnt vmcnt(0)")
    e("v_max3_u32 v2, v16, v17, v18")
    for i in range(19, 55, 2): e(f"v_max3_u32 v2, v2, v{i}, v{i+1}")
    e(f"""
v_max_u32 v2, v2, v55
v_cmp_eq_u32 vcc, -1, v2
s_cbranch_vccz L_d1
s_add_u32 s59, s59, 1
s_cmp_lt_u32 s59, {SPIN}
s_cbranch_scc1 L_d0
L_d1:
""")
    stamp(6)
    for st in (16, 8, 4):
        for i in range(0, st, 2): e(f"v_pk_add_f32 v[{16+i}:{17+i}], v[{16+i}:{17+i}], v[{16+st+i}:{17+st+i}]")
    e("v_pk_add_f32 v[16:17], v[16:17], v[48:49]\n v_pk_add_f32 v[18:19], v[18:19], v[50:51]")
    for q in range(4): e(f"v_add_f32_dpp v{16+q}, v{16+q}, v{16+q} row_ror:8 row_mask:0xf bank_mask:0xf")
    for wh in (16, 32):
        for q in range(4): e(f"v_mov_b32 v{20+q}, v{16+q}")
        for q in range(4): e(f"v_permlane{wh}_swap_b32 v{16+q}, v{20+q}")
        for q in range(4): e(f"v_add_f32 v{16+q}, v{16+q}, v{20+q}")
    def rnd4():
        for h in range(2): e(f"v_cvt_pk_bf16_f32 v{24+h}, v{16+2*h}, v{17+2*h}")
        for h in range(2): e(f"v_lshlrev_b32 v{16+2*h}, 16, v{24+h}\n v_and_b32 v{17+2*h}, 0xffff0000, v{24+h}")
    rnd4()
    for q in range(4): e(f"v_mul_f32 v{16+q}, v{16+q}, v5")
    for src in (52, 54):
        rnd4()
        for h in range(2): e(f"v_lshlrev_b32 v{20+2*h}, 16, v{src+h}\n v_and_b32 v{21+2*h}, 0xffff0000, v{src+h}")
        for q in range(4): e(f"v_add_f32 v{16+q}, v{16+q}, v{20+q}")
    for h in range(2): e(f"v_cvt_pk_bf16_f32 v{24+h}, v{16+2*h}, v{17+2*h}")
    srd(68, 20, 2359296)
    e("s_mov_b64 exec, 0xff\n buffer_store_dwordx2 v[24:25], v4, s[68:71], s52 offen sc1")
    stamp(7)
    a.lab("L_fin")
    fin()
    a.lab("L_end")
    e("s_endpgm")
    a.lab("L_codeend")

    lines, n = hazard.fix(a.L)
    import os
    ref = "sequential_preLN__linear_attn_block__moe_arch_mod__prompt.s.ref"
    hdr = open(ref).read().split("; @launch")[0] if os.path.exists(ref) else ""
    hdr += f"""; @launch grid=(256,1,1) block=(512,1,1) lds=163840
.amdgcn_target "amdgcn-amd-amdhsa--gfx950"
.text
.globl {NAME}
.p2align 8
.type {NAME},@function
"""
    tail = f"""
.section .rodata,"a"
.p2align 6
.amdhsa_kernel {NAME}
  .amdhsa_next_free_vgpr 256
  .amdhsa_next_free_sgpr 102
  .amdhsa_accum_offset 256
  .amdhsa_group_segment_fixed_size 0
  .amdhsa_kernarg_size 88
  .amdhsa_user_sgpr_count 2
  .amdhsa_user_sgpr_kernarg_segment_ptr 1
  .amdhsa_system_sgpr_workgroup_id_x 1
.end_amdhsa_kernel
"""
    return hdr + "\n".join(lines) + "\n" + tail

if __name__ == "__main__":
    assert all((n*1821)>>16 == n//36 for n in range(108))
    assert all((n*13108)>>16 == n//5 for n in range(192))
    assert all((n*2428)>>16 == n//27 for n in range(108))
    assert all((n*4370)>>16 == n//15 for n in range(60))
    print(gen(stamps=len(sys.argv) > 1))
```

```python
import sys, struct
from asmlib import *
import hazard

NAME = "sequential_preLN__linear_attn_block__moe_arch_mod__prompt_kernel"
KVP = 0
OB  = KVP + 16*8*3072
ST  = OB + 128*16*1152
KEY = ST + 128*9*256
CAND = KEY + 8192
YP  = CAND + 128*2*2304
assert YP + 72*4608 <= 4<<20
XST = 4<<20
CS  = XST + 32768
assert CS + 64*3840 <= XST + 256*2048
TS_OFF = 0x8000000
XS = 32768; STG = XS + 16384; NBUF = 3
L_WO = 0; L_KVRED = 73728; L_PQ = 106496
L_RS = 147456; L_MRS = L_RS + 1024; L_CS = L_MRS + 1024; L_KT = L_CS + 1024; L_SW = L_KT + 1536
L_STAGE = L_KVRED
L_WR = L_SW + 64
L_XT = L_PQ + 24576
assert L_XT + 16384 == L_RS
F_WG = 0; F_WU = 73728; F_WD = 0; F_HN = 147456; F_ACT = F_HN + 2560; F_KEYS = F_ACT + 256; F_RED = F_KEYS + 256
SPIN = 1 << 17
def f2u(x): return struct.unpack("<I", struct.pack("<f", x))[0]
LOG2E = 1.4426950408889634

def gen(stamps=False, owait=0, await_=1, cwait=1, dwait=1, rflag='sc1'):
    a = Asm()
    e = a.e
    def stamp(i):
        if stamps: e(f"s_memrealtime s[{72+2*i}:{73+2*i}]")
    def fin():
        if stamps:
            e("s_waitcnt vmcnt(0) lgkmcnt(0)")
            e("s_mov_b64 exec, -1")
            e(f"s_lshl_b32 s44, s2, 3\n s_add_u32 s44, s44, s3\n s_lshl_b32 s44, s44, 6\n s_add_u32 s44, s44, {TS_OFF}\n v_mov_b32 v2, 0")
            for i in range(15):
                e(f"v_mov_b32 v3, s{72+2*i}\n buffer_store_dword v3, v2, s[36:39], s44 offen offset:{4*i}")
        e("s_endpgm")
    def srd(d, p, n):
        e(f"s_mov_b32 s{d}, s{p}\n s_mov_b32 s{d+1}, s{p+1}\n s_mov_b32 s{d+2}, {n}\n s_mov_b32 s{d+3}, 0x20000")
    def rowmax(d, s):
        e(f"v_max_u32_dpp v{d}, v{s}, v{s} quad_perm:[1,0,3,2] row_mask:0xf bank_mask:0xf")
        e(f"v_max_u32_dpp v{d}, v{d}, v{d} quad_perm:[2,3,0,1] row_mask:0xf bank_mask:0xf")
        e(f"v_max_u32_dpp v{d}, v{d}, v{d} row_half_mirror row_mask:0xf bank_mask:0xf")
        e(f"v_max_u32_dpp v{d}, v{d}, v{d} row_mirror row_mask:0xf bank_mask:0xf")
    def rowsum(d):
        for m in ("quad_perm:[1,0,3,2]", "quad_perm:[2,3,0,1]", "row_half_mirror", "row_mirror"):
            e(f"v_add_f32_dpp v{d}, v{d}, v{d} {m} row_mask:0xf bank_mask:0xf")
    def xsum(d, t, which, op="v_add_f32"):
        e(f"v_mov_b32 v{t}, v{d}\n v_permlane{which}_swap_b32 v{d}, v{t}\n {op} v{d}, v{d}, v{t}")

    a.lab(NAME)
    e("""
s_load_dwordx16 s[4:19], s[0:1], 0
s_load_dwordx4 s[20:23], s[0:1], 64
s_load_dwordx2 s[24:25], s[0:1], 80
""")
    if stamps:
        for i in range(1, 15): e(f"s_mov_b64 s[{72+2*i}:{73+2*i}], 0")
    stamp(0)
    e(f"""
v_lshrrev_b32 v2, 6, v0
v_and_b32 v1, 63, v0
s_cmp_ge_u32 s2, 256
v_readfirstlane_b32 s3, v2
s_cbranch_scc1 L_end
s_and_b32 s26, s2, 7
s_lshr_b32 s27, s2, 3          ; slot
s_lshr_b32 s45, s26, 1         ; rbg
s_and_b32 s46, s2, 1           ; half
v_and_b32 v13, 15, v1
v_lshrrev_b32 v14, 4, v1
s_and_b32 s54, s3, 3           ; w
s_cmp_ge_u32 s27, 16
s_cbranch_scc1 L_B
s_and_b32 s47, s27, 7
s_lshl_b32 s48, s46, 3
s_add_u32 s48, s48, s47        ; hp
s_lshr_b32 s49, s27, 3
s_lshl_b32 s50, s45, 1
s_add_u32 s50, s50, s49        ; rb (0..7)
s_mul_i32 s51, s48, 72
s_and_b32 s52, s51, 8
s_and_b32 s51, s51, -16        ; a0
s_mov_b32 s53, s27
s_cmp_lt_u32 s3, 4
s_cbranch_scc1 L_compute
""")
    e(f"""
s_setprio 2
s_lshl_b32 s55, s50, 5
s_add_u32 s55, s55, s54
s_lshl_b32 s55, s55, 3
v_lshrrev_b32 v2, 3, v1
v_add_u32 v2, s55, v2
v_mul_u32_u24 v16, 1152, v2
s_and_b32 s56, s54, 1
s_lshl_b32 s57, s56, 2
v_add_u32 v3, s57, v14
v_and_b32 v2, 7, v1
v_xor_b32 v2, v2, v3
v_lshl_add_u32 v16, v2, 4, v16
v_lshrrev_b32 v2, 1, v13
v_xor_b32 v2, v2, v3
v_and_b32 v3, 1, v1
v_lshl_add_u32 v2, v2, 1, v3
v_min_u32 v2, 14, v2
v_mul_u32_u24 v3, 52, v2
v_lshrrev_b32 v3, 8, v3
v_lshlrev_b32 v2, 4, v2
v_xor_b32 v15, 1, v3
v_lshrrev_b32 v4, 1, v3
v_sub_u32 v15, v15, v4
v_mul_u32_u24 v15, 1152, v15
v_mul_u32_u24 v3, 80, v3
v_sub_u32 v2, v2, v3
s_lshl_b32 s55, s54, 3
v_add_u32 v3, s55, v14
v_mul_u32_u24 v3, 3456, v3
v_add3_u32 v17, v2, v3, v15
s_lshl_b32 s41, s54, 10
s_mov_b32 s55, 0
s_mov_b32 s56, s51
s_mov_b32 s43, 0
s_mov_b32 s44, -1
s_mov_b32 s30, 2359296
s_mov_b32 s31, 0x20000
s_mov_b32 s34, 1990656
s_mov_b32 s35, 0x20000
s_waitcnt lgkmcnt(0)
s_mov_b32 s28, s4
s_mov_b32 s29, s5
s_mov_b32 s32, s6
s_mov_b32 s33, s7
""")
    a.lab("L_hloop")
    e("s_mov_b32 s57, s55")
    for i in range(8):
        if i < 4:
            e(f"s_add_u32 m0, s41, {XS + i*4096}\n s_add_u32 s58, s56, {((i>>1)*32 + (i&1)*4)*3456}")
            e("buffer_load_dwordx4 v17, s[32:35], s58 offen lds")
        e(f"s_add_u32 m0, s41, {i*4096}")
        if i: e(f"s_add_u32 s57, s57, {2*18432}")
        e("buffer_load_dwordx4 v16, s[28:31], s57 offen lds")
    e(f"""
s_add_u32 s55, s55, 128
s_add_u32 s56, s56, {64*3456}
s_add_u32 s43, s43, 1
s_add_u32 s41, s41, {STG}
s_cmp_eq_u32 s43, {NBUF}
s_cselect_b32 s57, {NBUF*STG}, 0
s_cselect_b32 s43, 0, s43
s_sub_u32 s41, s41, s57
s_add_u32 s44, s44, 1
s_cmp_eq_u32 s44, 0
s_cbranch_scc1 L_hloop
s_cmp_eq_u32 s44, 8
s_cbranch_scc1 L_htail
s_waitcnt vmcnt(12)
s_barrier
s_cmp_lg_u32 s44, 2
s_cbranch_scc1 L_hloop
""")
    e("s_setprio 0")
    e(f"""
v_lshl_add_u32 v2, s54, 6, v1      ; n = 64w + lane
s_lshl_b32 s57, s50, 10
s_lshl_b32 s60, s46, 14
s_add_u32 s60, s60, s57
s_add_u32 s60, s60, {XST}
v_lshlrev_b32 v18, 2, v2
v_min_u32 v3, 107, v2
v_mul_u32_u24 v4, 1821, v3
v_lshrrev_b32 v4, 16, v4           ; sec = c/36
v_xor_b32 v5, 1, v4
v_lshrrev_b32 v6, 1, v4
v_sub_u32 v5, v5, v6
v_mul_u32_u24 v5, 320, v5
v_mul_u32_u24 v4, 36, v4
v_sub_u32 v3, v3, v4
v_add_u32 v3, v3, v5
v_lshlrev_b32 v19, 2, v3
s_mul_i32 s61, s48, 144
s_lshl_b32 s57, s46, 10
s_sub_u32 s61, s61, s57
s_mul_i32 s57, s26, {8*3840}
s_add_u32 s61, s61, s57
s_add_u32 s61, s61, {CS}
""")
    e(f"""
v_cmp_gt_u32 vcc, 190, v2
v_cndmask_b32 v3, 0, v2, vcc       ; gamma or 0
v_cndmask_b32 v23, 0, -1, vcc
v_mov_b32 v24, v23
v_mul_u32_u24 v4, 13108, v3
v_lshrrev_b32 v4, 16, v4           ; col
v_mul_u32_u24 v5, 5, v4
v_sub_u32 v5, v3, v5               ; i
v_cmp_le_u32 vcc, 18, v4
v_cndmask_b32 v6, 0, 1, vcc        ; head for col<36
v_cmp_le_u32 vcc, 36, v4
v_subrev_u32 v7, 36, v4
v_cndmask_b32 v6, v6, v7, vcc      ; head
v_cndmask_b32 v4, v4, 36, vcc      ; e (36 = ones column)
v_lshl_add_u32 v7, v6, 2, v5       ; delta = i + 4*head
v_add_u32 v4, 72, v4               ; tile column index 72+e
v_lshrrev_b32 v8, 4, v4
v_subrev_u32 v8, 4, v8             ; TB-4
v_and_b32 v4, 15, v4               ; lane col
v_lshrrev_b32 v9, 2, v7            ; TA
v_mad_u32_u24 v8, v9, 3, v8
v_lshrrev_b32 v10, 1, v9
v_sub_u32 v8, v8, v10
v_and_b32 v9, 3, v7
v_lshl_add_u32 v4, v9, 4, v4
v_lshlrev_b32 v4, 4, v4
v_lshl_add_u32 v22, v8, 10, v4
v_add_u32 v22, {L_KVRED}, v22      ; lds source
v_cmp_eq_u32 vcc, 4, v7
v_cndmask_b32 v8, -1, 0, vcc       ; 0 when delta==4
v_subrev_u32 v9, 1, v6             ; head0: -1, head1: 0
v_or_b32 v9, v9, v8
v_and_b32 v23, v23, v9             ; lo mask
v_sub_u32 v9, 0, v6
v_or_b32 v9, v9, v8
v_and_b32 v24, v24, v9             ; hi mask
v_lshlrev_b32 v25, 4, v2           ; gamma*16
v_lshlrev_b32 v26, 3, v2
v_add_u32 v26, {L_KT}, v26
s_mul_i32 s62, s48, {8*3072}       ; KVP base of this hp
""".replace("v_cndmask_b32 v23, 0, -1, vcc", "v_cndmask_b32_e64 v23, 0, -1, vcc").replace("v_cndmask_b32 v6, 0, 1, vcc", "v_cndmask_b32_e64 v6, 0, 1, vcc").replace("v_cndmask_b32 v4, v4, 36, vcc", "v_cndmask_b32_e64 v4, v4, 36, vcc").replace("v_cndmask_b32 v8, -1, 0, vcc", "v_cndmask_b32_e64 v8, -1, 0, vcc"))
    def wo_setup():
        e(f"""
s_cmp_ge_u32 s53, 9
s_cselect_b32 s57, 9, 0
s_sub_u32 s63, s53, s57            ; cb
v_lshrrev_b32 v2, 3, v1            ; rr
v_and_b32 v3, 7, v1
v_bfe_u32 v4, v1, 4, 2
v_lshlrev_b32 v4, 1, v4
v_xor_b32 v3, v3, v4
v_lshlrev_b32 v3, 4, v3
s_lshl_b32 s57, s63, 7
v_add_u32 v3, s57, v3
v_lshrrev_b32 v4, 2, v2
v_and_b32 v5, 3, v2
v_mad_u32_u24 v6, v4, 10, v5
s_and_b32 s57, s54, 1
s_mul_i32 s58, s57, 18
s_lshr_b32 s59, s54, 1
s_lshl_b32 s42, s59, 2
s_add_u32 s58, s58, s42
v_add_u32 v6, s58, v6
v_mul_u32_u24 v6, 1152, v6
v_add_u32 v20, v6, v3
v_mul_u32_u24 v4, 72, v4
v_bfe_u32 v5, v2, 1, 1
v_mad_u32_u24 v4, v5, 18, v4
v_and_b32 v5, 1, v2
v_add_u32 v4, v4, v5
s_mul_i32 s57, s57, 144
s_mul_i32 s59, s59, 36
s_add_u32 s57, s57, s59
s_add_u32 s57, s57, 8
v_add_u32 v4, s57, v4
v_mul_u32_u24 v4, 1152, v4
v_add_u32 v21, v4, v3
v_and_b32 v3, 7, v1
v_xor_b32 v3, v3, v2
v_mul_u32_u24 v4, 1152, v2
v_lshl_add_u32 v29, v3, 4, v4
s_cmp_ge_u32 s53, 9
s_cselect_b32 s57, 16, 0
s_lshl_b32 s49, s26, 5
s_add_u32 s49, s49, s57
s_add_u32 s49, s49, s54
s_mul_i32 s49, s49, {8*1152}
s_lshl_b32 s57, s63, 7
s_add_u32 s49, s49, s57
""")
    def wo_dma(tag, part=0):
        if part >= 0:
            srd(68, 8, 663552)
            e("s_lshl_b32 s42, s54, 10\n s_mov_b32 s40, 0")
        e(f"""
L_wod{tag}:
s_mov_b32 m0, s42
s_add_u32 s42, s42, 4096
buffer_load_dwordx4 v20, s[68:71], s40 offen lds
s_add_u32 s40, s40, {36*1152}
s_cmp_lt_u32 s40, {(part if part > 0 else 16)*36*1152}
s_cbranch_scc1 L_wod{tag}
""")
        if part <= 0:
            e(f"""
s_mov_b32 m0, s42
s_add_u32 s42, s42, 4096
buffer_load_dwordx4 v21, s[68:71], 0 offen lds
s_mov_b32 m0, s42
s_mov_b32 s40, {288*1152}
buffer_load_dwordx4 v21, s[68:71], s40 offen lds
s_lshl_b32 s42, s54, 10
""")
            for i in range(4):
                e(f"s_add_u32 m0, s42, {L_XT + 4096*i}\n s_add_u32 s40, s49, {i*32*1152}\n buffer_load_dwordx4 v29, s[28:31], s40 offen lds")
    def sw_calc():
        srd(68, 12, 1152)
        e("v_lshlrev_b32 v2, 2, v1")
        for i in range(5): e(f"buffer_load_dword v{30+i}, v2, s[68:71], 0 offen offset:{256*i}")
        e("v_mov_b32 v3, 0\n s_mov_b32 s57, 0x3f803f80\n s_waitcnt vmcnt(0)")
        e(f"v_add_u32 v2, {L_WR}, v2")
        for i in range(5): e(f"ds_write_b32 v2, v{30+i} offset:{256*i}")
        for i in range(5): e(f"v_dot2c_f32_bf16 v3, s57, v{30+i}")
        rowsum(3); xsum(3, 4, 16); xsum(3, 4, 32)
        e(f"v_mov_b32 v4, {L_SW}\n ds_write_b32 v4, v3")
    def flags_wait(tag, issued, off, fv=27, av=28, nap=0):
        e(f"s_mov_b32 s59, 0")
        if issued: e(f"s_branch L_fl1{tag}")
        a.lab(f"L_fl0{tag}")
        if nap: e(f"s_sleep {nap}")
        e(f"""
buffer_load_dword v{fv}, v{av}, s[64:67], 0 offen offset:{off} sc1
L_fl1{tag}:
s_waitcnt vmcnt(0)
v_cmp_eq_u32 vcc, 0, v{fv}
s_cbranch_vccz L_fl2{tag}
s_add_u32 s59, s59, 1
s_cmp_lt_u32 s59, {SPIN}
s_cbranch_scc1 L_fl0{tag}
L_fl2{tag}:
""")
    def arrive(tag, cnt_off, done_off, n):
        e(f"""
v_mov_b32 v20, 1
v_mov_b32 v21, 0
s_mov_b64 exec, 1
buffer_atomic_add v20, v21, s[64:67], 0 offen offset:{cnt_off} sc0
s_waitcnt vmcnt(0)
v_cmp_eq_u32 vcc, {n-1}, v20
s_cbranch_vccz L_ar{tag}
buffer_store_dword v20, v21, s[64:67], 0 offen offset:{done_off} sc1
L_ar{tag}:
s_mov_b64 exec, -1
""")
    wo_setup()
    e("v_mov_b32 v28, 0\n s_branch L_hloop")
    a.lab("L_htail")
    srd(36, 24, 0x10000000)
    srd(64, 22, 256)
    e("buffer_load_dword v27, v28, s[64:67], 0 offen offset:128 sc1\n s_waitcnt vmcnt(13)\n s_barrier")
    flags_wait("a", True, 128)
    def statloads():
        e("buffer_load_dword v30, v18, s[36:39], s60 offen sc1\n s_add_u32 s57, s60, 8192\n buffer_load_dword v31, v18, s[36:39], s57 offen sc1\n s_mov_b32 s57, s61")
        for i in range(8):
            e(f"buffer_load_dword v{32+i}, v19, s[36:39], s57 offen sc1")
            if i < 7: e("s_add_u32 s57, s57, 3840")
    statloads()
    e("s_barrier")
    wo_dma("a", 8)
    e("s_mov_b32 s59, 0\n s_waitcnt vmcnt(8)\n s_branch L_st1")
    a.lab("L_st0")
    statloads()
    e(f"""
s_waitcnt vmcnt(0)
L_st1:
v_max3_u32 v2, v30, v31, v32
v_max3_u32 v2, v2, v33, v34
v_max3_u32 v2, v2, v35, v36
v_max3_u32 v2, v2, v37, v38
v_max_u32 v2, v2, v39
v_cmp_eq_u32 vcc, -1, v2
s_cbranch_vccz L_st2
s_add_u32 s59, s59, 1
s_cmp_lt_u32 s59, {SPIN}
s_cbranch_scc1 L_st0
L_st2:
v_add_u32 v18, {L_RS}, v18
v_pk_add_f32 v[32:33], v[32:33], v[36:37]
v_pk_add_f32 v[34:35], v[34:35], v[38:39]
v_pk_add_f32 v[32:33], v[32:33], v[34:35]
v_add_f32 v32, v32, v33
ds_write_b32 v18, v30
ds_write_b32 v18, v31 offset:1024
ds_write_b32 v18, v32 offset:2048
""")
    e("s_waitcnt lgkmcnt(0)\n s_barrier")
    stamp(1)
    wo_dma("b", -8)
    flags_wait("r", False, 132)
    e("s_cmp_lg_u32 s54, 3\n s_cbranch_scc1 L_hpub")
    sw_calc()
    e("s_waitcnt vmcnt(0) lgkmcnt(0)\n s_barrier\n s_barrier\n s_branch L_s3pre")
    a.lab("L_hpub")
    e("s_waitcnt vmcnt(0)\n s_barrier")
    for i in range(4): e(f"ds_read_b128 v[{32+4*i}:{35+4*i}], v22 offset:{8192*i}")
    e(f"s_mul_i32 s57, s50, 3072\n s_add_u32 s57, s57, s62\n s_waitcnt lgkmcnt(0)")
    e("v_pk_add_f32 v[32:33], v[32:33], v[36:37]\n v_pk_add_f32 v[34:35], v[34:35], v[38:39]\n v_pk_add_f32 v[40:41], v[40:41], v[44:45]\n v_pk_add_f32 v[42:43], v[42:43], v[46:47]")
    e("v_pk_add_f32 v[32:33], v[32:33], v[40:41]\n v_pk_add_f32 v[34:35], v[34:35], v[42:43]")
    for i in range(4): e(f"v_min_u32 v{32+i}, -2, v{32+i}")
    e("buffer_store_dwordx4 v[32:35], v25, s[36:39], s57 offen sc1")
    stamp(2)
    e("s_mov_b32 s59, 0")
    if await_: e("s_waitcnt vmcnt(0)")
    a.lab("L_hA")
    e("s_mov_b32 s57, s62")
    for i in range(8):
        e(f"buffer_load_dwordx4 v[{32+4*i}:{35+4*i}], v25, s[36:39], s57 offen sc1")
        if i < 7: e("s_add_u32 s57, s57, 3072")
    e("s_waitcnt vmcnt(0)")
    e("v_max3_u32 v2, v32, v33, v34")
    for i in range(35, 63, 2): e(f"v_max3_u32 v2, v2, v{i}, v{i+1}")
    e(f"""
v_max_u32 v2, v2, v63
v_cmp_eq_u32 vcc, -1, v2
s_cbranch_vccz L_hA2
s_add_u32 s59, s59, 1
s_cmp_lt_u32 s59, {SPIN}
s_cbranch_scc1 L_hA
L_hA2:
""")
    for st in (16, 8, 4):
        for i in range(0, st, 2): e(f"v_pk_add_f32 v[{32+i}:{33+i}], v[{32+i}:{33+i}], v[{32+st+i}:{33+st+i}]")
    e("""
v_cvt_pk_bf16_f32 v32, v32, v33
v_cvt_pk_bf16_f32 v33, v34, v35
v_and_b32 v32, v32, v23
v_and_b32 v33, v33, v24
ds_write_b64 v26, v[32:33]
s_waitcnt lgkmcnt(0)
s_barrier
""")
    stamp(3)
    e("s_branch L_s3pre")

    a.lab("L_compute")
    e(f"""
v_lshrrev_b32 v15, 1, v13
v_xor_b32 v15, v15, v14
v_lshlrev_b32 v15, 4, v15
v_lshl_add_u32 v4, v13, 7, v15
s_lshl_b32 s55, s54, 13
v_add_u32 v4, s55, v4
v_xor_b32 v5, 64, v4
v_lshrrev_b32 v2, 2, v13
v_lshl_add_u32 v2, v14, 2, v2
v_and_b32 v3, 3, v13
v_and_b32 v15, 7, v2
v_lshlrev_b32 v15, 5, v15
v_lshlrev_b32 v2, 8, v2
v_add_u32 v2, {XS}, v2
v_add_u32 v16, 3, v3
v_and_b32 v16, 4, v16
v_lshlrev_b32 v16, 1, v16
v_and_b32 v17, 2, v3
v_lshlrev_b32 v17, 2, v17
v_lshlrev_b32 v3, 3, v3
v_add_u32 v3, s52, v3
""")
    for T in range(7):
        secs = [min((4*T+c)//9, 2) for c in range(4)]
        e(f"v_add_u32 v{6+T}, {32*T + 8*secs[0]}, v3")
        if T == 2: e(f"v_add_u32 v{6+T}, v{6+T}, v16")
        if T == 4: e(f"v_add_u32 v{6+T}, v{6+T}, v17")
        e(f"v_xor_b32 v{6+T}, v{6+T}, v15\n v_add_u32 v{6+T}, v{6+T}, v2")
    e(f"""
v_lshrrev_b32 v16, 3, v13          ; head
v_bfe_u32 v17, v13, 2, 1           ; odd
v_and_b32 v18, 3, v13              ; r
v_mul_u32_u24 v19, 18, v16
v_mad_u32_u24 v19, v17, 10, v19
v_add_u32 v19, v19, v18
v_add_u32 v20, 4, v19              ; tau=1
v_add_u32 v21, 8, v19
v_add_u32 v22, 36, v16
v_cmp_eq_u32 vcc, 2, v18
v_cndmask_b32 v21, v21, v22, vcc
v_cndmask_b32_e64 v23, 0, 1, vcc
v_lshl_add_u32 v22, v17, 2, v18
v_cmp_gt_u32 vcc, 2, v22
v_cndmask_b32_e64 v23, v23, 1, vcc
v_lshlrev_b32 v22, 2, v16
v_sub_u32 v22, v14, v22            ; g' - 4*head
v_mov_b32 v25, {L_KT + 190*8}
""")
    for tau in range(3):
        for t in range(3):
            d = 240 + tau*3 + t
            e(f"v_add_u32 v24, {4*t}, v22\n v_mad_u32_u24 v{d}, v{19+tau}, 5, v24\n v_lshlrev_b32 v{d}, 3, v{d}\n v_add_u32 v{d}, {L_KT}, v{d}\n v_cmp_gt_u32 vcc, 5, v24\n v_cndmask_b32 v{d}, v25, v{d}, vcc")
            if tau == 2: e(f"v_cmp_eq_u32 vcc, 1, v23\n v_cndmask_b32 v{d}, v25, v{d}, vcc")
    e(f"""
s_lshl_b32 s55, s54, 8
s_add_u32 s55, s55, {L_RS}
v_lshl_add_u32 v249, v14, 4, s55
v_lshlrev_b32 v250, 2, v13
v_add_u32 v250, {L_CS}, v250
v_cmp_le_u32 vcc, 12, v13
v_cndmask_b32_e64 v251, 0, -1, vcc
s_mul_i32 s55, s54, 6144
s_add_u32 s55, s55, {L_PQ}
v_lshlrev_b32 v252, 5, v13
v_lshl_add_u32 v252, v14, 3, v252
v_add_u32 v252, s55, v252
v_lshlrev_b32 v254, 3, v13
v_add_u32 v254, s55, v254
v_lshl_add_u32 v253, v14, 7, v254
s_lshl_b32 s55, s54, 13
s_add_u32 s55, s55, {L_KVRED}
v_lshl_add_u32 v255, v1, 4, s55
""")
    ACC = 16; F = [128, 172]
    for i in range(112): e(f"v_mov_b32 v{ACC+i}, 0")
    def reads(fs, kk):
        r = [f"ds_read_b128 v[{F[fs]+4*j}:{F[fs]+4*j+3}], v{4+kk} offset:{j*2048}" for j in range(4)]
        for T in range(7):
            for hf in range(2):
                d = F[fs]+16+4*T+2*hf
                r.append(f"ds_read_b64_tr_b16 v[{d}:{d+1}], v{6+T} offset:{(kk*32+hf*16)*256}")
        return r
    def acc(j, T): return ACC + (j*7+T)*4
    def mfmas(fs):
        m = []
        for T in range(7):
            for j in range(4):
                c = acc(j, T); b = F[fs]+16+4*T
                m.append(f"v_mfma_f32_16x16x32_bf16 v[{c}:{c+3}], v[{F[fs]+4*j}:{F[fs]+4*j+3}], v[{b}:{b+3}], v[{c}:{c+3}]")
        return m
    def weave(m, r, extra):
        out = []
        for i, x in enumerate(m):
            out.append(x)
            if i < len(r): out.append(r[i])
            if i in extra: out.extend(extra[i])
        return out
    e(f"s_mov_b32 s55, 0\n s_mov_b32 s56, 0\n s_mov_b32 s58, {STG}\n s_waitcnt lgkmcnt(0)")
    srd(36, 24, 0x10000000)
    srd(28, 4, 2359296)
    e("s_barrier")
    stamp(1)
    for r in reads(0, 0): e(r)
    e("s_waitcnt lgkmcnt(0)\n s_branch L_cloop\n .p2align 3")
    a.lab("L_cloop2")
    for x in weave(mfmas(1), reads(0, 0), {}): e(x)
    e("s_waitcnt lgkmcnt(0)")
    a.lab("L_cloop")
    ex = {0: ["s_add_u32 s56, s56, 1", f"s_cmp_eq_u32 s56, {NBUF}"], 1: [f"s_cselect_b32 s57, {(-(NBUF-1)*STG) & 0xffffffff}, s58", "s_cselect_b32 s56, 0, s56"],
          2: ["v_add_u32 v4, s57, v4"], 4: ["v_add_u32 v5, s57, v5"], 22: ["s_add_u32 s55, s55, 1", "s_cmp_lt_u32 s55, 9"]}
    for T in range(7): ex.setdefault(6+2*T, []).append(f"v_add_u32 v{6+T}, s57, v{6+T}")
    for x in weave(mfmas(0), reads(1, 1), ex): e(x)
    e("s_waitcnt lgkmcnt(0)\n s_barrier\n s_cbranch_scc1 L_cloop2")
    RS, MRS, CSR = 128, 144, 160
    tr = [f"ds_read_b128 v[{RS+4*j}:{RS+4*j+3}], v249 offset:{64*j}" for j in range(4)] + [f"ds_read_b128 v[{MRS+4*j}:{MRS+4*j+3}], v249 offset:{1024+64*j}" for j in range(4)]
    tr += [f"ds_read_b32 v{CSR+T}, v250 offset:{64*T}" for T in range(7)]
    C1 = 1.000001
    tr += [f"v_mov_b32 v168, {f2u(C1):#x}", f"v_mov_b32 v169, {f2u(LOG2E):#x}", f"v_mov_b32 v170, {f2u(-LOG2E*C1):#x}", f"v_mov_b32 v171, {f2u(1e-6):#x}", "v_mov_b32 v2, 0x3f803f80"]
    for x in weave(mfmas(1), tr, {}): e(x)
    e("s_waitcnt lgkmcnt(0)")
    stamp(2)
    def bc(r):
        return (f"v[{r&~1}:{(r&~1)+1}]", r & 1)
    TMP = 204
    def phi(j, T, dst):
        c = acc(j, T); p, s_ = bc(CSR+T)
        for h in range(2):
            e(f"v_pk_fma_f32 v[{TMP+2*h}:{TMP+2*h+1}], v[{MRS+4*j+2*h}:{MRS+4*j+2*h+1}], {p}, v[168:169] op_sel:[0,{s_},0] op_sel_hi:[1,{s_},0]")
        for h in range(2):
            e(f"v_pk_fma_f32 v[{TMP+2*h}:{TMP+2*h+1}], v[{c+2*h}:{c+2*h+1}], v[{RS+4*j+2*h}:{RS+4*j+2*h+1}], v[{TMP+2*h}:{TMP+2*h+1}]")
        for h in range(2):
            e(f"v_pk_fma_f32 v[{TMP+4+2*h}:{TMP+5+2*h}], v[{TMP+2*h}:{TMP+2*h+1}], v[168:169], v[170:171] op_sel:[0,1,0] op_sel_hi:[1,1,0]")
        for q in range(4): e(f"v_exp_f32_e64 v{TMP+4+q}, v{TMP+4+q} clamp")
        for h in range(2):
            e(f"v_pk_add_f32 v[{TMP+4+2*h}:{TMP+5+2*h}], v[{TMP+4+2*h}:{TMP+5+2*h}], v[170:171] op_sel:[0,1] op_sel_hi:[1,1]")
        for q in range(4): e(f"v_max_f32 v{TMP+q}, v{TMP+q}, v{TMP+4+q}")
        for h in range(2): e(f"v_cvt_pk_bf16_f32 v{dst+h}, v{TMP+2*h}, v{TMP+2*h+1}")
    def lin(j, T, dst):
        c = acc(j, T); p, s_ = bc(CSR+T)
        for h in range(2):
            e(f"v_pk_mul_f32 v[{TMP+8+2*h}:{TMP+9+2*h}], v[{MRS+4*j+2*h}:{MRS+4*j+2*h+1}], {p} op_sel:[0,{s_}] op_sel_hi:[1,{s_}]")
        for h in range(2):
            e(f"v_pk_fma_f32 v[{TMP+8+2*h}:{TMP+9+2*h}], v[{c+2*h}:{c+2*h+1}], v[{RS+4*j+2*h}:{RS+4*j+2*h+1}], v[{TMP+8+2*h}:{TMP+9+2*h}]")
        for h in range(2): e(f"v_cvt_pk_bf16_f32 v{dst+h}, v{TMP+8+2*h}, v{TMP+9+2*h}")
    PK = 216; KVA = 172
    pairs = [(0,0),(0,1),(0,2),(1,0),(1,1),(1,2),(2,1),(2,2)]
    for jp in range(2):
        for jj in range(2):
            j = 2*jp + jj
            for T in range(3): phi(j, T, PK + 4*T + 2*jj)
            e(f"ds_write_b64 v252, v[{PK+8+2*jj}:{PK+9+2*jj}] offset:{j*1536}")
            for T in range(3): lin(j, 4+T, PK + 12 + 4*T + 2*jj)
            for h in range(2): e(f"v_bfi_b32 v{PK+20+2*jj+h}, v251, v2, v{PK+20+2*jj+h}")
        for n, (ta, tb) in enumerate(pairs):
            c = KVA + 4*n
            e(f"v_mfma_f32_16x16x32_bf16 v[{c}:{c+3}], v[{PK+4*ta}:{PK+4*ta+3}], v[{PK+12+4*tb}:{PK+15+4*tb}], " + ("0" if jp == 0 else f"v[{c}:{c+3}]"))
    for n, (ta, tb) in enumerate(pairs):
        e(f"ds_write_b128 v255, v[{KVA+4*n}:{KVA+4*n+3}] offset:{n*1024}")
    e("s_waitcnt lgkmcnt(0)\n s_barrier")
    stamp(3)
    for j in range(4):
        for T in (3, 4):
            d = PK + (j*2 + T-3)*2
            phi(j, T, d)
            e(f"ds_write_b64 v252, v[{d}:{d+1}] offset:{j*1536 + (T-2)*512}")
    PQ = 16
    e("s_waitcnt lgkmcnt(0)")
    for j in range(4):
        for t in range(2): e(f"ds_read_b64_tr_b16 v[{PQ+6*j+2*t}:{PQ+6*j+2*t+1}], v253 offset:{j*1536 + (4+16*t)*32}")
        e(f"ds_read_b64_tr_b16 v[{PQ+6*j+4}:{PQ+6*j+5}], v254 offset:{j*1536 + 36*32}")
    KA = 44
    e(f"v_mov_b32 v{PQ+24}, 0\n v_mov_b32 v{PQ+25}, 0")
    for tau in range(3): e(f"v_mov_b32 v{KA+8*tau+6}, 0\n v_mov_b32 v{KA+8*tau+7}, 0")
    e(f"""
v_lshlrev_b32 v6, 4, v1
v_lshlrev_b32 v7, 3, v13
v_lshl_add_u32 v7, v14, 1, v7
v_add_u32 v7, 1024, v7
v_and_b32 v8, 1, v14
v_lshl_or_b32 v7, v8, 31, v7
s_lshl_b32 s55, s50, 4
s_lshl_b32 s56, s54, 2
s_add_u32 s55, s55, s56
s_lshl_b32 s55, s55, 4
s_add_u32 s55, s55, s48
s_mul_i32 s55, s55, 1152
s_add_u32 s55, s55, {OB}
s_waitcnt lgkmcnt(0)
""")
    stamp(4)
    e("s_barrier")
    stamp(5)
    for tau in range(3):
        for t in range(3): e(f"ds_read_b64 v[{KA+8*tau+2*t}:{KA+8*tau+2*t+1}], v{240+tau*3+t}")
    e("s_waitcnt lgkmcnt(0)")
    D = 68
    for half in range(2):
        for j in range(4):
            for tau in range(3):
                c = D + 12*j + 4*tau
                e(f"v_mfma_f32_16x16x32_bf16 v[{c}:{c+3}], v[{KA+8*tau+4*half}:{KA+8*tau+4*half+3}], v[{PQ+6*j+4*half}:{PQ+6*j+4*half+3}], " + ("0" if half == 0 else f"v[{c}:{c+3}]"))
    for j in range(4):
        c = D + 12*j
        e(f"v_cvt_pk_bf16_f32 v{c+10}, v{c+10}, v{c+10}\n v_and_b32 v{c+10}, 0xffff0000, v{c+10}\n v_add_f32 v{c+10}, v171, v{c+10}\n v_rcp_f32 v{c+10}, v{c+10}")
    for j in range(4):
        c = D + 12*j; o = 116 + 6*j
        for h in range(5): e(f"v_pk_mul_f32 v[{c+2*h}:{c+2*h+1}], v[{c+2*h}:{c+2*h+1}], v[{c+10}:{c+11}] op_sel_hi:[1,0]")
        for h in range(5): e(f"v_cvt_pk_bf16_f32 v{o+h}, v{c+2*h}, v{c+2*h+1}")
        for h in range(5): e(f"v_min_u32 v{o+h}, -2, v{o+h}")
        e(f"buffer_store_dwordx4 v[{o}:{o+3}], v6, s[36:39], s55 offen sc1\n buffer_store_dword v{o+4}, v7, s[36:39], s55 offen sc1")
        if j < 3: e(f"s_add_u32 s55, s55, {16*1152}")
    stamp(6)

    a.lab("L_s3pre")
    OF = 16; AC = 88; BR = 104; XR = 216; WR = 224
    e(f"""
s_cmp_ge_u32 s53, 9
s_cselect_b32 s57, 9, 0
s_cselect_b32 s58, 8, 0
s_sub_u32 s63, s53, s57            ; cb
s_lshl_b32 s60, s26, 4
s_add_u32 s60, s60, s58
s_add_u32 s60, s60, s3             ; tb
v_lshrrev_b32 v2, 2, v13
v_lshl_add_u32 v2, v14, 2, v2      ; rho
v_bfe_u32 v3, v2, 1, 2
v_lshlrev_b32 v2, 7, v2
v_and_b32 v4, 3, v13
v_lshl_add_u32 v2, v4, 3, v2
v_lshlrev_b32 v3, 5, v3
v_add_u32 v8, v2, v3
v_xor_b32 v9, 32, v8
v_xor_b32 v10, 64, v8
v_xor_b32 v11, 96, v8
s_mul_i32 s61, s60, {16*1152}
s_lshl_b32 s57, s63, 7
s_add_u32 s61, s61, s57
s_add_u32 s57, s57, {L_WR}
v_lshl_add_u32 v5, v14, 3, s57
v_lshrrev_b32 v2, 1, v14
v_and_b32 v3, 7, v13
v_xor_b32 v2, v2, v3
v_lshlrev_b32 v2, 4, v2
v_lshl_add_u32 v2, v13, 7, v2
v_and_b32 v3, 1, v14
v_lshl_add_u32 v2, v3, 3, v2
s_lshl_b32 s57, s3, 11
s_add_u32 s57, s57, {L_XT}
v_add_u32 v2, s57, v2
""")
    for T in range(4):
        e(f"v_xor_b32 v4, {32*T}, v2\n ds_read_b64 v[{XR+2*T}:{XR+2*T+1}], v4")
        e(f"ds_read_b64 v[{WR+2*T}:{WR+2*T+1}], v5 offset:{32*T}")
    NPRE = 7
    def bread(k):
        r = []
        for T in range(4):
            for hf in range(2):
                d = BR + (k % NPRE)*16 + 4*T + 2*hf
                off = (k*32 + hf*16)*128
                reg = 8+T
                if off > 65535: off -= 65536 - 0; reg = 232+T
                r.append(f"ds_read_b64_tr_b16 v[{d}:{d+1}], v{reg} offset:{off}")
        return r
    for k in range(NPRE):
        for x in bread(k): e(x)
    for T in range(4): e(f"v_add_u32 v{232+T}, 0x10000, v{8+T}")
    e(f"""
v_mov_b32 v2, {L_SW}
ds_read_b32 v236, v2
v_lshlrev_b32 v6, 4, v1
v_mul_u32_u24 v7, 2304, v14
v_lshl_add_u32 v7, v13, 3, v7
s_mul_i32 s62, s60, {16*1152}
s_add_u32 s62, s62, {OB}
""")
    for i in range(16): e(f"v_mov_b32 v{AC+i}, 0")
    e(f"""
s_cmp_lt_u32 s27, 16
s_cbranch_scc1 L_oload
v_mul_u32_u24 v2, 1152, v13
s_mov_b32 s59, 0
L_ohint:
s_sleep 2
buffer_load_dword v3, v2, s[36:39], s62 offen offset:1024 sc1
s_waitcnt vmcnt(0)
v_cmp_ne_u32 vcc, -1, v3
s_cbranch_vccnz L_oload
s_add_u32 s59, s59, 1
s_cmp_lt_u32 s59, {SPIN}
s_cbranch_scc1 L_ohint
L_oload:
s_waitcnt OWAIT
s_barrier
""".replace("OWAIT", "vmcnt(0) lgkmcnt(0)" if owait else "lgkmcnt(0)"))
    stamp(7)
    groups = [[0,1,2,3],[4,5,6,7],[8,9,10,11],[12,13,14,15],[16,17]]
    def oloads(g):
        r = []
        for k in g:
            if k < 16:
                r.append(f"s_add_u32 s57, s62, {k*1152}\n buffer_load_dwordx4 v[{OF+4*k}:{OF+4*k+3}], v6, s[36:39], s57 offen sc1")
            else:
                u = k-16
                r.append(f"s_add_u32 s57, s62, {8*u*1152}\n buffer_load_dwordx2 v[{OF+4*k}:{OF+4*k+1}], v7, s[36:39], s57 offen offset:1024 sc1\n buffer_load_dwordx2 v[{OF+4*k+2}:{OF+4*k+3}], v7, s[36:39], s57 offen offset:{1024+1152} sc1")
        return r
    for g in groups:
        for x in oloads(g): e(x)
    def ocheck(g):
        rs_ = list(range(OF+4*g[0], OF+4*g[-1]+4))
        e(f"v_max3_u32 v2, v{rs_[0]}, v{rs_[1]}, v{rs_[2]}")
        for i in range(3, len(rs_)-1, 2): e(f"v_max3_u32 v2, v2, v{rs_[i]}, v{rs_[i+1]}")
        e(f"v_max_u32 v2, v2, v{rs_[-1]}\n v_cmp_eq_u32 vcc, -1, v2")
    e("s_mov_b32 s59, 0")
    pending = 0
    for gi, g in enumerate(groups):
        e(f"s_waitcnt vmcnt({16-4*gi})")
        ocheck(g)
        e(f"s_cbranch_vccnz L_oretry{gi}")
        a.lab(f"L_ook{gi}")
        for k in g:
            if k >= NPRE:
                later = min(k+NPRE-1, 17) - k
                e(f"s_waitcnt lgkmcnt({min(8*later, 15)})")
            m = []
            for T in range(4):
                b = BR + (k % NPRE)*16 + 4*T
                m.append(f"v_mfma_f32_16x16x32_bf16 v[{AC+4*T}:{AC+4*T+3}], v[{b}:{b+3}], v[{OF+4*k}:{OF+4*k+3}], v[{AC+4*T}:{AC+4*T+3}]")
            r = bread(k+NPRE) if k+NPRE < 18 else []
            for T in range(4):
                e(m[T])
                for x in r[2*T:2*T+2]: e(x)
    stamp(8)
    HP = 104; HF = 112
    for i in range(8): e(f"v_cvt_pk_bf16_f32 v{HP+i}, v{AC+2*i}, v{AC+2*i+1}")
    for i in range(8):
        e(f"v_lshlrev_b32 v{AC+2*i}, 16, v{HP+i}\n v_and_b32 v{AC+2*i+1}, 0xffff0000, v{HP+i}\n v_lshlrev_b32 v{HF+2*i}, 16, v{XR+i}\n v_and_b32 v{HF+2*i+1}, 0xffff0000, v{XR+i}")
    for i in range(8): e(f"v_pk_add_f32 v[{HF+2*i}:{HF+2*i+1}], v[{HF+2*i}:{HF+2*i+1}], v[{AC+2*i}:{AC+2*i+1}]")
    for i in range(8): e(f"v_cvt_pk_bf16_f32 v{HP+i}, v{HF+2*i}, v{HF+2*i+1}")
    e("v_mov_b32 v16, 0\n v_mov_b32 v17, 0\n v_mov_b32 v18, 0\n v_mov_b32 v19, 0\n s_mov_b32 s57, 0x3f803f80")
    for i in range(8):
        e(f"v_dot2c_f32_bf16 v16, s57, v{HP+i}\n v_dot2c_f32_bf16 v17, v{HP+i}, v{HP+i}\n v_dot2c_f32_bf16 v18, v{WR+i}, v{HP+i}")
    for wh in (16, 32):
        for q in range(3): e(f"v_mov_b32 v{20+q}, v{16+q}")
        for q in range(3): e(f"v_permlane{wh}_swap_b32 v{16+q}, v{20+q}")
        for q in range(3): e(f"v_add_f32 v{16+q}, v{16+q}, v{20+q}")
    for q in range(3): e(f"v_min_u32 v{16+q}, -2, v{16+q}")
    e(f"""
s_mul_i32 s62, s60, {9*256}
s_add_u32 s62, s62, {ST}
s_lshl_b32 s57, s63, 8
s_add_u32 s57, s57, s62
s_mov_b64 exec, 0xffff
buffer_store_dwordx4 v[16:19], v6, s[36:39], s57 offen sc1
s_mov_b64 exec, -1
""")
    stamp(9)
    for i in range(8): e(f"v_lshlrev_b32 v{HF+2*i}, 16, v{HP+i}\n v_and_b32 v{HF+2*i+1}, 0xffff0000, v{HP+i}")
    e(f"""
v_lshlrev_b32 v7, 4, v13
s_lshl_b32 s57, s3, 12
s_add_u32 s57, s57, {L_STAGE}
v_lshlrev_b32 v8, 7, v13
v_lshl_add_u32 v8, v14, 3, v8
v_add_u32 v8, s57, v8
v_lshl_add_u32 v9, v1, 4, s57
v_lshrrev_b32 v10, 3, v1
v_mul_u32_u24 v10, 1152, v10
v_and_b32 v11, 7, v1
v_lshl_add_u32 v10, v11, 4, v10
v_lshl_add_u32 v12, s60, 4, v13    ; token
s_mov_b32 s59, 0
{"s_waitcnt vmcnt(0)" if cwait else ""}
L_c1:
buffer_load_dwordx4 v[20:23], v6, s[36:39], s62 offen sc1
buffer_load_dwordx4 v[24:27], v6, s[36:39], s62 offen offset:1024 sc1
buffer_load_dwordx4 v[28:31], v7, s[36:39], s62 offen offset:2048 sc1
s_waitcnt vmcnt(0)
v_max3_u32 v2, v20, v21, v22
v_max3_u32 v2, v2, v24, v25
v_max3_u32 v2, v2, v26, v28
v_max3_u32 v2, v2, v29, v30
v_cmp_eq_u32 vcc, -1, v2
s_cbranch_vccz L_c1ok
s_add_u32 s59, s59, 1
s_cmp_lt_u32 s59, {SPIN}
s_cbranch_scc1 L_c1
L_c1ok:
""")
    stamp(10)
    for q in range(3): e(f"v_add_f32 v{16+q}, v{20+q}, v{24+q}")
    for wh in (16, 32):
        for q in range(3): e(f"v_mov_b32 v{20+q}, v{16+q}")
        for q in range(3): e(f"v_permlane{wh}_swap_b32 v{16+q}, v{20+q}")
        for q in range(3): e(f"v_add_f32 v{16+q}, v{16+q}, v{20+q}")
    for q in range(3): e(f"v_add_f32 v{16+q}, v{16+q}, v{28+q}")
    inv = f2u(1.0/576)
    e(f"""
v_mul_f32 v16, {inv:#x}, v16        ; mean
v_mul_f32 v17, {inv:#x}, v17
v_fma_f32 v17, -v16, v16, v17       ; var
v_max_f32 v17, 0, v17
v_cvt_pk_bf16_f32 v20, v16, v17
v_lshlrev_b32 v16, 16, v20
v_and_b32 v17, 0xffff0000, v20
v_add_f32 v17, {f2u(1e-5):#x}, v17
v_cvt_pk_bf16_f32 v17, v17, v17
v_and_b32 v17, 0xffff0000, v17
v_sqrt_f32 v17, v17
v_fma_f32 v18, -v16, v236, v18
v_cvt_pk_bf16_f32 v17, v17, v17
v_and_b32 v17, 0xffff0000, v17
v_rcp_f32 v17, v17
v_mul_f32 v18, v18, v17
v_cvt_pk_bf16_f32 v18, v18, v18
v_ashrrev_i32 v20, 31, v18
v_or_b32 v20, 0x80000000, v20
v_xor_b32 v18, v18, v20
v_and_b32 v18, 0xffff0000, v18
v_sub_u32 v20, 2047, v12
v_or_b32 v18, v18, v20              ; key
s_cmp_lg_u32 s63, 0
s_cbranch_scc1 L_nokey
v_lshlrev_b32 v20, 2, v12
s_mov_b32 s57, {KEY}
s_mov_b64 exec, 0xffff
buffer_store_dword v18, v20, s[36:39], s57 offen sc1
s_mov_b64 exec, -1
L_nokey:
""")
    stamp(11)
    NP = 32; NF = 40
    for i in range(8): e(f"v_pk_add_f32 v[{NF+2*i}:{NF+2*i+1}], v[{HF+2*i}:{HF+2*i+1}], v[16:17] op_sel_hi:[1,0] neg_lo:[0,1] neg_hi:[0,1]")
    for i in range(8): e(f"v_cvt_pk_bf16_f32 v{NP+i}, v{NF+2*i}, v{NF+2*i+1}")
    for i in range(8): e(f"v_lshlrev_b32 v{NF+2*i}, 16, v{NP+i}\n v_and_b32 v{NF+2*i+1}, 0xffff0000, v{NP+i}")
    for i in range(8): e(f"v_pk_mul_f32 v[{NF+2*i}:{NF+2*i+1}], v[{NF+2*i}:{NF+2*i+1}], v[16:17] op_sel:[0,1] op_sel_hi:[1,1]")
    for i in range(8): e(f"v_cvt_pk_bf16_f32 v{NP+i}, v{NF+2*i}, v{NF+2*i+1}")
    for T in range(4): e(f"ds_write_b64 v8, v[{NP+2*T}:{NP+2*T+1}] offset:{32*T}")
    for T in range(4): e(f"ds_write_b64 v8, v[{HP+2*T}:{HP+2*T+1}] offset:{2048+32*T}")
    rowmax(20, 18)
    e("v_cmp_eq_u32 vcc, v18, v20\n v_cndmask_b32_e64 v21, v18, 0, vcc")
    rowmax(22, 21)
    e(f"""
v_cmp_gt_u32 vcc, 8, v1
v_cndmask_b32 v20, v22, v20, vcc
v_not_b32 v20, v20
v_and_b32 v20, 15, v20
v_lshlrev_b32 v20, 7, v20
v_lshl_add_u32 v20, v11, 4, v20
s_lshl_b32 s57, s3, 12
s_add_u32 s57, s57, {L_STAGE}
v_add_u32 v20, s57, v20
s_waitcnt lgkmcnt(0)
ds_read_b128 v[24:27], v20
ds_read_b128 v[28:31], v20 offset:2048
v_bfe_u32 v21, v1, 3, 1
v_mul_u32_u24 v21, 2304, v21
v_lshl_add_u32 v21, v11, 4, v21
s_mul_i32 s62, s60, 4608
s_lshl_b32 s57, s63, 7
s_add_u32 s62, s62, s57
s_add_u32 s62, s62, {CAND}
s_waitcnt lgkmcnt(0)
""")
    for q in range(8): e(f"v_min_u32 v{24+q}, -2, v{24+q}")
    e("s_mov_b64 exec, 0xffff\n buffer_store_dwordx4 v[24:27], v21, s[36:39], s62 offen sc1\n s_mov_b64 exec, -1")
    for i in range(8): e(f"v_lshlrev_b32 v{NF+2*i}, 16, v{NP+i}\n v_and_b32 v{NF+2*i+1}, 0xffff0000, v{NP+i}")
    for i in range(8): e(f"v_pk_add_f32 v[{NF+2*i}:{NF+2*i+1}], v[{NF+2*i}:{NF+2*i+1}], v[{HF+2*i}:{HF+2*i+1}]")
    for i in range(8): e(f"v_cvt_pk_bf16_f32 v{NP+i}, v{NF+2*i}, v{NF+2*i+1}")
    for T in range(4): e(f"ds_write_b64 v8, v[{NP+2*T}:{NP+2*T+1}] offset:{32*T}")
    srd(68, 20, 2359296)
    e(f"""
s_waitcnt lgkmcnt(0)
ds_read_b128 v[40:43], v9
ds_read_b128 v[44:47], v9 offset:1024
s_add_u32 s57, s61, {8*1152}
s_waitcnt lgkmcnt(0)
buffer_store_dwordx4 v[40:43], v10, s[68:71], s61 offen sc1
buffer_store_dwordx4 v[44:47], v10, s[68:71], s57 offen sc1
s_waitcnt vmcnt(0)
s_mov_b64 exec, 0xffff
buffer_store_dwordx4 v[28:31], v21, s[36:39], s62 offen offset:1152 sc1
""")
    stamp(12)
    fin()
    for gi, g in enumerate(groups):
        a.lab(f"L_oretry{gi}")
        e(f"s_add_u32 s59, s59, 1\n s_cmp_ge_u32 s59, {SPIN}\n s_cbranch_scc1 L_ook{gi}")
        for x in oloads(g): e(x)
        e("s_waitcnt vmcnt(0)")
        ocheck(g)
        e(f"s_cbranch_vccnz L_oretry{gi}\n s_branch L_ook{gi}")

    a.lab("L_B")
    e(f"""
s_sub_u32 s47, s27, 16             ; h
s_cmp_ge_u32 s27, 28
s_cbranch_scc1 L_R
s_cmp_ge_u32 s27, 24
s_cbranch_scc1 L_X
v_add_u32 v3, 64, v1
v_min_u32 v3, 119, v3
v_mul_u32_u24 v4, 1639, v1
v_lshrrev_b32 v4, 16, v4
v_lshlrev_b32 v2, 4, v1
v_lshl_add_u32 v2, v4, 9, v2
v_mul_u32_u24 v4, 1639, v3
v_lshrrev_b32 v4, 16, v4
v_lshlrev_b32 v5, 4, v3
v_lshl_add_u32 v5, v4, 9, v5
s_lshl_b32 s56, s47, 3
s_add_u32 s56, s56, s3
s_mul_i32 s56, s56, 3456
s_lshl_b32 s57, s46, 9
s_add_u32 s56, s56, s57
s_mov_b32 s34, 1990656
s_mov_b32 s35, 0x20000
s_waitcnt lgkmcnt(0)
s_mov_b32 s32, s6
s_mov_b32 s33, s7
""")
    def wacc(st_):
        for p in range(2):
            r = 16 + 8*st_ + 4*p
            d = 88 + 8*p if st_ == 0 else 104
            for q in range(4): e(f"v_lshlrev_b32 v{d+2*q}, 16, v{r+q}\n v_and_b32 v{d+2*q+1}, 0xffff0000, v{r+q}")
            if st_:
                for q in range(4): e(f"v_pk_add_f32 v[{88+8*p+2*q}:{89+8*p+2*q}], v[{88+8*p+2*q}:{89+8*p+2*q}], v[{104+2*q}:{105+2*q}]")
    LAG = 3
    for st_ in range(9):
        e(f"buffer_load_dwordx4 v[{16+8*st_}:{19+8*st_}], v2, s[32:35], s56 offen\n buffer_load_dwordx4 v[{20+8*st_}:{23+8*st_}], v5, s[32:35], s56 offen")
        if st_ < 8: e(f"s_add_u32 s56, s56, {64*3456}\n s_barrier")
        if st_ >= LAG:
            e(f"s_waitcnt vmcnt({2*LAG})"); wacc(st_-LAG)
    for st_ in range(9-LAG, 9):
        e(f"s_waitcnt vmcnt({2*(8-st_)})"); wacc(st_)
    srd(36, 24, 0x10000000); srd(64, 22, 256)
    e(f"""
s_mul_i32 s57, s3, 3840
v_lshl_add_u32 v2, v1, 5, s57
v_lshl_add_u32 v5, v3, 5, s57
ds_write_b128 v2, v[88:91]
ds_write_b128 v2, v[92:95] offset:16
ds_write_b128 v5, v[96:99]
ds_write_b128 v5, v[100:103] offset:16
v_mov_b32 v28, 0
""")
    flags_wait("w", False, 128)
    e(f"""
v_min_u32 v2, 239, v0
v_lshlrev_b32 v2, 4, v2
s_waitcnt lgkmcnt(0)
s_barrier
s_cmp_ge_u32 s3, 4
s_cbranch_scc1 L_W2
""")
    for i_ in range(8): e(f"ds_read_b128 v[{32+4*i_}:{35+4*i_}], v2 offset:{3840*i_}")
    e(f"s_lshl_b32 s57, s26, 3\n s_add_u32 s57, s57, s47\n s_mul_i32 s57, s57, 3840\n s_add_u32 s57, s57, {CS}\n s_waitcnt lgkmcnt(0)")
    for st in (16, 8, 4):
        for i_ in range(0, st, 2): e(f"v_pk_add_f32 v[{32+i_}:{33+i_}], v[{32+i_}:{33+i_}], v[{32+st+i_}:{33+st+i_}]")
    for q in range(4): e(f"v_min_u32 v{32+q}, -2, v{32+q}")
    e("buffer_store_dwordx4 v[32:35], v2, s[36:39], s57 offen sc1")
    a.lab("L_W2")
    e("s_barrier")
    stamp(1)
    e("s_branch L_F")

    a.lab("L_X")
    e(f"""
v_lshrrev_b32 v2, 3, v1
v_and_b32 v3, 7, v1
v_mul_u32_u24 v4, 1152, v2
v_lshl_add_u32 v4, v3, 4, v4
s_lshl_b32 s55, s45, 2
s_add_u32 s55, s55, s47
s_sub_u32 s55, s55, 8
s_lshl_b32 s55, s55, 3
s_add_u32 s55, s55, s3
s_mul_i32 s56, s55, {16*1152}
s_add_u32 s57, s56, {8*1152}
s_mov_b32 s30, 2359296
s_mov_b32 s31, 0x20000
v_mov_b32 v8, 0
v_mov_b32 v9, 0
v_mov_b32 v10, 0
v_mov_b32 v11, 0
s_mov_b32 s58, 0x3f803f80
s_waitcnt lgkmcnt(0)
s_mov_b32 s28, s4
s_mov_b32 s29, s5
""")
    def xacc(st_):
        for q in range(4):
            for p in range(2):
                r = 16 + 8*st_ + 4*p + q
                e(f"v_dot2c_f32_bf16 v{8+p}, s58, v{r}\n v_dot2c_f32_bf16 v{10+p}, v{r}, v{r}")
    for st_ in range(9):
        e(f"buffer_load_dwordx4 v[{16+8*st_}:{19+8*st_}], v4, s[28:31], s56 offen offset:{128*st_}\n buffer_load_dwordx4 v[{20+8*st_}:{23+8*st_}], v4, s[28:31], s57 offen offset:{128*st_}")
        if st_ < 8: e("s_barrier")
        if st_ >= LAG:
            e(f"s_waitcnt vmcnt({2*LAG})"); xacc(st_-LAG)
    for st_ in range(9-LAG, 9):
        e(f"s_waitcnt vmcnt({2*(8-st_)})"); xacc(st_)
    srd(36, 24, 0x10000000); srd(64, 22, 256)
    e("v_mov_b32 v28, 0\n buffer_load_dword v27, v28, s[64:67], 0 offen offset:128 sc1")
    for m_ in ("quad_perm:[1,0,3,2]", "quad_perm:[2,3,0,1]", "row_half_mirror"):
        for d in range(8, 12): e(f"v_add_f32_dpp v{d}, v{d}, v{d} {m_} row_mask:0xf bank_mask:0xf")
    e(f"""
v_and_b32 v5, 1, v1
v_cmp_eq_u32 vcc, 1, v5
v_cndmask_b32 v16, v8, v9, vcc
v_cndmask_b32 v18, v10, v11, vcc
v_mul_f32 v16, {inv:#x}, v16
v_mul_f32 v18, {inv:#x}, v18
v_fma_f32 v18, -v16, v16, v18
v_max_f32 v18, 0, v18
v_cvt_pk_bf16_f32 v20, v16, v18
v_lshlrev_b32 v16, 16, v20
v_and_b32 v18, 0xffff0000, v20
v_add_f32 v18, {f2u(1e-5):#x}, v18
v_cvt_pk_bf16_f32 v18, v18, v18
v_and_b32 v18, 0xffff0000, v18
v_sqrt_f32 v18, v18
v_cvt_pk_bf16_f32 v18, v18, v18
v_and_b32 v18, 0xffff0000, v18
v_rcp_f32 v18, v18
v_lshl_add_u32 v20, v5, 3, v2
v_lshlrev_b32 v20, 2, v20
v_mul_f32_e64 v19, -v16, v18
v_min_u32 v18, -2, v18
v_min_u32 v19, -2, v19
s_lshl_b32 s56, s55, 6
s_lshl_b32 s57, s46, 14
s_add_u32 s56, s56, s57
s_add_u32 s56, s56, {XST}
s_add_u32 s57, s56, 8192
""")
    flags_wait("x", True, 128)
    e(f"""
s_mov_b32 s58, 0x03030303
s_mov_b32 s59, 0x03030303
s_mov_b64 exec, s[58:59]
buffer_store_dword v18, v20, s[36:39], s56 offen sc1
buffer_store_dword v19, v20, s[36:39], s57 offen sc1
s_mov_b64 exec, -1
""")
    stamp(1)
    e("s_cmp_eq_u32 s27, 24\n s_cbranch_scc1 L_F\n s_cmp_lt_u32 s27, 27\n s_cbranch_scc1 L_HS3")
    fin()
    a.lab("L_HS3")
    e("s_sub_u32 s53, s27, 9\n s_cmp_lt_u32 s3, 4\n s_cbranch_scc1 L_HS3b")
    wo_setup(); wo_dma("h")
    e("s_cmp_lg_u32 s54, 3\n s_cbranch_scc1 L_HS3b")
    sw_calc()
    flags_wait("h", False, 132, nap=4)
    a.lab("L_HS3b")
    e("s_waitcnt vmcnt(0) lgkmcnt(0)\n s_barrier\n s_branch L_s3pre")

    a.lab("L_R")
    e(f"""
s_cmp_lg_u32 s3, 0
s_cbranch_scc1 L_R1
s_getpc_b64 s[40:41]
L_pc:
s_sub_u32 s40, s40, L_pc-{NAME}
s_subb_u32 s41, s41, 0
s_sub_u32 s57, s27, 28
s_lshl_b32 s57, s57, 13
v_lshl_add_u32 v2, v1, 7, s57
v_min_u32 v2, L_codeend-{NAME}-4, v2
global_load_dword v6, v2, s[40:41]
L_R1:
v_mov_b32 v8, -1
v_mov_b32 v9, -1
v_mov_b32 v10, -1
v_mov_b32 v11, -1
v_lshlrev_b32 v12, 4, v1
s_lshl_b32 s48, s26, 2
s_add_u32 s48, s48, s47
s_sub_u32 s48, s48, 12
s_lshl_b32 s57, s48, 3
s_add_u32 s57, s57, s3
s_lshl_b32 s56, s57, 11
s_add_u32 s56, s56, {XST}
s_lshl_b32 s57, s57, 14
s_add_u32 s58, s57, 16384
s_waitcnt lgkmcnt(0)
""")
    srd(36, 24, 0x10000000); srd(64, 22, 256); srd(68, 8, 663552)
    e(f"""
buffer_store_dwordx4 v[8:11], v12, s[36:39], s56 offen sc1
buffer_store_dwordx4 v[8:11], v12, s[36:39], s56 offen offset:1024 sc1
s_waitcnt vmcnt(0)
s_barrier
s_cmp_lg_u32 s3, 0
s_cbranch_scc1 L_R2
""")
    arrive("q", 0, 128, 32)
    stamp(1)
    e(f"""
L_R2:
buffer_store_dwordx4 v[8:11], v12, s[36:39], s57 offen {rflag}
s_add_u32 s57, s57, 1024
s_cmp_lt_u32 s57, s58
s_cbranch_scc1 L_R2
s_cmp_ge_u32 s3, 3
s_cbranch_scc1 L_R4
s_mul_i32 s56, s48, 3
s_add_u32 s56, s56, s3
s_lshl_b32 s56, s56, 13
v_lshlrev_b32 v2, 7, v1
buffer_load_dword v6, v2, s[68:71], s56 offen
L_R4:
s_waitcnt vmcnt(0)
s_barrier
s_cmp_lg_u32 s3, 0
s_cbranch_scc1 L_R3
""")
    arrive("r", 4, 132, 32)
    a.lab("L_R3")
    stamp(2)
    fin()

    a.lab("L_F")
    e(f"""
s_mul_i32 s48, s26, 9
s_add_u32 s48, s48, s47            ; fi
""")
    GW = 16; DW = 88
    srd(32, 18, 5308416); srd(68, 14, 5308416)
    e(f"""
s_and_b32 s56, s3, 1
s_lshl_b32 s56, s56, 4
s_bfe_u32 s57, s3, 0x10001
s_lshl_b32 s57, s57, 2
s_add_u32 s56, s56, s57
s_lshr_b32 s57, s3, 2
s_lshl_b32 s57, s57, 5
s_add_u32 s55, s56, s57
s_lshl_b32 s57, s48, 6
s_add_u32 s56, s55, s57
s_mul_i32 s56, s56, 1152
s_mul_i32 s57, s3, 9216
v_lshlrev_b32 v2, 4, v1
v_lshrrev_b32 v3, 5, v1
v_mul_u32_u24 v3, 4608, v3
v_add_u32 v3, v3, v2
""")
    for t in range(9):
        e(f"s_add_u32 m0, s57, {F_WU + t*1024}\n s_add_u32 s58, s56, {t*1024 + (4608 if t > 4 else 0)}\n buffer_load_dwordx4 v{3 if t == 4 else 2}, s[32:35], s58 offen nt lds")
    def gu_dma(tag, base):
        e(f"""
s_lshl_b32 s56, s48, 7
s_lshl_b32 s57, s3, 10
s_add_u32 s57, s57, {base}
s_mov_b32 s58, 0
L_Fl{tag}:
s_mov_b32 m0, s57
s_add_u32 s57, s57, 8192
buffer_load_dwordx4 v4, s[68:71], s56 offen nt lds
s_add_u32 s56, s56, {64*9216}
s_add_u32 s58, s58, 1
s_cmp_lt_u32 s58, 9
s_cbranch_scc1 L_Fl{tag}
""")
    e(f"""
v_lshrrev_b32 v2, 3, v1            ; rr
v_and_b32 v3, 7, v1
v_xor_b32 v3, v3, v2
v_lshlrev_b32 v3, 4, v3
v_lshrrev_b32 v4, 2, v2
v_and_b32 v5, 3, v2
v_lshl_add_u32 v4, v4, 3, v5
v_add_u32 v4, s55, v4              ; k local
v_mul_u32_u24 v4, 9216, v4
v_add_u32 v4, v4, v3
""")
    gu_dma("g", F_WG)
    e(f"""
v_lshrrev_b32 v2, 2, v13
v_lshl_add_u32 v2, v14, 2, v2
v_mul_u32_u24 v2, 1152, v2
v_and_b32 v3, 3, v13
v_lshl_add_u32 v2, v3, 3, v2
v_add_u32 v2, {F_WU}, v2
s_lshl_b32 s56, s3, 5
v_add_u32 v5, s56, v2
s_min_u32 s56, s3, 3
s_lshl_b32 s56, s56, 5
v_add_u32 v6, s56, v2
v_lshlrev_b32 v251, 2, v1
s_mov_b32 s68, s16
s_mov_b32 s69, s17
s_waitcnt vmcnt(9)
s_barrier
""")
    for i in range(5):
        for k in range(2):
            for hf in range(2):
                d = DW + 8*i + 4*k + 2*hf
                e(f"ds_read_b64_tr_b16 v[{d}:{d+1}], v{6 if i == 4 else 5} offset:{(k*32+hf*16)*1152 + 256*i}")
    e("s_waitcnt lgkmcnt(0)\n s_barrier")
    gu_dma("u", F_WU)
    e(f"""
v_lshrrev_b32 v2, 2, v13
v_lshl_add_u32 v2, v14, 2, v2      ; rho
v_and_b32 v3, 7, v2
v_xor_b32 v3, s3, v3
v_lshlrev_b32 v3, 4, v3
v_lshl_add_u32 v3, v2, 7, v3
v_and_b32 v4, 1, v13
v_lshl_add_u32 v3, v4, 3, v3
v_bfe_u32 v4, v13, 1, 1
s_mov_b32 s56, {F_WU}
v_mad_u32_u24 v5, v4, s56, v3
v_add_u32 v6, 0x9000, v5
v_mov_b32 v249, 0
""")
    flags_wait("f", False, 132, 250, 249)
    e("s_barrier")
    for k in range(18):
        for hf in range(2):
            off = (k*32+hf*16)*128
            reg = 5
            if k >= 9: off -= 0x9000; reg = 6
            e(f"ds_read_b64_tr_b16 v[{GW+4*k+2*hf}:{GW+4*k+2*hf+1}], v{reg} offset:{off}")
    e(f"""
v_lshlrev_b32 v7, 4, v0            ; tid*16
v_and_b32 v2, 1, v13
v_mul_u32_u24 v8, 1168, v2
v_lshl_add_u32 v8, v14, 4, v8
v_add_u32 v8, {F_HN}, v8
v_lshlrev_b32 v9, 7, v2
v_lshl_add_u32 v10, v14, 4, v9
v_add_u32 v10, {F_ACT}, v10
v_lshl_add_u32 v9, v14, 3, v9
s_lshl_b32 s56, s3, 4
s_add_u32 s56, s56, {F_ACT}
v_add_u32 v9, s56, v9
v_mul_u32_u24 v11, 2304, v2
v_lshl_add_u32 v11, v14, 4, v11    ; y voffset
s_lshl_b32 s56, s3, 5
s_add_u32 s56, s56, {F_KEYS}
v_lshl_add_u32 v12, v14, 3, s56
v_add_u32 v15, {F_KEYS}, v251
v_cmp_le_u32 vcc, 72, v0
v_cndmask_b32_e64 v128, 0, 1, vcc
v_mul_u32_u24 v129, 1152, v128
v_sub_u32 v129, v7, v129
v_lshl_add_u32 v130, v128, 4, v7
v_add_u32 v130, {F_HN}, v130
s_mul_i32 s60, s48, 4608
s_lshl_b32 s56, s3, 6
s_add_u32 s60, s60, s56
s_add_u32 s60, s60, {YP}
s_mov_b32 s57, {KEY}
s_mov_b32 s59, 0
s_waitcnt lgkmcnt(0)
""")
    stamp(2)
    e(f"""
L_k0:
buffer_load_dwordx4 v[132:135], v7, s[36:39], s57 offen sc1
s_waitcnt vmcnt(0)
v_max3_u32 v2, v132, v133, v134
v_max_u32 v2, v2, v135
v_cmp_eq_u32 vcc, -1, v2
s_cbranch_vccz L_k1
s_sleep 1
s_add_u32 s59, s59, 1
s_cmp_lt_u32 s59, {SPIN}
s_cbranch_scc1 L_k0
L_k1:
""")
    stamp(3)
    e("""
v_max_u32 v136, v132, v133
v_min_u32 v137, v132, v133
v_max_u32 v138, v134, v135
v_min_u32 v139, v134, v135
v_min_u32 v3, v136, v138
v_max3_u32 v3, v3, v137, v139
""")
    rowmax(136, 2)
    e("v_cmp_eq_u32 vcc, v2, v136\n v_cndmask_b32 v2, v2, v3, vcc")
    rowmax(137, 2)
    e("ds_write_b64 v12, v[136:137]\n s_waitcnt lgkmcnt(0)\n s_barrier\n ds_read_b32 v2, v15\n s_waitcnt lgkmcnt(0)")
    def wavemax(sd, src):
        rowmax(136, src)
        e(f"v_readlane_b32 s{sd}, v136, 0\n v_readlane_b32 s56, v136, 16\n v_readlane_b32 s57, v136, 32\n v_readlane_b32 s58, v136, 48")
        e(f"s_max_u32 s{sd}, s{sd}, s56\n s_max_u32 s57, s57, s58\n s_max_u32 s{sd}, s{sd}, s57")
    wavemax(50, 2)
    e("v_cmp_ne_u32 vcc, s50, v2\n v_cndmask_b32 v2, 0, v2, vcc")
    wavemax(51, 2)
    e(f"""
s_and_b32 s52, s50, 0x7ff
s_sub_u32 s52, 2047, s52           ; token 0
s_and_b32 s53, s51, 0x7ff
s_sub_u32 s53, 2047, s53           ; token 1
s_lshr_b32 s56, s52, 4
s_lshr_b32 s57, s53, 4
s_cmp_eq_u32 s56, s57
s_cselect_b32 s58, 2304, 0
s_mul_i32 s61, s56, 4608
s_mul_i32 s62, s57, 4608
s_add_u32 s62, s62, s58
s_cmp_ge_u32 s3, 3
s_cbranch_scc1 L_f2
s_sub_u32 s56, s62, s61
v_mul_lo_u32 v2, v128, s56
v_add_u32 v2, v2, v129
v_add_u32 v2, s61, v2
v_cmp_gt_u32 vcc, 144, v0
s_mov_b64 exec, vcc
s_mov_b32 s57, {CAND}
s_mov_b32 s59, 0
L_f0:
buffer_load_dwordx4 v[132:135], v2, s[36:39], s57 offen sc1
s_waitcnt vmcnt(0)
v_max3_u32 v3, v132, v133, v134
v_max_u32 v3, v3, v135
v_cmp_eq_u32 vcc, -1, v3
s_cbranch_vccz L_f1
s_add_u32 s59, s59, 1
s_cmp_lt_u32 s59, {SPIN}
s_cbranch_scc1 L_f0
L_f1:
ds_write_b128 v130, v[132:135]
s_mov_b64 exec, -1
s_waitcnt lgkmcnt(0)
L_f2:
s_barrier
""")
    stamp(4)
    HB = 140
    for k in range(18): e(f"ds_read_b128 v[{HB+4*k}:{HB+4*k+3}], v8 offset:{64*k}")
    for k in range(18):
        e(f"s_waitcnt lgkmcnt({min(17-k,15)})")
        e(f"v_mfma_f32_16x16x32_bf16 v[132:135], v[{GW+4*k}:{GW+4*k+3}], v[{HB+4*k}:{HB+4*k+3}], " + ("0" if k == 0 else "v[132:135]"))
    e("""
v_cvt_pk_bf16_f32 v136, v132, v133
v_cvt_pk_bf16_f32 v137, v134, v135
v_mov_b32 v138, v136
v_mov_b32 v139, v137
v_permlane32_swap_b32 v136, v138
v_permlane32_swap_b32 v137, v139
""")
    for h in range(2):
        e(f"v_lshlrev_b32 v{140+2*h}, 16, v{136+h}\n v_and_b32 v{141+2*h}, 0xffff0000, v{136+h}\n v_lshlrev_b32 v{144+2*h}, 16, v{138+h}\n v_and_b32 v{145+2*h}, 0xffff0000, v{138+h}")
    for q in range(4): e(f"v_mul_f32 v{148+q}, {f2u(-LOG2E):#x}, v{140+q}")
    for q in range(4): e(f"v_exp_f32 v{148+q}, v{148+q}")
    for q in range(4): e(f"v_add_f32 v{148+q}, 1.0, v{148+q}")
    for q in range(4): e(f"v_rcp_f32 v{148+q}, v{148+q}")
    for q in range(4): e(f"v_mul_f32 v{140+q}, v{140+q}, v{148+q}")
    for h in range(2): e(f"v_cvt_pk_bf16_f32 v{136+h}, v{140+2*h}, v{141+2*h}")
    for h in range(2): e(f"v_lshlrev_b32 v{140+2*h}, 16, v{136+h}\n v_and_b32 v{141+2*h}, 0xffff0000, v{136+h}")
    for q in range(4): e(f"v_mul_f32 v{140+q}, v{140+q}, v{144+q}")
    for h in range(2): e(f"v_cvt_pk_bf16_f32 v{136+h}, v{140+2*h}, v{141+2*h}")
    e(f"""
s_mov_b64 exec, 0x30003
ds_write_b64 v9, v[136:137]
s_mov_b64 exec, -1
s_waitcnt lgkmcnt(0)
s_barrier
ds_read_b128 v[140:143], v10
ds_read_b128 v[144:147], v10 offset:64
s_waitcnt lgkmcnt(0)
""")
    for k in range(2):
        for i in range(5):
            c = 148 + 4*i
            e(f"v_mfma_f32_16x16x32_bf16 v[{c}:{c+3}], v[{DW+8*i+4*k}:{DW+8*i+4*k+3}], v[{140+4*k}:{143+4*k}], " + ("0" if k == 0 else f"v[{c}:{c+3}]"))
    e("s_mov_b32 s56, 0x30003\n s_mov_b32 s57, 0x30003\n s_mov_b64 exec, s[56:57]")
    for i in range(5):
        c = 148 + 4*i
        if i == 4: e("s_cmp_ge_u32 s3, 4\n s_cbranch_scc1 L_y1")
        for q in range(4): e(f"v_min_u32 v{c+q}, -2, v{c+q}")
        e(f"buffer_store_dwordx4 v[{c}:{c+3}], v11, s[36:39], s60 offen offset:{512*i} sc1")
    a.lab("L_y1")
    e("s_mov_b64 exec, -1")
    stamp(5)
    e("s_cmp_lg_u32 s3, 7\n s_cbranch_scc1 L_fin\n s_cmp_ge_u32 s48, 36\n s_cbranch_scc1 L_fin")
    e(f"""
s_cmp_ge_u32 s48, 18
s_cselect_b32 s50, s51, s50
s_cselect_b32 s52, s53, s52
s_cselect_b32 s61, s62, s61
s_cselect_b32 s56, 18, 0
s_sub_u32 s56, s48, s56
s_lshl_b32 s56, s56, 6
s_add_u32 s61, s61, s56
s_add_u32 s61, s61, {CAND}
s_mul_i32 s52, s52, 1152
s_add_u32 s52, s52, s56
s_lshl_b32 s62, s48, 7
s_add_u32 s62, s62, {YP}
v_and_b32 v2, 7, v1
v_lshlrev_b32 v4, 3, v2
v_lshrrev_b32 v3, 3, v1
v_mul_u32_u24 v3, 4608, v3
v_lshl_add_u32 v3, v2, 4, v3
s_ashr_i32 s56, s50, 31
s_not_b32 s56, s56
s_or_b32 s56, s56, 0x80000000
s_xor_b32 s56, s56, s50
s_and_b32 s56, s56, 0xffff0000
v_mov_b32 v5, {f2u(-LOG2E):#x}
v_mul_f32 v5, s56, v5
v_exp_f32 v5, v5
v_add_f32 v5, 1.0, v5
v_rcp_f32 v5, v5
v_cvt_pk_bf16_f32 v5, v5, v5
v_and_b32 v5, 0xffff0000, v5
s_mov_b32 s59, 0
{"s_waitcnt vmcnt(0)" if dwait else ""}
L_d0:
s_mov_b32 s57, s62
""")
    for i in range(9):
        e(f"buffer_load_dwordx4 v[{16+4*i}:{19+4*i}], v3, s[36:39], s57 offen sc1")
        if i < 8: e(f"s_add_u32 s57, s57, {8*4608}")
    e("buffer_load_dwordx2 v[52:53], v4, s[36:39], s61 offen sc1\n buffer_load_dwordx2 v[54:55], v4, s[36:39], s61 offen offset:1152 sc1\n s_waitcnt vmcnt(0)")
    e("v_max3_u32 v2, v16, v17, v18")
    for i in range(19, 55, 2): e(f"v_max3_u32 v2, v2, v{i}, v{i+1}")
    e(f"""
v_max_u32 v2, v2, v55
v_cmp_eq_u32 vcc, -1, v2
s_cbranch_vccz L_d1
s_add_u32 s59, s59, 1
s_cmp_lt_u32 s59, {SPIN}
s_cbranch_scc1 L_d0
L_d1:
""")
    stamp(6)
    for st in (16, 8, 4):
        for i in range(0, st, 2): e(f"v_pk_add_f32 v[{16+i}:{17+i}], v[{16+i}:{17+i}], v[{16+st+i}:{17+st+i}]")
    e("v_pk_add_f32 v[16:17], v[16:17], v[48:49]\n v_pk_add_f32 v[18:19], v[18:19], v[50:51]")
    for q in range(4): e(f"v_add_f32_dpp v{16+q}, v{16+q}, v{16+q} row_ror:8 row_mask:0xf bank_mask:0xf")
    for wh in (16, 32):
        for q in range(4): e(f"v_mov_b32 v{20+q}, v{16+q}")
        for q in range(4): e(f"v_permlane{wh}_swap_b32 v{16+q}, v{20+q}")
        for q in range(4): e(f"v_add_f32 v{16+q}, v{16+q}, v{20+q}")
    def rnd4():
        for h in range(2): e(f"v_cvt_pk_bf16_f32 v{24+h}, v{16+2*h}, v{17+2*h}")
        for h in range(2): e(f"v_lshlrev_b32 v{16+2*h}, 16, v{24+h}\n v_and_b32 v{17+2*h}, 0xffff0000, v{24+h}")
    rnd4()
    for q in range(4): e(f"v_mul_f32 v{16+q}, v{16+q}, v5")
    for src in (52, 54):
        rnd4()
        for h in range(2): e(f"v_lshlrev_b32 v{20+2*h}, 16, v{src+h}\n v_and_b32 v{21+2*h}, 0xffff0000, v{src+h}")
        for q in range(4): e(f"v_add_f32 v{16+q}, v{16+q}, v{20+q}")
    for h in range(2): e(f"v_cvt_pk_bf16_f32 v{24+h}, v{16+2*h}, v{17+2*h}")
    srd(68, 20, 2359296)
    e("s_mov_b64 exec, 0xff\n buffer_store_dwordx2 v[24:25], v4, s[68:71], s52 offen sc1")
    stamp(7)
    a.lab("L_fin")
    fin()
    a.lab("L_end")
    e("s_endpgm")
    a.lab("L_codeend")

    lines, n = hazard.fix(a.L)
    import os
    ref = "sequential_preLN__linear_attn_block__moe_arch_mod__prompt.s.ref"
    hdr = open(ref).read().split("; @launch")[0] if os.path.exists(ref) else ""
    hdr += f"""; @launch grid=(256,1,1) block=(512,1,1) lds=163840
.amdgcn_target "amdgcn-amd-amdhsa--gfx950"
.text
.globl {NAME}
.p2align 8
.type {NAME},@function
"""
    tail = f"""
.section .rodata,"a"
.p2align 6
.amdhsa_kernel {NAME}
  .amdhsa_next_free_vgpr 256
  .amdhsa_next_free_sgpr 102
  .amdhsa_accum_offset 256
  .amdhsa_group_segment_fixed_size 0
  .amdhsa_kernarg_size 88
  .amdhsa_user_sgpr_count 2
  .amdhsa_user_sgpr_kernarg_segment_ptr 1
  .amdhsa_system_sgpr_workgroup_id_x 1
.end_amdhsa_kernel
"""
    return hdr + "\n".join(lines) + "\n" + tail

if __name__ == "__main__":
    assert all((n*1821)>>16 == n//36 for n in range(108))
    assert all((n*13108)>>16 == n//5 for n in range(192))
    assert all((n*1639)>>16 == n//40 for n in range(120))
    print(gen(stamps=len(sys.argv) > 1))
```

```python
import sys, struct
from asmlib import *
import hazard, align

NAME = "sequential_preLN__linear_attn_block__moe_arch_mod__prompt_kernel"
KVP = 0
OB  = KVP + 16*8*3072
ST  = OB + 128*16*1152
KEY = ST + 128*9*256
CAND = KEY + 9*2048
YP  = CAND + 16*2*2304
assert YP + 72*4608 <= 256*14336
XST = 4<<20
CS  = XST + 32768
assert CS + 64*3840 <= XST + 256*2048
TS_OFF = 0x8000000
XS = 32768; STG = XS + 16384; NBUF = 3
L_WO = 0; L_KVRED = 73728; L_PQ = 106496
L_RS = 153600; L_MRS = L_RS + 1024; L_CS = L_MRS + 1024; L_KT = L_CS + 1024; L_SW = L_KT + 1536
L_STAGE = L_KVRED
L_WR = L_SW + 64
L_KEY = L_WR + 1280
L_XT = L_PQ + 30720
assert L_XT + 16384 == L_RS and L_KEY + 64 <= 163840
F_WG = 0; F_WU = 73728; F_WD = 0; F_HN = 147456; F_ACT = F_HN + 2560; F_KEYS = F_ACT + 256; F_RED = F_KEYS + 256
SPIN = 1 << 17
def f2u(x): return struct.unpack("<I", struct.pack("<f", x))[0]
LOG2E = 1.4426950408889634

def gen(stamps=False, owait=1, await_=1, cwait=1, dwait=1, rflag='sc1', diag=None, doalign=1, gate=1, fstore='sc1', ksleep=0, merged=0, LAG=3, hintall=1, hsleep=2, obar=0, hprio=1, ahead=3, outwait=0, rot=0, krep=1, dsleep=0, csleep=0, asleep=0, osleep=0):
    NPRE = 6
    a = Asm()
    e = a.e
    def stamp(i):
        if stamps or diag: e(f"s_memrealtime s[{72+2*i}:{73+2*i}]")
    def fin():
        if diag:
            wg, wave, idx, K = diag
            lb = a.new("L_dg")
            e("s_waitcnt vmcnt(0) lgkmcnt(0)")
            if idx == "xcc":
                e(f"s_getreg_b32 s44, hwreg(HW_REG_XCC_ID)\n s_and_b32 s44, s44, 7\n s_and_b32 s45, s2, 7\n s_cmp_eq_u32 s44, s45\n s_cbranch_scc1 {lb}e\n s_add_u32 s44, s72, 10000")
            else:
                e(f"s_cmp_lg_u32 s2, {wg}\n s_cbranch_scc1 {lb}e\n s_cmp_lg_u32 s3, {wave}\n s_cbranch_scc1 {lb}e")
                if idx == "fix": e(f"s_add_u32 s44, s72, {K}")
                else: e(f"s_sub_u32 s44, s{72+2*idx}, s72\n s_min_u32 s44, s44, 10000\n s_mul_i32 s44, s44, {K}\n s_add_u32 s44, s44, s72")
            e(f"{lb}:\n s_memrealtime s[46:47]\n s_waitcnt lgkmcnt(0)\n s_sub_u32 s45, s46, s44\n s_cmp_lt_i32 s45, 0\n s_cbranch_scc1 {lb}\n{lb}e:")
        if stamps:
            e("s_waitcnt vmcnt(0) lgkmcnt(0)")
            e("s_mov_b64 exec, -1")
            e(f"s_lshl_b32 s44, s2, 3\n s_add_u32 s44, s44, s3\n s_lshl_b32 s44, s44, 6\n s_add_u32 s44, s44, {TS_OFF}\n v_mov_b32 v2, 0")
            for i in range(15):
                e(f"v_mov_b32 v3, s{72+2*i}\n buffer_store_dword v3, v2, s[36:39], s44 offen offset:{4*i}")
        e("s_endpgm")
    def srd(d, p, n):
        e(f"s_mov_b32 s{d}, s{p}\n s_mov_b32 s{d+1}, s{p+1}\n s_mov_b32 s{d+2}, {n}\n s_mov_b32 s{d+3}, 0x20000")
    def rowmax(d, s):
        e(f"v_max_u32_dpp v{d}, v{s}, v{s} quad_perm:[1,0,3,2] row_mask:0xf bank_mask:0xf")
        e(f"v_max_u32_dpp v{d}, v{d}, v{d} quad_perm:[2,3,0,1] row_mask:0xf bank_mask:0xf")
        e(f"v_max_u32_dpp v{d}, v{d}, v{d} row_half_mirror row_mask:0xf bank_mask:0xf")
        e(f"v_max_u32_dpp v{d}, v{d}, v{d} row_mirror row_mask:0xf bank_mask:0xf")
    def rowsum(d):
        for m in ("quad_perm:[1,0,3,2]", "quad_perm:[2,3,0,1]", "row_half_mirror", "row_mirror"):
            e(f"v_add_f32_dpp v{d}, v{d}, v{d} {m} row_mask:0xf bank_mask:0xf")
    def xsum(d, t, which, op="v_add_f32"):
        e(f"v_mov_b32 v{t}, v{d}\n v_permlane{which}_swap_b32 v{d}, v{t}\n {op} v{d}, v{d}, v{t}")

    a.lab(NAME)
    e("""
s_load_dwordx16 s[4:19], s[0:1], 0
s_load_dwordx4 s[20:23], s[0:1], 64
s_load_dwordx2 s[24:25], s[0:1], 80
""")
    if stamps:
        for i in range(1, 15): e(f"s_mov_b64 s[{72+2*i}:{73+2*i}], 0")
    stamp(0)
    e(f"""
v_lshrrev_b32 v2, 6, v0
v_and_b32 v1, 63, v0
s_cmp_ge_u32 s2, 256
v_readfirstlane_b32 s3, v2
s_cbranch_scc1 L_end
s_and_b32 s26, s2, 7
s_lshr_b32 s27, s2, 3          ; slot
s_lshr_b32 s45, s26, 1         ; rbg
s_and_b32 s46, s2, 1           ; half
v_and_b32 v13, 15, v1
v_lshrrev_b32 v14, 4, v1
s_and_b32 s54, s3, 3           ; w
s_cmp_ge_u32 s27, 16
s_cbranch_scc1 L_B
s_and_b32 s47, s27, 7
s_lshl_b32 s48, s46, 3
s_add_u32 s48, s48, s47        ; hp
s_lshr_b32 s49, s27, 3
s_lshl_b32 s50, s45, 1
s_add_u32 s50, s50, s49        ; rb (0..7)
s_mul_i32 s51, s48, 72
s_and_b32 s52, s51, 8
s_and_b32 s51, s51, -16        ; a0
s_mov_b32 s53, s27
s_cmp_lt_u32 s3, 4
s_cbranch_scc1 L_compute
""")
    e(f"""
s_setprio 2
s_lshl_b32 s55, s50, 5
s_add_u32 s55, s55, s54
s_lshl_b32 s55, s55, 3
v_lshrrev_b32 v2, 3, v1
v_add_u32 v2, s55, v2
v_mul_u32_u24 v16, 1152, v2
s_and_b32 s56, s54, 1
s_lshl_b32 s57, s56, 2
v_add_u32 v3, s57, v14
v_and_b32 v2, 7, v1
v_xor_b32 v2, v2, v3
v_lshl_add_u32 v16, v2, 4, v16
v_lshrrev_b32 v2, 1, v13
v_xor_b32 v2, v2, v3
v_and_b32 v3, 1, v1
v_lshl_add_u32 v2, v2, 1, v3
v_min_u32 v2, 14, v2
v_mul_u32_u24 v3, 52, v2
v_lshrrev_b32 v3, 8, v3
v_lshlrev_b32 v2, 4, v2
v_xor_b32 v15, 1, v3
v_lshrrev_b32 v4, 1, v3
v_sub_u32 v15, v15, v4
v_mul_u32_u24 v15, 1152, v15
v_mul_u32_u24 v3, 80, v3
v_sub_u32 v2, v2, v3
s_lshl_b32 s55, s54, 3
v_add_u32 v3, s55, v14
v_mul_u32_u24 v3, 3456, v3
v_add3_u32 v17, v2, v3, v15
s_lshl_b32 s41, s54, 10
s_mov_b32 s55, 0
s_mov_b32 s56, s51
s_mov_b32 s43, 0
s_mov_b32 s44, -1
s_mov_b32 s30, 2359296
s_mov_b32 s31, 0x20000
s_mov_b32 s34, 1990656
s_mov_b32 s35, 0x20000
s_waitcnt lgkmcnt(0)
s_mov_b32 s28, s4
s_mov_b32 s29, s5
s_mov_b32 s32, s6
s_mov_b32 s33, s7
""")
    def issue():
        e("s_mov_b32 s57, s55")
        for i in range(8):
            if i < 4:
                e(f"s_add_u32 m0, s41, {XS + i*4096}\n s_add_u32 s58, s56, {((i>>1)*32 + (i&1)*4)*3456}")
                e("buffer_load_dwordx4 v17, s[32:35], s58 offen lds")
            e(f"s_add_u32 m0, s41, {i*4096}")
            if i: e(f"s_add_u32 s57, s57, {2*18432}")
            e("buffer_load_dwordx4 v16, s[28:31], s57 offen lds")
        e(f"""
s_add_u32 s55, s55, 128
s_add_u32 s56, s56, {64*3456}
s_add_u32 s43, s43, 1
s_add_u32 s41, s41, {STG}
s_cmp_eq_u32 s43, {NBUF}
s_cselect_b32 s57, {NBUF*STG}, 0
s_cselect_b32 s43, 0, s43
s_sub_u32 s41, s41, s57
s_add_u32 s44, s44, 1
""")
    a.lab("L_hloop0")
    issue()
    e("""
s_cmp_eq_u32 s44, 0
s_cbranch_scc1 L_hloop0
s_waitcnt vmcnt(12)
s_barrier
s_cmp_lg_u32 s44, 2
s_cbranch_scc1 L_hloop0
""")
    e("s_setprio 0")
    stamp(14)
    e(f"""
v_lshl_add_u32 v2, s54, 6, v1      ; n = 64w + lane
s_lshl_b32 s57, s50, 10
s_lshl_b32 s60, s46, 14
s_add_u32 s60, s60, s57
s_add_u32 s60, s60, {XST}
v_lshlrev_b32 v18, 2, v2
v_min_u32 v3, 107, v2
v_mul_u32_u24 v4, 1821, v3
v_lshrrev_b32 v4, 16, v4           ; sec = c/36
v_xor_b32 v5, 1, v4
v_lshrrev_b32 v6, 1, v4
v_sub_u32 v5, v5, v6
v_mul_u32_u24 v5, 320, v5
v_mul_u32_u24 v4, 36, v4
v_sub_u32 v3, v3, v4
v_add_u32 v3, v3, v5
v_lshlrev_b32 v19, 2, v3
s_mul_i32 s61, s48, 144
s_lshl_b32 s57, s46, 10
s_sub_u32 s61, s61, s57
s_mul_i32 s57, s26, {8*3840}
s_add_u32 s61, s61, s57
s_add_u32 s61, s61, {CS}
""")
    e(f"""
v_cmp_gt_u32 vcc, 190, v2
v_cndmask_b32 v3, 0, v2, vcc       ; gamma or 0
v_cndmask_b32 v23, 0, -1, vcc
v_mov_b32 v24, v23
v_mul_u32_u24 v4, 13108, v3
v_lshrrev_b32 v4, 16, v4           ; col
v_mul_u32_u24 v5, 5, v4
v_sub_u32 v5, v3, v5               ; i
v_cmp_le_u32 vcc, 18, v4
v_cndmask_b32 v6, 0, 1, vcc        ; head for col<36
v_cmp_le_u32 vcc, 36, v4
v_subrev_u32 v7, 36, v4
v_cndmask_b32 v6, v6, v7, vcc      ; head
v_cndmask_b32 v4, v4, 36, vcc      ; e (36 = ones column)
v_mov_b32 v12, {f2u(1/LOG2E**2):#x}
v_mov_b32 v11, {f2u(1/LOG2E):#x}
v_cndmask_b32 v12, v12, v11, vcc
v_lshl_add_u32 v7, v6, 2, v5       ; delta = i + 4*head
v_add_u32 v4, 72, v4               ; tile column index 72+e
v_lshrrev_b32 v8, 4, v4
v_subrev_u32 v8, 4, v8             ; TB-4
v_and_b32 v4, 15, v4               ; lane col
v_lshrrev_b32 v9, 2, v7            ; TA
v_mad_u32_u24 v8, v9, 3, v8
v_lshrrev_b32 v10, 1, v9
v_sub_u32 v8, v8, v10
v_and_b32 v9, 3, v7
v_lshl_add_u32 v4, v9, 4, v4
v_lshlrev_b32 v4, 4, v4
v_lshl_add_u32 v22, v8, 10, v4
v_add_u32 v22, {L_KVRED}, v22      ; lds source
v_cmp_eq_u32 vcc, 4, v7
v_cndmask_b32 v8, -1, 0, vcc       ; 0 when delta==4
v_subrev_u32 v9, 1, v6             ; head0: -1, head1: 0
v_or_b32 v9, v9, v8
v_and_b32 v23, v23, v9             ; lo mask
v_sub_u32 v9, 0, v6
v_or_b32 v9, v9, v8
v_and_b32 v24, v24, v9             ; hi mask
v_lshlrev_b32 v25, 4, v2           ; gamma*16
v_lshlrev_b32 v26, 3, v2
v_add_u32 v26, {L_KT}, v26
s_mul_i32 s62, s48, {8*3072}       ; KVP base of this hp
""".replace("v_cndmask_b32 v23, 0, -1, vcc", "v_cndmask_b32_e64 v23, 0, -1, vcc").replace("v_cndmask_b32 v6, 0, 1, vcc", "v_cndmask_b32_e64 v6, 0, 1, vcc").replace("v_cndmask_b32 v4, v4, 36, vcc", "v_cndmask_b32_e64 v4, v4, 36, vcc").replace("v_cndmask_b32 v8, -1, 0, vcc", "v_cndmask_b32_e64 v8, -1, 0, vcc"))
    def wo_setup():
        e(f"""
s_cmp_ge_u32 s53, 9
s_cselect_b32 s57, 9, 0
s_sub_u32 s63, s53, s57            ; cb
v_lshrrev_b32 v2, 3, v1            ; rr
v_and_b32 v3, 7, v1
v_bfe_u32 v4, v1, 4, 2
v_lshlrev_b32 v4, 1, v4
v_xor_b32 v3, v3, v4
v_lshlrev_b32 v3, 4, v3
s_lshl_b32 s57, s63, 7
v_add_u32 v3, s57, v3
v_lshrrev_b32 v4, 2, v2
v_and_b32 v5, 3, v2
v_mad_u32_u24 v6, v4, 10, v5
s_and_b32 s57, s54, 1
s_mul_i32 s58, s57, 18
s_lshr_b32 s59, s54, 1
s_lshl_b32 s42, s59, 2
s_add_u32 s58, s58, s42
v_add_u32 v6, s58, v6
v_mul_u32_u24 v6, 1152, v6
v_add_u32 v20, v6, v3
v_mul_u32_u24 v4, 72, v4
v_bfe_u32 v5, v2, 1, 1
v_mad_u32_u24 v4, v5, 18, v4
v_and_b32 v5, 1, v2
v_add_u32 v4, v4, v5
s_mul_i32 s57, s57, 144
s_mul_i32 s59, s59, 36
s_add_u32 s57, s57, s59
s_add_u32 s57, s57, 8
v_add_u32 v4, s57, v4
v_mul_u32_u24 v4, 1152, v4
v_add_u32 v21, v4, v3
v_and_b32 v3, 7, v1
v_xor_b32 v3, v3, v2
v_mul_u32_u24 v4, 1152, v2
v_lshl_add_u32 v29, v3, 4, v4
s_cmp_ge_u32 s53, 9
s_cselect_b32 s57, 16, 0
s_lshl_b32 s49, s26, 5
s_add_u32 s49, s49, s57
s_add_u32 s49, s49, s54
s_mul_i32 s49, s49, {8*1152}
s_lshl_b32 s57, s63, 7
s_add_u32 s49, s49, s57
""")
    def wo_dma(tag, part=0):
        if part >= 0:
            srd(68, 8, 663552)
            e(f"s_lshl_b32 s42, s54, 10\n s_lshl_b32 s40, s63, 1\n s_and_b32 s40, s40, {15 if rot else 0}\n s_mul_i32 s40, s40, {36*1152}")
        e(f"""
L_wod{tag}:
s_mov_b32 m0, s42
s_add_u32 s42, s42, 4096
buffer_load_dwordx4 v20, s[68:71], s40 offen lds
s_add_u32 s40, s40, {36*1152}
s_cmp_eq_u32 s40, {16*36*1152}
s_cselect_b32 s40, 0, s40
s_cmp_lt_u32 s42, {(part if part > 0 else 16)*4096}
s_cbranch_scc1 L_wod{tag}
""")
        if part <= 0:
            e(f"""
s_mov_b32 m0, s42
s_add_u32 s42, s42, 4096
buffer_load_dwordx4 v21, s[68:71], 0 offen lds
s_mov_b32 m0, s42
s_mov_b32 s40, {288*1152}
buffer_load_dwordx4 v21, s[68:71], s40 offen lds
s_lshl_b32 s42, s54, 10
""")
            for i in range(4):
                e(f"s_add_u32 m0, s42, {L_XT + 4096*i}\n s_add_u32 s40, s49, {i*32*1152}\n buffer_load_dwordx4 v29, s[28:31], s40 offen lds")
    def sw_calc():
        srd(68, 12, 1152)
        e("v_lshlrev_b32 v2, 2, v1")
        for i in range(5): e(f"buffer_load_dword v{30+i}, v2, s[68:71], 0 offen offset:{256*i}")
        e("v_mov_b32 v3, 0\n s_mov_b32 s57, 0x3f803f80\n s_waitcnt vmcnt(0)")
        e(f"v_add_u32 v2, {L_WR}, v2")
        for i in range(5): e(f"ds_write_b32 v2, v{30+i} offset:{256*i}")
        for i in range(5): e(f"v_dot2c_f32_bf16 v3, s57, v{30+i}")
        rowsum(3); xsum(3, 4, 16); xsum(3, 4, 32)
        e(f"v_mov_b32 v4, {L_SW}\n ds_write_b32 v4, v3")
    def flags_wait(tag, issued, off, fv=27, av=28, nap=0):
        e(f"s_mov_b32 s59, 0")
        if issued: e(f"s_branch L_fl1{tag}")
        a.lab(f"L_fl0{tag}")
        if nap: e(f"s_sleep {nap}")
        e(f"""
buffer_load_dword v{fv}, v{av}, s[64:67], 0 offen offset:{off} sc1
L_fl1{tag}:
s_waitcnt vmcnt(0)
v_cmp_eq_u32 vcc, 0, v{fv}
s_cbranch_vccz L_fl2{tag}
s_add_u32 s59, s59, 1
s_cmp_lt_u32 s59, {SPIN}
s_cbranch_scc1 L_fl0{tag}
L_fl2{tag}:
""")
    def arrive(tag, cnt_off, done_off, n):
        e(f"""
v_mov_b32 v20, 1
v_mov_b32 v21, 0
s_mov_b64 exec, 1
buffer_atomic_add v20, v21, s[64:67], 0 offen offset:{cnt_off} sc0
s_waitcnt vmcnt(0)
v_cmp_eq_u32 vcc, {n-1}, v20
s_cbranch_vccz L_ar{tag}
buffer_store_dword v20, v21, s[64:67], 0 offen offset:{done_off} sc1
L_ar{tag}:
s_mov_b64 exec, -1
""")
    wo_setup()
    e("v_mov_b32 v28, 0")
    srd(36, 24, 0x10000000)
    srd(64, 22, 256)
    e("s_branch L_hloop")
    a.lab("L_hloop1")
    e("s_waitcnt vmcnt(12)\n s_barrier")
    a.lab("L_hloop")
    issue()
    e("s_cmp_lg_u32 s44, 8\n s_cbranch_scc1 L_hloop1")
    e("buffer_load_dword v27, v28, s[64:67], 0 offen offset:128 sc1\n s_waitcnt vmcnt(13)\n s_barrier")
    stamp(4)
    flags_wait("a", True, 128)
    stamp(5)
    def statloads():
        e("buffer_load_dword v30, v18, s[36:39], s60 offen sc1\n s_add_u32 s57, s60, 8192\n buffer_load_dword v31, v18, s[36:39], s57 offen sc1\n s_mov_b32 s57, s61")
        for i in range(8):
            e(f"buffer_load_dword v{32+i}, v19, s[36:39], s57 offen sc1")
            if i < 7: e("s_add_u32 s57, s57, 3840")
    statloads()
    e("buffer_load_dword v27, v28, s[64:67], 0 offen offset:132 sc1\n s_barrier")
    stamp(6)
    wo_dma("a", 8)
    e("s_mov_b32 s59, 0\n s_waitcnt vmcnt(8)\n s_branch L_st1")
    a.lab("L_st0")
    statloads()
    e(f"""
s_waitcnt vmcnt(0)
L_st1:
v_max3_u32 v2, v30, v31, v32
v_max3_u32 v2, v2, v33, v34
v_max3_u32 v2, v2, v35, v36
v_max3_u32 v2, v2, v37, v38
v_max_u32 v2, v2, v39
v_cmp_eq_u32 vcc, -1, v2
s_cbranch_vccz L_st2
s_add_u32 s59, s59, 1
s_cmp_lt_u32 s59, {SPIN}
s_cbranch_scc1 L_st0
L_st2:
{"s_memrealtime s[98:99]" if stamps else ""}
v_add_u32 v18, {L_RS}, v18
v_pk_add_f32 v[32:33], v[32:33], v[36:37]
v_pk_add_f32 v[34:35], v[34:35], v[38:39]
v_pk_add_f32 v[32:33], v[32:33], v[34:35]
v_add_f32 v32, v32, v33
ds_write_b32 v18, v30
ds_write_b32 v18, v31 offset:1024
ds_write_b32 v18, v32 offset:2048
""")
    e("s_waitcnt lgkmcnt(0)\n s_barrier")
    stamp(1)
    wo_dma("b", -8)
    flags_wait("r", True, 132)
    e("s_cmp_lg_u32 s54, 3\n s_cbranch_scc1 L_hpub")
    sw_calc()
    e("s_waitcnt vmcnt(0) lgkmcnt(0)\n s_barrier\n s_barrier\n s_branch L_s3pre")
    a.lab("L_hpub")
    if hprio: e("s_setprio 2")
    e("s_waitcnt vmcnt(0)\n s_barrier")
    for i in range(4): e(f"ds_read_b128 v[{32+4*i}:{35+4*i}], v22 offset:{8192*i}")
    e(f"s_mul_i32 s57, s50, 3072\n s_add_u32 s57, s57, s62\n s_waitcnt lgkmcnt(0)")
    e("v_pk_add_f32 v[32:33], v[32:33], v[36:37]\n v_pk_add_f32 v[34:35], v[34:35], v[38:39]\n v_pk_add_f32 v[40:41], v[40:41], v[44:45]\n v_pk_add_f32 v[42:43], v[42:43], v[46:47]")
    e("v_pk_add_f32 v[32:33], v[32:33], v[40:41]\n v_pk_add_f32 v[34:35], v[34:35], v[42:43]")
    for i in range(4): e(f"v_min_u32 v{32+i}, -2, v{32+i}")
    e("buffer_store_dwordx4 v[32:35], v25, s[36:39], s57 offen sc1")
    stamp(2)
    e("s_mov_b32 s59, 0")
    e("s_waitcnt vmcnt(0)" if await_ else f"s_sleep {asleep}")
    a.lab("L_hA")
    e("s_mov_b32 s57, s62")
    for i in range(8):
        e(f"buffer_load_dwordx4 v[{32+4*i}:{35+4*i}], v25, s[36:39], s57 offen sc1")
        if i < 7: e("s_add_u32 s57, s57, 3072")
    e("s_waitcnt vmcnt(0)")
    e("v_max3_u32 v2, v32, v33, v34")
    for i in range(35, 63, 2): e(f"v_max3_u32 v2, v2, v{i}, v{i+1}")
    e(f"""
v_max_u32 v2, v2, v63
v_cmp_eq_u32 vcc, -1, v2
s_cbranch_vccz L_hA2
s_add_u32 s59, s59, 1
s_cmp_lt_u32 s59, {SPIN}
s_cbranch_scc1 L_hA
L_hA2:
""")
    for st in (16, 8, 4):
        for i in range(0, st, 2): e(f"v_pk_add_f32 v[{32+i}:{33+i}], v[{32+i}:{33+i}], v[{32+st+i}:{33+st+i}]")
    e("""
v_pk_mul_f32 v[32:33], v[32:33], v[12:13] op_sel_hi:[1,0]
v_pk_mul_f32 v[34:35], v[34:35], v[12:13] op_sel_hi:[1,0]
v_cvt_pk_bf16_f32 v32, v32, v33
v_cvt_pk_bf16_f32 v33, v34, v35
v_and_b32 v32, v32, v23
v_and_b32 v33, v33, v24
ds_write_b64 v26, v[32:33]
s_waitcnt lgkmcnt(0)
s_barrier
""")
    stamp(3)
    if hprio: e("s_setprio 0")
    e("s_branch L_s3pre")

    OF = 16; AC = 116; WR = 132; BR = 140; BA = 236
    VST, VSW, VSR, VOUT, VC7, VTOK, VSUM = 249, 250, 251, 252, 253, 254, 255
    VKW, VKR = 11, 12
    def bread(k):
        r = []
        for T in range(4):
            for hf in range(2):
                d = BR + (k % NPRE)*16 + 4*T + 2*hf
                off = ((k*32 + hf*16)*128) & 0xffff
                r.append(f"ds_read_b64_tr_b16 v[{d}:{d+1}], v{BA+T} offset:{off}")
        return r
    def s3_setup():
        XR = BR + 80
        e(f"""
s_cmp_ge_u32 s53, 9
s_cselect_b32 s57, 9, 0
s_cselect_b32 s58, 8, 0
s_sub_u32 s63, s53, s57            ; cb
s_lshl_b32 s60, s26, 4
s_add_u32 s60, s60, s58
s_add_u32 s60, s60, s3             ; tb
v_lshrrev_b32 v2, 2, v13
v_lshl_add_u32 v2, v14, 2, v2      ; rho
v_bfe_u32 v3, v2, 1, 2
v_lshlrev_b32 v2, 7, v2
v_and_b32 v4, 3, v13
v_lshl_add_u32 v2, v4, 3, v2
v_lshlrev_b32 v3, 5, v3
v_add_u32 v{BA}, v2, v3
v_xor_b32 v{BA+1}, 32, v{BA}
v_xor_b32 v{BA+2}, 64, v{BA}
v_xor_b32 v{BA+3}, 96, v{BA}
s_mul_i32 s61, s60, {16*1152}
s_add_u32 s62, s61, {OB}
s_lshl_b32 s57, s63, 7
s_add_u32 s61, s61, s57
s_add_u32 s57, s57, {L_WR}
v_lshl_add_u32 v5, v14, 3, s57
v_lshrrev_b32 v2, 1, v14
v_and_b32 v3, 7, v13
v_xor_b32 v2, v2, v3
v_lshlrev_b32 v2, 4, v2
v_lshl_add_u32 v2, v13, 7, v2
v_and_b32 v3, 1, v14
v_lshl_add_u32 v2, v3, 3, v2
s_lshl_b32 s57, s3, 11
s_add_u32 s57, s57, {L_XT}
v_add_u32 v2, s57, v2
""")
        for T in range(4):
            e(f"v_xor_b32 v4, {32*T}, v2\n ds_read_b64 v[{XR+2*T}:{XR+2*T+1}], v4")
            e(f"ds_read_b64 v[{WR+2*T}:{WR+2*T+1}], v5 offset:{32*T}")
        e(f"v_mov_b32 v2, {L_SW}\n ds_read_b32 v{VSUM}, v2")
        for k in range(NPRE-1):
            for x in bread(k): e(x)
        e(f"""
v_and_b32 v2, 3, v13
v_cmp_eq_u32 s[40:41], 2, v2
v_cndmask_b32_e64 v3, 0, -1, s[40:41]
v_mov_b32 v4, 0x3f803f80
v_cmp_eq_u32 s[40:41], 0, v2
v_cndmask_b32_e64 v4, 0, v4, s[40:41]
v_lshlrev_b32 v{VST}, 4, v13
s_mul_i32 s50, s3, 4608
s_add_u32 s50, s50, {L_STAGE}
v_mul_u32_u24 v{VSW}, 144, v13
v_lshl_add_u32 v{VSW}, v14, 3, v{VSW}
v_add_u32 v{VSW}, s50, v{VSW}
v_lshrrev_b32 v{VOUT}, 3, v1
v_add_u32 v{VSR}, v{VOUT}, v1
v_lshl_add_u32 v{VSR}, v{VSR}, 4, s50
v_mul_u32_u24 v{VOUT}, 1152, v{VOUT}
v_and_b32 v{VC7}, 7, v1
v_lshl_add_u32 v{VOUT}, v{VC7}, 4, v{VOUT}
v_lshl_add_u32 v{VTOK}, s60, 4, v13
v_sub_u32 v{VTOK}, 2047, v{VTOK}
s_lshl_b32 s57, s3, 3
s_add_u32 s57, s57, {L_KEY}
v_mov_b32 v{VKW}, s57
v_lshlrev_b32 v{VKR}, 2, v13
v_add_u32 v{VKR}, {L_KEY}, v{VKR}
s_mul_i32 s51, s60, {9*256}
s_add_u32 s51, s51, {ST}
s_lshl_b32 s52, s63, 8
s_add_u32 s52, s52, s51
s_mov_b32 s44, 0x00f0000f
s_mov_b32 s45, 0xf0000f00
s_mov_b32 s46, 0x22222222
s_mov_b32 s47, 0x22222222
s_mov_b32 s48, 0xcccccccc
s_mov_b32 s49, 0xcccccccc
s_mov_b32 s42, 0x88888888
s_mov_b32 s43, 0x88888888
s_lshl_b32 s56, s63, 1
s_and_b32 s56, s56, {15 if rot else 0}
s_waitcnt lgkmcnt(15)
""")
        for i in range(8): e(f"v_lshlrev_b32 v{AC+2*i}, 16, v{XR+i}\n v_and_b32 v{AC+2*i+1}, 0xffff0000, v{XR+i}\n v_and_or_b32 v{WR+i}, v{WR+i}, v3, v4")
        for x in bread(NPRE-1): e(x)

    a.lab("L_compute")
    e(f"""
v_lshrrev_b32 v15, 1, v13
v_xor_b32 v15, v15, v14
v_lshlrev_b32 v15, 4, v15
v_lshl_add_u32 v4, v13, 7, v15
s_lshl_b32 s55, s54, 13
v_add_u32 v4, s55, v4
v_xor_b32 v5, 64, v4
v_lshrrev_b32 v2, 2, v13
v_lshl_add_u32 v2, v14, 2, v2
v_and_b32 v3, 3, v13
v_and_b32 v15, 7, v2
v_lshlrev_b32 v15, 5, v15
v_lshlrev_b32 v2, 8, v2
v_add_u32 v2, {XS}, v2
v_add_u32 v16, 3, v3
v_and_b32 v16, 4, v16
v_lshlrev_b32 v16, 1, v16
v_and_b32 v17, 2, v3
v_lshlrev_b32 v17, 2, v17
v_lshlrev_b32 v3, 3, v3
v_add_u32 v3, s52, v3
""")
    for T in range(7):
        secs = [min((4*T+c)//9, 2) for c in range(4)]
        e(f"v_add_u32 v{6+T}, {32*T + 8*secs[0]}, v3")
        if T == 2: e(f"v_add_u32 v{6+T}, v{6+T}, v16")
        if T == 4: e(f"v_add_u32 v{6+T}, v{6+T}, v17")
        e(f"v_xor_b32 v{6+T}, v{6+T}, v15\n v_add_u32 v{6+T}, v{6+T}, v2")
    e(f"""
v_lshrrev_b32 v16, 3, v13          ; head
v_bfe_u32 v17, v13, 2, 1           ; odd
v_and_b32 v18, 3, v13              ; r
v_mul_u32_u24 v19, 18, v16
v_mad_u32_u24 v19, v17, 10, v19
v_add_u32 v19, v19, v18
v_add_u32 v20, 4, v19              ; tau=1
v_add_u32 v21, 8, v19
v_add_u32 v22, 36, v16
v_cmp_eq_u32 vcc, 2, v18
v_cndmask_b32 v21, v21, v22, vcc
v_cndmask_b32_e64 v23, 0, 1, vcc
v_lshl_add_u32 v22, v17, 2, v18
v_cmp_gt_u32 vcc, 2, v22
v_cndmask_b32_e64 v23, v23, 1, vcc
v_lshlrev_b32 v22, 2, v16
v_sub_u32 v22, v14, v22            ; g' - 4*head
v_mov_b32 v25, {L_KT + 190*8}
""")
    for tau in range(3):
        for t in range(3):
            d = 240 + tau*3 + t
            e(f"v_add_u32 v24, {4*t}, v22\n v_mad_u32_u24 v{d}, v{19+tau}, 5, v24\n v_lshlrev_b32 v{d}, 3, v{d}\n v_add_u32 v{d}, {L_KT}, v{d}\n v_cmp_gt_u32 vcc, 5, v24\n v_cndmask_b32 v{d}, v25, v{d}, vcc")
            if tau == 2: e(f"v_cmp_eq_u32 vcc, 1, v23\n v_cndmask_b32 v{d}, v25, v{d}, vcc")
    e(f"""
s_lshl_b32 s55, s54, 8
s_add_u32 s55, s55, {L_RS}
v_lshl_add_u32 v249, v14, 4, s55
v_lshlrev_b32 v250, 2, v13
v_add_u32 v250, {L_CS}, v250
v_cmp_le_u32 vcc, 12, v13
v_cndmask_b32_e64 v251, 0, -1, vcc
s_mul_i32 s55, s54, 7680
s_add_u32 s55, s55, {L_PQ}
v_mul_u32_u24 v252, 40, v13
v_lshl_add_u32 v252, v14, 3, v252
v_add_u32 v252, s55, v252
v_lshrrev_b32 v254, 2, v13
v_add_u32 v254, v254, v13
v_lshl_add_u32 v254, v254, 3, s55
v_mul_u32_u24 v253, 160, v14
v_add_u32 v253, v253, v254
s_lshl_b32 s55, s54, 13
s_add_u32 s55, s55, {L_KVRED}
v_lshl_add_u32 v255, v1, 4, s55
""")
    ACC = 16; F = [128, 172]
    for i in range(112): e(f"v_mov_b32 v{ACC+i}, 0")
    def reads(fs, kk):
        r = [f"ds_read_b128 v[{F[fs]+4*j}:{F[fs]+4*j+3}], v{4+kk} offset:{j*2048}" for j in range(4)]
        for T in range(7):
            for hf in range(2):
                d = F[fs]+16+4*T+2*hf
                r.append(f"ds_read_b64_tr_b16 v[{d}:{d+1}], v{6+T} offset:{(kk*32+hf*16)*256}")
        return r
    def acc(j, T): return ACC + (j*7+T)*4
    def mfmas(fs):
        m = []
        for T in range(7):
            for j in range(4):
                c = acc(j, T); b = F[fs]+16+4*T
                m.append(f"v_mfma_f32_16x16x32_bf16 v[{c}:{c+3}], v[{F[fs]+4*j}:{F[fs]+4*j+3}], v[{b}:{b+3}], v[{c}:{c+3}]")
        return m
    def weave(m, r, extra):
        out = []
        for i, x in enumerate(m):
            out.append(x)
            if i < len(r): out.append(r[i])
            if i in extra: out.extend(extra[i])
        return out
    e(f"s_mov_b32 s55, 0\n s_mov_b32 s56, 0\n s_mov_b32 s58, {STG}\n s_waitcnt lgkmcnt(0)")
    srd(36, 24, 0x10000000)
    srd(28, 4, 2359296)
    e("s_barrier")
    stamp(1)
    for r in reads(0, 0): e(r)
    e("s_waitcnt lgkmcnt(0)\n s_branch L_cloop\n .p2align 3")
    a.lab("L_cloop2")
    for x in weave(mfmas(1), reads(0, 0), {}): e(x)
    e("s_waitcnt lgkmcnt(0)")
    a.lab("L_cloop")
    ex = {0: ["s_add_u32 s56, s56, 1", f"s_cmp_eq_u32 s56, {NBUF}"], 1: [f"s_cselect_b32 s57, {(-(NBUF-1)*STG) & 0xffffffff}, s58", "s_cselect_b32 s56, 0, s56"],
          2: ["v_add_u32 v4, s57, v4"], 4: ["v_add_u32 v5, s57, v5"], 22: ["s_add_u32 s55, s55, 1", "s_cmp_lt_u32 s55, 9"]}
    for T in range(7): ex.setdefault(6+2*T, []).append(f"v_add_u32 v{6+T}, s57, v{6+T}")
    for x in weave(mfmas(0), reads(1, 1), ex): e(x)
    e("s_waitcnt lgkmcnt(0)\n s_barrier\n s_cbranch_scc1 L_cloop2")
    RS, MRS = 128, 144
    CSR = [160, 162, 164, 166, 168, 170, 10]
    K = 4
    import math
    C1L = LOG2E*1.000001; E2M = LOG2E*math.exp(-1.000001); E2A = LOG2E*1e-6
    tr = [f"ds_read_b32 v{CSR[T]}, v250 offset:{64*T}" for T in range(7)]
    for j in range(4): tr += [f"ds_read_b128 v[{RS+4*j}:{RS+4*j+3}], v249 offset:{64*j}", f"ds_read_b128 v[{MRS+4*j}:{MRS+4*j+3}], v249 offset:{1024+64*j}"]
    tr += [f"v_mov_b32 v{K}, {f2u(C1L):#x}", f"v_mov_b32 v{K+2}, {f2u(E2M):#x}", f"v_mov_b32 v{K+4}, {f2u(E2A):#x}", "v_mov_b32 v2, 0x3f803f80"]
    for x in weave(mfmas(1), tr, {}): e(x)
    e("s_waitcnt lgkmcnt(0)")
    stamp(2)
    TMP = 204
    def phi(j, T, dst):
        c = acc(j, T); p = f"v[{CSR[T]}:{CSR[T]+1}]"; u = TMP; t = TMP+4
        for h in range(2): e(f"v_pk_fma_f32 v[{u+2*h}:{u+2*h+1}], v[{MRS+4*j+2*h}:{MRS+4*j+2*h+1}], {p}, v[{K}:{K+1}] op_sel_hi:[1,0,0]")
        for h in range(2): e(f"v_pk_fma_f32 v[{u+2*h}:{u+2*h+1}], v[{c+2*h}:{c+2*h+1}], v[{RS+4*j+2*h}:{RS+4*j+2*h+1}], v[{u+2*h}:{u+2*h+1}]")
        for q in range(4): e(f"v_exp_f32 v{t+q}, v{u+q}")
        for h in range(2): e(f"v_pk_fma_f32 v[{t+2*h}:{t+2*h+1}], v[{t+2*h}:{t+2*h+1}], v[{K+2}:{K+3}], v[{K+4}:{K+5}] op_sel_hi:[1,0,0]")
        for q in range(4): e(f"v_med3_f32 v{t+q}, v{u+q}, v{t+q}, v{K}")
        for h in range(2): e(f"v_cvt_pk_bf16_f32 v{dst+h}, v{t+2*h}, v{t+2*h+1}")
    def lin(j, T, dst):
        c = acc(j, T); p = f"v[{CSR[T]}:{CSR[T]+1}]"
        for h in range(2): e(f"v_pk_mul_f32 v[{TMP+8+2*h}:{TMP+9+2*h}], v[{MRS+4*j+2*h}:{MRS+4*j+2*h+1}], {p} op_sel_hi:[1,0]")
        for h in range(2): e(f"v_pk_fma_f32 v[{TMP+8+2*h}:{TMP+9+2*h}], v[{c+2*h}:{c+2*h+1}], v[{RS+4*j+2*h}:{RS+4*j+2*h+1}], v[{TMP+8+2*h}:{TMP+9+2*h}]")
        for h in range(2): e(f"v_cvt_pk_bf16_f32 v{dst+h}, v{TMP+8+2*h}, v{TMP+9+2*h}")
    PK = 216; KVA = 172
    pairs = [(0,0),(0,1),(0,2),(1,0),(1,1),(1,2),(2,1),(2,2)]
    for jp in range(2):
        for jj in range(2):
            j = 2*jp + jj
            for T in range(3): phi(j, T, PK + 4*T + 2*jj)
            e(f"ds_write_b64 v252, v[{PK+8+2*jj}:{PK+9+2*jj}] offset:{j*1920}")
            for T in range(3): lin(j, 4+T, PK + 12 + 4*T + 2*jj)
            for h in range(2): e(f"v_bfi_b32 v{PK+20+2*jj+h}, v251, v2, v{PK+20+2*jj+h}")
        for n, (ta, tb) in enumerate(pairs):
            c = KVA + 4*n
            e(f"v_mfma_f32_16x16x32_bf16 v[{c}:{c+3}], v[{PK+4*ta}:{PK+4*ta+3}], v[{PK+12+4*tb}:{PK+15+4*tb}], " + ("0" if jp == 0 else f"v[{c}:{c+3}]"))
    for n, (ta, tb) in enumerate(pairs):
        e(f"ds_write_b128 v255, v[{KVA+4*n}:{KVA+4*n+3}] offset:{n*1024}")
    e("s_waitcnt lgkmcnt(0)")
    stamp(13)
    e("s_barrier")
    stamp(3)
    for j in range(4):
        for T in (3, 4):
            d = PK + (j*2 + T-3)*2
            phi(j, T, d)
            e(f"ds_write_b64 v252, v[{d}:{d+1}] offset:{j*1920 + (T-2)*640}")
    PQ = 16
    e("s_waitcnt lgkmcnt(0)")
    for j in range(4):
        for t in range(2): e(f"ds_read_b64_tr_b16 v[{PQ+6*j+2*t}:{PQ+6*j+2*t+1}], v253 offset:{j*1920 + (4+16*t)*40}")
        e(f"ds_read_b64_tr_b16 v[{PQ+6*j+4}:{PQ+6*j+5}], v254 offset:{j*1920 + 36*40}")
    KA = 44
    e(f"v_mov_b32 v{PQ+24}, 0\n v_mov_b32 v{PQ+25}, 0")
    for tau in range(3): e(f"v_mov_b32 v{KA+8*tau+6}, 0\n v_mov_b32 v{KA+8*tau+7}, 0")
    e(f"""
v_lshlrev_b32 v6, 4, v1
v_lshlrev_b32 v7, 3, v13
v_lshl_add_u32 v7, v14, 1, v7
v_add_u32 v7, 1024, v7
v_and_b32 v8, 1, v14
v_lshl_or_b32 v7, v8, 31, v7
v_mov_b32 v9, {f2u(1/LOG2E):#x}
v_mov_b32 v10, {f2u(1e-6):#x}
s_lshl_b32 s55, s50, 4
s_lshl_b32 s56, s54, 2
s_add_u32 s55, s55, s56
s_lshl_b32 s55, s55, 4
s_add_u32 s55, s55, s48
s_mul_i32 s55, s55, 1152
s_add_u32 s55, s55, {OB}
s_waitcnt lgkmcnt(0)
""")
    s3_setup()
    e("s_waitcnt lgkmcnt(0)")
    stamp(4)
    e("s_barrier")
    stamp(5)
    for tau in (2, 0, 1):
        for t in range(3): e(f"ds_read_b64 v[{KA+8*tau+2*t}:{KA+8*tau+2*t+1}], v{240+tau*3+t}")
    D = 68
    def s2m(j, tau, half):
        c = D + 12*j + 4*tau
        return f"v_mfma_f32_16x16x32_bf16 v[{c}:{c+3}], v[{KA+8*tau+4*half}:{KA+8*tau+4*half+3}], v[{PQ+6*j+4*half}:{PQ+6*j+4*half+3}], " + ("0" if half == 0 else f"v[{c}:{c+3}]")
    e("s_waitcnt lgkmcnt(6)")
    for half in range(2):
        for j in range(4): e(s2m(j, 2, half))
    e("s_waitcnt lgkmcnt(0)")
    mm = [s2m(j, tau, half) for j in range(4) for half in range(2) for tau in range(2)]
    dv = []
    for op in range(6):
        for j in range(4):
            r = D + 12*j + 10
            dv.append([f"v_mul_f32 v{r}, v9, v{r}", f"v_cvt_pk_bf16_f32 v{r}, v{r}, v{r}", f"v_and_b32 v{r}, 0xffff0000, v{r}", f"v_add_f32 v{r}, v10, v{r}", f"v_rcp_f32 v{r}, v{r}", f"v_mul_f32 v{r}, v9, v{r}"][op])
    for x in interleave(mm, dv, 2, 3): e(x)
    for j in range(4):
        c = D + 12*j; o = c
        for h in range(5): e(f"v_pk_mul_f32 v[{c+2*h}:{c+2*h+1}], v[{c+2*h}:{c+2*h+1}], v[{c+10}:{c+11}] op_sel_hi:[1,0]")
        for h in range(5): e(f"v_cvt_pk_bf16_f32 v{o+h}, v{c+2*h}, v{c+2*h+1}")
        for h in range(5): e(f"v_min_u32 v{o+h}, -2, v{o+h}")
        e(f"buffer_store_dwordx4 v[{o}:{o+3}], v6, s[36:39], s55 offen sc1\n buffer_store_dword v{o+4}, v7, s[36:39], s55 offen sc1")
        if j < 3: e(f"s_add_u32 s55, s55, {16*1152}")
    stamp(6)

    e("s_branch L_s3go")
    a.lab("L_s3pre")
    s3_setup()
    a.lab("L_s3go")
    e("v_lshlrev_b32 v6, 4, v1\n v_mul_u32_u24 v7, 2304, v14\n v_lshl_add_u32 v7, v13, 3, v7")
    e(f"""
{"" if hintall else "s_cmp_lt_u32 s27, 16"}
{"" if hintall else "s_cbranch_scc1 L_oload"}
s_cmp_lg_u32 s3, 7
s_cbranch_scc1 L_oload
v_mov_b32 v2, 0
s_mov_b32 s59, 0
s_add_u32 s57, s62, 1152
L_ohint:
s_sleep {hsleep}
buffer_load_dword v3, v2, s[36:39], s57 offen offset:1024 sc1
s_waitcnt vmcnt(0)
v_cmp_eq_u32 vcc, -1, v3
s_cbranch_vccz L_oload
s_add_u32 s59, s59, 1
s_cmp_lt_u32 s59, {SPIN}
s_cbranch_scc1 L_ohint
L_oload:
{"s_sleep %d" % osleep if osleep else ""}
s_waitcnt {"vmcnt(0) " if owait else ""}lgkmcnt(0)
s_barrier
""")
    stamp(7)
    groups = [[2*i, 2*i+1] for i in range(9)]
    def oreg(k): return OF + 4*(k % 8)
    def oloads(g):
        r = []
        for k in g:
            o = oreg(k)
            if k < 16:
                if k % 2 == 0: r.append(f"s_add_u32 s57, s56, {k}\n s_and_b32 s57, s57, 15\n s_mul_i32 s57, s57, 1152\n s_add_u32 s57, s57, s62")
                r.append(f"buffer_load_dwordx4 v[{o}:{o+3}], v6, s[36:39], s57 offen offset:{1152*(k%2)} sc1")
            else:
                u = k-16
                r.append(f"s_add_u32 s57, s62, {8*u*1152}\n buffer_load_dwordx2 v[{o}:{o+1}], v7, s[36:39], s57 offen offset:1024 sc1\n buffer_load_dwordx2 v[{o+2}:{o+3}], v7, s[36:39], s57 offen offset:{1024+1152} sc1")
        return r
    def ocheck(g):
        o = oreg(g[0])
        e(f"v_max3_u32 v2, v{o}, v{o+1}, v{o+2}\n v_max3_u32 v3, v{o+3}, v{o+4}, v{o+5}\n v_max3_u32 v2, v2, v{o+6}, v{o+7}\n v_max_u32 v2, v2, v3\n v_cmp_eq_u32 vcc, -1, v2")
    cnt = lambda i: 0 if i > 8 else (4 if i == 8 else 2)
    for g in groups[:ahead]:
        for x in oloads(g): e(x)
    e("s_mov_b32 s59, 0")
    for gi, g in enumerate(groups):
        e(f"s_waitcnt vmcnt({sum(cnt(gi+d) for d in range(1, ahead))})")
        if gi + ahead < 9:
            for x in oloads(groups[gi+ahead]): e(x)
        ocheck(g)
        e(f"s_cbranch_vccnz L_oretry{gi}")
        a.lab(f"L_ook{gi}")
        for k in g:
            if k >= NPRE and (NPRE < 9 or k == NPRE): e(f"s_waitcnt lgkmcnt({min(8*(min(k+NPRE-1, 17) - k), 15) if NPRE < 9 else 0})")
            m = []
            for T in range(4):
                b = BR + (k % NPRE)*16 + 4*T
                m.append(f"v_mfma_f32_16x16x32_bf16 v[{AC+4*T}:{AC+4*T+3}], v[{b}:{b+3}], v[{oreg(k)}:{oreg(k)+3}], v[{AC+4*T}:{AC+4*T+3}]")
            if k+NPRE == 16:
                for T in range(4): e(f"v_add_u32 v{BA+T}, 0x10000, v{BA+T}")
            r = bread(k+NPRE) if k+NPRE < 18 else []
            for T in range(4):
                e(m[T])
                for x in r[2*T:2*T+2]: e(x)
    stamp(8)
    HP = 64; HF = 72
    for i in range(8): e(f"v_cvt_pk_bf16_f32 v{HP+i}, v{AC+2*i}, v{AC+2*i+1}")
    e(f"""
v_mfma_f32_16x16x32_bf16 v[20:23], v[{HP}:{HP+3}], v[{HP}:{HP+3}], 0
v_mfma_f32_16x16x32_bf16 v[16:19], v[{WR}:{WR+3}], v[{HP}:{HP+3}], 0
v_mfma_f32_16x16x32_bf16 v[20:23], v[{HP+4}:{HP+7}], v[{HP+4}:{HP+7}], v[20:23]
v_mfma_f32_16x16x32_bf16 v[16:19], v[{WR+4}:{WR+7}], v[{HP+4}:{HP+7}], v[16:19]
v_cndmask_b32_e64 v20, v20, v21, s[46:47]
v_cndmask_b32_e64 v22, v22, v23, s[42:43]
v_min_u32 v16, -2, v16
v_min_u32 v18, -2, v18
v_cndmask_b32_e64 v17, v20, v22, s[48:49]
v_min_u32 v17, -2, v17
s_mov_b64 exec, s[44:45]
buffer_store_dwordx3 v[16:18], v{VST}, s[36:39], s52 offen sc1
s_mov_b64 exec, -1
""")
    stamp(9)
    for i in range(8): e(f"v_lshlrev_b32 v{HF+2*i}, 16, v{HP+i}\n v_and_b32 v{HF+2*i+1}, 0xffff0000, v{HP+i}")
    for T in range(4): e(f"ds_write_b64 v{VSW}, v[{HP+2*T}:{HP+2*T+1}] offset:{2304+32*T}")
    e(f"""
s_mov_b32 s59, 0
{"s_waitcnt vmcnt(0)" if cwait else "s_sleep %d" % csleep}
L_c1:
buffer_load_dwordx3 v[20:22], v6, s[36:39], s51 offen sc1
buffer_load_dwordx3 v[24:26], v6, s[36:39], s51 offen offset:1024 sc1
buffer_load_dwordx3 v[28:30], v{VST}, s[36:39], s51 offen offset:2048 sc1
s_waitcnt vmcnt(0)
v_max3_u32 v2, v20, v21, v22
v_max3_u32 v3, v24, v25, v26
v_max3_u32 v4, v28, v29, v30
v_max3_u32 v2, v2, v3, v4
v_cmp_eq_u32 vcc, -1, v2
s_cbranch_vccz L_c1ok
s_add_u32 s59, s59, 1
s_cmp_lt_u32 s59, {SPIN}
s_cbranch_scc1 L_c1
L_c1ok:
""")
    stamp(10)
    for q in range(3): e(f"v_add_f32 v{16+q}, v{20+q}, v{24+q}\n v_add_f32 v{20+q}, v{20+q}, v{24+q}")
    for q in range(3): e(f"v_permlane16_swap_b32 v{16+q}, v{20+q}")
    for q in range(3): e(f"v_add_f32 v{24+q}, v{16+q}, v{20+q}\n v_add_f32 v{16+q}, v{16+q}, v{20+q}")
    for q in range(3): e(f"v_permlane32_swap_b32 v{16+q}, v{24+q}")
    for q in range(3): e(f"v_add_f32 v{16+q}, v{16+q}, v{24+q}")
    for q in range(3): e(f"v_add_f32 v{16+q}, v{16+q}, v{28+q}")
    inv = f2u(1.0/576)
    e(f"""
v_mul_f32 v16, {inv:#x}, v16        ; mean
v_mul_f32 v17, {inv:#x}, v17
v_fma_f32 v17, -v16, v16, v17       ; var
v_max_f32 v17, 0, v17
v_cvt_pk_bf16_f32 v20, v16, v17
v_lshlrev_b32 v16, 16, v20
v_and_b32 v17, 0xffff0000, v20
v_add_f32 v17, {f2u(1e-5):#x}, v17
v_cvt_pk_bf16_f32 v17, v17, v17
v_and_b32 v17, 0xffff0000, v17
v_sqrt_f32 v17, v17
v_fma_f32 v18, -v16, v{VSUM}, v18
v_cvt_pk_bf16_f32 v17, v17, v17
v_and_b32 v17, 0xffff0000, v17
v_rcp_f32 v56, v17
v_mul_f32 v18, v18, v56
v_cvt_pk_bf16_f32 v18, v18, v18
v_ashrrev_i32 v20, 31, v18
v_or_b32 v20, 0x80000000, v20
v_xor_b32 v18, v18, v20
s_mov_b32 s57, 0xffff0000
v_and_or_b32 v18, v18, s57, v{VTOK}    ; key
""")
    rowmax(20, 18)
    e("v_cmp_eq_u32 s[40:41], v18, v20\n v_cndmask_b32_e64 v22, v18, 0, s[40:41]")
    rowmax(21, 22)
    e(f"ds_write_b64 v{VKW}, v[20:21]\n s_lshr_b32 s58, s60, 3\n s_lshl_b32 s57, s58, 7\n s_add_u32 s57, s57, {KEY}\n s_lshl_b32 s56, s63, 11\n s_add_u32 s57, s57, s56\n {'s_mov_b32 s56, s3' if krep else 's_or_b32 s56, s63, s3'}\n v_mov_b32 v23, 0\n s_waitcnt lgkmcnt(0)\n s_barrier\n ds_read_b32 v18, v{VKR}\n s_waitcnt lgkmcnt(0)")
    rowmax(20, 18)
    e("v_cmp_eq_u32 s[40:41], v18, v20\n v_cndmask_b32_e64 v22, v18, 0, s[40:41]")
    rowmax(21, 22)
    e(f"""
s_cmp_lg_u32 s56, 0
s_cbranch_scc1 L_nokey
s_mov_b64 exec, 1
buffer_store_dwordx2 v[20:21], v23, s[36:39], s57 offen sc1
s_mov_b64 exec, -1
L_nokey:
""")
    stamp(11)
    NP = 32; NF = 40
    for i in range(8): e(f"v_pk_add_f32 v[{NF+2*i}:{NF+2*i+1}], v[{HF+2*i}:{HF+2*i+1}], v[16:17] op_sel_hi:[1,0] neg_lo:[0,1] neg_hi:[0,1]")
    for i in range(8): e(f"v_cvt_pk_bf16_f32 v{NP+i}, v{NF+2*i}, v{NF+2*i+1}")
    for i in range(8): e(f"v_lshlrev_b32 v{NF+2*i}, 16, v{NP+i}\n v_and_b32 v{NF+2*i+1}, 0xffff0000, v{NP+i}")
    for i in range(8): e(f"v_pk_mul_f32 v[{NF+2*i}:{NF+2*i+1}], v[{NF+2*i}:{NF+2*i+1}], v[56:57] op_sel_hi:[1,0]")
    for i in range(8): e(f"v_cvt_pk_bf16_f32 v{NP+i}, v{NF+2*i}, v{NF+2*i+1}")
    for T in range(4): e(f"ds_write_b64 v{VSW}, v[{NP+2*T}:{NP+2*T+1}] offset:{32*T}")
    e(f"""
s_mov_b64 s[40:41], 0xff
v_cndmask_b32_e64 v20, v21, v20, s[40:41]
v_not_b32 v20, v20
v_bfe_u32 v22, v20, 4, 3
v_cmp_eq_u32 s[46:47], s3, v22
s_and_b64 s[46:47], s[46:47], 0xffff
v_and_b32 v20, 15, v20
v_mul_u32_u24 v20, 144, v20
v_lshl_add_u32 v20, v{VC7}, 4, v20
v_add_u32 v20, s50, v20
v_bfe_u32 v21, v1, 3, 1
v_mul_u32_u24 v21, 2304, v21
v_lshl_add_u32 v21, v{VC7}, 4, v21
s_mul_i32 s62, s58, 4608
s_lshl_b32 s57, s63, 7
s_add_u32 s62, s62, s57
s_add_u32 s62, s62, {CAND}
s_cmp_eq_u64 s[46:47], 0
s_cbranch_scc1 L_nocand
s_waitcnt lgkmcnt(0)
ds_read_b128 v[24:27], v20
ds_read_b128 v[28:31], v20 offset:2304
s_waitcnt lgkmcnt(0)
""")
    for q in range(8): e(f"v_min_u32 v{24+q}, -2, v{24+q}")
    e("s_mov_b64 exec, s[46:47]\n buffer_store_dwordx4 v[24:27], v21, s[36:39], s62 offen sc1\n s_mov_b64 exec, -1\nL_nocand:")
    for i in range(8): e(f"v_lshlrev_b32 v{NF+2*i}, 16, v{NP+i}\n v_and_b32 v{NF+2*i+1}, 0xffff0000, v{NP+i}")
    for i in range(8): e(f"v_pk_add_f32 v[{NF+2*i}:{NF+2*i+1}], v[{NF+2*i}:{NF+2*i+1}], v[{HF+2*i}:{HF+2*i+1}]")
    for i in range(8): e(f"v_cvt_pk_bf16_f32 v{NP+i}, v{NF+2*i}, v{NF+2*i+1}")
    for T in range(4): e(f"ds_write_b64 v{VSW}, v[{NP+2*T}:{NP+2*T+1}] offset:{32*T}")
    srd(68, 20, 2359296)
    e(f"""
s_waitcnt lgkmcnt(0)
ds_read_b128 v[40:43], v{VSR}
ds_read_b128 v[44:47], v{VSR} offset:1152
s_add_u32 s57, s61, {8*1152}
s_waitcnt {"vmcnt(0) " if outwait else ""}lgkmcnt(0)
s_barrier
buffer_store_dwordx4 v[40:43], v{VOUT}, s[68:71], s61 offen sc1
buffer_store_dwordx4 v[44:47], v{VOUT}, s[68:71], s57 offen sc1
s_cmp_eq_u64 s[46:47], 0
s_cbranch_scc1 L_s3end
s_waitcnt vmcnt(0)
s_mov_b64 exec, s[46:47]
buffer_store_dwordx4 v[28:31], v21, s[36:39], s62 offen offset:1152 sc1
L_s3end:
""")
    stamp(12)
    fin()
    for gi, g in enumerate(groups):
        a.lab(f"L_oretry{gi}")
        e(f"s_add_u32 s59, s59, 1\n s_cmp_ge_u32 s59, {SPIN}\n s_cbranch_scc1 L_ook{gi}")
        for x in oloads(g): e(x)
        e("s_waitcnt vmcnt(0)")
        ocheck(g)
        e(f"s_cbranch_vccnz L_oretry{gi}\n s_branch L_ook{gi}")

    a.lab("L_B")
    e(f"""
s_sub_u32 s47, s27, 16             ; h
s_cmp_ge_u32 s27, 28
s_cbranch_scc1 L_R
s_cmp_ge_u32 s27, 24
s_cbranch_scc1 L_X
v_add_u32 v3, 64, v1
v_min_u32 v3, 119, v3
v_mul_u32_u24 v4, 1639, v1
v_lshrrev_b32 v4, 16, v4
v_lshlrev_b32 v2, 4, v1
v_lshl_add_u32 v2, v4, 9, v2
v_mul_u32_u24 v4, 1639, v3
v_lshrrev_b32 v4, 16, v4
v_lshlrev_b32 v5, 4, v3
v_lshl_add_u32 v5, v4, 9, v5
s_lshl_b32 s56, s47, 3
s_add_u32 s56, s56, s3
s_mul_i32 s56, s56, 3456
s_lshl_b32 s57, s46, 9
s_add_u32 s56, s56, s57
s_mov_b32 s34, 1990656
s_mov_b32 s35, 0x20000
s_waitcnt lgkmcnt(0)
s_mov_b32 s32, s6
s_mov_b32 s33, s7
""")
    def wacc(st_):
        for p in range(2):
            r = 16 + 8*st_ + 4*p
            d = 88 + 8*p if st_ == 0 else 104
            for q in range(4): e(f"v_lshlrev_b32 v{d+2*q}, 16, v{r+q}\n v_and_b32 v{d+2*q+1}, 0xffff0000, v{r+q}")
            if st_:
                for q in range(4): e(f"v_pk_add_f32 v[{88+8*p+2*q}:{89+8*p+2*q}], v[{88+8*p+2*q}:{89+8*p+2*q}], v[{104+2*q}:{105+2*q}]")
    NL = 3 if merged else 2
    if merged:
        srd(28, 4, 2359296)
        e(f"""
v_lshrrev_b32 v6, 3, v1
v_and_b32 v7, 7, v1
v_mul_u32_u24 v6, 1152, v6
v_lshl_add_u32 v6, v7, 4, v6
s_lshl_b32 s55, s45, 3
s_add_u32 s55, s55, s47
s_lshl_b32 s55, s55, 3
s_add_u32 s55, s55, s3
s_mul_i32 s57, s55, {8*1152}
v_mov_b32 v8, 0
v_mov_b32 v10, 0
s_mov_b32 s58, 0x3f803f80
""")
    def macc(st_):
        wacc(st_)
        if merged:
            for q in range(4): e(f"v_dot2c_f32_bf16 v8, s58, v{120+4*st_+q}\n v_dot2c_f32_bf16 v10, v{120+4*st_+q}, v{120+4*st_+q}")
    for st_ in range(9):
        if merged: e(f"buffer_load_dwordx4 v[{120+4*st_}:{123+4*st_}], v6, s[28:31], s57 offen offset:{128*st_}")
        e(f"buffer_load_dwordx4 v[{16+8*st_}:{19+8*st_}], v2, s[32:35], s56 offen\n buffer_load_dwordx4 v[{20+8*st_}:{23+8*st_}], v5, s[32:35], s56 offen")
        if st_ < 8: e(f"s_add_u32 s56, s56, {64*3456}\n s_barrier")
        if st_ >= LAG:
            e(f"s_waitcnt vmcnt({NL*LAG})"); macc(st_-LAG)
    for st_ in range(9-LAG, 9):
        e(f"s_waitcnt vmcnt({NL*(8-st_)})"); macc(st_)
    stamp(13)
    srd(36, 24, 0x10000000); srd(64, 22, 256)
    e(f"""
s_mul_i32 s57, s3, 3840
v_lshl_add_u32 v2, v1, 5, s57
v_lshl_add_u32 v5, v3, 5, s57
ds_write_b128 v2, v[88:91]
ds_write_b128 v2, v[92:95] offset:16
ds_write_b128 v5, v[96:99]
ds_write_b128 v5, v[100:103] offset:16
v_mov_b32 v28, 0
""")
    flags_wait("w", False, 128)
    e(f"""
v_min_u32 v2, 239, v0
v_lshlrev_b32 v2, 4, v2
s_waitcnt lgkmcnt(0)
s_barrier
s_cmp_ge_u32 s3, 4
s_cbranch_scc1 L_W2
""")
    for i_ in range(8): e(f"ds_read_b128 v[{32+4*i_}:{35+4*i_}], v2 offset:{3840*i_}")
    e(f"s_lshl_b32 s57, s26, 3\n s_add_u32 s57, s57, s47\n s_mul_i32 s57, s57, 3840\n s_add_u32 s57, s57, {CS}\n s_waitcnt lgkmcnt(0)")
    for st in (16, 8, 4):
        for i_ in range(0, st, 2): e(f"v_pk_add_f32 v[{32+i_}:{33+i_}], v[{32+i_}:{33+i_}], v[{32+st+i_}:{33+st+i_}]")
    for q in range(4): e(f"v_min_u32 v{32+q}, -2, v{32+q}")
    e("buffer_store_dwordx4 v[32:35], v2, s[36:39], s57 offen sc1")
    a.lab("L_W2")
    e("s_barrier")
    stamp(1)
    e("s_branch L_F")

    a.lab("L_X")
    if merged: e("s_sleep 127")
    e(f"""
v_lshrrev_b32 v2, 3, v1
v_and_b32 v3, 7, v1
v_mul_u32_u24 v4, 1152, v2
v_lshl_add_u32 v4, v3, 4, v4
s_lshl_b32 s55, s45, 2
s_add_u32 s55, s55, s47
s_sub_u32 s55, s55, 8
s_lshl_b32 s55, s55, 3
s_add_u32 s55, s55, s3
s_mul_i32 s56, s55, {16*1152}
s_add_u32 s57, s56, {8*1152}
s_mov_b32 s30, 2359296
s_mov_b32 s31, 0x20000
v_mov_b32 v8, 0
v_mov_b32 v9, 0
v_mov_b32 v10, 0
v_mov_b32 v11, 0
s_mov_b32 s58, 0x3f803f80
s_waitcnt lgkmcnt(0)
s_mov_b32 s28, s4
s_mov_b32 s29, s5
""")
    def xacc(st_):
        for q in range(4):
            for p in range(2):
                r = 16 + 8*st_ + 4*p + q
                e(f"v_dot2c_f32_bf16 v{8+p}, s58, v{r}\n v_dot2c_f32_bf16 v{10+p}, v{r}, v{r}")
    for st_ in range(9):
        e(f"buffer_load_dwordx4 v[{16+8*st_}:{19+8*st_}], v4, s[28:31], s56 offen offset:{128*st_}\n buffer_load_dwordx4 v[{20+8*st_}:{23+8*st_}], v4, s[28:31], s57 offen offset:{128*st_}")
        if st_ < 8: e("s_barrier")
        if st_ >= LAG:
            e(f"s_waitcnt vmcnt({2*LAG})"); xacc(st_-LAG)
    for st_ in range(9-LAG, 9):
        e(f"s_waitcnt vmcnt({2*(8-st_)})"); xacc(st_)
    srd(36, 24, 0x10000000); srd(64, 22, 256)
    e("v_mov_b32 v28, 0\n buffer_load_dword v27, v28, s[64:67], 0 offen offset:128 sc1")
    for m_ in ("quad_perm:[1,0,3,2]", "quad_perm:[2,3,0,1]", "row_half_mirror"):
        for d in range(8, 12): e(f"v_add_f32_dpp v{d}, v{d}, v{d} {m_} row_mask:0xf bank_mask:0xf")
    e(f"""
v_and_b32 v5, 1, v1
v_cmp_eq_u32 vcc, 1, v5
v_cndmask_b32 v16, v8, v9, vcc
v_cndmask_b32 v18, v10, v11, vcc
v_mul_f32 v16, {inv:#x}, v16
v_mul_f32 v18, {inv:#x}, v18
v_fma_f32 v18, -v16, v16, v18
v_max_f32 v18, 0, v18
v_cvt_pk_bf16_f32 v20, v16, v18
v_lshlrev_b32 v16, 16, v20
v_and_b32 v18, 0xffff0000, v20
v_add_f32 v18, {f2u(1e-5):#x}, v18
v_cvt_pk_bf16_f32 v18, v18, v18
v_and_b32 v18, 0xffff0000, v18
v_sqrt_f32 v18, v18
v_cvt_pk_bf16_f32 v18, v18, v18
v_and_b32 v18, 0xffff0000, v18
v_rcp_f32 v18, v18
v_lshl_add_u32 v20, v5, 3, v2
v_lshlrev_b32 v20, 2, v20
v_mul_f32 v18, {f2u(LOG2E):#x}, v18
v_mul_f32_e64 v19, -v16, v18
v_min_u32 v18, -2, v18
v_min_u32 v19, -2, v19
s_lshl_b32 s56, s55, 6
s_lshl_b32 s57, s46, 14
s_add_u32 s56, s56, s57
s_add_u32 s56, s56, {XST}
s_add_u32 s57, s56, 8192
""")
    flags_wait("x", True, 128)
    e(f"""
s_mov_b32 s58, 0x03030303
s_mov_b32 s59, 0x03030303
s_mov_b64 exec, s[58:59]
buffer_store_dword v18, v20, s[36:39], s56 offen sc1
buffer_store_dword v19, v20, s[36:39], s57 offen sc1
s_mov_b64 exec, -1
""")
    stamp(1)
    e("s_cmp_eq_u32 s27, 24\n s_cbranch_scc1 L_F\n s_cmp_lt_u32 s27, 27\n s_cbranch_scc1 L_HS3")
    fin()
    a.lab("L_HS3")
    e("s_sub_u32 s53, s27, 9\n s_cmp_lt_u32 s3, 4\n s_cbranch_scc1 L_HS3b")
    wo_setup(); wo_dma("h")
    e("s_cmp_lg_u32 s54, 3\n s_cbranch_scc1 L_HS3b")
    sw_calc()
    flags_wait("h", False, 132, nap=4)
    a.lab("L_HS3b")
    e("s_waitcnt vmcnt(0) lgkmcnt(0)\n s_barrier\n s_branch L_s3pre")

    a.lab("L_R")
    e(f"""
s_cmp_lg_u32 s3, 0
s_cbranch_scc1 L_R1
s_getpc_b64 s[40:41]
L_pc:
s_sub_u32 s40, s40, L_pc-{NAME}
s_subb_u32 s41, s41, 0
s_sub_u32 s57, s27, 28
s_lshl_b32 s57, s57, 13
v_lshl_add_u32 v2, v1, 7, s57
v_min_u32 v2, L_codeend-{NAME}-4, v2
global_load_dword v6, v2, s[40:41]
L_R1:
v_mov_b32 v8, -1
v_mov_b32 v9, -1
v_mov_b32 v10, -1
v_mov_b32 v11, -1
v_lshlrev_b32 v12, 4, v1
s_lshl_b32 s48, s26, 2
s_add_u32 s48, s48, s47
s_sub_u32 s48, s48, 12
s_lshl_b32 s57, s48, 3
s_add_u32 s57, s57, s3
s_lshl_b32 s56, s57, 11
s_add_u32 s56, s56, {XST}
s_mul_i32 s57, s57, 14336
s_add_u32 s58, s57, 14336
s_waitcnt lgkmcnt(0)
""")
    srd(36, 24, 0x10000000); srd(64, 22, 256); srd(68, 8, 663552)
    e(f"""
buffer_store_dwordx4 v[8:11], v12, s[36:39], s56 offen sc1
buffer_store_dwordx4 v[8:11], v12, s[36:39], s56 offen offset:1024 sc1
s_waitcnt vmcnt(0)
s_barrier
s_cmp_lg_u32 s3, 0
s_cbranch_scc1 L_R2
""")
    arrive("q", 0, 128, 32)
    stamp(1)
    e(f"""
L_R2:
buffer_store_dwordx4 v[8:11], v12, s[36:39], s57 offen {rflag}
s_add_u32 s57, s57, 1024
s_cmp_lt_u32 s57, s58
s_cbranch_scc1 L_R2
L_R4:
s_waitcnt vmcnt(0)
s_barrier
s_cmp_lg_u32 s3, 0
s_cbranch_scc1 L_R3
""")
    arrive("r", 4, 132, 32)
    a.lab("L_R3")
    e(f"""
s_sub_u32 s56, s27, 28
s_lshl_b32 s56, s56, 3
s_add_u32 s56, s56, s3
s_lshl_b32 s56, s56, 13
v_lshlrev_b32 v2, 7, v1
buffer_load_dword v6, v2, s[68:71], s56 offen
s_add_u32 s56, s56, {32*8192}
buffer_load_dword v6, v2, s[68:71], s56 offen
s_add_u32 s56, s56, {32*8192}
buffer_load_dword v6, v2, s[68:71], s56 offen
""")
    if stamps: e("s_waitcnt vmcnt(0)")
    stamp(2)
    fin()

    a.lab("L_F")
    e(f"""
s_mul_i32 s48, s26, 9
s_add_u32 s48, s48, s47            ; fi
""")
    GW = 16; DW = 88
    srd(32, 18, 5308416); srd(68, 14, 5308416)
    e(f"""
s_and_b32 s56, s3, 1
s_lshl_b32 s56, s56, 4
s_bfe_u32 s57, s3, 0x10001
s_lshl_b32 s57, s57, 2
s_add_u32 s56, s56, s57
s_lshr_b32 s57, s3, 2
s_lshl_b32 s57, s57, 5
s_add_u32 s55, s56, s57
s_lshl_b32 s57, s48, 6
s_add_u32 s56, s55, s57
s_mul_i32 s56, s56, 1152
s_mul_i32 s57, s3, 9216
v_lshlrev_b32 v2, 4, v1
v_lshrrev_b32 v3, 5, v1
v_mul_u32_u24 v3, 4608, v3
v_add_u32 v3, v3, v2
""")
    for t in range(9):
        e(f"s_add_u32 m0, s57, {F_WU + t*1024}\n s_add_u32 s58, s56, {t*1024 + (4608 if t > 4 else 0)}\n buffer_load_dwordx4 v{3 if t == 4 else 2}, s[32:35], s58 offen nt lds")
    def gu_dma(tag, base):
        e(f"""
s_lshl_b32 s56, s48, 7
s_lshl_b32 s57, s3, 10
s_add_u32 s57, s57, {base}
s_mov_b32 s58, 0
L_Fl{tag}:
s_mov_b32 m0, s57
s_add_u32 s57, s57, 8192
buffer_load_dwordx4 v4, s[68:71], s56 offen nt lds
s_add_u32 s56, s56, {64*9216}
s_add_u32 s58, s58, 1
s_cmp_lt_u32 s58, 9
s_cbranch_scc1 L_Fl{tag}
""")
    e(f"""
v_lshrrev_b32 v2, 3, v1            ; rr
v_and_b32 v3, 7, v1
v_xor_b32 v3, v3, v2
v_lshlrev_b32 v3, 4, v3
v_lshrrev_b32 v4, 2, v2
v_and_b32 v5, 3, v2
v_lshl_add_u32 v4, v4, 3, v5
v_add_u32 v4, s55, v4              ; k local
v_mul_u32_u24 v4, 9216, v4
v_add_u32 v4, v4, v3
""")
    gu_dma("g", F_WG)
    e(f"""
v_lshrrev_b32 v2, 2, v13
v_lshl_add_u32 v2, v14, 2, v2
v_mul_u32_u24 v2, 1152, v2
v_and_b32 v3, 3, v13
v_lshl_add_u32 v2, v3, 3, v2
v_add_u32 v2, {F_WU}, v2
s_lshl_b32 s56, s3, 5
v_add_u32 v5, s56, v2
s_min_u32 s56, s3, 3
s_lshl_b32 s56, s56, 5
v_add_u32 v6, s56, v2
v_lshlrev_b32 v251, 2, v1
s_mov_b32 s68, s16
s_mov_b32 s69, s17
s_waitcnt vmcnt(9)
s_barrier
""")
    for i in range(5):
        for k in range(2):
            for hf in range(2):
                d = DW + 8*i + 4*k + 2*hf
                e(f"ds_read_b64_tr_b16 v[{d}:{d+1}], v{6 if i == 4 else 5} offset:{(k*32+hf*16)*1152 + 256*i}")
    e("s_waitcnt lgkmcnt(0)\n s_barrier")
    gu_dma("u", F_WU)
    e(f"""
v_lshrrev_b32 v2, 2, v13
v_lshl_add_u32 v2, v14, 2, v2      ; rho
v_and_b32 v3, 7, v2
v_xor_b32 v3, s3, v3
v_lshlrev_b32 v3, 4, v3
v_lshl_add_u32 v3, v2, 7, v3
v_and_b32 v4, 1, v13
v_lshl_add_u32 v3, v4, 3, v3
v_bfe_u32 v4, v13, 1, 1
s_mov_b32 s56, {F_WU}
v_mad_u32_u24 v5, v4, s56, v3
v_add_u32 v6, 0x9000, v5
v_mov_b32 v249, 0
""")
    flags_wait("f", False, 132, 250, 249)
    e("s_barrier")
    for k in range(18):
        for hf in range(2):
            off = (k*32+hf*16)*128
            reg = 5
            if k >= 9: off -= 0x9000; reg = 6
            e(f"ds_read_b64_tr_b16 v[{GW+4*k+2*hf}:{GW+4*k+2*hf+1}], v{reg} offset:{off}")
    e(f"""
v_lshlrev_b32 v7, 4, v0            ; tid*16
v_and_b32 v2, 1, v13
v_mul_u32_u24 v8, 1168, v2
v_lshl_add_u32 v8, v14, 4, v8
v_add_u32 v8, {F_HN}, v8
v_lshlrev_b32 v9, 7, v2
v_lshl_add_u32 v10, v14, 4, v9
v_add_u32 v10, {F_ACT}, v10
v_lshl_add_u32 v9, v14, 3, v9
s_lshl_b32 s56, s3, 4
s_add_u32 s56, s56, {F_ACT}
v_add_u32 v9, s56, v9
v_mul_u32_u24 v11, 2304, v2
v_lshl_add_u32 v11, v14, 4, v11    ; y voffset
v_lshlrev_b32 v12, 7, v13
v_cmp_le_u32 vcc, 72, v0
v_cndmask_b32_e64 v128, 0, 1, vcc
v_mul_u32_u24 v129, 1152, v128
v_sub_u32 v129, v7, v129
v_lshl_add_u32 v130, v128, 4, v7
v_add_u32 v130, {F_HN}, v130
s_mul_i32 s60, s48, 4608
s_lshl_b32 s56, s3, 6
s_add_u32 s60, s60, s56
s_add_u32 s60, s60, {YP}
s_lshl_b32 s57, s26, 11
{'' if krep else 's_mov_b32 s57, 0'}
s_add_u32 s57, s57, {KEY}
s_mov_b32 s59, 0
s_movk_i32 s58, 144
s_movk_i32 s55, 2304
s_waitcnt lgkmcnt(0)
""")
    stamp(2)
    e(f"""
s_add_u32 s56, s3, 1
s_and_b32 s56, s56, 7
s_cmp_ge_u32 s56, 4
s_cbranch_scc1 L_f2
v_cmp_gt_u32 s[42:43], s58, v0
v_cmp_eq_u32 s[44:45], 1, v128
L_k0:
buffer_load_dwordx2 v[132:133], v12, s[36:39], s57 offen sc1
s_waitcnt vmcnt(0)
v_max_u32 v2, v132, v133
v_cmp_eq_u32 vcc, -1, v2
s_cbranch_vccz L_k1
{'s_sleep %d' % ksleep if ksleep else ''}
s_add_u32 s59, s59, 1
s_cmp_lt_u32 s59, {SPIN}
s_cbranch_scc1 L_k0
L_k1:
""")
    stamp(3)
    rowmax(136, 132)
    e("v_cmp_eq_u32 s[40:41], v132, v136\n v_cndmask_b32_e64 v2, v132, v133, s[40:41]")
    rowmax(137, 2)
    e(f"""
v_not_b32 v2, v136
v_not_b32 v3, v137
v_bfe_u32 v2, v2, 7, 4
v_bfe_u32 v3, v3, 7, 4
v_cmp_eq_u32 s[40:41], v2, v3
v_lshlrev_b32 v2, 1, v2
v_lshlrev_b32 v3, 1, v3
v_addc_co_u32_e64 v3, s[40:41], 0, v3, s[40:41]
s_cmp_eq_u32 s3, 7
s_cbranch_scc1 L_f3
v_cndmask_b32_e64 v2, v2, v3, s[44:45]
v_mad_u32_u24 v2, v2, s55, v129
s_mov_b64 exec, s[42:43]
s_mov_b32 s57, {CAND}
s_mov_b32 s59, 0
L_f0:
buffer_load_dwordx4 v[132:135], v2, s[36:39], s57 offen sc1
s_waitcnt vmcnt(0)
v_max3_u32 v3, v132, v133, v134
v_max_u32 v3, v3, v135
v_cmp_eq_u32 vcc, -1, v3
s_cbranch_vccz L_f1
s_add_u32 s59, s59, 1
s_cmp_lt_u32 s59, {SPIN}
s_cbranch_scc1 L_f0
L_f1:
ds_write_b128 v130, v[132:135]
s_mov_b64 exec, -1
s_waitcnt lgkmcnt(0)
s_branch L_f2
L_f3:
v_readfirstlane_b32 s50, v136
v_readfirstlane_b32 s51, v137
v_readfirstlane_b32 s61, v2
v_readfirstlane_b32 s62, v3
L_f2:
s_barrier
""")
    stamp(4)
    HB = 140
    for k in range(18): e(f"ds_read_b128 v[{HB+4*k}:{HB+4*k+3}], v8 offset:{64*k}")
    for k in range(18):
        e(f"s_waitcnt lgkmcnt({min(17-k,15)})")
        e(f"v_mfma_f32_16x16x32_bf16 v[132:135], v[{GW+4*k}:{GW+4*k+3}], v[{HB+4*k}:{HB+4*k+3}], " + ("0" if k == 0 else "v[132:135]"))
    e("""
v_cvt_pk_bf16_f32 v136, v132, v133
v_cvt_pk_bf16_f32 v137, v134, v135
v_mov_b32 v138, v136
v_mov_b32 v139, v137
v_permlane32_swap_b32 v136, v138
v_permlane32_swap_b32 v137, v139
""")
    for h in range(2):
        e(f"v_lshlrev_b32 v{140+2*h}, 16, v{136+h}\n v_and_b32 v{141+2*h}, 0xffff0000, v{136+h}\n v_lshlrev_b32 v{144+2*h}, 16, v{138+h}\n v_and_b32 v{145+2*h}, 0xffff0000, v{138+h}")
    for q in range(4): e(f"v_mul_f32 v{148+q}, {f2u(-LOG2E):#x}, v{140+q}")
    for q in range(4): e(f"v_exp_f32 v{148+q}, v{148+q}")
    for q in range(4): e(f"v_add_f32 v{148+q}, 1.0, v{148+q}")
    for q in range(4): e(f"v_rcp_f32 v{148+q}, v{148+q}")
    for q in range(4): e(f"v_mul_f32 v{140+q}, v{140+q}, v{148+q}")
    for h in range(2): e(f"v_cvt_pk_bf16_f32 v{136+h}, v{140+2*h}, v{141+2*h}")
    for h in range(2): e(f"v_lshlrev_b32 v{140+2*h}, 16, v{136+h}\n v_and_b32 v{141+2*h}, 0xffff0000, v{136+h}")
    for q in range(4): e(f"v_mul_f32 v{140+q}, v{140+q}, v{144+q}")
    for h in range(2): e(f"v_cvt_pk_bf16_f32 v{136+h}, v{140+2*h}, v{141+2*h}")
    e(f"""
s_mov_b64 exec, 0x30003
ds_write_b64 v9, v[136:137]
s_mov_b64 exec, -1
s_waitcnt lgkmcnt(0)
s_barrier
ds_read_b128 v[140:143], v10
ds_read_b128 v[144:147], v10 offset:64
s_waitcnt lgkmcnt(0)
""")
    for k in range(2):
        for i in range(5):
            c = 148 + 4*i
            e(f"v_mfma_f32_16x16x32_bf16 v[{c}:{c+3}], v[{DW+8*i+4*k}:{DW+8*i+4*k+3}], v[{140+4*k}:{143+4*k}], " + ("0" if k == 0 else f"v[{c}:{c+3}]"))
    e("s_mov_b32 s56, 0x30003\n s_mov_b32 s57, 0x30003\n s_mov_b64 exec, s[56:57]")
    for i in range(5):
        c = 148 + 4*i
        if i == 4: e("s_cmp_ge_u32 s3, 4\n s_cbranch_scc1 L_y1")
        for q in range(4): e(f"v_min_u32 v{c+q}, -2, v{c+q}")
        e(f"buffer_store_dwordx4 v[{c}:{c+3}], v11, s[36:39], s60 offen offset:{512*i} sc1")
    a.lab("L_y1")
    e("s_mov_b64 exec, -1")
    stamp(5)
    e("s_cmp_lg_u32 s3, 7\n s_cbranch_scc1 L_fin\n s_cmp_ge_u32 s48, 36\n s_cbranch_scc1 L_fin")
    e(f"""
s_cmp_ge_u32 s48, 18
s_cselect_b32 s50, s51, s50
s_cselect_b32 s61, s62, s61
s_cselect_b32 s56, 18, 0
s_mul_i32 s61, s61, 2304
s_andn2_b32 s52, 0x7ff, s50
s_sub_u32 s56, s48, s56
s_lshl_b32 s56, s56, 6
s_add_u32 s61, s61, s56
s_add_u32 s61, s61, {CAND}
s_mul_i32 s52, s52, 1152
s_add_u32 s52, s52, s56
s_lshl_b32 s62, s48, 7
s_add_u32 s62, s62, {YP}
v_and_b32 v2, 7, v1
v_lshlrev_b32 v4, 3, v2
v_lshrrev_b32 v3, 3, v1
v_mul_u32_u24 v3, 4608, v3
v_lshl_add_u32 v3, v2, 4, v3
s_ashr_i32 s56, s50, 31
s_not_b32 s56, s56
s_or_b32 s56, s56, 0x80000000
s_xor_b32 s56, s56, s50
s_and_b32 s56, s56, 0xffff0000
v_mov_b32 v5, {f2u(-LOG2E):#x}
v_mul_f32 v5, s56, v5
v_exp_f32 v5, v5
v_add_f32 v5, 1.0, v5
v_rcp_f32 v5, v5
v_cvt_pk_bf16_f32 v5, v5, v5
v_and_b32 v5, 0xffff0000, v5
s_mov_b32 s59, 0
{"s_waitcnt vmcnt(0)" if dwait else "s_sleep %d" % dsleep}
{"s_memrealtime s[88:89]" if stamps else ""}
L_d0:
s_mov_b32 s57, s62
""")
    for i in range(9):
        e(f"buffer_load_dwordx4 v[{16+4*i}:{19+4*i}], v3, s[36:39], s57 offen sc1")
        if i < 8: e(f"s_add_u32 s57, s57, {8*4608}")
    e("buffer_load_dwordx2 v[52:53], v4, s[36:39], s61 offen sc1\n buffer_load_dwordx2 v[54:55], v4, s[36:39], s61 offen offset:1152 sc1\n s_waitcnt vmcnt(0)")
    e("v_max3_u32 v2, v16, v17, v18")
    for i in range(19, 55, 2): e(f"v_max3_u32 v2, v2, v{i}, v{i+1}")
    e(f"""
v_max_u32 v2, v2, v55
v_cmp_eq_u32 vcc, -1, v2
s_cbranch_vccz L_d1
s_add_u32 s59, s59, 1
s_cmp_lt_u32 s59, {SPIN}
s_cbranch_scc1 L_d0
L_d1:
""")
    stamp(6)
    for st in (16, 8, 4):
        for i in range(0, st, 2): e(f"v_pk_add_f32 v[{16+i}:{17+i}], v[{16+i}:{17+i}], v[{16+st+i}:{17+st+i}]")
    e("v_pk_add_f32 v[16:17], v[16:17], v[48:49]\n v_pk_add_f32 v[18:19], v[18:19], v[50:51]")
    for q in range(4): e(f"v_add_f32_dpp v{16+q}, v{16+q}, v{16+q} row_ror:8 row_mask:0xf bank_mask:0xf")
    for wh in (16, 32):
        for q in range(4): e(f"v_mov_b32 v{20+q}, v{16+q}")
        for q in range(4): e(f"v_permlane{wh}_swap_b32 v{16+q}, v{20+q}")
        for q in range(4): e(f"v_add_f32 v{16+q}, v{16+q}, v{20+q}")
    def rnd4():
        for h in range(2): e(f"v_cvt_pk_bf16_f32 v{24+h}, v{16+2*h}, v{17+2*h}")
        for h in range(2): e(f"v_lshlrev_b32 v{16+2*h}, 16, v{24+h}\n v_and_b32 v{17+2*h}, 0xffff0000, v{24+h}")
    rnd4()
    for q in range(4): e(f"v_mul_f32 v{16+q}, v{16+q}, v5")
    for src in (52, 54):
        rnd4()
        for h in range(2): e(f"v_lshlrev_b32 v{20+2*h}, 16, v{src+h}\n v_and_b32 v{21+2*h}, 0xffff0000, v{src+h}")
        for q in range(4): e(f"v_add_f32 v{16+q}, v{16+q}, v{20+q}")
    for h in range(2): e(f"v_cvt_pk_bf16_f32 v{24+h}, v{16+2*h}, v{17+2*h}")
    srd(68, 20, 2359296)
    e(f"s_mov_b64 exec, 0xff\n buffer_store_dwordx2 v[24:25], v4, s[68:71], s52 offen {fstore}")
    stamp(7)
    a.lab("L_fin")
    fin()
    a.lab("L_end")
    e("s_endpgm")
    a.lab("L_codeend")

    assert not any('op_sel:' in l for l in a.L)
    lines, n = hazard.fix(a.L)
    if doalign: lines, nw, npad = align.run(lines)
    import os
    ref = "sequential_preLN__linear_attn_block__moe_arch_mod__prompt.s.ref"
    hdr = open(ref).read().split("; @launch")[0] if os.path.exists(ref) else ""
    hdr += f"""; @launch grid=(256,1,1) block=(512,1,1) lds=163840
.amdgcn_target "amdgcn-amd-amdhsa--gfx950"
.text
.globl {NAME}
.p2align 8
.type {NAME},@function
"""
    tail = f"""
.section .rodata,"a"
.p2align 6
.amdhsa_kernel {NAME}
  .amdhsa_next_free_vgpr 256
  .amdhsa_next_free_sgpr 102
  .amdhsa_accum_offset 256
  .amdhsa_group_segment_fixed_size 0
  .amdhsa_kernarg_size 88
  .amdhsa_user_sgpr_count 2
  .amdhsa_user_sgpr_kernarg_segment_ptr 1
  .amdhsa_system_sgpr_workgroup_id_x 1
.end_amdhsa_kernel
"""
    return hdr + "\n".join(lines) + "\n" + tail

if __name__ == "__main__":
    assert all((n*1821)>>16 == n//36 for n in range(108))
    assert all((n*13108)>>16 == n//5 for n in range(192))
    assert all((n*1639)>>16 == n//40 for n in range(120))
    print(gen(stamps=len(sys.argv) > 1))
```

```python
import sys, struct
from asmlib import *
import hazard, align

NAME = "sequential_preLN__linear_attn_block__moe_arch_mod__prompt_kernel"
KVP = 0
OB  = KVP + 16*8*3072
ST  = OB + 128*16*1152
KEY = ST + 128*9*256
XID = KEY + 9*2048
CAND = XID + 2048
YP  = CAND + 16*2*2304
assert YP + 72*4608 <= 256*14336
XST = 4<<20
CS  = XST + 32768
assert CS + 64*3840 <= XST + 256*2048
TS_OFF = 0x8000000
XS = 32768; STG = XS + 16384; NBUF = 3
L_WO = 0; L_KVRED = 73728; L_PQ = 106496
L_RS = 153600; L_MRS = L_RS + 1024; L_CS = L_MRS + 1024; L_KT = L_CS + 1024; L_SW = L_KT + 1536
L_STAGE = L_KVRED
L_WR = L_SW + 64
L_KEY = L_WR + 1280
L_KTA = L_KEY + 64
L_XT = L_PQ + 30720
assert L_XT + 16384 == L_RS and L_KTA + 3072 <= 163840
F_WG = 0; F_WU = 73728; F_WD = 0; F_HN = 147456; F_ACT = F_HN + 2560; F_KEYS = F_ACT + 256; F_RED = F_KEYS + 256
SPIN = 1 << 17
def f2u(x): return struct.unpack("<I", struct.pack("<f", x))[0]
LOG2E = 1.4426950408889634

def gen(stamps=False, owait=1, await_=1, cwait=0, dwait=1, rflag='sc1', diag=None, doalign=1, gate=1, fstore='sc1', ksleep=0, merged=0, LAG=3, hintall=1, hsleep=2, obar=0, hprio=1, ahead=4, outwait=0, rot=0, krep=1, dsleep=0, csleep=0, asleep=0, osleep=0, wfl='', xfl='', lprio=0, worder=1, cyc=0, flip=0, nof=0, st0=0, s3prio=0, fthr=-1, latepre=0, x_nochk=0, x_nord=0, x_nomf=0, x_nold=0, x_fl='sc1', fast=1, outsleep=0, outfl='sc1'):
    NPRE = 6
    a = Asm()
    e = a.e
    def stamp(i):
        if stamps or diag: e(f"s_memrealtime s[{72+2*i}:{73+2*i}]")
    def fin():
        if diag:
            wg, wave, idx, K = diag
            lb = a.new("L_dg")
            e("s_waitcnt vmcnt(0) lgkmcnt(0)")
            if idx == "xcc":
                e(f"s_getreg_b32 s44, hwreg(HW_REG_XCC_ID)\n s_and_b32 s44, s44, 7\n s_and_b32 s45, s2, 7\n s_cmp_eq_u32 s44, s45\n s_cbranch_scc1 {lb}e\n s_add_u32 s44, s72, 10000")
            else:
                e(f"s_cmp_lg_u32 s2, {wg}\n s_cbranch_scc1 {lb}e\n s_cmp_lg_u32 s3, {wave}\n s_cbranch_scc1 {lb}e")
                if idx == "fix": e(f"s_add_u32 s44, s72, {K}")
                else: e(f"s_sub_u32 s44, s{72+2*idx}, s72\n s_min_u32 s44, s44, 10000\n s_mul_i32 s44, s44, {K}\n s_add_u32 s44, s44, s72")
            e(f"{lb}:\n s_memrealtime s[46:47]\n s_waitcnt lgkmcnt(0)\n s_sub_u32 s45, s46, s44\n s_cmp_lt_i32 s45, 0\n s_cbranch_scc1 {lb}\n{lb}e:")
        if stamps:
            e("s_waitcnt vmcnt(0) lgkmcnt(0)")
            e("s_mov_b64 exec, -1")
            e(f"s_lshl_b32 s44, s2, 3\n s_add_u32 s44, s44, s3\n s_lshl_b32 s44, s44, 6\n s_add_u32 s44, s44, {TS_OFF}\n v_mov_b32 v2, 0")
            for i in range(15):
                e(f"v_mov_b32 v3, s{72+2*i}\n buffer_store_dword v3, v2, s[36:39], s44 offen offset:{4*i}")
        e("s_endpgm")
    def srd(d, p, n):
        e(f"s_mov_b32 s{d}, s{p}\n s_mov_b32 s{d+1}, s{p+1}\n s_mov_b32 s{d+2}, {n}\n s_mov_b32 s{d+3}, 0x20000")
    def rowmax(d, s):
        e(f"v_max_u32_dpp v{d}, v{s}, v{s} quad_perm:[1,0,3,2] row_mask:0xf bank_mask:0xf")
        e(f"v_max_u32_dpp v{d}, v{d}, v{d} quad_perm:[2,3,0,1] row_mask:0xf bank_mask:0xf")
        e(f"v_max_u32_dpp v{d}, v{d}, v{d} row_half_mirror row_mask:0xf bank_mask:0xf")
        e(f"v_max_u32_dpp v{d}, v{d}, v{d} row_mirror row_mask:0xf bank_mask:0xf")
    def rowsum(d):
        for m in ("quad_perm:[1,0,3,2]", "quad_perm:[2,3,0,1]", "row_half_mirror", "row_mirror"):
            e(f"v_add_f32_dpp v{d}, v{d}, v{d} {m} row_mask:0xf bank_mask:0xf")
    def xsum(d, t, which, op="v_add_f32"):
        e(f"v_mov_b32 v{t}, v{d}\n v_permlane{which}_swap_b32 v{d}, v{t}\n {op} v{d}, v{d}, v{t}")

    a.lab(NAME)
    e("""
s_load_dwordx16 s[4:19], s[0:1], 0
s_load_dwordx4 s[20:23], s[0:1], 64
s_load_dwordx2 s[24:25], s[0:1], 80
""")
    if stamps:
        for i in range(1, 15): e(f"s_mov_b64 s[{72+2*i}:{73+2*i}], 0")
    stamp(0)
    e(f"""
v_lshrrev_b32 v2, 6, v0
v_and_b32 v1, 63, v0
s_cmp_ge_u32 s2, 256
v_readfirstlane_b32 s3, v2
s_cbranch_scc1 L_end
s_and_b32 s26, s2, 7
s_lshr_b32 s27, s2, 3          ; slot
s_lshr_b32 s45, s26, 1         ; rbg
s_and_b32 s46, s2, 1           ; half
v_and_b32 v13, 15, v1
v_lshrrev_b32 v14, 4, v1
s_and_b32 s54, s3, 3           ; w
s_cmp_ge_u32 s27, 16
s_cbranch_scc1 L_B
s_and_b32 s47, s27, 7
s_lshl_b32 s48, s46, 3
s_add_u32 s48, s48, s47        ; hp
s_lshr_b32 s49, s27, 3
s_lshl_b32 s50, s45, 1
s_add_u32 s50, s50, s49        ; rb (0..7)
s_mul_i32 s51, s48, 72
s_and_b32 s52, s51, 8
s_and_b32 s51, s51, -16        ; a0
s_mov_b32 s53, s27
{'s_xor_b32 s3, s3, 4' if flip else ''}
s_cmp_lt_u32 s3, 4
s_cbranch_scc1 L_compute
""")
    e(f"""
s_setprio 2
s_lshl_b32 s55, s50, 5
s_add_u32 s55, s55, s54
s_lshl_b32 s55, s55, 3
v_lshrrev_b32 v2, 3, v1
v_add_u32 v2, s55, v2
v_mul_u32_u24 v16, 1152, v2
s_and_b32 s56, s54, 1
s_lshl_b32 s57, s56, 2
v_add_u32 v3, s57, v14
v_and_b32 v2, 7, v1
v_xor_b32 v2, v2, v3
v_lshl_add_u32 v16, v2, 4, v16
v_lshrrev_b32 v2, 1, v13
v_xor_b32 v2, v2, v3
v_and_b32 v3, 1, v1
v_lshl_add_u32 v2, v2, 1, v3
v_min_u32 v2, 14, v2
v_mul_u32_u24 v3, 52, v2
v_lshrrev_b32 v3, 8, v3
v_lshlrev_b32 v2, 4, v2
v_xor_b32 v15, 1, v3
v_lshrrev_b32 v4, 1, v3
v_sub_u32 v15, v15, v4
v_mul_u32_u24 v15, 1152, v15
v_mul_u32_u24 v3, 80, v3
v_sub_u32 v2, v2, v3
s_lshl_b32 s55, s54, 3
v_add_u32 v3, s55, v14
v_mul_u32_u24 v3, 3456, v3
v_add3_u32 v17, v2, v3, v15
s_lshl_b32 s41, s54, 10
s_mov_b32 s55, 0
s_mov_b32 s56, s51
s_mov_b32 s43, 0
s_mov_b32 s44, -1
s_mov_b32 s30, 2359296
s_mov_b32 s31, 0x20000
s_mov_b32 s34, 1990656
s_mov_b32 s35, 0x20000
s_waitcnt lgkmcnt(0)
s_mov_b32 s28, s4
s_mov_b32 s29, s5
s_mov_b32 s32, s6
s_mov_b32 s33, s7
""")
    def issue():
        e("s_mov_b32 s57, s55")
        for i in range(8):
            iw = (i//2 if i % 2 == 0 else 9) if worder else i
            if iw < 4:
                e(f"s_add_u32 m0, s41, {XS + iw*4096}\n s_add_u32 s58, s56, {((iw>>1)*32 + (iw&1)*4)*3456}")
                e(f"buffer_load_dwordx4 v17, s[32:35], s58 offen {wfl} lds")
            e(f"s_add_u32 m0, s41, {i*4096}")
            if i: e(f"s_add_u32 s57, s57, {2*18432}")
            e(f"buffer_load_dwordx4 v16, s[28:31], s57 offen {xfl} lds")
        e(f"""
s_add_u32 s55, s55, 128
s_add_u32 s56, s56, {64*3456}
s_add_u32 s43, s43, 1
s_add_u32 s41, s41, {STG}
s_cmp_eq_u32 s43, {NBUF}
s_cselect_b32 s57, {NBUF*STG}, 0
s_cselect_b32 s43, 0, s43
s_sub_u32 s41, s41, s57
s_add_u32 s44, s44, 1
""")
    if st0: stamp(5)
    a.lab("L_hloop0")
    issue()
    e("""
s_cmp_eq_u32 s44, 0
s_cbranch_scc1 L_hloop0
s_waitcnt vmcnt(12)
s_barrier
s_cmp_lg_u32 s44, 2
s_cbranch_scc1 L_hloop0
""")
    e("s_setprio 0")
    stamp(14)
    issue()
    e(f"""
v_lshl_add_u32 v2, s54, 6, v1      ; n = 64w + lane
s_lshl_b32 s57, s50, 10
s_lshl_b32 s60, s46, 14
s_add_u32 s60, s60, s57
s_add_u32 s60, s60, {XST}
v_lshlrev_b32 v18, 2, v2
v_min_u32 v3, 107, v2
v_mul_u32_u24 v4, 1821, v3
v_lshrrev_b32 v4, 16, v4           ; sec = c/36
v_xor_b32 v5, 1, v4
v_lshrrev_b32 v6, 1, v4
v_sub_u32 v5, v5, v6
v_mul_u32_u24 v5, 320, v5
v_mul_u32_u24 v4, 36, v4
v_sub_u32 v3, v3, v4
v_add_u32 v3, v3, v5
v_lshlrev_b32 v19, 2, v3
s_mul_i32 s61, s48, 144
s_lshl_b32 s57, s46, 10
s_sub_u32 s61, s61, s57
s_mul_i32 s57, s26, {8*3840}
s_add_u32 s61, s61, s57
s_add_u32 s61, s61, {CS}
""")
    e(f"""
v_cmp_gt_u32 vcc, 190, v2
v_cndmask_b32_e64 v3, 0, v2, vcc       ; gamma or 0
v_cndmask_b32 v23, 0, -1, vcc
v_mov_b32 v24, v23
v_mul_u32_u24 v4, 13108, v3
v_lshrrev_b32 v4, 16, v4           ; col
v_mul_u32_u24 v5, 5, v4
v_sub_u32 v5, v3, v5               ; i
v_cmp_le_u32 vcc, 18, v4
v_cndmask_b32 v6, 0, 1, vcc        ; head for col<36
v_cmp_le_u32 vcc, 36, v4
v_subrev_u32 v7, 36, v4
v_cndmask_b32_e64 v6, v6, v7, vcc      ; head
v_cndmask_b32 v4, v4, 36, vcc      ; e (36 = ones column)
v_mov_b32 v12, {f2u(1/LOG2E**2):#x}
v_mov_b32 v11, {f2u(1/LOG2E):#x}
v_cndmask_b32_e64 v12, v12, v11, vcc
v_lshl_add_u32 v7, v6, 2, v5       ; delta = i + 4*head
v_add_u32 v4, 72, v4               ; tile column index 72+e
v_lshrrev_b32 v8, 4, v4
v_subrev_u32 v8, 4, v8             ; TB-4
v_and_b32 v4, 15, v4               ; lane col
v_lshrrev_b32 v9, 2, v7            ; TA
v_mad_u32_u24 v8, v9, 3, v8
v_lshrrev_b32 v10, 1, v9
v_sub_u32 v8, v8, v10
v_and_b32 v9, 3, v7
v_lshl_add_u32 v4, v9, 4, v4
v_lshlrev_b32 v4, 4, v4
v_lshl_add_u32 v22, v8, 10, v4
v_add_u32 v22, {L_KVRED}, v22      ; lds source
v_cmp_eq_u32 vcc, 4, v7
v_cndmask_b32 v8, -1, 0, vcc       ; 0 when delta==4
v_subrev_u32 v9, 1, v6             ; head0: -1, head1: 0
v_or_b32 v9, v9, v8
v_and_b32 v23, v23, v9             ; lo mask
v_sub_u32 v9, 0, v6
v_or_b32 v9, v9, v8
v_and_b32 v24, v24, v9             ; hi mask
v_lshlrev_b32 v25, 4, v2           ; gamma*16
v_lshlrev_b32 v26, 3, v2
v_add_u32 v26, {L_KT}, v26
s_mul_i32 s62, s48, {8*3072}       ; KVP base of this hp
""".replace("v_cndmask_b32 v23, 0, -1, vcc", "v_cndmask_b32_e64 v23, 0, -1, vcc").replace("v_cndmask_b32 v6, 0, 1, vcc", "v_cndmask_b32_e64 v6, 0, 1, vcc").replace("v_cndmask_b32 v4, v4, 36, vcc", "v_cndmask_b32_e64 v4, v4, 36, vcc").replace("v_cndmask_b32 v8, -1, 0, vcc", "v_cndmask_b32_e64 v8, -1, 0, vcc"))
    def wo_setup():
        e(f"""
s_cmp_ge_u32 s53, 9
s_cselect_b32 s57, 9, 0
s_sub_u32 s63, s53, s57            ; cb
v_lshrrev_b32 v2, 3, v1            ; rr
v_and_b32 v3, 7, v1
v_bfe_u32 v4, v1, 4, 2
v_lshlrev_b32 v4, 1, v4
v_xor_b32 v3, v3, v4
v_lshlrev_b32 v3, 4, v3
s_lshl_b32 s57, s63, 7
v_add_u32 v3, s57, v3
v_lshrrev_b32 v4, 2, v2
v_and_b32 v5, 3, v2
v_mad_u32_u24 v6, v4, 10, v5
s_and_b32 s57, s54, 1
s_mul_i32 s58, s57, 18
s_lshr_b32 s59, s54, 1
s_lshl_b32 s42, s59, 2
s_add_u32 s58, s58, s42
v_add_u32 v6, s58, v6
v_mul_u32_u24 v6, 1152, v6
v_add_u32 v20, v6, v3
v_mul_u32_u24 v4, 72, v4
v_bfe_u32 v5, v2, 1, 1
v_mad_u32_u24 v4, v5, 18, v4
v_and_b32 v5, 1, v2
v_add_u32 v4, v4, v5
s_mul_i32 s57, s57, 144
s_mul_i32 s59, s59, 36
s_add_u32 s57, s57, s59
s_add_u32 s57, s57, 8
v_add_u32 v4, s57, v4
v_mul_u32_u24 v4, 1152, v4
v_add_u32 v21, v4, v3
v_and_b32 v3, 7, v1
v_xor_b32 v3, v3, v2
v_mul_u32_u24 v4, 1152, v2
v_lshl_add_u32 v29, v3, 4, v4
s_cmp_ge_u32 s53, 9
s_cselect_b32 s57, 16, 0
s_lshl_b32 s49, s26, 5
s_add_u32 s49, s49, s57
s_add_u32 s49, s49, s54
s_mul_i32 s49, s49, {8*1152}
s_lshl_b32 s57, s63, 7
s_add_u32 s49, s49, s57
""")
    def wo_dma(tag, part=0):
        if part >= 0:
            srd(68, 8, 663552)
            e(f"s_lshl_b32 s42, s54, 10\n s_lshl_b32 s40, s63, 1\n s_and_b32 s40, s40, {15 if rot else 0}\n s_mul_i32 s40, s40, {36*1152}")
        e(f"""
L_wod{tag}:
s_mov_b32 m0, s42
s_add_u32 s42, s42, 4096
buffer_load_dwordx4 v20, s[68:71], s40 offen lds
s_add_u32 s40, s40, {36*1152}
s_cmp_eq_u32 s40, {16*36*1152}
s_cselect_b32 s40, 0, s40
s_cmp_lt_u32 s42, {(part if part > 0 else 16)*4096}
s_cbranch_scc1 L_wod{tag}
""")
        if part <= 0:
            e(f"""
s_mov_b32 m0, s42
s_add_u32 s42, s42, 4096
buffer_load_dwordx4 v21, s[68:71], 0 offen lds
s_mov_b32 m0, s42
s_mov_b32 s40, {288*1152}
buffer_load_dwordx4 v21, s[68:71], s40 offen lds
s_lshl_b32 s42, s54, 10
""")
            for i in range(4):
                e(f"s_add_u32 m0, s42, {L_XT + 4096*i}\n s_add_u32 s40, s49, {i*32*1152}\n buffer_load_dwordx4 v29, s[28:31], s40 offen lds")
    def sw_calc():
        srd(68, 12, 1152)
        e("v_lshlrev_b32 v2, 2, v1")
        for i in range(5): e(f"buffer_load_dword v{30+i}, v2, s[68:71], 0 offen offset:{256*i}")
        e("v_mov_b32 v3, 0\n s_mov_b32 s57, 0x3f803f80\n s_waitcnt vmcnt(0)")
        e(f"v_add_u32 v2, {L_WR}, v2")
        for i in range(5): e(f"ds_write_b32 v2, v{30+i} offset:{256*i}")
        for i in range(5): e(f"v_dot2c_f32_bf16 v3, s57, v{30+i}")
        rowsum(3); xsum(3, 4, 16); xsum(3, 4, 32)
        e(f"v_mov_b32 v4, {L_SW}\n ds_write_b32 v4, v3")
        e(f"""
s_getreg_b32 s57, hwreg(HW_REG_XCC_ID)
s_and_b32 s57, s57, 15
v_mov_b32 v5, s57
v_mov_b32 v6, 0
s_cmp_ge_u32 s53, 9
s_cselect_b32 s57, 128, 0
s_lshl_b32 s58, s26, 8
s_add_u32 s57, s57, s58
s_lshl_b32 s58, s63, 2
s_add_u32 s57, s57, s58
s_add_u32 s57, s57, {XID}
s_mov_b64 exec, 1
buffer_store_dword v5, v6, s[36:39], s57 offen sc1
s_mov_b64 exec, -1
""")
    def flags_wait(tag, issued, off, fv=27, av=28, nap=0):
        e(f"s_mov_b32 s59, 0")
        if issued: e(f"s_branch L_fl1{tag}")
        a.lab(f"L_fl0{tag}")
        if nap: e(f"s_sleep {nap}")
        e(f"""
buffer_load_dword v{fv}, v{av}, s[64:67], 0 offen offset:{off} sc1
L_fl1{tag}:
s_waitcnt vmcnt(0)
v_cmp_eq_u32 vcc, 0, v{fv}
s_cbranch_vccz L_fl2{tag}
s_add_u32 s59, s59, 1
s_cmp_lt_u32 s59, {SPIN}
s_cbranch_scc1 L_fl0{tag}
L_fl2{tag}:
""")
    def arrive(tag, cnt_off, done_off, n):
        e(f"""
v_mov_b32 v20, 1
v_mov_b32 v21, 0
s_mov_b64 exec, 1
buffer_atomic_add v20, v21, s[64:67], 0 offen offset:{cnt_off} sc0
s_waitcnt vmcnt(0)
v_cmp_eq_u32 vcc, {n-1}, v20
s_cbranch_vccz L_ar{tag}
buffer_store_dword v20, v21, s[64:67], 0 offen offset:{done_off} sc1
L_ar{tag}:
s_mov_b64 exec, -1
""")
    e("s_waitcnt vmcnt(12)\n s_barrier")
    issue()
    wo_setup()
    e(f"""
v_lshrrev_b32 v2, 3, v13           ; head
v_bfe_u32 v3, v13, 2, 1            ; odd
v_and_b32 v4, 3, v13               ; r
v_mul_u32_u24 v5, 18, v2
v_mad_u32_u24 v5, v3, 10, v5
v_add_u32 v5, v5, v4
v_lshl_add_u32 v5, s54, 2, v5
s_mov_b64 s[70:71], -1
s_cmp_lg_u32 s54, 2
s_cbranch_scc1 L_kta
v_add_u32 v6, 36, v2
v_cmp_eq_u32 s[68:69], 2, v4
v_cndmask_b32_e64 v5, v5, v6, s[68:69]
v_lshl_add_u32 v6, v3, 2, v4
v_cmp_gt_u32 s[70:71], 2, v6
s_or_b64 s[70:71], s[70:71], s[68:69]
L_kta:
v_lshlrev_b32 v6, 2, v2
v_sub_u32 v6, v14, v6
v_mov_b32 v7, 190
s_mul_i32 s57, s54, 768
s_add_u32 s57, s57, {L_KTA}
v_lshl_add_u32 v8, v1, 2, s57
s_mov_b32 s57, {L_KT}
""")
    for t in range(3):
        e(f"v_add_u32 v9, {4*t}, v6\n v_cmp_gt_u32 s[68:69], 5, v9\n v_mad_u32_u24 v9, v5, 5, v9\n s_and_b64 s[68:69], s[68:69], s[70:71]\n v_cndmask_b32_e64 v9, v7, v9, s[68:69]\n v_lshl_add_u32 v9, v9, 3, s57\n ds_write_b32 v8, v9 offset:{256*t}")
    e("v_mov_b32 v28, 0")
    srd(36, 24, 0x10000000)
    srd(64, 22, 256)
    if lprio: e(f"s_setprio {lprio}")
    a.lab("L_hloop1")
    e("s_waitcnt vmcnt(12)\n s_barrier")
    issue()
    e("s_cmp_lg_u32 s44, 8\n s_cbranch_scc1 L_hloop1")
    e("buffer_load_dword v27, v28, s[64:67], 0 offen offset:128 sc1\n s_waitcnt vmcnt(13)\n s_barrier")
    stamp(4)
    flags_wait("a", True, 128)
    if not st0: stamp(5)
    def statloads():
        e("buffer_load_dword v30, v18, s[36:39], s60 offen sc1\n s_add_u32 s57, s60, 8192\n buffer_load_dword v31, v18, s[36:39], s57 offen sc1\n s_mov_b32 s57, s61")
        for i in range(8):
            e(f"buffer_load_dword v{32+i}, v19, s[36:39], s57 offen sc1")
            if i < 7: e("s_add_u32 s57, s57, 3840")
    statloads()
    e("buffer_load_dword v27, v28, s[64:67], 0 offen offset:132 sc1\n s_barrier")
    stamp(6)
    wo_dma("a", 8)
    e("s_mov_b32 s59, 0\n s_waitcnt vmcnt(8)\n s_branch L_st1")
    a.lab("L_st0")
    statloads()
    e(f"""
s_waitcnt vmcnt(0)
L_st1:
v_max3_u32 v2, v30, v31, v32
v_max3_u32 v2, v2, v33, v34
v_max3_u32 v2, v2, v35, v36
v_max3_u32 v2, v2, v37, v38
v_max_u32 v2, v2, v39
v_cmp_eq_u32 vcc, -1, v2
s_cbranch_vccz L_st2
s_add_u32 s59, s59, 1
s_cmp_lt_u32 s59, {SPIN}
s_cbranch_scc1 L_st0
L_st2:
{"s_memrealtime s[98:99]" if stamps else ""}
v_add_u32 v18, {L_RS}, v18
v_pk_add_f32 v[32:33], v[32:33], v[36:37]
v_pk_add_f32 v[34:35], v[34:35], v[38:39]
v_pk_add_f32 v[32:33], v[32:33], v[34:35]
v_add_f32 v32, v32, v33
ds_write_b32 v18, v30
ds_write_b32 v18, v31 offset:1024
ds_write_b32 v18, v32 offset:2048
""")
    e("s_waitcnt lgkmcnt(0)\n s_barrier")
    stamp(1)
    wo_dma("b", -8)
    flags_wait("r", True, 132)
    e("s_cmp_lg_u32 s54, 3\n s_cbranch_scc1 L_hpub")
    sw_calc()
    e("s_waitcnt lgkmcnt(0)\n s_barrier\n s_barrier\n s_branch L_s3pre")
    a.lab("L_hpub")
    if hprio: e("s_setprio 2")
    e("s_waitcnt vmcnt(0)\n s_barrier")
    for i in range(4): e(f"ds_read_b128 v[{32+4*i}:{35+4*i}], v22 offset:{8192*i}")
    e(f"s_mul_i32 s57, s50, 3072\n s_add_u32 s57, s57, s62\n s_waitcnt lgkmcnt(0)")
    e("v_pk_add_f32 v[32:33], v[32:33], v[36:37]\n v_pk_add_f32 v[34:35], v[34:35], v[38:39]\n v_pk_add_f32 v[40:41], v[40:41], v[44:45]\n v_pk_add_f32 v[42:43], v[42:43], v[46:47]")
    e("v_pk_add_f32 v[32:33], v[32:33], v[40:41]\n v_pk_add_f32 v[34:35], v[34:35], v[42:43]")
    e("buffer_store_dwordx4 v[32:35], v25, s[36:39], s57 offen sc1")
    stamp(2)
    e("s_mov_b32 s59, 0")
    e("s_waitcnt vmcnt(0)" if await_ else f"s_sleep {asleep}")
    a.lab("L_hA")
    e("s_mov_b32 s57, s62")
    for i in range(8):
        e(f"buffer_load_dwordx4 v[{32+4*i}:{35+4*i}], v25, s[36:39], s57 offen sc1")
        if i < 7: e("s_add_u32 s57, s57, 3072")
    e("s_waitcnt vmcnt(0)")
    e("v_max3_u32 v2, v32, v33, v34")
    for i in range(35, 63, 2): e(f"v_max3_u32 v2, v2, v{i}, v{i+1}")
    e(f"""
v_max_u32 v2, v2, v63
v_cmp_eq_u32 vcc, -1, v2
s_cbranch_vccz L_hA2
s_add_u32 s59, s59, 1
s_cmp_lt_u32 s59, {SPIN}
s_cbranch_scc1 L_hA
L_hA2:
""")
    for st in (16, 8, 4):
        for i in range(0, st, 2): e(f"v_pk_add_f32 v[{32+i}:{33+i}], v[{32+i}:{33+i}], v[{32+st+i}:{33+st+i}]")
    e("""
v_pk_mul_f32 v[32:33], v[32:33], v[12:13] op_sel_hi:[1,0]
v_pk_mul_f32 v[34:35], v[34:35], v[12:13] op_sel_hi:[1,0]
v_cvt_pk_bf16_f32 v32, v32, v33
v_cvt_pk_bf16_f32 v33, v34, v35
v_and_b32 v32, v32, v23
v_and_b32 v33, v33, v24
ds_write_b64 v26, v[32:33]
s_waitcnt lgkmcnt(0)
s_barrier
""")
    stamp(3)
    if hprio: e("s_setprio 0")
    e("s_branch L_s3pre")

    OF = 16; AC = 116; WR = 132; BR = 140; BA = 236
    VST, VSW, VSR, VOUT, VC7, VTOK, VSUM = 249, 250, 251, 252, 253, 254, 255
    VKW, VKR = 11, 12
    def bread(k):
        r = []
        for T in range(4):
            for hf in range(2):
                d = BR + (k % NPRE)*16 + 4*T + 2*hf
                off = ((k*32 + hf*16)*128) & 0xffff
                r.append(f"ds_read_b64_tr_b16 v[{d}:{d+1}], v{BA+T} offset:{off}")
        return r
    def s3_setup():
        XR = BR + 80
        e(f"""
s_cmp_ge_u32 s53, 9
s_cselect_b32 s57, 9, 0
s_cselect_b32 s58, 8, 0
s_sub_u32 s63, s53, s57            ; cb
s_lshl_b32 s60, s26, 4
s_add_u32 s60, s60, s58
s_add_u32 s60, s60, s3             ; tb
v_lshrrev_b32 v2, 2, v13
v_lshl_add_u32 v2, v14, 2, v2      ; rho
v_bfe_u32 v3, v2, 1, 2
v_lshlrev_b32 v2, 7, v2
v_and_b32 v4, 3, v13
v_lshl_add_u32 v2, v4, 3, v2
v_lshlrev_b32 v3, 5, v3
v_add_u32 v{BA}, v2, v3
v_xor_b32 v{BA+1}, 32, v{BA}
v_xor_b32 v{BA+2}, 64, v{BA}
v_xor_b32 v{BA+3}, 96, v{BA}
s_mul_i32 s61, s60, {16*1152}
s_add_u32 s62, s61, {OB}
s_lshl_b32 s57, s63, 7
s_add_u32 s61, s61, s57
s_add_u32 s57, s57, {L_WR}
v_lshl_add_u32 v5, v14, 3, s57
v_lshrrev_b32 v2, 1, v14
v_and_b32 v3, 7, v13
v_xor_b32 v2, v2, v3
v_lshlrev_b32 v2, 4, v2
v_lshl_add_u32 v2, v13, 7, v2
v_and_b32 v3, 1, v14
v_lshl_add_u32 v2, v3, 3, v2
s_lshl_b32 s57, s3, 11
s_add_u32 s57, s57, {L_XT}
v_add_u32 v2, s57, v2
""")
        for T in range(4):
            e(f"v_xor_b32 v4, {32*T}, v2\n ds_read_b64 v[{XR+2*T}:{XR+2*T+1}], v4")
            e(f"ds_read_b64 v[{WR+2*T}:{WR+2*T+1}], v5 offset:{32*T}")
        e(f"v_mov_b32 v2, {L_SW}\n ds_read_b32 v{VSUM}, v2")
        if not latepre:
            for k in range(NPRE-1):
                for x in bread(k): e(x)
        e(f"""
v_and_b32 v2, 3, v13
v_cmp_eq_u32 s[40:41], 2, v2
v_cndmask_b32_e64 v3, 0, -1, s[40:41]
v_mov_b32 v4, 0x3f803f80
v_cmp_eq_u32 s[40:41], 0, v2
v_cndmask_b32_e64 v4, 0, v4, s[40:41]
v_lshlrev_b32 v{VST}, 4, v13
s_mul_i32 s50, s3, 4608
s_add_u32 s50, s50, {L_STAGE}
v_mul_u32_u24 v{VSW}, 144, v13
v_lshl_add_u32 v{VSW}, v14, 3, v{VSW}
v_add_u32 v{VSW}, s50, v{VSW}
v_lshrrev_b32 v{VOUT}, 3, v1
v_add_u32 v{VSR}, v{VOUT}, v1
v_lshl_add_u32 v{VSR}, v{VSR}, 4, s50
v_mul_u32_u24 v{VOUT}, 1152, v{VOUT}
v_and_b32 v{VC7}, 7, v1
v_lshl_add_u32 v{VOUT}, v{VC7}, 4, v{VOUT}
v_lshl_add_u32 v{VTOK}, s60, 4, v13
v_sub_u32 v{VTOK}, 2047, v{VTOK}
s_lshl_b32 s57, s3, 3
s_add_u32 s57, s57, {L_KEY}
v_mov_b32 v{VKW}, s57
v_lshlrev_b32 v{VKR}, 2, v13
v_add_u32 v{VKR}, {L_KEY}, v{VKR}
s_mul_i32 s51, s60, {9*256}
s_add_u32 s51, s51, {ST}
s_lshl_b32 s52, s63, 8
s_add_u32 s52, s52, s51
s_mov_b32 s44, 0x00f0000f
s_mov_b32 s45, 0xf0000f00
s_mov_b32 s46, 0x22222222
s_mov_b32 s47, 0x22222222
s_mov_b32 s48, 0xcccccccc
s_mov_b32 s49, 0xcccccccc
s_mov_b32 s42, 0x88888888
s_mov_b32 s43, 0x88888888
s_lshl_b32 s56, s63, 1
s_and_b32 s56, s56, {15 if rot else 0}
s_waitcnt lgkmcnt({0 if latepre else 15})
""")
        for i in range(8): e(f"v_lshlrev_b32 v{AC+2*i}, 16, v{XR+i}\n v_and_b32 v{AC+2*i+1}, 0xffff0000, v{XR+i}\n v_and_or_b32 v{WR+i}, v{WR+i}, v3, v4")
        if not latepre:
            for x in bread(NPRE-1): e(x)

    a.lab("L_compute")
    e(f"""
v_lshrrev_b32 v15, 1, v13
v_xor_b32 v15, v15, v14
v_lshlrev_b32 v15, 4, v15
v_lshl_add_u32 v4, v13, 7, v15
s_lshl_b32 s55, s54, 13
v_add_u32 v4, s55, v4
v_xor_b32 v5, 64, v4
v_lshrrev_b32 v2, 2, v13
v_lshl_add_u32 v2, v14, 2, v2
v_and_b32 v3, 3, v13
v_and_b32 v15, 7, v2
v_lshlrev_b32 v15, 5, v15
v_lshlrev_b32 v2, 8, v2
v_add_u32 v2, {XS}, v2
v_add_u32 v16, 3, v3
v_and_b32 v16, 4, v16
v_lshlrev_b32 v16, 1, v16
v_and_b32 v17, 2, v3
v_lshlrev_b32 v17, 2, v17
v_lshlrev_b32 v3, 3, v3
v_add_u32 v3, s52, v3
""")
    for T in range(7):
        secs = [min((4*T+c)//9, 2) for c in range(4)]
        e(f"v_add_u32 v{6+T}, {32*T + 8*secs[0]}, v3")
        if T == 2: e(f"v_add_u32 v{6+T}, v{6+T}, v16")
        if T == 4: e(f"v_add_u32 v{6+T}, v{6+T}, v17")
        e(f"v_xor_b32 v{6+T}, v{6+T}, v15\n v_add_u32 v{6+T}, v{6+T}, v2")
    e(f"""
s_lshl_b32 s55, s54, 8
s_add_u32 s55, s55, {L_RS}
v_lshl_add_u32 v249, v14, 4, s55
v_lshlrev_b32 v250, 2, v13
v_add_u32 v250, {L_CS}, v250
v_cmp_le_u32 s[40:41], 12, v13
v_cndmask_b32_e64 v251, 0, -1, s[40:41]
s_mul_i32 s55, s54, 7680
s_add_u32 s55, s55, {L_PQ}
v_mul_u32_u24 v252, 40, v13
v_lshl_add_u32 v252, v14, 3, v252
v_add_u32 v252, s55, v252
v_lshrrev_b32 v254, 2, v13
v_add_u32 v254, v254, v13
v_lshl_add_u32 v254, v254, 3, s55
v_mul_u32_u24 v253, 160, v14
v_add_u32 v253, v253, v254
s_lshl_b32 s55, s54, 13
s_add_u32 s55, s55, {L_KVRED}
v_lshl_add_u32 v255, v1, 4, s55
""")
    ACC = 16; F = [128, 172]
    for i in range(4): e(f"v_mov_b32 v{F[1]+i}, 0")
    for i in range(28): e(f"v_mfma_f32_16x16x32_bf16 v[{ACC+4*i}:{ACC+4*i+3}], v[{F[1]}:{F[1]+3}], v[{F[1]}:{F[1]+3}], 0")
    def reads(fs, kk):
        r = [f"ds_read_b128 v[{F[fs]+4*j}:{F[fs]+4*j+3}], v{4+kk} offset:{j*2048}" for j in range(4)]
        for T in range(7):
            for hf in range(2):
                d = F[fs]+16+4*T+2*hf
                r.append(f"ds_read_b64_tr_b16 v[{d}:{d+1}], v{6+T} offset:{(kk*32+hf*16)*256}")
        return r
    def acc(j, T): return ACC + (j*7+T)*4
    def mfmas(fs):
        m = []
        for T in range(7):
            for j in range(4):
                c = acc(j, T); b = F[fs]+16+4*T
                m.append(f"v_mfma_f32_16x16x32_bf16 v[{c}:{c+3}], v[{F[fs]+4*j}:{F[fs]+4*j+3}], v[{b}:{b+3}], v[{c}:{c+3}]")
        return m
    def weave(m, r, extra):
        out = []
        for i, x in enumerate(m):
            out.append(x)
            if i < len(r): out.append(r[i])
            if i in extra: out.extend(extra[i])
        return out
    e(f"s_mov_b32 s55, 0\n s_mov_b32 s56, 0\n s_mov_b32 s58, {STG}\n s_waitcnt lgkmcnt(0)")
    srd(36, 24, 0x10000000)
    srd(28, 4, 2359296)
    stamp(14)
    e("s_barrier")
    stamp(1)
    for r in reads(0, 0): e(r)
    e("s_waitcnt lgkmcnt(0)\n s_branch L_cloop\n .p2align 3")
    a.lab("L_cloop2")
    for x in weave(mfmas(1), reads(0, 0), {}): e(x)
    e("s_waitcnt lgkmcnt(0)")
    a.lab("L_cloop")
    ex = {0: ["s_add_u32 s56, s56, 1", f"s_cmp_eq_u32 s56, {NBUF}"], 1: [f"s_cselect_b32 s57, {(-(NBUF-1)*STG) & 0xffffffff}, s58", "s_cselect_b32 s56, 0, s56"],
          2: ["v_add_u32 v4, s57, v4"], 4: ["v_add_u32 v5, s57, v5"], 22: ["s_add_u32 s55, s55, 1", "s_cmp_lt_u32 s55, 9"]}
    for T in range(7): ex.setdefault(6+2*T, []).append(f"v_add_u32 v{6+T}, s57, v{6+T}")
    for x in weave(mfmas(0), reads(1, 1), ex): e(x)
    e("s_waitcnt lgkmcnt(0)\n s_barrier\n s_cbranch_scc1 L_cloop2")
    RS, MRS = 128, 144
    CSR = [160, 162, 164, 166, 168, 170, 10]
    K = 4
    import math
    C1L = LOG2E*1.000001; E2M = LOG2E*math.exp(-1.000001); E2A = LOG2E*1e-6
    tr = [f"ds_read_b32 v{CSR[T]}, v250 offset:{64*T}" for T in range(7)]
    for j in range(4): tr += [f"ds_read_b128 v[{RS+4*j}:{RS+4*j+3}], v249 offset:{64*j}", f"ds_read_b128 v[{MRS+4*j}:{MRS+4*j+3}], v249 offset:{1024+64*j}"]
    tr += [f"v_mov_b32 v{K}, {f2u(C1L):#x}", f"v_mov_b32 v{K+2}, {f2u(E2M):#x}", f"v_mov_b32 v{K+4}, {f2u(E2A):#x}", "v_mov_b32 v2, 0x3f803f80"]
    for x in weave(mfmas(1), tr, {}): e(x)
    e("s_waitcnt lgkmcnt(0)")
    stamp(2)
    TMP = 204
    def phi(j, T, dst):
        c = acc(j, T); p = f"v[{CSR[T]}:{CSR[T]+1}]"; u = TMP; t = TMP+4
        for h in range(2): e(f"v_pk_fma_f32 v[{u+2*h}:{u+2*h+1}], v[{MRS+4*j+2*h}:{MRS+4*j+2*h+1}], {p}, v[{K}:{K+1}] op_sel_hi:[1,0,0]")
        for h in range(2): e(f"v_pk_fma_f32 v[{u+2*h}:{u+2*h+1}], v[{c+2*h}:{c+2*h+1}], v[{RS+4*j+2*h}:{RS+4*j+2*h+1}], v[{u+2*h}:{u+2*h+1}]")
        for q in range(4): e(f"v_exp_f32 v{t+q}, v{u+q}")
        for h in range(2): e(f"v_pk_fma_f32 v[{t+2*h}:{t+2*h+1}], v[{t+2*h}:{t+2*h+1}], v[{K+2}:{K+3}], v[{K+4}:{K+5}] op_sel_hi:[1,0,0]")
        for q in range(4): e(f"v_med3_f32 v{t+q}, v{u+q}, v{t+q}, v{K}")
        for h in range(2): e(f"v_cvt_pk_bf16_f32 v{dst+h}, v{t+2*h}, v{t+2*h+1}")
    def lin(j, T, dst):
        c = acc(j, T); p = f"v[{CSR[T]}:{CSR[T]+1}]"
        for h in range(2): e(f"v_pk_mul_f32 v[{TMP+8+2*h}:{TMP+9+2*h}], v[{MRS+4*j+2*h}:{MRS+4*j+2*h+1}], {p} op_sel_hi:[1,0]")
        for h in range(2): e(f"v_pk_fma_f32 v[{TMP+8+2*h}:{TMP+9+2*h}], v[{c+2*h}:{c+2*h+1}], v[{RS+4*j+2*h}:{RS+4*j+2*h+1}], v[{TMP+8+2*h}:{TMP+9+2*h}]")
        for h in range(2): e(f"v_cvt_pk_bf16_f32 v{dst+h}, v{TMP+8+2*h}, v{TMP+9+2*h}")
    PK = 216; KVA = 172
    pairs = [(0,0),(0,1),(0,2),(1,0),(1,1),(1,2),(2,1),(2,2)]
    for jp in range(2):
        for jj in range(2):
            j = 2*jp + jj
            for T in range(3): phi(j, T, PK + 4*T + 2*jj)
            e(f"ds_write_b64 v252, v[{PK+8+2*jj}:{PK+9+2*jj}] offset:{j*1920}")
            for T in range(3): lin(j, 4+T, PK + 12 + 4*T + 2*jj)
            for h in range(2): e(f"v_bfi_b32 v{PK+20+2*jj+h}, v251, v2, v{PK+20+2*jj+h}")
        for n, (ta, tb) in enumerate(pairs):
            c = KVA + 4*n
            e(f"v_mfma_f32_16x16x32_bf16 v[{c}:{c+3}], v[{PK+4*ta}:{PK+4*ta+3}], v[{PK+12+4*tb}:{PK+15+4*tb}], " + ("0" if jp == 0 else f"v[{c}:{c+3}]"))
    for n, (ta, tb) in enumerate(pairs):
        e(f"ds_write_b128 v255, v[{KVA+4*n}:{KVA+4*n+3}] offset:{n*1024}")
    e("s_waitcnt lgkmcnt(0)")
    stamp(13)
    e("s_barrier")
    stamp(3)
    for j in range(4):
        for T in (3, 4):
            d = PK + (j*2 + T-3)*2
            phi(j, T, d)
            e(f"ds_write_b64 v252, v[{d}:{d+1}] offset:{j*1920 + (T-2)*640}")
    PQ = 16
    e("s_waitcnt lgkmcnt(0)")
    for j in range(4):
        for t in range(2): e(f"ds_read_b64_tr_b16 v[{PQ+6*j+2*t}:{PQ+6*j+2*t+1}], v253 offset:{j*1920 + (4+16*t)*40}")
        e(f"ds_read_b64_tr_b16 v[{PQ+6*j+4}:{PQ+6*j+5}], v254 offset:{j*1920 + 36*40}")
    KA = 44
    e(f"v_lshlrev_b32 v2, 2, v1\n v_add_u32 v2, {L_KTA}, v2")
    for i in range(9): e(f"ds_read_b32 v{240+i}, v2 offset:{256*i}")
    e(f"v_mov_b32 v{PQ+24}, 0\n v_mov_b32 v{PQ+25}, 0")
    for tau in range(3): e(f"v_mov_b32 v{KA+8*tau+6}, 0\n v_mov_b32 v{KA+8*tau+7}, 0")
    e(f"""
v_lshlrev_b32 v6, 4, v1
v_lshlrev_b32 v7, 3, v13
v_lshl_add_u32 v7, v14, 1, v7
v_add_u32 v7, 1024, v7
v_and_b32 v8, 1, v14
v_lshl_or_b32 v7, v8, 31, v7
v_mov_b32 v9, {f2u(1/LOG2E):#x}
v_mov_b32 v10, {f2u(1e-6):#x}
s_lshl_b32 s55, s50, 4
s_lshl_b32 s56, s54, 2
s_add_u32 s55, s55, s56
s_lshl_b32 s55, s55, 4
s_add_u32 s55, s55, s48
s_mul_i32 s55, s55, 1152
s_add_u32 s55, s55, {OB}
s_waitcnt lgkmcnt(0)
""")
    s3_setup()
    e("s_waitcnt lgkmcnt(0)")
    stamp(4)
    e("s_barrier")
    stamp(5)
    for tau in (2, 0, 1):
        for t in range(3): e(f"ds_read_b64 v[{KA+8*tau+2*t}:{KA+8*tau+2*t+1}], v{240+tau*3+t}")
    D = 68
    def s2m(j, tau, half):
        c = D + 12*j + 4*tau
        return f"v_mfma_f32_16x16x32_bf16 v[{c}:{c+3}], v[{KA+8*tau+4*half}:{KA+8*tau+4*half+3}], v[{PQ+6*j+4*half}:{PQ+6*j+4*half+3}], " + ("0" if half == 0 else f"v[{c}:{c+3}]")
    e("s_waitcnt lgkmcnt(6)")
    for half in range(2):
        for j in range(4): e(s2m(j, 2, half))
    e("s_waitcnt lgkmcnt(0)")
    mm = [s2m(j, tau, half) for j in range(4) for half in range(2) for tau in range(2)]
    dv = []
    for op in range(6):
        for j in range(4):
            r = D + 12*j + 10
            dv.append([f"v_mul_f32 v{r}, v9, v{r}", f"v_cvt_pk_bf16_f32 v{r}, v{r}, v{r}", f"v_and_b32 v{r}, 0xffff0000, v{r}", f"v_add_f32 v{r}, v10, v{r}", f"v_rcp_f32 v{r}, v{r}", f"v_mul_f32 v{r}, v9, v{r}"][op])
    for x in interleave(mm, dv, 2, 3): e(x)
    for j in range(4):
        c = D + 12*j; o = c
        for h in range(5): e(f"v_pk_mul_f32 v[{c+2*h}:{c+2*h+1}], v[{c+2*h}:{c+2*h+1}], v[{c+10}:{c+11}] op_sel_hi:[1,0]")
        for h in range(5): e(f"v_cvt_pk_bf16_f32 v{o+h}, v{c+2*h}, v{c+2*h+1}")
        e(f"buffer_store_dwordx4 v[{o}:{o+3}], v6, s[36:39], s55 offen sc1\n buffer_store_dword v{o+4}, v7, s[36:39], s55 offen sc1")
        if j < 3: e(f"s_add_u32 s55, s55, {16*1152}")
    stamp(6)

    e("s_branch L_s3go")
    a.lab("L_s3pre")
    s3_setup()
    a.lab("L_s3go")
    if latepre:
        for k in range(NPRE):
            for x in bread(k): e(x)
    e("v_lshlrev_b32 v6, 4, v1\n v_mul_u32_u24 v7, 2304, v14\n v_lshl_add_u32 v7, v13, 3, v7")
    e(f"""
{"" if hintall else "s_cmp_lt_u32 s27, 16"}
{"" if hintall else "s_cbranch_scc1 L_oload"}
s_cmp_lg_u32 s3, 7
s_cbranch_scc1 L_oload
v_mov_b32 v2, 0
s_mov_b32 s59, 0
s_add_u32 s57, s62, 1152
L_ohint:
s_sleep {hsleep}
buffer_load_dword v3, v2, s[36:39], s57 offen offset:1024 sc1
s_waitcnt vmcnt(0)
v_cmp_eq_u32 vcc, -1, v3
s_cbranch_vccz L_oload
s_add_u32 s59, s59, 1
s_cmp_lt_u32 s59, {SPIN}
s_cbranch_scc1 L_ohint
L_oload:
{"s_sleep %d" % osleep if osleep else ""}
s_waitcnt {"vmcnt(0) " if owait else ""}lgkmcnt(0)
s_barrier
""")
    stamp(7)
    if s3prio: e(f"s_cmp_lt_u32 s3, 4\n s_cbranch_scc1 L_s3p\n s_setprio {s3prio}\nL_s3p:")
    groups = [[2*i, 2*i+1] for i in range(9)]
    def oreg(k): return OF + 4*(k % (2*ahead+2))
    def oloads(g):
        r = []
        for k in g:
            o = oreg(k)
            if k < 16:
                if k % 2 == 0: r.append(f"s_add_u32 s57, s56, {k}\n s_and_b32 s57, s57, 15\n s_mul_i32 s57, s57, 1152\n s_add_u32 s57, s57, s62")
                r.append(f"buffer_load_dwordx4 v[{o}:{o+3}], v6, s[36:39], s57 offen offset:{1152*(k%2)} {x_fl}")
            else:
                u = k-16
                r.append(f"s_add_u32 s57, s62, {8*u*1152}\n buffer_load_dwordx2 v[{o}:{o+1}], v7, s[36:39], s57 offen offset:1024 sc1\n buffer_load_dwordx2 v[{o+2}:{o+3}], v7, s[36:39], s57 offen offset:{1024+1152} sc1")
        return r
    def ocheck(g):
        o = oreg(g[0])
        e(f"v_max3_u32 v2, v{o}, v{o+1}, v{o+2}\n v_max3_u32 v3, v{o+3}, v{o+4}, v{o+5}\n v_max3_u32 v2, v2, v{o+6}, v{o+7}\n v_max_u32 v2, v2, v3\n v_cmp_eq_u32 vcc, -1, v2")
    cnt = lambda i: 0 if i > 8 else (4 if i == 8 else 2)
    e(f"""
s_lshr_b32 s57, s60, 3
s_lshl_b32 s57, s57, 7
s_add_u32 s57, s57, {XID}
v_min_u32 v8, 8, v1
v_lshlrev_b32 v8, 2, v8
buffer_load_dword v15, v8, s[36:39], s57 offen sc1
s_getreg_b32 s53, hwreg(HW_REG_XCC_ID)
s_and_b32 s53, s53, 15
""")
    for g in groups[:ahead]:
        for x in oloads(g): e(x)
    e("s_mov_b32 s59, 0")
    for gi, g in enumerate(groups):
        e(f"s_waitcnt vmcnt({sum(cnt(gi+d) for d in range(1, ahead))})")
        if gi + ahead < 9 and not x_nold:
            for x in oloads(groups[gi+ahead]): e(x)
        if gi == 9 - ahead:
            e(f"""
v_cmp_ne_u32 s[54:55], s53, v15
s_cmp_eq_u64 s[54:55], 0
s_cselect_b32 s53, {fast}, 0
s_cmp_eq_u32 s53, 0
s_cbranch_scc1 L_npt
v_min_u32 v8, 17, v1
v_lshlrev_b32 v8, 7, v8
buffer_load_dword v15, v8, s[36:39], s51 offen
L_npt:
""")
        if not x_nochk:
            ocheck(g)
            e(f"s_cbranch_vccnz L_oretry{gi}")
        a.lab(f"L_ook{gi}")
        for k in g:
            if k >= NPRE and (NPRE < 9 or k == NPRE): e(f"s_waitcnt lgkmcnt({min(8*(min(k+NPRE-1, 17) - k), 15) if NPRE < 9 else 0})")
            m = []
            for T in range(4):
                b = BR + (k % NPRE)*16 + 4*T
                m.append(f"v_mfma_f32_16x16x32_bf16 v[{AC+4*T}:{AC+4*T+3}], v[{b}:{b+3}], v[{oreg(k)}:{oreg(k)+3}], v[{AC+4*T}:{AC+4*T+3}]")
            if k+NPRE == 16:
                for T in range(4): e(f"v_add_u32 v{BA+T}, 0x10000, v{BA+T}")
            r = bread(k+NPRE) if k+NPRE < 18 and not x_nord else []
            for T in range(4):
                if not x_nomf: e(m[T])
                for x in r[2*T:2*T+2]: e(x)
    stamp(8)
    HP = 64; HF = 72
    for i in range(8): e(f"v_cvt_pk_bf16_f32 v{HP+i}, v{AC+2*i}, v{AC+2*i+1}")
    e(f"""
v_mfma_f32_16x16x32_bf16 v[20:23], v[{HP}:{HP+3}], v[{HP}:{HP+3}], 0
v_mfma_f32_16x16x32_bf16 v[16:19], v[{WR}:{WR+3}], v[{HP}:{HP+3}], 0
v_mfma_f32_16x16x32_bf16 v[20:23], v[{HP+4}:{HP+7}], v[{HP+4}:{HP+7}], v[20:23]
v_mfma_f32_16x16x32_bf16 v[16:19], v[{WR+4}:{WR+7}], v[{HP+4}:{HP+7}], v[16:19]
v_cndmask_b32_e64 v20, v20, v21, s[46:47]
v_cndmask_b32_e64 v22, v22, v23, s[42:43]
v_cndmask_b32_e64 v17, v20, v22, s[48:49]
s_mov_b64 exec, s[44:45]
s_cmp_eq_u32 s53, 0
s_cbranch_scc1 L_ss
buffer_store_dwordx3 v[16:18], v{VST}, s[36:39], s52 offen
L_sb:
s_mov_b64 exec, -1
""")
    stamp(9)
    for i in range(8): e(f"v_lshlrev_b32 v{HF+2*i}, 16, v{HP+i}\n v_and_b32 v{HF+2*i+1}, 0xffff0000, v{HP+i}")
    for T in range(4): e(f"ds_write_b64 v{VSW}, v[{HP+2*T}:{HP+2*T+1}] offset:{2304+32*T}")
    e(f"""
s_mov_b32 s59, 0
{"s_waitcnt vmcnt(0)" if cwait else ""}
L_c1:
buffer_load_dwordx3 v[20:22], v6, s[36:39], s51 offen sc1
buffer_load_dwordx3 v[24:26], v6, s[36:39], s51 offen offset:1024 sc1
buffer_load_dwordx3 v[28:30], v{VST}, s[36:39], s51 offen offset:2048 sc1
s_waitcnt vmcnt(0)
v_max3_u32 v2, v20, v21, v22
v_max3_u32 v3, v24, v25, v26
v_max3_u32 v4, v28, v29, v30
v_max3_u32 v2, v2, v3, v4
v_cmp_eq_u32 vcc, -1, v2
s_cbranch_vccz L_c1ok
s_add_u32 s59, s59, 1
s_cmp_lt_u32 s59, {SPIN}
s_cbranch_scc1 L_c1
L_c1ok:
""")
    stamp(10)
    for q in range(3): e(f"v_add_f32 v{16+q}, v{20+q}, v{24+q}\n v_add_f32 v{20+q}, v{20+q}, v{24+q}")
    for q in range(3): e(f"v_permlane16_swap_b32 v{16+q}, v{20+q}")
    for q in range(3): e(f"v_add_f32 v{24+q}, v{16+q}, v{20+q}\n v_add_f32 v{16+q}, v{16+q}, v{20+q}")
    for q in range(3): e(f"v_permlane32_swap_b32 v{16+q}, v{24+q}")
    for q in range(3): e(f"v_add_f32 v{16+q}, v{16+q}, v{24+q}")
    for q in range(3): e(f"v_add_f32 v{16+q}, v{16+q}, v{28+q}")
    inv = f2u(1.0/576)
    e(f"""
v_mul_f32 v16, {inv:#x}, v16        ; mean
v_mul_f32 v17, {inv:#x}, v17
v_fma_f32 v17, -v16, v16, v17       ; var
v_max_f32 v17, 0, v17
v_cvt_pk_bf16_f32 v20, v16, v17
v_lshlrev_b32 v16, 16, v20
v_and_b32 v17, 0xffff0000, v20
v_add_f32 v17, {f2u(1e-5):#x}, v17
v_cvt_pk_bf16_f32 v17, v17, v17
v_and_b32 v17, 0xffff0000, v17
v_sqrt_f32 v17, v17
v_fma_f32 v18, -v16, v{VSUM}, v18
v_cvt_pk_bf16_f32 v17, v17, v17
v_and_b32 v17, 0xffff0000, v17
v_rcp_f32 v56, v17
v_mul_f32 v18, v18, v56
v_cvt_pk_bf16_f32 v18, v18, v18
v_ashrrev_i32 v20, 31, v18
v_or_b32 v20, 0x80000000, v20
v_xor_b32 v18, v18, v20
s_mov_b32 s57, 0xffff0000
v_and_or_b32 v18, v18, s57, v{VTOK}    ; key
""")
    rowmax(20, 18)
    e("v_cmp_eq_u32 s[40:41], v18, v20\n v_cndmask_b32_e64 v22, v18, 0, s[40:41]")
    rowmax(21, 22)
    e(f"ds_write_b64 v{VKW}, v[20:21]\n s_lshr_b32 s58, s60, 3\n s_lshl_b32 s57, s58, 7\n s_add_u32 s57, s57, {KEY}\n s_lshl_b32 s56, s63, 11\n s_add_u32 s57, s57, s56\n {'s_mov_b32 s56, s3' if krep else 's_or_b32 s56, s63, s3'}\n v_mov_b32 v23, 0\n s_waitcnt lgkmcnt(0)\n s_barrier\n ds_read_b32 v18, v{VKR}\n s_waitcnt lgkmcnt(0)")
    rowmax(20, 18)
    e("v_cmp_eq_u32 s[40:41], v18, v20\n v_cndmask_b32_e64 v22, v18, 0, s[40:41]")
    rowmax(21, 22)
    e(f"""
s_cmp_lg_u32 s56, 0
s_cbranch_scc1 L_nokey
s_mov_b64 exec, 1
buffer_store_dwordx2 v[20:21], v23, s[36:39], s57 offen sc1
s_mov_b64 exec, -1
L_nokey:
""")
    stamp(11)
    NP = 32; NF = 40
    for i in range(8): e(f"v_pk_add_f32 v[{NF+2*i}:{NF+2*i+1}], v[{HF+2*i}:{HF+2*i+1}], v[16:17] op_sel_hi:[1,0] neg_lo:[0,1] neg_hi:[0,1]")
    for i in range(8): e(f"v_cvt_pk_bf16_f32 v{NP+i}, v{NF+2*i}, v{NF+2*i+1}")
    for i in range(8): e(f"v_lshlrev_b32 v{NF+2*i}, 16, v{NP+i}\n v_and_b32 v{NF+2*i+1}, 0xffff0000, v{NP+i}")
    for i in range(8): e(f"v_pk_mul_f32 v[{NF+2*i}:{NF+2*i+1}], v[{NF+2*i}:{NF+2*i+1}], v[56:57] op_sel_hi:[1,0]")
    for i in range(8): e(f"v_cvt_pk_bf16_f32 v{NP+i}, v{NF+2*i}, v{NF+2*i+1}")
    for T in range(4): e(f"ds_write_b64 v{VSW}, v[{NP+2*T}:{NP+2*T+1}] offset:{32*T}")
    e(f"""
s_mov_b64 s[40:41], 0xff
v_cndmask_b32_e64 v20, v21, v20, s[40:41]
v_not_b32 v20, v20
v_bfe_u32 v22, v20, 4, 3
v_cmp_eq_u32 s[46:47], s3, v22
s_and_b64 s[46:47], s[46:47], 0xffff
v_and_b32 v20, 15, v20
v_mul_u32_u24 v20, 144, v20
v_lshl_add_u32 v20, v{VC7}, 4, v20
v_add_u32 v20, s50, v20
v_bfe_u32 v21, v1, 3, 1
v_mul_u32_u24 v21, 2304, v21
v_lshl_add_u32 v21, v{VC7}, 4, v21
s_mul_i32 s62, s58, 4608
s_lshl_b32 s57, s63, 7
s_add_u32 s62, s62, s57
s_add_u32 s62, s62, {CAND}
s_cmp_eq_u64 s[46:47], 0
s_cbranch_scc1 L_nocand
s_waitcnt lgkmcnt(0)
ds_read_b128 v[24:27], v20
ds_read_b128 v[28:31], v20 offset:2304
s_waitcnt lgkmcnt(0)
""")
    e("s_mov_b64 exec, s[46:47]\n buffer_store_dwordx4 v[24:27], v21, s[36:39], s62 offen sc1\n s_mov_b64 exec, -1\nL_nocand:")
    for i in range(8): e(f"v_lshlrev_b32 v{NF+2*i}, 16, v{NP+i}\n v_and_b32 v{NF+2*i+1}, 0xffff0000, v{NP+i}")
    for i in range(8): e(f"v_pk_add_f32 v[{NF+2*i}:{NF+2*i+1}], v[{NF+2*i}:{NF+2*i+1}], v[{HF+2*i}:{HF+2*i+1}]")
    for i in range(8): e(f"v_cvt_pk_bf16_f32 v{NP+i}, v{NF+2*i}, v{NF+2*i+1}")
    for T in range(4): e(f"ds_write_b64 v{VSW}, v[{NP+2*T}:{NP+2*T+1}] offset:{32*T}")
    srd(68, 20, 2359296)
    e(f"""
s_waitcnt lgkmcnt(0)
ds_read_b128 v[40:43], v{VSR}
ds_read_b128 v[44:47], v{VSR} offset:1152
s_add_u32 s57, s61, {8*1152}
s_waitcnt {"vmcnt(0) " if outwait else ""}lgkmcnt(0)
s_barrier
{"s_sleep %d" % outsleep if outsleep else ""}
buffer_store_dwordx4 v[40:43], v{VOUT}, s[68:71], s61 offen sc1
buffer_store_dwordx4 v[44:47], v{VOUT}, s[68:71], s57 offen sc1
s_cmp_eq_u64 s[46:47], 0
s_cbranch_scc1 L_s3end
s_waitcnt vmcnt(0)
s_mov_b64 exec, s[46:47]
buffer_store_dwordx4 v[28:31], v21, s[36:39], s62 offen offset:1152 sc1
L_s3end:
""")
    stamp(12)
    fin()
    e(f"L_ss:\n buffer_store_dwordx3 v[16:18], v{VST}, s[36:39], s52 offen sc1\n s_waitcnt vmcnt(0)\n s_branch L_sb")
    for gi, g in enumerate(groups):
        a.lab(f"L_oretry{gi}")
        e(f"s_add_u32 s59, s59, 1\n s_cmp_ge_u32 s59, {SPIN}\n s_cbranch_scc1 L_ook{gi}")
        for x in oloads(g): e(x)
        e("s_waitcnt vmcnt(0)")
        ocheck(g)
        e(f"s_cbranch_vccnz L_oretry{gi}\n s_branch L_ook{gi}")

    a.lab("L_B")
    e(f"""
s_sub_u32 s47, s27, 16             ; h
s_cmp_ge_u32 s27, 28
s_cbranch_scc1 L_R
s_cmp_ge_u32 s27, 24
s_cbranch_scc1 L_X
v_add_u32 v3, 64, v1
v_min_u32 v3, 119, v3
v_mul_u32_u24 v4, 1639, v1
v_lshrrev_b32 v4, 16, v4
v_lshlrev_b32 v2, 4, v1
v_lshl_add_u32 v2, v4, 9, v2
v_mul_u32_u24 v4, 1639, v3
v_lshrrev_b32 v4, 16, v4
v_lshlrev_b32 v5, 4, v3
v_lshl_add_u32 v5, v4, 9, v5
s_lshl_b32 s56, s47, 3
s_add_u32 s56, s56, s3
s_mul_i32 s56, s56, 3456
s_lshl_b32 s57, s46, 9
s_add_u32 s56, s56, s57
s_mov_b32 s34, 1990656
s_mov_b32 s35, 0x20000
s_waitcnt lgkmcnt(0)
s_mov_b32 s32, s6
s_mov_b32 s33, s7
""")
    def wacc(st_):
        for p in range(2):
            r = 16 + 8*st_ + 4*p
            d = 88 + 8*p if st_ == 0 else 104
            for q in range(4): e(f"v_lshlrev_b32 v{d+2*q}, 16, v{r+q}\n v_and_b32 v{d+2*q+1}, 0xffff0000, v{r+q}")
            if st_:
                for q in range(4): e(f"v_pk_add_f32 v[{88+8*p+2*q}:{89+8*p+2*q}], v[{88+8*p+2*q}:{89+8*p+2*q}], v[{104+2*q}:{105+2*q}]")
    NL = 3 if merged else 2
    if merged:
        srd(28, 4, 2359296)
        e(f"""
v_lshrrev_b32 v6, 3, v1
v_and_b32 v7, 7, v1
v_mul_u32_u24 v6, 1152, v6
v_lshl_add_u32 v6, v7, 4, v6
s_lshl_b32 s55, s45, 3
s_add_u32 s55, s55, s47
s_lshl_b32 s55, s55, 3
s_add_u32 s55, s55, s3
s_mul_i32 s57, s55, {8*1152}
v_mov_b32 v8, 0
v_mov_b32 v10, 0
s_mov_b32 s58, 0x3f803f80
""")
    def macc(st_):
        wacc(st_)
        if merged:
            for q in range(4): e(f"v_dot2c_f32_bf16 v8, s58, v{120+4*st_+q}\n v_dot2c_f32_bf16 v10, v{120+4*st_+q}, v{120+4*st_+q}")
    for st_ in range(9):
        if merged: e(f"buffer_load_dwordx4 v[{120+4*st_}:{123+4*st_}], v6, s[28:31], s57 offen offset:{128*st_}")
        e(f"buffer_load_dwordx4 v[{16+8*st_}:{19+8*st_}], v2, s[32:35], s56 offen\n buffer_load_dwordx4 v[{20+8*st_}:{23+8*st_}], v5, s[32:35], s56 offen")
        if st_ < 8: e(f"s_add_u32 s56, s56, {64*3456}\n s_barrier")
        if st_ == 2:
            srd(36, 24, 0x10000000); srd(64, 22, 256); e("v_mov_b32 v113, 0")
        if st_ == 8: e("buffer_load_dword v112, v113, s[64:67], 0 offen offset:128 sc1")
        if st_ >= LAG:
            e(f"s_waitcnt vmcnt({NL*LAG + (st_ == 8)})"); macc(st_-LAG)
    for st_ in range(9-LAG, 9):
        e(f"s_waitcnt vmcnt({NL*(8-st_)+1})"); macc(st_)
    stamp(13)
    e(f"""
s_mul_i32 s57, s3, 3840
v_lshl_add_u32 v2, v1, 5, s57
v_lshl_add_u32 v5, v3, 5, s57
ds_write_b128 v2, v[88:91]
ds_write_b128 v2, v[92:95] offset:16
ds_write_b128 v5, v[96:99]
ds_write_b128 v5, v[100:103] offset:16
v_min_u32 v2, 239, v0
v_lshlrev_b32 v2, 4, v2
s_waitcnt lgkmcnt(0)
s_barrier
s_cmp_ge_u32 s3, 4
s_cbranch_scc1 L_W2
""")
    for i_ in range(8): e(f"ds_read_b128 v[{32+4*i_}:{35+4*i_}], v2 offset:{3840*i_}")
    e(f"s_lshl_b32 s57, s26, 3\n s_add_u32 s57, s57, s47\n s_mul_i32 s57, s57, 3840\n s_add_u32 s57, s57, {CS}\n s_waitcnt lgkmcnt(0)")
    for st in (16, 8, 4):
        for i_ in range(0, st, 2): e(f"v_pk_add_f32 v[{32+i_}:{33+i_}], v[{32+i_}:{33+i_}], v[{32+st+i_}:{33+st+i_}]")
    for q in range(4): e(f"v_min_u32 v{32+q}, -2, v{32+q}")
    flags_wait("w", True, 128, 112, 113)
    e("buffer_store_dwordx4 v[32:35], v2, s[36:39], s57 offen sc1")
    a.lab("L_W2")
    e("s_barrier")
    stamp(1)
    e("s_branch L_F")

    a.lab("L_X")
    if merged: e("s_sleep 127")
    e(f"""
v_lshrrev_b32 v2, 3, v1
v_and_b32 v3, 7, v1
v_mul_u32_u24 v4, 1152, v2
v_lshl_add_u32 v4, v3, 4, v4
s_lshl_b32 s55, s45, 2
s_add_u32 s55, s55, s47
s_sub_u32 s55, s55, 8
s_lshl_b32 s55, s55, 3
s_add_u32 s55, s55, s3
s_mul_i32 s56, s55, {16*1152}
s_add_u32 s57, s56, {8*1152}
s_mov_b32 s30, 2359296
s_mov_b32 s31, 0x20000
v_mov_b32 v8, 0
v_mov_b32 v9, 0
v_mov_b32 v10, 0
v_mov_b32 v11, 0
s_mov_b32 s58, 0x3f803f80
s_waitcnt lgkmcnt(0)
s_mov_b32 s28, s4
s_mov_b32 s29, s5
""")
    def xacc(st_):
        for q in range(4):
            for p in range(2):
                r = 16 + 8*st_ + 4*p + q
                e(f"v_dot2c_f32_bf16 v{8+p}, s58, v{r}\n v_dot2c_f32_bf16 v{10+p}, v{r}, v{r}")
    for st_ in range(9):
        e(f"buffer_load_dwordx4 v[{16+8*st_}:{19+8*st_}], v4, s[28:31], s56 offen offset:{128*st_}\n buffer_load_dwordx4 v[{20+8*st_}:{23+8*st_}], v4, s[28:31], s57 offen offset:{128*st_}")
        if st_ < 8: e("s_barrier")
        if st_ >= LAG:
            e(f"s_waitcnt vmcnt({2*LAG})"); xacc(st_-LAG)
    for st_ in range(9-LAG, 9):
        e(f"s_waitcnt vmcnt({2*(8-st_)})"); xacc(st_)
    srd(36, 24, 0x10000000); srd(64, 22, 256)
    e("v_mov_b32 v28, 0\n buffer_load_dword v27, v28, s[64:67], 0 offen offset:128 sc1")
    for m_ in ("quad_perm:[1,0,3,2]", "quad_perm:[2,3,0,1]", "row_half_mirror"):
        for d in range(8, 12): e(f"v_add_f32_dpp v{d}, v{d}, v{d} {m_} row_mask:0xf bank_mask:0xf")
    e(f"""
v_and_b32 v5, 1, v1
v_cmp_eq_u32 vcc, 1, v5
v_cndmask_b32 v16, v8, v9, vcc
v_cndmask_b32 v18, v10, v11, vcc
v_mul_f32 v16, {inv:#x}, v16
v_mul_f32 v18, {inv:#x}, v18
v_fma_f32 v18, -v16, v16, v18
v_max_f32 v18, 0, v18
v_cvt_pk_bf16_f32 v20, v16, v18
v_lshlrev_b32 v16, 16, v20
v_and_b32 v18, 0xffff0000, v20
v_add_f32 v18, {f2u(1e-5):#x}, v18
v_cvt_pk_bf16_f32 v18, v18, v18
v_and_b32 v18, 0xffff0000, v18
v_sqrt_f32 v18, v18
v_cvt_pk_bf16_f32 v18, v18, v18
v_and_b32 v18, 0xffff0000, v18
v_rcp_f32 v18, v18
v_lshl_add_u32 v20, v5, 3, v2
v_lshlrev_b32 v20, 2, v20
v_mul_f32 v18, {f2u(LOG2E):#x}, v18
v_mul_f32_e64 v19, -v16, v18
v_min_u32 v18, -2, v18
v_min_u32 v19, -2, v19
s_lshl_b32 s56, s55, 6
s_lshl_b32 s57, s46, 14
s_add_u32 s56, s56, s57
s_add_u32 s56, s56, {XST}
s_add_u32 s57, s56, 8192
""")
    flags_wait("x", True, 128)
    e(f"""
s_mov_b32 s58, 0x03030303
s_mov_b32 s59, 0x03030303
s_mov_b64 exec, s[58:59]
buffer_store_dword v18, v20, s[36:39], s56 offen sc1
buffer_store_dword v19, v20, s[36:39], s57 offen sc1
s_mov_b64 exec, -1
""")
    stamp(1)
    e("s_cmp_eq_u32 s27, 24\n s_cbranch_scc1 L_F")
    srd(68, 8, 663552)
    e("s_sub_u32 s56, s27, 25\n s_lshl_b32 s56, s56, 3\n s_add_u32 s56, s56, s3\n s_lshl_b32 s56, s56, 13\n v_lshlrev_b32 v2, 7, v1")
    for i in range(4):
        e(f"buffer_load_dword v100, v2, s[68:71], s56 offen\n s_add_u32 s56, s56, {24*8192}\n s_barrier")
    if stamps: e("s_waitcnt vmcnt(0)")
    stamp(2)
    e("s_cmp_lt_u32 s27, 27\n s_cbranch_scc1 L_HS3")
    fin()
    a.lab("L_HS3")
    e("s_sub_u32 s53, s27, 9\n s_cmp_lt_u32 s3, 4\n s_cbranch_scc1 L_HS3b")
    wo_setup(); wo_dma("h")
    e("s_cmp_lg_u32 s54, 3\n s_cbranch_scc1 L_HS3b")
    flags_wait("h", False, 132, nap=4)
    sw_calc()
    a.lab("L_HS3b")
    e("s_waitcnt vmcnt(0) lgkmcnt(0)\n s_barrier\n s_branch L_s3pre")

    a.lab("L_R")
    e(f"""
s_cmp_lg_u32 s3, 0
s_cbranch_scc1 L_R1
s_getpc_b64 s[40:41]
L_pc:
s_sub_u32 s40, s40, L_pc-{NAME}
s_subb_u32 s41, s41, 0
s_sub_u32 s57, s27, 28
s_lshl_b32 s57, s57, 13
v_lshl_add_u32 v2, v1, 7, s57
v_min_u32 v2, L_codeend-{NAME}-4, v2
global_load_dword v6, v2, s[40:41]
L_R1:
v_mov_b32 v8, -1
v_mov_b32 v9, -1
v_mov_b32 v10, -1
v_mov_b32 v11, -1
v_lshlrev_b32 v12, 4, v1
s_lshl_b32 s48, s26, 2
s_add_u32 s48, s48, s47
s_sub_u32 s48, s48, 12
s_lshl_b32 s57, s48, 3
s_add_u32 s57, s57, s3
s_lshl_b32 s56, s57, 11
s_add_u32 s56, s56, {XST}
s_mul_i32 s57, s57, 14336
s_add_u32 s58, s57, 14336
s_waitcnt lgkmcnt(0)
""")
    srd(36, 24, 0x10000000); srd(64, 22, 256)
    e(f"""
buffer_store_dwordx4 v[8:11], v12, s[36:39], s56 offen sc1
buffer_store_dwordx4 v[8:11], v12, s[36:39], s56 offen offset:1024 sc1
s_waitcnt vmcnt(0)
s_barrier
s_cmp_lg_u32 s3, 0
s_cbranch_scc1 L_R21
""")
    arrive("q", 0, 128, 32)
    stamp(1)
    e(f"""
L_R21:
s_barrier
L_R2:
buffer_store_dwordx4 v[8:11], v12, s[36:39], s57 offen {rflag}
s_add_u32 s57, s57, 1024
s_cmp_lt_u32 s57, s58
s_cbranch_scc1 L_R2
L_R4:
s_waitcnt vmcnt(0)
s_barrier
s_cmp_lg_u32 s3, 0
s_cbranch_scc1 L_R3
""")
    arrive("r", 4, 132, 32)
    a.lab("L_R3")
    stamp(2)
    fin()

    a.lab("L_F")
    if nof:
        for _ in range(nof): e("s_sleep 127")
    e(f"""
s_mul_i32 s48, s26, 9
s_add_u32 s48, s48, s47            ; fi
""")
    GW = 16; DW = 88
    srd(32, 18, 5308416); srd(68, 14, 5308416)
    e(f"""
s_and_b32 s56, s3, 1
s_lshl_b32 s56, s56, 4
s_bfe_u32 s57, s3, 0x10001
s_lshl_b32 s57, s57, 2
s_add_u32 s56, s56, s57
s_lshr_b32 s57, s3, 2
s_lshl_b32 s57, s57, 5
s_add_u32 s55, s56, s57
s_lshl_b32 s57, s48, 6
s_add_u32 s56, s55, s57
s_mul_i32 s56, s56, 1152
s_mul_i32 s57, s3, 9216
v_lshlrev_b32 v2, 4, v1
v_lshrrev_b32 v3, 5, v1
v_mul_u32_u24 v3, 4608, v3
v_add_u32 v3, v3, v2
""")
    for t in range(9):
        e(f"s_add_u32 m0, s57, {F_WU + t*1024}\n s_add_u32 s58, s56, {t*1024 + (4608 if t > 4 else 0)}\n buffer_load_dwordx4 v{3 if t == 4 else 2}, s[32:35], s58 offen nt lds")
        if fthr >= 0: e(f"s_waitcnt vmcnt({fthr})")
    def gu_dma(tag, base):
        e(f"""
s_lshl_b32 s56, s48, 7
s_lshl_b32 s57, s3, 10
s_add_u32 s57, s57, {base}
s_mov_b32 s58, 0
L_Fl{tag}:
s_mov_b32 m0, s57
s_add_u32 s57, s57, 8192
buffer_load_dwordx4 v4, s[68:71], s56 offen nt lds
{'s_waitcnt vmcnt(%d)' % fthr if fthr >= 0 else ''}
s_add_u32 s56, s56, {64*9216}
s_add_u32 s58, s58, 1
s_cmp_lt_u32 s58, 9
s_cbranch_scc1 L_Fl{tag}
""")
    e(f"""
v_lshrrev_b32 v2, 3, v1            ; rr
v_and_b32 v3, 7, v1
v_xor_b32 v3, v3, v2
v_lshlrev_b32 v3, 4, v3
v_lshrrev_b32 v4, 2, v2
v_and_b32 v5, 3, v2
v_lshl_add_u32 v4, v4, 3, v5
v_add_u32 v4, s55, v4              ; k local
v_mul_u32_u24 v4, 9216, v4
v_add_u32 v4, v4, v3
""")
    gu_dma("g", F_WG)
    e(f"""
v_lshrrev_b32 v2, 2, v13
v_lshl_add_u32 v2, v14, 2, v2
v_mul_u32_u24 v2, 1152, v2
v_and_b32 v3, 3, v13
v_lshl_add_u32 v2, v3, 3, v2
v_add_u32 v2, {F_WU}, v2
s_lshl_b32 s56, s3, 5
v_add_u32 v5, s56, v2
s_min_u32 s56, s3, 3
s_lshl_b32 s56, s56, 5
v_add_u32 v6, s56, v2
v_lshlrev_b32 v251, 2, v1
s_mov_b32 s68, s16
s_mov_b32 s69, s17
s_waitcnt vmcnt(9)
s_barrier
""")
    for i in range(5):
        for k in range(2):
            for hf in range(2):
                d = DW + 8*i + 4*k + 2*hf
                e(f"ds_read_b64_tr_b16 v[{d}:{d+1}], v{6 if i == 4 else 5} offset:{(k*32+hf*16)*1152 + 256*i}")
    e("s_waitcnt lgkmcnt(0)\n s_barrier")
    gu_dma("u", F_WU)
    e(f"""
v_lshrrev_b32 v2, 2, v13
v_lshl_add_u32 v2, v14, 2, v2      ; rho
v_and_b32 v3, 7, v2
v_xor_b32 v3, s3, v3
v_lshlrev_b32 v3, 4, v3
v_lshl_add_u32 v3, v2, 7, v3
v_and_b32 v4, 1, v13
v_lshl_add_u32 v3, v4, 3, v3
v_bfe_u32 v4, v13, 1, 1
s_mov_b32 s56, {F_WU}
v_mad_u32_u24 v5, v4, s56, v3
v_add_u32 v6, 0x9000, v5
v_mov_b32 v249, 0
""")
    flags_wait("f", False, 132, 250, 249)
    e("s_barrier")
    for k in range(18):
        for hf in range(2):
            off = (k*32+hf*16)*128
            reg = 5
            if k >= 9: off -= 0x9000; reg = 6
            e(f"ds_read_b64_tr_b16 v[{GW+4*k+2*hf}:{GW+4*k+2*hf+1}], v{reg} offset:{off}")
    e(f"""
v_lshlrev_b32 v7, 4, v0            ; tid*16
v_and_b32 v2, 1, v13
v_mul_u32_u24 v8, 1168, v2
v_lshl_add_u32 v8, v14, 4, v8
v_add_u32 v8, {F_HN}, v8
v_lshlrev_b32 v9, 7, v2
v_lshl_add_u32 v10, v14, 4, v9
v_add_u32 v10, {F_ACT}, v10
v_lshl_add_u32 v9, v14, 3, v9
s_lshl_b32 s56, s3, 4
s_add_u32 s56, s56, {F_ACT}
v_add_u32 v9, s56, v9
v_and_b32 v3, 6, v13
v_add_u32 v9, v9, v3
s_mov_b32 s46, 0xcccccccc
s_mov_b32 s47, 0xcccccccc
s_mov_b32 s52, 0xf0f0f0f0
s_mov_b32 s53, 0xf0f0f0f0
v_mul_u32_u24 v11, 2304, v2
v_lshl_add_u32 v11, v14, 4, v11    ; y voffset
v_lshlrev_b32 v12, 7, v13
v_cmp_le_u32 vcc, 72, v0
v_cndmask_b32_e64 v128, 0, 1, vcc
v_mul_u32_u24 v129, 1152, v128
v_sub_u32 v129, v7, v129
v_lshl_add_u32 v130, v128, 4, v7
v_add_u32 v130, {F_HN}, v130
s_mul_i32 s60, s48, 4608
s_lshl_b32 s56, s3, 6
s_add_u32 s60, s60, s56
s_add_u32 s60, s60, {YP}
s_lshl_b32 s57, s26, 11
{'' if krep else 's_mov_b32 s57, 0'}
s_add_u32 s57, s57, {KEY}
s_mov_b32 s59, 0
s_movk_i32 s58, 144
s_movk_i32 s55, 2304
s_waitcnt lgkmcnt(0)
""")
    stamp(2)
    e(f"""
s_add_u32 s56, s3, 1
s_and_b32 s56, s56, 7
s_cmp_ge_u32 s56, 4
s_cbranch_scc1 L_f2
v_cmp_gt_u32 s[42:43], s58, v0
v_cmp_eq_u32 s[44:45], 1, v128
L_k0:
buffer_load_dwordx2 v[132:133], v12, s[36:39], s57 offen sc1
s_waitcnt vmcnt(0)
v_max_u32 v2, v132, v133
v_cmp_eq_u32 vcc, -1, v2
s_cbranch_vccz L_k1
{'s_sleep %d' % ksleep if ksleep else ''}
s_add_u32 s59, s59, 1
s_cmp_lt_u32 s59, {SPIN}
s_cbranch_scc1 L_k0
L_k1:
""")
    stamp(3)
    rowmax(136, 132)
    e("v_cmp_eq_u32 s[40:41], v132, v136\n v_cndmask_b32_e64 v2, v132, v133, s[40:41]")
    rowmax(137, 2)
    e(f"""
v_not_b32 v2, v136
v_not_b32 v3, v137
v_bfe_u32 v2, v2, 7, 4
v_bfe_u32 v3, v3, 7, 4
v_cmp_eq_u32 s[40:41], v2, v3
v_lshlrev_b32 v2, 1, v2
v_lshlrev_b32 v3, 1, v3
v_addc_co_u32_e64 v3, s[40:41], 0, v3, s[40:41]
s_cmp_eq_u32 s3, 7
s_cbranch_scc1 L_f3
v_cndmask_b32_e64 v2, v2, v3, s[44:45]
v_mad_u32_u24 v2, v2, s55, v129
s_mov_b64 exec, s[42:43]
s_mov_b32 s57, {CAND}
s_mov_b32 s59, 0
L_f0:
buffer_load_dwordx4 v[132:135], v2, s[36:39], s57 offen sc1
s_waitcnt vmcnt(0)
v_max3_u32 v3, v132, v133, v134
v_max_u32 v3, v3, v135
v_cmp_eq_u32 vcc, -1, v3
s_cbranch_vccz L_f1
s_add_u32 s59, s59, 1
s_cmp_lt_u32 s59, {SPIN}
s_cbranch_scc1 L_f0
L_f1:
ds_write_b128 v130, v[132:135]
s_mov_b64 exec, -1
s_waitcnt lgkmcnt(0)
s_branch L_f2
L_f3:
v_readfirstlane_b32 s50, v136
v_readfirstlane_b32 s51, v137
v_readfirstlane_b32 s61, v2
v_readfirstlane_b32 s62, v3
L_f2:
s_barrier
""")
    stamp(4)
    HB = 140
    for k in range(18): e(f"ds_read_b128 v[{HB+4*k}:{HB+4*k+3}], v8 offset:{64*k}")
    for k in range(18):
        e(f"s_waitcnt lgkmcnt({min(17-k,15)})")
        e(f"v_mfma_f32_16x16x32_bf16 v[132:135], v[{GW+4*k}:{GW+4*k+3}], v[{HB+4*k}:{HB+4*k+3}], " + ("0" if k == 0 else "v[132:135]"))
    e(f"""
v_cndmask_b32_e64 v132, v132, v133, s[46:47]
v_cndmask_b32_e64 v134, v134, v135, s[46:47]
v_cndmask_b32_e64 v132, v132, v134, s[52:53]
v_cvt_pk_bf16_f32 v132, v132, v132
v_and_b32 v136, 0xffff0000, v132
v_and_b32 v138, 0xffff0000, v132
v_permlane32_swap_b32 v136, v138
v_mul_f32 v140, {f2u(-LOG2E):#x}, v136
v_exp_f32 v140, v140
v_add_f32 v140, 1.0, v140
v_rcp_f32 v140, v140
v_mul_f32 v136, v136, v140
v_cvt_pk_bf16_f32 v136, v136, v136
v_and_b32 v136, 0xffff0000, v136
v_mul_f32 v136, v136, v138
v_cvt_pk_bf16_f32 v136, v136, v136
s_mov_b64 exec, 0xff00ff
ds_write_b16 v9, v136
s_mov_b64 exec, -1
s_waitcnt lgkmcnt(0)
s_barrier
ds_read_b128 v[140:143], v10
ds_read_b128 v[144:147], v10 offset:64
s_mov_b32 s56, 0x30003
s_mov_b32 s57, 0x30003
s_cmp_ge_u32 s3, 4
s_waitcnt lgkmcnt(0)
""")
    def dm(i, k):
        c = 148 + 4*i
        return f"v_mfma_f32_16x16x32_bf16 v[{c}:{c+3}], v[{DW+8*i+4*k}:{DW+8*i+4*k+3}], v[{140+4*k}:{143+4*k}], " + ("0" if k == 0 else f"v[{c}:{c+3}]")
    for i in range(4):
        for k in range(2): e(dm(i, k))
    e("s_cbranch_scc1 L_y0")
    for k in range(2): e(dm(4, k))
    a.lab("L_y0")
    e("s_mov_b64 exec, s[56:57]")
    for i in range(5):
        c = 148 + 4*i
        if i == 4: e("s_cbranch_scc1 L_y1")
        e(f"buffer_store_dwordx4 v[{c}:{c+3}], v11, s[36:39], s60 offen offset:{512*i} sc1")
    a.lab("L_y1")
    e("s_mov_b64 exec, -1")
    stamp(5)
    e("s_cmp_lg_u32 s3, 7\n s_cbranch_scc1 L_fin\n s_cmp_ge_u32 s48, 36\n s_cbranch_scc1 L_fin")
    e(f"""
s_cmp_ge_u32 s48, 18
s_cselect_b32 s50, s51, s50
s_cselect_b32 s61, s62, s61
s_cselect_b32 s56, 18, 0
s_mul_i32 s61, s61, 2304
s_andn2_b32 s52, 0x7ff, s50
s_sub_u32 s56, s48, s56
s_lshl_b32 s56, s56, 6
s_add_u32 s61, s61, s56
s_add_u32 s61, s61, {CAND}
s_mul_i32 s52, s52, 1152
s_add_u32 s52, s52, s56
s_lshl_b32 s62, s48, 7
s_add_u32 s62, s62, {YP}
v_and_b32 v2, 7, v1
v_lshlrev_b32 v4, 3, v2
v_lshrrev_b32 v3, 3, v1
v_mul_u32_u24 v3, 4608, v3
v_lshl_add_u32 v3, v2, 4, v3
s_ashr_i32 s56, s50, 31
s_not_b32 s56, s56
s_or_b32 s56, s56, 0x80000000
s_xor_b32 s56, s56, s50
s_and_b32 s56, s56, 0xffff0000
v_mov_b32 v5, {f2u(-LOG2E):#x}
v_mul_f32 v5, s56, v5
v_exp_f32 v5, v5
v_add_f32 v5, 1.0, v5
v_rcp_f32 v5, v5
v_cvt_pk_bf16_f32 v5, v5, v5
v_and_b32 v5, 0xffff0000, v5
s_mov_b32 s59, 0
{"s_waitcnt vmcnt(0)" if dwait else "s_sleep %d" % dsleep}
{"s_memrealtime s[88:89]" if stamps else ""}
L_d0:
s_mov_b32 s57, s62
""")
    for i in range(9):
        e(f"buffer_load_dwordx4 v[{16+4*i}:{19+4*i}], v3, s[36:39], s57 offen sc1")
        if i < 8: e(f"s_add_u32 s57, s57, {8*4608}")
    e("buffer_load_dwordx2 v[52:53], v4, s[36:39], s61 offen sc1\n buffer_load_dwordx2 v[54:55], v4, s[36:39], s61 offen offset:1152 sc1\n s_waitcnt vmcnt(0)")
    e("v_max3_u32 v2, v16, v17, v18")
    for i in range(19, 55, 2): e(f"v_max3_u32 v2, v2, v{i}, v{i+1}")
    e(f"""
v_max_u32 v2, v2, v55
v_cmp_eq_u32 vcc, -1, v2
s_cbranch_vccz L_d1
s_add_u32 s59, s59, 1
s_cmp_lt_u32 s59, {SPIN}
s_cbranch_scc1 L_d0
L_d1:
""")
    stamp(6)
    for st in (16, 8, 4):
        for i in range(0, st, 2): e(f"v_pk_add_f32 v[{16+i}:{17+i}], v[{16+i}:{17+i}], v[{16+st+i}:{17+st+i}]")
    e("v_pk_add_f32 v[16:17], v[16:17], v[48:49]\n v_pk_add_f32 v[18:19], v[18:19], v[50:51]")
    for q in range(4): e(f"v_add_f32_dpp v{16+q}, v{16+q}, v{16+q} row_ror:8 row_mask:0xf bank_mask:0xf")
    for wh in (16, 32):
        for q in range(4): e(f"v_mov_b32 v{20+q}, v{16+q}")
        for q in range(4): e(f"v_permlane{wh}_swap_b32 v{16+q}, v{20+q}")
        for q in range(4): e(f"v_add_f32 v{16+q}, v{16+q}, v{20+q}")
    def rnd4():
        for h in range(2): e(f"v_cvt_pk_bf16_f32 v{24+h}, v{16+2*h}, v{17+2*h}")
        for h in range(2): e(f"v_lshlrev_b32 v{16+2*h}, 16, v{24+h}\n v_and_b32 v{17+2*h}, 0xffff0000, v{24+h}")
    rnd4()
    for q in range(4): e(f"v_mul_f32 v{16+q}, v{16+q}, v5")
    for src in (52, 54):
        rnd4()
        for h in range(2): e(f"v_lshlrev_b32 v{20+2*h}, 16, v{src+h}\n v_and_b32 v{21+2*h}, 0xffff0000, v{src+h}")
        for q in range(4): e(f"v_add_f32 v{16+q}, v{16+q}, v{20+q}")
    for h in range(2): e(f"v_cvt_pk_bf16_f32 v{24+h}, v{16+2*h}, v{17+2*h}")
    srd(68, 20, 2359296)
    e(f"s_mov_b64 exec, 0xff\n buffer_store_dwordx2 v[24:25], v4, s[68:71], s52 offen {fstore}")
    stamp(7)
    a.lab("L_fin")
    fin()
    a.lab("L_end")
    e("s_endpgm")
    a.lab("L_codeend")

    assert not any('op_sel:' in l for l in a.L)
    if cyc: a.L = [l.replace('s_memrealtime', 's_memtime') for l in a.L]
    lines, n = hazard.fix(a.L)
    if doalign: lines, nw, npad = align.run(lines)
    import os
    ref = "sequential_preLN__linear_attn_block__moe_arch_mod__prompt.s.ref"
    hdr = open(ref).read().split("; @launch")[0] if os.path.exists(ref) else ""
    hdr += f"""; @launch grid=(256,1,1) block=(512,1,1) lds=163840
.amdgcn_target "amdgcn-amd-amdhsa--gfx950"
.text
.globl {NAME}
.p2align 8
.type {NAME},@function
"""
    tail = f"""
.section .rodata,"a"
.p2align 6
.amdhsa_kernel {NAME}
  .amdhsa_next_free_vgpr 256
  .amdhsa_next_free_sgpr 102
  .amdhsa_accum_offset 256
  .amdhsa_group_segment_fixed_size 0
  .amdhsa_kernarg_size 88
  .amdhsa_user_sgpr_count 2
  .amdhsa_user_sgpr_kernarg_segment_ptr 1
  .amdhsa_system_sgpr_workgroup_id_x 1
.end_amdhsa_kernel
"""
    return hdr + "\n".join(lines) + "\n" + tail

if __name__ == "__main__":
    assert all((n*1821)>>16 == n//36 for n in range(108))
    assert all((n*13108)>>16 == n//5 for n in range(192))
    assert all((n*1639)>>16 == n//40 for n in range(120))
    print(gen(stamps=len(sys.argv) > 1))
```

```python
import sys, struct
from asmlib import *
import hazard, align

NAME = "sequential_preLN__linear_attn_block__moe_arch_mod__prompt_kernel"
KVP = 0
OB  = KVP + 16*8*3072
ST  = OB + 128*16*1152
KEY = ST + 128*9*256
XID = KEY + 9*2048
CAND = XID + 2048
YP  = CAND + 16*2*2304
assert YP + 72*4608 <= 256*14336
XST = 4<<20
CS  = XST + 16384
XIA = CS + 65536
assert XIA + 2048 <= XST + 96*1024
TS_OFF = 0x8000000
XS = 32768; STG = XS + 16384; NBUF = 3
L_WO = 0; L_KVRED = 73728; L_PQ = 106496
L_RS = 153600; L_MRS = L_RS + 1024; L_CS = L_MRS + 1024; L_KT = L_CS + 1024; L_SW = L_KT + 1536
L_STAGE = L_KVRED
L_WR = L_SW + 64
L_KEY = L_WR + 1280
L_KTA = L_KEY + 64
L_XT = L_PQ + 30720
assert L_XT + 16384 == L_RS and L_KTA + 3072 <= 163840
F_WG = 0; F_WU = 73728; F_WD = 0; F_HN = 147456; F_ACT = F_HN + 2560; F_KEYS = F_ACT + 256; F_RED = F_KEYS + 256
SPIN = 1 << 17
def f2u(x): return struct.unpack("<I", struct.pack("<f", x))[0]
LOG2E = 1.4426950408889634

def gen(stamps=False, owait=1, await_=1, cwait=0, dwait=1, rflag='sc1', diag=None, doalign=1, gate=1, fstore='sc1', ksleep=0, merged=0, LAG=3, hintall=1, hsleep=2, obar=0, hprio=1, ahead=4, outwait=0, rot=0, krep=1, dsleep=0, csleep=0, asleep=0, osleep=0, wfl='', xfl='', lprio=0, worder=1, cyc=0, flip=0, nof=0, st0=0, s3prio=0, fthr=2, latepre=0, x_nochk=0, x_nord=0, x_nomf=0, x_nold=0, x_fl='sc1', fast=1, fasta=1, nanchk=1, oprio=1, hnearly=0, qswap=1, wb=0, lf=1,  outsleep=0, outfl='sc1'):
    NPRE = 6
    a = Asm()
    e = a.e
    def stamp(i):
        if stamps or diag: e(f"s_memrealtime s[{72+2*i}:{73+2*i}]")
    def fin():
        if diag:
            wg, wave, idx, K = diag
            lb = a.new("L_dg")
            e("s_waitcnt vmcnt(0) lgkmcnt(0)")
            if idx == "xcc":
                e(f"s_getreg_b32 s44, hwreg(HW_REG_XCC_ID)\n s_and_b32 s44, s44, 7\n s_and_b32 s45, s2, 7\n s_cmp_eq_u32 s44, s45\n s_cbranch_scc1 {lb}e\n s_add_u32 s44, s72, 10000")
            else:
                e(f"s_cmp_lg_u32 s2, {wg}\n s_cbranch_scc1 {lb}e\n s_cmp_lg_u32 s3, {wave}\n s_cbranch_scc1 {lb}e")
                if idx == "fix": e(f"s_add_u32 s44, s72, {K}")
                else: e(f"s_sub_u32 s44, s{72+2*idx}, s72\n s_min_u32 s44, s44, 10000\n s_mul_i32 s44, s44, {K}\n s_add_u32 s44, s44, s72")
            e(f"{lb}:\n s_memrealtime s[46:47]\n s_waitcnt lgkmcnt(0)\n s_sub_u32 s45, s46, s44\n s_cmp_lt_i32 s45, 0\n s_cbranch_scc1 {lb}\n{lb}e:")
        if stamps:
            e("s_waitcnt vmcnt(0) lgkmcnt(0)")
            e("s_mov_b64 exec, -1")
            e(f"s_lshl_b32 s44, s2, 3\n s_add_u32 s44, s44, s3\n s_lshl_b32 s44, s44, 6\n s_add_u32 s44, s44, {TS_OFF}\n v_mov_b32 v2, 0")
            for i in range(15):
                e(f"v_mov_b32 v3, s{72+2*i}\n buffer_store_dword v3, v2, s[36:39], s44 offen offset:{4*i}")
        e("s_endpgm")
    def srd(d, p, n):
        e(f"s_mov_b32 s{d}, s{p}\n s_mov_b32 s{d+1}, s{p+1}\n s_mov_b32 s{d+2}, {n}\n s_mov_b32 s{d+3}, 0x20000")
    def rowmax(d, s):
        e(f"v_max_u32_dpp v{d}, v{s}, v{s} quad_perm:[1,0,3,2] row_mask:0xf bank_mask:0xf")
        e(f"v_max_u32_dpp v{d}, v{d}, v{d} quad_perm:[2,3,0,1] row_mask:0xf bank_mask:0xf")
        e(f"v_max_u32_dpp v{d}, v{d}, v{d} row_half_mirror row_mask:0xf bank_mask:0xf")
        e(f"v_max_u32_dpp v{d}, v{d}, v{d} row_mirror row_mask:0xf bank_mask:0xf")
    def rowsum(d):
        for m in ("quad_perm:[1,0,3,2]", "quad_perm:[2,3,0,1]", "row_half_mirror", "row_mirror"):
            e(f"v_add_f32_dpp v{d}, v{d}, v{d} {m} row_mask:0xf bank_mask:0xf")
    def xsum(d, t, which, op="v_add_f32"):
        e(f"v_mov_b32 v{t}, v{d}\n v_permlane{which}_swap_b32 v{d}, v{t}\n {op} v{d}, v{d}, v{t}")

    a.lab(NAME)
    e("""
s_load_dwordx16 s[4:19], s[0:1], 0
s_load_dwordx4 s[20:23], s[0:1], 64
s_load_dwordx2 s[24:25], s[0:1], 80
""")
    if stamps:
        for i in range(1, 15): e(f"s_mov_b64 s[{72+2*i}:{73+2*i}], 0")
    stamp(0)
    e(f"""
v_lshrrev_b32 v2, 6, v0
v_and_b32 v1, 63, v0
s_cmp_ge_u32 s2, 256
v_readfirstlane_b32 s3, v2
s_cbranch_scc1 L_end
s_and_b32 s26, s2, 7
s_lshr_b32 s27, s2, 3          ; slot
s_lshr_b32 s45, s26, 1         ; rbg
s_and_b32 s46, s2, 1           ; half
v_and_b32 v13, 15, v1
v_lshrrev_b32 v14, 4, v1
s_and_b32 s54, s3, 3           ; w
s_cmp_lt_u32 s27, 16
s_cbranch_scc1 L_A
s_sub_u32 s47, s27, 16             ; h
s_cmp_ge_u32 s27, 28
s_cbranch_scc1 L_R
s_lshl_b32 s55, s47, 3
s_add_u32 s55, s55, s3
s_mul_i32 s57, s55, 22
v_min_u32 v6, 21, v1
v_add_u32 v6, s57, v6
v_min_u32 v6, 2047, v6
v_mul_u32_u24 v6, 1152, v6
s_mov_b32 s30, 2359296
s_mov_b32 s31, 0x20000
s_waitcnt lgkmcnt(0)
s_mov_b32 s28, s4
s_mov_b32 s29, s5
buffer_load_dword v114, v6, s[28:31], 0 offen
s_branch L_B
L_A:
s_and_b32 s46, s27, 1
s_lshl_b32 s48, s26, 1
s_add_u32 s48, s48, s46        ; hp
s_lshr_b32 s50, s27, 1         ; rb
s_mul_i32 s51, s26, 144
s_lshl_b32 s52, s46, 3
s_mov_b32 s53, s27
{'s_xor_b32 s3, s3, 4' if flip else ''}
s_cmp_lt_u32 s3, 4
s_cbranch_scc1 L_compute
""")
    OF = 16; AC = 116; WR = 132; BR = 140; BA = 236
    VST, VSW, VSR, VOUT, VC7, VTOK, VSUM = 249, 250, 251, 252, 253, 254, 255
    VKW, VKR, VXA, VWA, VM1, VM2 = 110, 111, 112, 113, 114, 115
    XR = 240
    def bread(k):
        r = []
        for T in range(4):
            for hf in range(2):
                d = BR + (k % NPRE)*16 + 4*T + 2*hf
                off = ((k*32 + hf*16)*128) & 0xffff
                r.append(f"ds_read_b64_tr_b16 v[{d}:{d+1}], v{BA+T} offset:{off}")
        return r
    def s3_scal(v=True):
        e(f"""
s_cmp_ge_u32 s53, 9
s_cselect_b32 s57, 9, 0
s_cselect_b32 s58, 8, 0
s_sub_u32 s63, s53, s57            ; cb
s_lshl_b32 s60, s26, 4
s_add_u32 s60, s60, s58
s_add_u32 s60, s60, s3             ; tb
s_mul_i32 s61, s60, {16*1152}
s_add_u32 s62, s61, {OB}
s_lshl_b32 s57, s63, 7
s_add_u32 s61, s61, s57
s_mul_i32 s50, s3, 4608
s_add_u32 s50, s50, {L_STAGE}
s_mul_i32 s51, s60, {9*256}
s_add_u32 s51, s51, {ST}
s_lshl_b32 s52, s63, 8
s_add_u32 s52, s52, s51
s_mov_b32 s44, 0x00f0000f
s_mov_b32 s45, 0xf0000f00
s_mov_b32 s46, 0x22222222
s_mov_b32 s47, 0x22222222
s_mov_b32 s48, 0xcccccccc
s_mov_b32 s49, 0xcccccccc
s_mov_b32 s42, 0x88888888
s_mov_b32 s43, 0x88888888
""")
        if v: e(f"v_lshlrev_b32 v{VST}, 4, v13\n v_lshrrev_b32 v{VOUT}, 3, v1")
    def s3_addr1():
        e(f"""
v_lshrrev_b32 v2, 2, v13
v_lshl_add_u32 v2, v14, 2, v2      ; rho
v_bfe_u32 v3, v2, 1, 2
v_lshlrev_b32 v2, 7, v2
v_and_b32 v4, 3, v13
v_lshl_add_u32 v2, v4, 3, v2
v_lshl_add_u32 v{BA}, v3, 5, v2
v_xor_b32 v{BA+1}, 32, v{BA}
v_xor_b32 v{BA+2}, 64, v{BA}
v_xor_b32 v{BA+3}, 96, v{BA}
s_lshl_b32 s57, s63, 7
s_add_u32 s57, s57, {L_WR}
v_lshl_add_u32 v{VWA}, v14, 3, s57
v_lshrrev_b32 v2, 1, v14
v_and_b32 v3, 7, v13
v_xor_b32 v2, v2, v3
v_lshlrev_b32 v2, 4, v2
v_lshl_add_u32 v2, v13, 7, v2
v_and_b32 v3, 1, v14
v_lshl_add_u32 v2, v3, 3, v2
s_lshl_b32 s57, s3, 11
s_add_u32 s57, s57, {L_XT}
v_add_u32 v{VXA}, s57, v2
""")
    def s3_reads():
        for T in range(4):
            e(f"v_xor_b32 v4, {32*T}, v{VXA}\n ds_read_b64 v[{XR+2*T}:{XR+2*T+1}], v4")
            e(f"ds_read_b64 v[{WR+2*T}:{WR+2*T+1}], v{VWA} offset:{32*T}")
        e(f"v_mov_b32 v2, {L_SW}\n ds_read_b32 v{VSUM}, v2")
        for k in range(NPRE):
            for x in bread(k): e(x)
    def s3_addr2(sb=50, st=60, m=40):
        e(f"""
v_and_b32 v2, 3, v13
v_cmp_eq_u32 s[{m}:{m+1}], 2, v2
v_cndmask_b32_e64 v{VM1}, 0, -1, s[{m}:{m+1}]
v_mov_b32 v4, 0x3f803f80
v_cmp_eq_u32 s[{m}:{m+1}], 0, v2
v_cndmask_b32_e64 v{VM2}, 0, v4, s[{m}:{m+1}]
v_mul_u32_u24 v{VSW}, 144, v13
v_lshl_add_u32 v{VSW}, v14, 3, v{VSW}
v_add_u32 v{VSW}, s{sb}, v{VSW}
v_add_u32 v{VSR}, v{VOUT}, v1
v_lshl_add_u32 v{VSR}, v{VSR}, 4, s{sb}
v_mul_u32_u24 v{VOUT}, 1152, v{VOUT}
v_and_b32 v{VC7}, 7, v1
v_lshl_add_u32 v{VOUT}, v{VC7}, 4, v{VOUT}
v_lshl_add_u32 v{VTOK}, s{st}, 4, v13
v_sub_u32 v{VTOK}, 2047, v{VTOK}
s_lshl_b32 s57, s3, 3
s_add_u32 s57, s57, {L_KEY}
v_mov_b32 v{VKW}, s57
v_lshlrev_b32 v{VKR}, 2, v13
v_add_u32 v{VKR}, {L_KEY}, v{VKR}
""")
    def s3_unpack():
        e("s_waitcnt lgkmcnt(15)")
        for i in range(8): e(f"v_lshlrev_b32 v{AC+2*i}, 16, v{XR+i}\n v_and_b32 v{AC+2*i+1}, 0xffff0000, v{XR+i}\n v_and_or_b32 v{WR+i}, v{WR+i}, v{VM1}, v{VM2}")
    e(f"""
s_setprio 2
s_lshl_b32 s55, s50, 5
s_add_u32 s55, s55, s54
s_lshl_b32 s55, s55, 3
v_lshrrev_b32 v2, 3, v1
v_add_u32 v2, s55, v2
v_mul_u32_u24 v16, 1152, v2
s_and_b32 s56, s54, 1
s_lshl_b32 s57, s56, 2
v_add_u32 v3, s57, v14
v_and_b32 v2, 7, v1
v_xor_b32 v2, v2, v3
v_lshl_add_u32 v16, v2, 4, v16
v_lshrrev_b32 v2, 1, v13
v_xor_b32 v2, v2, v3
v_and_b32 v3, 1, v1
v_lshl_add_u32 v2, v2, 1, v3
v_min_u32 v2, 14, v2
v_mul_u32_u24 v3, 52, v2
v_lshrrev_b32 v3, 8, v3
v_lshlrev_b32 v2, 4, v2
v_and_b32 v4, {qswap}, v3
v_xor_b32 v4, s46, v4
v_lshl_add_u32 v2, v4, 6, v2
v_xor_b32 v15, 1, v3
v_lshrrev_b32 v4, 1, v3
v_sub_u32 v15, v15, v4
v_mul_u32_u24 v15, 1152, v15
v_mul_u32_u24 v3, 80, v3
v_sub_u32 v2, v2, v3
s_lshl_b32 s55, s54, 3
v_add_u32 v3, s55, v14
v_mul_u32_u24 v3, 3456, v3
v_add3_u32 v17, v2, v3, v15
s_lshl_b32 s41, s54, 10
s_mov_b32 s55, 0
s_mov_b32 s56, s51
s_mov_b32 s43, 0
s_mov_b32 s44, -1
s_mov_b32 s30, 2359296
s_mov_b32 s31, 0x20000
s_mov_b32 s34, 1990656
s_mov_b32 s35, 0x20000
s_waitcnt lgkmcnt(0)
s_mov_b32 s28, s4
s_mov_b32 s29, s5
s_mov_b32 s32, s6
s_mov_b32 s33, s7
""")
    def issue():
        e("s_mov_b32 s57, s55")
        for i in range(8):
            iw = (i//2 if i % 2 == 0 else 9) if worder else i
            if iw < 4:
                e(f"s_add_u32 m0, s41, {XS + iw*4096}\n s_add_u32 s58, s56, {((iw>>1)*32 + (iw&1)*4)*3456}")
                e(f"buffer_load_dwordx4 v17, s[32:35], s58 offen {wfl} lds")
            e(f"s_add_u32 m0, s41, {i*4096}")
            if i: e(f"s_add_u32 s57, s57, {2*18432}")
            e(f"buffer_load_dwordx4 v16, s[28:31], s57 offen {xfl} lds")
        e(f"""
s_add_u32 s55, s55, 128
s_add_u32 s56, s56, {64*3456}
s_add_u32 s43, s43, 1
s_add_u32 s41, s41, {STG}
s_cmp_eq_u32 s43, {NBUF}
s_cselect_b32 s57, {NBUF*STG}, 0
s_cselect_b32 s43, 0, s43
s_sub_u32 s41, s41, s57
s_add_u32 s44, s44, 1
""")
    if st0: stamp(5)
    a.lab("L_hloop0")
    issue()
    e("""
s_cmp_eq_u32 s44, 0
s_cbranch_scc1 L_hloop0
s_waitcnt vmcnt(12)
s_barrier
s_cmp_lg_u32 s44, 2
s_cbranch_scc1 L_hloop0
""")
    e("s_setprio 0")
    stamp(14)
    issue()
    e(f"""
v_lshl_add_u32 v2, s54, 6, v1      ; n = 64w + lane
s_lshl_b32 s60, s50, 10
s_add_u32 s60, s60, {XST}
v_lshlrev_b32 v18, 2, v2
v_min_u32 v3, 107, v2
v_mul_u32_u24 v4, 1821, v3
v_lshrrev_b32 v4, 16, v4           ; sec = c/36
v_xor_b32 v5, 1, v4
v_lshrrev_b32 v6, 1, v4
v_sub_u32 v5, v5, v6
v_mul_u32_u24 v5, 72, v5
v_and_b32 v6, {qswap}, v4
v_xor_b32 v6, s46, v6
v_mad_u32_u24 v5, v6, 36, v5
v_mul_u32_u24 v4, 36, v4
v_sub_u32 v3, v3, v4
v_add_u32 v3, v3, v5
v_lshlrev_b32 v19, 2, v3
s_lshl_b32 s61, s26, 13
s_add_u32 s61, s61, {CS}
""")
    e(f"""
v_cmp_gt_u32 vcc, 190, v2
v_cndmask_b32_e64 v3, 0, v2, vcc       ; gamma or 0
v_cndmask_b32 v23, 0, -1, vcc
v_mov_b32 v24, v23
v_mul_u32_u24 v4, 13108, v3
v_lshrrev_b32 v4, 16, v4           ; col
v_mul_u32_u24 v5, 5, v4
v_sub_u32 v5, v3, v5               ; i
v_cmp_le_u32 vcc, 18, v4
v_cndmask_b32 v6, 0, 1, vcc        ; head for col<36
v_cmp_le_u32 vcc, 36, v4
v_subrev_u32 v7, 36, v4
v_cndmask_b32_e64 v6, v6, v7, vcc      ; head
v_cndmask_b32 v4, v4, 36, vcc      ; e (36 = ones column)
v_mov_b32 v12, {f2u(1/LOG2E**2):#x}
v_mov_b32 v11, {f2u(1/LOG2E):#x}
v_cndmask_b32_e64 v12, v12, v11, vcc
v_lshl_add_u32 v7, v6, 2, v5       ; delta = i + 4*head
v_add_u32 v4, 72, v4               ; tile column index 72+e
v_lshrrev_b32 v8, 4, v4
v_subrev_u32 v8, 4, v8             ; TB-4
v_and_b32 v4, 15, v4               ; lane col
v_lshrrev_b32 v9, 2, v7            ; TA
v_mad_u32_u24 v8, v9, 3, v8
v_lshrrev_b32 v10, 1, v9
v_sub_u32 v8, v8, v10
v_and_b32 v9, 3, v7
v_lshl_add_u32 v4, v9, 4, v4
v_lshlrev_b32 v4, 4, v4
v_lshl_add_u32 v22, v8, 10, v4
v_add_u32 v22, {L_KVRED}, v22      ; lds source
v_cmp_eq_u32 vcc, 4, v7
v_cndmask_b32 v8, -1, 0, vcc       ; 0 when delta==4
v_subrev_u32 v9, 1, v6             ; head0: -1, head1: 0
v_or_b32 v9, v9, v8
v_and_b32 v23, v23, v9             ; lo mask
v_sub_u32 v9, 0, v6
v_or_b32 v9, v9, v8
v_and_b32 v24, v24, v9             ; hi mask
v_lshlrev_b32 v25, 4, v2           ; gamma*16
v_lshlrev_b32 v26, 3, v2
v_add_u32 v26, {L_KT}, v26
s_xor_b32 s62, s48, {qswap}
s_mul_i32 s62, s62, {8*3072}       ; KVP base of the head pair of q
s_lshl_b32 s52, s48, 3
s_add_u32 s52, s52, s50
s_mul_i32 s52, s52, 3072           ; own slot
""".replace("v_cndmask_b32 v23, 0, -1, vcc", "v_cndmask_b32_e64 v23, 0, -1, vcc").replace("v_cndmask_b32 v6, 0, 1, vcc", "v_cndmask_b32_e64 v6, 0, 1, vcc").replace("v_cndmask_b32 v4, v4, 36, vcc", "v_cndmask_b32_e64 v4, v4, 36, vcc").replace("v_cndmask_b32 v8, -1, 0, vcc", "v_cndmask_b32_e64 v8, -1, 0, vcc"))
    def wo_setup():
        e(f"""
s_cmp_ge_u32 s53, 9
s_cselect_b32 s57, 9, 0
s_sub_u32 s63, s53, s57            ; cb
v_lshrrev_b32 v2, 3, v1            ; rr
v_and_b32 v3, 7, v1
v_bfe_u32 v4, v1, 4, 2
v_lshlrev_b32 v4, 1, v4
v_xor_b32 v3, v3, v4
v_lshlrev_b32 v3, 4, v3
s_lshl_b32 s57, s63, 7
v_add_u32 v3, s57, v3
v_lshrrev_b32 v4, 2, v2
v_and_b32 v5, 3, v2
v_mad_u32_u24 v6, v4, 10, v5
s_and_b32 s57, s54, 1
s_mul_i32 s58, s57, 18
s_lshr_b32 s59, s54, 1
s_lshl_b32 s42, s59, 2
s_add_u32 s58, s58, s42
v_add_u32 v6, s58, v6
v_mul_u32_u24 v6, 1152, v6
v_add_u32 v20, v6, v3
v_mul_u32_u24 v4, 72, v4
v_bfe_u32 v5, v2, 1, 1
v_mad_u32_u24 v4, v5, 18, v4
v_and_b32 v5, 1, v2
v_add_u32 v4, v4, v5
s_mul_i32 s57, s57, 144
s_mul_i32 s59, s59, 36
s_add_u32 s57, s57, s59
s_add_u32 s57, s57, 8
v_add_u32 v4, s57, v4
v_mul_u32_u24 v4, 1152, v4
v_add_u32 v21, v4, v3
v_and_b32 v3, 7, v1
v_xor_b32 v3, v3, v2
v_mul_u32_u24 v4, 1152, v2
v_lshl_add_u32 v29, v3, 4, v4
s_cmp_ge_u32 s53, 9
s_cselect_b32 s57, 16, 0
s_lshl_b32 s49, s26, 5
s_add_u32 s49, s49, s57
s_add_u32 s49, s49, s54
s_mul_i32 s49, s49, {8*1152}
s_lshl_b32 s57, s63, 7
s_add_u32 s49, s49, s57
""")
    def wo_dma(tag, part=0):
        if part >= 0:
            srd(68, 8, 663552)
            e(f"s_lshl_b32 s42, s54, 10\n s_lshl_b32 s40, s63, 1\n s_and_b32 s40, s40, {15 if rot else 0}\n s_mul_i32 s40, s40, {36*1152}")
        e(f"""
L_wod{tag}:
s_mov_b32 m0, s42
s_add_u32 s42, s42, 4096
buffer_load_dwordx4 v20, s[68:71], s40 offen lds
s_add_u32 s40, s40, {36*1152}
s_cmp_eq_u32 s40, {16*36*1152}
s_cselect_b32 s40, 0, s40
s_cmp_lt_u32 s42, {(part if part > 0 else 16)*4096}
s_cbranch_scc1 L_wod{tag}
""")
        if part <= 0:
            e(f"""
s_mov_b32 m0, s42
s_add_u32 s42, s42, 4096
buffer_load_dwordx4 v21, s[68:71], 0 offen lds
s_mov_b32 m0, s42
s_mov_b32 s40, {288*1152}
buffer_load_dwordx4 v21, s[68:71], s40 offen lds
s_lshl_b32 s42, s54, 10
""")
            for i in range(4):
                e(f"s_add_u32 m0, s42, {L_XT + 4096*i}\n s_add_u32 s40, s49, {i*32*1152}\n buffer_load_dwordx4 v29, s[28:31], s40 offen lds")
    def sw_calc():
        srd(68, 12, 1152)
        e("v_lshlrev_b32 v2, 2, v1")
        for i in range(5): e(f"buffer_load_dword v{30+i}, v2, s[68:71], 0 offen offset:{256*i}")
        e("v_mov_b32 v3, 0\n s_mov_b32 s57, 0x3f803f80\n s_waitcnt vmcnt(0)")
        e(f"v_add_u32 v2, {L_WR}, v2")
        for i in range(5): e(f"ds_write_b32 v2, v{30+i} offset:{256*i}")
        for i in range(5): e(f"v_dot2c_f32_bf16 v3, s57, v{30+i}")
        rowsum(3); xsum(3, 4, 16); xsum(3, 4, 32)
        e(f"v_mov_b32 v4, {L_SW}\n ds_write_b32 v4, v3")
        e(f"""
s_getreg_b32 s57, hwreg(HW_REG_XCC_ID)
s_and_b32 s57, s57, 15
v_mov_b32 v5, s57
v_mov_b32 v6, 0
s_cmp_ge_u32 s53, 9
s_cselect_b32 s57, 128, 0
s_lshl_b32 s58, s26, 8
s_add_u32 s57, s57, s58
s_lshl_b32 s58, s63, 2
s_add_u32 s57, s57, s58
s_add_u32 s57, s57, {XID}
s_mov_b64 exec, 1
buffer_store_dword v5, v6, s[36:39], s57 offen sc1
s_mov_b64 exec, -1
""")
    def flags_wait(tag, issued, off, fv=27, av=28, nap=0):
        e(f"s_mov_b32 s59, 0")
        if issued: e(f"s_branch L_fl1{tag}")
        a.lab(f"L_fl0{tag}")
        if nap: e(f"s_sleep {nap}")
        e(f"""
buffer_load_dword v{fv}, v{av}, s[64:67], 0 offen offset:{off} sc1
L_fl1{tag}:
s_waitcnt vmcnt(0)
v_cmp_eq_u32 vcc, 0, v{fv}
s_cbranch_vccz L_fl2{tag}
s_add_u32 s59, s59, 1
s_cmp_lt_u32 s59, {SPIN}
s_cbranch_scc1 L_fl0{tag}
L_fl2{tag}:
""")
    def arrive(tag, cnt_off, done_off, n):
        e(f"""
v_mov_b32 v20, 1
v_mov_b32 v21, 0
s_mov_b64 exec, 1
buffer_atomic_add v20, v21, s[64:67], 0 offen offset:{cnt_off} sc0
s_waitcnt vmcnt(0)
v_cmp_eq_u32 vcc, {n-1}, v20
s_cbranch_vccz L_ar{tag}
buffer_store_dword v20, v21, s[64:67], 0 offen offset:{done_off} sc1
L_ar{tag}:
s_mov_b64 exec, -1
""")
    e("s_waitcnt vmcnt(12)\n s_barrier")
    issue()
    wo_setup()
    e(f"""
v_lshrrev_b32 v2, 3, v13           ; head
v_bfe_u32 v3, v13, 2, 1            ; odd
v_and_b32 v4, 3, v13               ; r
v_mul_u32_u24 v5, 18, v2
v_mad_u32_u24 v5, v3, 10, v5
v_add_u32 v5, v5, v4
v_lshl_add_u32 v5, s54, 2, v5
s_mov_b64 s[70:71], -1
s_cmp_lg_u32 s54, 2
s_cbranch_scc1 L_kta
v_add_u32 v6, 36, v2
v_cmp_eq_u32 s[68:69], 2, v4
v_cndmask_b32_e64 v5, v5, v6, s[68:69]
v_lshl_add_u32 v6, v3, 2, v4
v_cmp_gt_u32 s[70:71], 2, v6
s_or_b64 s[70:71], s[70:71], s[68:69]
L_kta:
v_lshlrev_b32 v6, 2, v2
v_sub_u32 v6, v14, v6
v_mov_b32 v7, 190
s_mul_i32 s57, s54, 768
s_add_u32 s57, s57, {L_KTA}
v_lshl_add_u32 v8, v1, 2, s57
s_mov_b32 s57, {L_KT}
""")
    for t in range(3):
        e(f"v_add_u32 v9, {4*t}, v6\n v_cmp_gt_u32 s[68:69], 5, v9\n v_mad_u32_u24 v9, v5, 5, v9\n s_and_b64 s[68:69], s[68:69], s[70:71]\n v_cndmask_b32_e64 v9, v7, v9, s[68:69]\n v_lshl_add_u32 v9, v9, 3, s57\n ds_write_b32 v8, v9 offset:{256*t}")
    e("v_mov_b32 v28, 0")
    srd(36, 24, 0x10000000)
    srd(64, 22, 256)
    if lprio: e(f"s_setprio {lprio}")
    e("s_waitcnt vmcnt(12)\n s_barrier")
    issue()
    e(f"s_mul_i32 s58, s3, 4608\n s_add_u32 s58, s58, {L_STAGE}\n s_cmp_ge_u32 s53, 9\n s_cselect_b32 s59, 8, 0\n s_lshl_b32 s57, s26, 4\n s_add_u32 s59, s59, s57\n s_add_u32 s59, s59, s3\n v_lshlrev_b32 v{VST}, 4, v13\n v_lshrrev_b32 v{VOUT}, 3, v1")
    s3_addr1(); s3_addr2(58, 59, 68)
    a.lab("L_hloop1")
    e("s_waitcnt vmcnt(12)\n s_barrier")
    issue()
    e("s_cmp_lg_u32 s44, 7\n s_cbranch_scc1 L_hloop1")
    e("buffer_load_dword v27, v28, s[64:67], 0 offen offset:128 sc1\n s_waitcnt vmcnt(13)\n s_barrier")
    issue()
    e("s_waitcnt vmcnt(12)\n v_cmp_eq_u32 vcc, 0, v27\n s_cbranch_vccz L_fok")
    flags_wait("a", False, 128)
    a.lab("L_fok")
    def statloads():
        e("buffer_load_dword v30, v18, s[36:39], s60 offen sc1\n s_add_u32 s57, s60, 8192\n buffer_load_dword v31, v18, s[36:39], s57 offen sc1\n s_mov_b32 s57, s61")
        for i in range(8):
            e(f"buffer_load_dword v{32+i}, v19, s[36:39], s57 offen sc1")
            if i < 7: e("s_add_u32 s57, s57, 1024")
    statloads()
    e("buffer_load_dword v27, v28, s[64:67], 0 offen offset:132 sc1")
    e(f"""
s_getreg_b32 s45, hwreg(HW_REG_XCC_ID)
s_and_b32 s45, s45, 15
s_lshl_b32 s47, s26, 7
s_add_u32 s47, s47, {XIA}
v_mov_b32 v2, s45
v_mov_b32 v3, s27
v_lshlrev_b32 v3, 2, v3
s_cmp_eq_u32 s54, 3
s_cselect_b32 s57, 0, 0x80000000
v_or_b32 v3, s57, v3
s_mov_b64 exec, 1
buffer_store_dword v2, v3, s[36:39], s47 offen sc1
s_mov_b64 exec, -1
""")
    e("s_waitcnt vmcnt(24)\n s_barrier")
    stamp(4)
    wo_dma("a", 8)
    e("s_waitcnt vmcnt(20)\n s_barrier")
    stamp(6)
    e("s_mov_b32 s59, 0\n s_waitcnt vmcnt(9)\n s_branch L_st1")
    a.lab("L_st0")
    statloads()
    e(f"""
s_waitcnt vmcnt(0)
L_st1:
v_max3_u32 v2, v30, v31, v32
v_max3_u32 v2, v2, v33, v34
v_max3_u32 v2, v2, v35, v36
v_max3_u32 v2, v2, v37, v38
v_max_u32 v2, v2, v39
v_cmp_eq_u32 vcc, -1, v2
s_cbranch_vccz L_st2
s_add_u32 s59, s59, 1
s_cmp_lt_u32 s59, {SPIN}
s_cbranch_scc1 L_st0
L_st2:
{"s_memrealtime s[98:99]" if stamps else ""}
v_add_u32 v18, {L_RS}, v18
v_pk_add_f32 v[32:33], v[32:33], v[36:37]
v_pk_add_f32 v[34:35], v[34:35], v[38:39]
v_pk_add_f32 v[32:33], v[32:33], v[34:35]
v_add_f32 v32, v32, v33
ds_write_b32 v18, v30
ds_write_b32 v18, v31 offset:1024
ds_write_b32 v18, v32 offset:2048
""")
    e("s_waitcnt lgkmcnt(0)\n s_barrier")
    stamp(1)
    e("v_cmp_eq_u32 vcc, 0, v27\n s_cbranch_vccz L_r2")
    flags_wait("r", False, 132)
    e(f"""
L_r2:
v_lshrrev_b32 v2, 3, v1
v_mul_u32_u24 v2, 3072, v2
v_and_b32 v3, 7, v1
v_lshl_add_u32 v2, v3, 7, v2
s_min_u32 s57, s54, 2
s_lshl_b32 s57, s57, 10
s_add_u32 s57, s57, s62
buffer_load_dword v40, v2, s[36:39], s57 offen
""")
    wo_dma("b", -8)
    e("v_lshlrev_b32 v3, 2, v13\n buffer_load_dword v41, v3, s[36:39], s47 offen sc1")
    e("s_mov_b32 s32, s52\n s_mov_b32 s34, s62\n s_mov_b32 s35, s45\n s_cmp_lg_u32 s54, 3\n s_cbranch_scc1 L_hpub")
    sw_calc()
    a.lab("L_hpub")
    s3_scal(False)
    e("s_cmp_lg_u32 s54, 3\n s_cbranch_scc1 L_hpub2\n s_waitcnt lgkmcnt(0)\n s_barrier")
    s3_reads(); s3_unpack()
    e("s_barrier\n s_mov_b32 s33, 1\n s_branch L_s3a")
    a.lab("L_hpub2")
    if hprio: e("s_setprio 2")
    e(f"s_waitcnt vmcnt(0)\n v_cmp_ne_u32 s[40:41], s35, v41\n s_mov_b32 s57, s32\n s_cmp_eq_u64 s[40:41], 0\n s_cselect_b32 s35, {fasta}, 0\n s_mov_b32 s59, 0\n s_cmp_eq_u32 s35, 0\n s_barrier")
    for i in range(4): e(f"ds_read_b128 v[{32+4*i}:{35+4*i}], v22 offset:{8192*i}")
    e("s_waitcnt lgkmcnt(0)")
    e("v_pk_add_f32 v[32:33], v[32:33], v[36:37]\n v_pk_add_f32 v[34:35], v[34:35], v[38:39]\n v_pk_add_f32 v[40:41], v[40:41], v[44:45]\n v_pk_add_f32 v[42:43], v[42:43], v[46:47]")
    e("v_pk_add_f32 v[32:33], v[32:33], v[40:41]\n v_pk_add_f32 v[34:35], v[34:35], v[42:43]")
    e("s_cbranch_scc1 L_pslow\n buffer_store_dwordx4 v[32:35], v25, s[36:39], s57 offen")
    stamp(2)
    a.lab("L_hA")
    e("s_mov_b32 s57, s34")
    for i in range(8):
        e(f"buffer_load_dwordx4 v[{64+4*i}:{67+4*i}], v25, s[36:39], s57 offen sc1")
        if i < 7: e("s_add_u32 s57, s57, 3072")
    for i in range(1, 8):
        e(f"s_waitcnt vmcnt({7-i})")
        for h in range(2):
            src = 64 if i == 1 else 32
            e(f"v_pk_add_f32 v[{32+2*h}:{33+2*h}], v[{src+2*h}:{src+1+2*h}], v[{64+4*i+2*h}:{65+4*i+2*h}]")
    e("v_pk_add_f32 v[36:37], v[32:33], v[34:35]\n v_cmp_u_f32 vcc, v36, v37\n s_cbranch_vccnz L_hA1\nL_hA2:")
    e("""
v_pk_mul_f32 v[32:33], v[32:33], v[12:13] op_sel_hi:[1,0]
v_pk_mul_f32 v[34:35], v[34:35], v[12:13] op_sel_hi:[1,0]
v_cvt_pk_bf16_f32 v32, v32, v33
v_cvt_pk_bf16_f32 v33, v34, v35
v_and_b32 v32, v32, v23
v_and_b32 v33, v33, v24
ds_write_b64 v26, v[32:33]
s_waitcnt lgkmcnt(0)
s_barrier
""")
    stamp(3)
    if hprio: e("s_setprio 0")
    e("s_branch L_s3rd")
    e("L_pslow:\n buffer_store_dwordx4 v[32:35], v25, s[36:39], s57 offen sc1\n s_waitcnt vmcnt(0)\n s_branch L_hA")
    a.lab("L_hA1")
    e("v_max3_u32 v2, v64, v65, v66")
    for i in range(67, 95, 2): e(f"v_max3_u32 v2, v2, v{i}, v{i+1}")
    e(f"v_max_u32 v2, v2, v95\n v_cmp_eq_u32 vcc, -1, v2\n s_cbranch_vccz L_hA2\n s_add_u32 s59, s59, 1\n s_cmp_lt_u32 s59, {SPIN}\n s_cbranch_scc1 L_hA\n s_branch L_hA2")

    a.lab("L_compute")
    e(f"""
v_lshrrev_b32 v15, 1, v13
v_xor_b32 v15, v15, v14
v_lshlrev_b32 v15, 4, v15
v_lshl_add_u32 v4, v13, 7, v15
s_lshl_b32 s55, s54, 13
v_add_u32 v4, s55, v4
v_xor_b32 v5, 64, v4
v_lshrrev_b32 v2, 2, v13
v_lshl_add_u32 v2, v14, 2, v2
v_and_b32 v3, 3, v13
v_and_b32 v15, 7, v2
v_lshlrev_b32 v15, 5, v15
v_lshlrev_b32 v2, 8, v2
v_add_u32 v2, {XS}, v2
v_add_u32 v16, 3, v3
v_and_b32 v16, 4, v16
v_lshlrev_b32 v16, 1, v16
v_and_b32 v17, 2, v3
v_lshlrev_b32 v17, 2, v17
v_lshlrev_b32 v3, 3, v3
v_add_u32 v3, s52, v3
s_lshl_b32 s56, s46, 1
s_sub_u32 s57, 2, s56
s_lshl_b32 s58, s46, 4
s_sub_u32 s58, 8, s58
""")
    if qswap: e("v_mul_u32_u24 v16, s57, v16\n v_mul_u32_u24 v17, s56, v17\n v_add_u32 v17, s58, v17")
    for T in range(7):
        secs = [min((4*T+c)//9, 2) for c in range(4)]
        e(f"v_add_u32 v{6+T}, {32*T + 8*secs[0]}, v3")
        if T == 2: e(f"v_add_u32 v{6+T}, v{6+T}, v16")
        if T == 4: e(f"v_add_u32 v{6+T}, v{6+T}, v17")
        if T == 3 and qswap: e(f"v_add_u32 v{6+T}, s58, v{6+T}")
        e(f"v_xor_b32 v{6+T}, v{6+T}, v15\n v_add_u32 v{6+T}, v{6+T}, v2")
    e(f"""
s_lshl_b32 s55, s54, 8
s_add_u32 s55, s55, {L_RS}
v_lshl_add_u32 v249, v14, 4, s55
v_lshlrev_b32 v250, 2, v13
v_add_u32 v250, {L_CS}, v250
v_cmp_le_u32 s[40:41], 12, v13
v_cndmask_b32_e64 v251, 0, -1, s[40:41]
s_mul_i32 s55, s54, 7680
s_add_u32 s55, s55, {L_PQ}
v_mul_u32_u24 v252, 40, v13
v_lshl_add_u32 v252, v14, 3, v252
v_add_u32 v252, s55, v252
v_lshrrev_b32 v254, 2, v13
v_add_u32 v254, v254, v13
v_lshl_add_u32 v254, v254, 3, s55
v_mul_u32_u24 v253, 160, v14
v_add_u32 v253, v253, v254
s_lshl_b32 s55, s54, 13
s_add_u32 s55, s55, {L_KVRED}
v_lshl_add_u32 v255, v1, 4, s55
""")
    ACC = 16; F = [128, 172]
    for i in range(4): e(f"v_mov_b32 v{F[1]+i}, 0")
    for i in range(28): e(f"v_mfma_f32_16x16x32_bf16 v[{ACC+4*i}:{ACC+4*i+3}], v[{F[1]}:{F[1]+3}], v[{F[1]}:{F[1]+3}], 0")
    def reads(fs, kk):
        r = [f"ds_read_b128 v[{F[fs]+4*j}:{F[fs]+4*j+3}], v{4+kk} offset:{j*2048}" for j in range(4)]
        for T in range(7):
            for hf in range(2):
                d = F[fs]+16+4*T+2*hf
                r.append(f"ds_read_b64_tr_b16 v[{d}:{d+1}], v{6+T} offset:{(kk*32+hf*16)*256}")
        return r
    def acc(j, T): return ACC + (j*7+T)*4
    def mfmas(fs):
        m = []
        for T in range(7):
            for j in range(4):
                c = acc(j, T); b = F[fs]+16+4*T
                m.append(f"v_mfma_f32_16x16x32_bf16 v[{c}:{c+3}], v[{F[fs]+4*j}:{F[fs]+4*j+3}], v[{b}:{b+3}], v[{c}:{c+3}]")
        return m
    def weave(m, r, extra):
        out = []
        for i, x in enumerate(m):
            out.append(x)
            if i < len(r): out.append(r[i])
            if i in extra: out.extend(extra[i])
        return out
    e(f"s_mov_b32 s55, 0\n s_mov_b32 s56, 0\n s_mov_b32 s58, {STG}\n s_waitcnt lgkmcnt(0)")
    srd(36, 24, 0x10000000)
    srd(28, 4, 2359296)
    stamp(14)
    e("s_barrier")
    stamp(1)
    for r in reads(0, 0): e(r)
    e("s_waitcnt lgkmcnt(0)\n s_branch L_cloop\n .p2align 3")
    a.lab("L_cloop2")
    for x in weave(mfmas(1), reads(0, 0), {}): e(x)
    e("s_waitcnt lgkmcnt(0)")
    a.lab("L_cloop")
    ex = {0: ["s_add_u32 s56, s56, 1", f"s_cmp_eq_u32 s56, {NBUF}"], 1: [f"s_cselect_b32 s57, {(-(NBUF-1)*STG) & 0xffffffff}, s58", "s_cselect_b32 s56, 0, s56"],
          2: ["v_add_u32 v4, s57, v4"], 4: ["v_add_u32 v5, s57, v5"], 22: ["s_add_u32 s55, s55, 1", "s_cmp_lt_u32 s55, 9"]}
    for T in range(7): ex.setdefault(6+2*T, []).append(f"v_add_u32 v{6+T}, s57, v{6+T}")
    for x in weave(mfmas(0), reads(1, 1), ex): e(x)
    e("s_waitcnt lgkmcnt(0)\n s_barrier\n s_cbranch_scc1 L_cloop2")
    RS, MRS = 128, 144
    CSR = [160, 162, 164, 166, 168, 170, 10]
    K = 4
    import math
    C1L = LOG2E*1.000001; E2M = LOG2E*math.exp(-1.000001); E2A = LOG2E*1e-6
    tr = [f"ds_read_b32 v{CSR[T]}, v250 offset:{64*T}" for T in range(7)]
    for j in range(4): tr += [f"ds_read_b128 v[{RS+4*j}:{RS+4*j+3}], v249 offset:{64*j}", f"ds_read_b128 v[{MRS+4*j}:{MRS+4*j+3}], v249 offset:{1024+64*j}"]
    tr += [f"v_mov_b32 v{K}, {f2u(C1L):#x}", f"v_mov_b32 v{K+2}, {f2u(E2M):#x}", f"v_mov_b32 v{K+4}, {f2u(E2A):#x}", "v_mov_b32 v2, 0x3f803f80"]
    for x in weave(mfmas(1), tr, {}): e(x)
    e("s_waitcnt lgkmcnt(0)")
    stamp(2)
    TMP = 204
    def phi(j, T, dst):
        c = acc(j, T); p = f"v[{CSR[T]}:{CSR[T]+1}]"; u = TMP; t = TMP+4
        for h in range(2): e(f"v_pk_fma_f32 v[{u+2*h}:{u+2*h+1}], v[{MRS+4*j+2*h}:{MRS+4*j+2*h+1}], {p}, v[{K}:{K+1}] op_sel_hi:[1,0,0]")
        for h in range(2): e(f"v_pk_fma_f32 v[{u+2*h}:{u+2*h+1}], v[{c+2*h}:{c+2*h+1}], v[{RS+4*j+2*h}:{RS+4*j+2*h+1}], v[{u+2*h}:{u+2*h+1}]")
        for q in range(4): e(f"v_exp_f32 v{t+q}, v{u+q}")
        for h in range(2): e(f"v_pk_fma_f32 v[{t+2*h}:{t+2*h+1}], v[{t+2*h}:{t+2*h+1}], v[{K+2}:{K+3}], v[{K+4}:{K+5}] op_sel_hi:[1,0,0]")
        for q in range(4): e(f"v_med3_f32 v{t+q}, v{u+q}, v{t+q}, v{K}")
        for h in range(2): e(f"v_cvt_pk_bf16_f32 v{dst+h}, v{t+2*h}, v{t+2*h+1}")
    def lin(j, T, dst):
        c = acc(j, T); p = f"v[{CSR[T]}:{CSR[T]+1}]"
        for h in range(2): e(f"v_pk_mul_f32 v[{TMP+8+2*h}:{TMP+9+2*h}], v[{MRS+4*j+2*h}:{MRS+4*j+2*h+1}], {p} op_sel_hi:[1,0]")
        for h in range(2): e(f"v_pk_fma_f32 v[{TMP+8+2*h}:{TMP+9+2*h}], v[{c+2*h}:{c+2*h+1}], v[{RS+4*j+2*h}:{RS+4*j+2*h+1}], v[{TMP+8+2*h}:{TMP+9+2*h}]")
        for h in range(2): e(f"v_cvt_pk_bf16_f32 v{dst+h}, v{TMP+8+2*h}, v{TMP+9+2*h}")
    PK = 216; KVA = 172
    pairs = [(0,0),(0,1),(0,2),(1,0),(1,1),(1,2),(2,1),(2,2)]
    for jp in range(2):
        for jj in range(2):
            j = 2*jp + jj
            for T in range(3): phi(j, T, PK + 4*T + 2*jj)
            e(f"ds_write_b64 v252, v[{PK+8+2*jj}:{PK+9+2*jj}] offset:{j*1920}")
            for T in range(3): lin(j, 4+T, PK + 12 + 4*T + 2*jj)
            for h in range(2): e(f"v_bfi_b32 v{PK+20+2*jj+h}, v251, v2, v{PK+20+2*jj+h}")
        for n, (ta, tb) in enumerate(pairs):
            c = KVA + 4*n
            e(f"v_mfma_f32_16x16x32_bf16 v[{c}:{c+3}], v[{PK+4*ta}:{PK+4*ta+3}], v[{PK+12+4*tb}:{PK+15+4*tb}], " + ("0" if jp == 0 else f"v[{c}:{c+3}]"))
    for n, (ta, tb) in enumerate(pairs):
        e(f"ds_write_b128 v255, v[{KVA+4*n}:{KVA+4*n+3}] offset:{n*1024}")
    e("s_waitcnt lgkmcnt(0)")
    stamp(13)
    e("s_barrier")
    stamp(3)
    for j in range(4):
        for T in (3, 4):
            d = PK + (j*2 + T-3)*2
            phi(j, T, d)
            e(f"ds_write_b64 v252, v[{d}:{d+1}] offset:{j*1920 + (T-2)*640}")
    PQ = 16
    e("s_waitcnt lgkmcnt(0)")
    for j in range(4):
        for t in range(2): e(f"ds_read_b64_tr_b16 v[{PQ+6*j+2*t}:{PQ+6*j+2*t+1}], v253 offset:{j*1920 + (4+16*t)*40}")
        e(f"ds_read_b64_tr_b16 v[{PQ+6*j+4}:{PQ+6*j+5}], v254 offset:{j*1920 + 36*40}")
    KA = 44
    e(f"v_lshlrev_b32 v2, 2, v1\n v_add_u32 v2, {L_KTA}, v2")
    for i in range(9): e(f"ds_read_b32 v{240+i}, v2 offset:{256*i}")
    e(f"v_mov_b32 v{PQ+24}, 0\n v_mov_b32 v{PQ+25}, 0")
    for tau in range(3): e(f"v_mov_b32 v{KA+8*tau+6}, 0\n v_mov_b32 v{KA+8*tau+7}, 0")
    e(f"""
v_lshlrev_b32 v6, 4, v1
v_lshlrev_b32 v7, 3, v13
v_lshl_add_u32 v7, v14, 1, v7
v_add_u32 v7, 1024, v7
v_and_b32 v8, 1, v14
v_lshl_or_b32 v7, v8, 31, v7
v_mov_b32 v9, {f2u(1/LOG2E):#x}
v_mov_b32 v10, {f2u(1e-6):#x}
s_lshl_b32 s55, s50, 4
s_lshl_b32 s56, s54, 2
s_add_u32 s55, s55, s56
s_lshl_b32 s55, s55, 4
s_add_u32 s55, s55, s48
s_xor_b32 s55, s55, {qswap}
s_mul_i32 s55, s55, 1152
s_add_u32 s55, s55, {OB}
s_waitcnt lgkmcnt(0)
""")
    s3_scal()
    stamp(4)
    e("s_barrier")
    stamp(5)
    for tau in (2, 0, 1):
        for t in range(3): e(f"ds_read_b64 v[{KA+8*tau+2*t}:{KA+8*tau+2*t+1}], v{240+tau*3+t}")
    D = 68
    def s2m(j, tau, half):
        c = D + 12*j + 4*tau
        return f"v_mfma_f32_16x16x32_bf16 v[{c}:{c+3}], v[{KA+8*tau+4*half}:{KA+8*tau+4*half+3}], v[{PQ+6*j+4*half}:{PQ+6*j+4*half+3}], " + ("0" if half == 0 else f"v[{c}:{c+3}]")
    e("s_waitcnt lgkmcnt(6)")
    for half in range(2):
        for j in range(4): e(s2m(j, 2, half))
    e("s_waitcnt lgkmcnt(0)")
    mm = [s2m(j, tau, half) for j in range(4) for half in range(2) for tau in range(2)]
    dv = []
    for op in range(6):
        for j in range(4):
            r = D + 12*j + 10
            dv.append([f"v_mul_f32 v{r}, v9, v{r}", f"v_cvt_pk_bf16_f32 v{r}, v{r}, v{r}", f"v_and_b32 v{r}, 0xffff0000, v{r}", f"v_add_f32 v{r}, v10, v{r}", f"v_rcp_f32 v{r}, v{r}", f"v_mul_f32 v{r}, v9, v{r}"][op])
    for x in interleave(mm, dv, 2, 3): e(x)
    for j in range(4):
        c = D + 12*j; o = c
        for h in range(5): e(f"v_pk_mul_f32 v[{c+2*h}:{c+2*h+1}], v[{c+2*h}:{c+2*h+1}], v[{c+10}:{c+11}] op_sel_hi:[1,0]")
        for h in range(5): e(f"v_cvt_pk_bf16_f32 v{o+h}, v{c+2*h}, v{c+2*h+1}")
        e(f"buffer_store_dwordx4 v[{o}:{o+3}], v6, s[36:39], s55 offen sc1\n buffer_store_dword v{o+4}, v7, s[36:39], s55 offen sc1")
        if j < 3: e(f"s_add_u32 s55, s55, {16*1152}")
    stamp(6)

    e("s_mov_b32 s33, 0\n s_branch L_s3a")
    a.lab("L_s3pre")
    s3_scal(); s3_addr1(); s3_addr2()
    a.lab("L_s3rd")
    e("s_mov_b32 s33, 1")
    s3_reads(); s3_unpack()
    a.lab("L_s3a")
    e("v_lshlrev_b32 v6, 4, v1\n v_mul_u32_u24 v7, 2304, v14\n v_lshl_add_u32 v7, v13, 3, v7")
    e(f"""
{"" if hintall else "s_cmp_lt_u32 s27, 16"}
{"" if hintall else "s_cbranch_scc1 L_oload"}
s_cmp_lg_u32 s3, 7
s_cbranch_scc1 L_oload
v_mov_b32 v2, 0
s_mov_b32 s59, 0
s_add_u32 s57, s62, 1152
L_ohint:
s_sleep {hsleep}
buffer_load_dword v3, v2, s[36:39], s57 offen offset:1024 sc1
s_waitcnt vmcnt(0)
v_cmp_eq_u32 vcc, -1, v3
s_cbranch_vccz L_oload
s_add_u32 s59, s59, 1
s_cmp_lt_u32 s59, {SPIN}
s_cbranch_scc1 L_ohint
L_oload:
{"s_sleep %d" % osleep if osleep else ""}
s_waitcnt {"vmcnt(0) " if owait else ""}lgkmcnt(0)
s_barrier
""")
    stamp(7)
    if s3prio: e(f"s_cmp_lt_u32 s3, 4\n s_cbranch_scc1 L_s3p\n s_setprio {s3prio}\nL_s3p:")
    groups = [[2*i, 2*i+1] for i in range(9)]
    def oreg(k): return OF + 4*(k % (2*ahead+2))
    def oloads(g):
        r = []
        for k in g:
            o = oreg(k)
            if k < 16:
                if k % 2 == 0: r.append(f"s_add_u32 s57, s62, {k*1152}")
                r.append(f"buffer_load_dwordx4 v[{o}:{o+3}], v6, s[36:39], s57 offen offset:{1152*(k%2)} {x_fl}")
            else:
                u = k-16
                r.append(f"s_add_u32 s57, s62, {8*u*1152}\n buffer_load_dwordx2 v[{o}:{o+1}], v7, s[36:39], s57 offen offset:1024 sc1\n buffer_load_dwordx2 v[{o+2}:{o+3}], v7, s[36:39], s57 offen offset:{1024+1152} sc1")
        return r
    def ocheck(g):
        o = oreg(g[0])
        e(f"v_max3_u32 v2, v{o}, v{o+1}, v{o+2}\n v_max3_u32 v3, v{o+3}, v{o+4}, v{o+5}\n v_max3_u32 v2, v2, v{o+6}, v{o+7}\n v_max_u32 v2, v2, v3\n v_cmp_eq_u32 vcc, -1, v2")
    cnt = lambda i: 0 if i > 8 else (4 if i == 8 else 2)
    e(f"""
s_lshr_b32 s57, s60, 3
s_lshl_b32 s57, s57, 7
s_add_u32 s57, s57, {XID}
v_min_u32 v8, 8, v1
v_lshlrev_b32 v8, 2, v8
buffer_load_dword v15, v8, s[36:39], s57 offen sc1
s_getreg_b32 s53, hwreg(HW_REG_XCC_ID)
s_and_b32 s53, s53, 15
""")
    for g in groups[:ahead]:
        for x in oloads(g): e(x)
    e("s_cmp_eq_u32 s33, 0\n s_cbranch_scc0 L_s3b")
    s3_addr1(); s3_reads(); s3_addr2(); s3_unpack()
    e("s_waitcnt lgkmcnt(0)")
    a.lab("L_s3b")
    e("s_mov_b32 s59, 0")
    for gi, g in enumerate(groups):
        e(f"s_waitcnt vmcnt({sum(cnt(gi+d) for d in range(1, ahead))})")
        if gi + ahead < 9 and not x_nold:
            for x in oloads(groups[gi+ahead]): e(x)
        if gi == 9 - ahead:
            e(f"""
v_cmp_ne_u32 s[54:55], s53, v15
s_cmp_eq_u64 s[54:55], 0
s_cselect_b32 s53, {fast}, 0
s_cmp_eq_u32 s53, 0
s_cbranch_scc1 L_npt
v_min_u32 v8, 17, v1
v_lshlrev_b32 v8, 7, v8
buffer_load_dword v15, v8, s[36:39], s51 offen
L_npt:
""")
        if not x_nochk:
            ocheck(g)
            e(f"s_cbranch_vccnz L_oretry{gi}")
        a.lab(f"L_ook{gi}")
        for k in g:
            if k >= NPRE and (NPRE < 9 or k == NPRE): e(f"s_waitcnt lgkmcnt({min(8*(min(k+NPRE-1, 17) - k), 15) if NPRE < 9 else 0})")
            m = []
            for T in range(4):
                b = BR + (k % NPRE)*16 + 4*T
                m.append(f"v_mfma_f32_16x16x32_bf16 v[{AC+4*T}:{AC+4*T+3}], v[{b}:{b+3}], v[{oreg(k)}:{oreg(k)+3}], v[{AC+4*T}:{AC+4*T+3}]")
            if k+NPRE == 16:
                for T in range(4): e(f"v_add_u32 v{BA+T}, 0x10000, v{BA+T}")
            r = bread(k+NPRE) if k+NPRE < 18 and not x_nord else []
            for T in range(4):
                if not x_nomf: e(m[T])
                for x in r[2*T:2*T+2]: e(x)
    stamp(8)
    HP = 64; HF = 72
    for i in range(8): e(f"v_cvt_pk_bf16_f32 v{HP+i}, v{AC+2*i}, v{AC+2*i+1}")
    e(f"""
v_mfma_f32_16x16x32_bf16 v[20:23], v[{HP}:{HP+3}], v[{HP}:{HP+3}], 0
v_mfma_f32_16x16x32_bf16 v[16:19], v[{WR}:{WR+3}], v[{HP}:{HP+3}], 0
v_mfma_f32_16x16x32_bf16 v[20:23], v[{HP+4}:{HP+7}], v[{HP+4}:{HP+7}], v[20:23]
v_mfma_f32_16x16x32_bf16 v[16:19], v[{WR+4}:{WR+7}], v[{HP+4}:{HP+7}], v[16:19]
v_cndmask_b32_e64 v20, v20, v21, s[46:47]
v_cndmask_b32_e64 v22, v22, v23, s[42:43]
v_cndmask_b32_e64 v17, v20, v22, s[48:49]
s_mov_b64 exec, s[44:45]
s_cmp_eq_u32 s53, 0
s_cbranch_scc1 L_ss
buffer_store_dwordx3 v[16:18], v{VST}, s[36:39], s52 offen
L_sb:
s_mov_b64 exec, -1
""")
    stamp(9)
    for i in range(8): e(f"v_lshlrev_b32 v{HF+2*i}, 16, v{HP+i}\n v_and_b32 v{HF+2*i+1}, 0xffff0000, v{HP+i}")
    for T in range(4): e(f"ds_write_b64 v{VSW}, v[{HP+2*T}:{HP+2*T+1}] offset:{2304+32*T}")
    e(f"""
s_mov_b32 s59, 0
{"s_waitcnt vmcnt(0)" if cwait else ""}
L_c1:
buffer_load_dwordx3 v[20:22], v6, s[36:39], s51 offen sc1
buffer_load_dwordx3 v[24:26], v6, s[36:39], s51 offen offset:1024 sc1
buffer_load_dwordx3 v[28:30], v{VST}, s[36:39], s51 offen offset:2048 sc1
s_waitcnt vmcnt(0)
v_max3_u32 v2, v20, v21, v22
v_max3_u32 v3, v24, v25, v26
v_max3_u32 v4, v28, v29, v30
v_max3_u32 v2, v2, v3, v4
v_cmp_eq_u32 vcc, -1, v2
s_cbranch_vccz L_c1ok
s_add_u32 s59, s59, 1
s_cmp_lt_u32 s59, {SPIN}
s_cbranch_scc1 L_c1
L_c1ok:
""")
    stamp(10)
    for q in range(3): e(f"v_add_f32 v{16+q}, v{20+q}, v{24+q}\n v_add_f32 v{20+q}, v{20+q}, v{24+q}")
    for q in range(3): e(f"v_permlane16_swap_b32 v{16+q}, v{20+q}")
    for q in range(3): e(f"v_add_f32 v{24+q}, v{16+q}, v{20+q}\n v_add_f32 v{16+q}, v{16+q}, v{20+q}")
    for q in range(3): e(f"v_permlane32_swap_b32 v{16+q}, v{24+q}")
    for q in range(3): e(f"v_add_f32 v{16+q}, v{16+q}, v{24+q}")
    for q in range(3): e(f"v_add_f32 v{16+q}, v{16+q}, v{28+q}")
    inv = f2u(1.0/576)
    e(f"""
v_mul_f32 v16, {inv:#x}, v16        ; mean
v_mul_f32 v17, {inv:#x}, v17
v_fma_f32 v17, -v16, v16, v17       ; var
v_max_f32 v17, 0, v17
v_cvt_pk_bf16_f32 v20, v16, v17
v_lshlrev_b32 v16, 16, v20
v_and_b32 v17, 0xffff0000, v20
v_add_f32 v17, {f2u(1e-5):#x}, v17
v_cvt_pk_bf16_f32 v17, v17, v17
v_and_b32 v17, 0xffff0000, v17
v_sqrt_f32 v17, v17
v_fma_f32 v18, -v16, v{VSUM}, v18
v_cvt_pk_bf16_f32 v17, v17, v17
v_and_b32 v17, 0xffff0000, v17
v_rcp_f32 v56, v17
v_mul_f32 v18, v18, v56
v_cvt_pk_bf16_f32 v18, v18, v18
v_ashrrev_i32 v20, 31, v18
v_or_b32 v20, 0x80000000, v20
v_xor_b32 v18, v18, v20
s_mov_b32 s57, 0xffff0000
v_and_or_b32 v18, v18, s57, v{VTOK}    ; key
""")
    NP = 32; NF = 40
    def hncalc():
        for i in range(8): e(f"v_pk_add_f32 v[{NF+2*i}:{NF+2*i+1}], v[{HF+2*i}:{HF+2*i+1}], v[16:17] op_sel_hi:[1,0] neg_lo:[0,1] neg_hi:[0,1]")
        for i in range(8): e(f"v_cvt_pk_bf16_f32 v{NP+i}, v{NF+2*i}, v{NF+2*i+1}")
        for i in range(8): e(f"v_lshlrev_b32 v{NF+2*i}, 16, v{NP+i}\n v_and_b32 v{NF+2*i+1}, 0xffff0000, v{NP+i}")
        for i in range(8): e(f"v_pk_mul_f32 v[{NF+2*i}:{NF+2*i+1}], v[{NF+2*i}:{NF+2*i+1}], v[56:57] op_sel_hi:[1,0]")
        for i in range(8): e(f"v_cvt_pk_bf16_f32 v{NP+i}, v{NF+2*i}, v{NF+2*i+1}")
        for T in range(4): e(f"ds_write_b64 v{VSW}, v[{NP+2*T}:{NP+2*T+1}] offset:{32*T}")
    rowmax(20, 18)
    e("v_cmp_eq_u32 s[40:41], v18, v20\n v_cndmask_b32_e64 v22, v18, 0, s[40:41]")
    rowmax(21, 22)
    if hnearly: hncalc()
    e(f"ds_write_b64 v{VKW}, v[20:21]\n s_lshr_b32 s58, s60, 3\n s_lshl_b32 s57, s58, 7\n s_add_u32 s57, s57, {KEY}\n s_lshl_b32 s56, s63, 11\n s_add_u32 s57, s57, s56\n {'s_mov_b32 s56, s3' if krep else 's_or_b32 s56, s63, s3'}\n v_mov_b32 v23, 0\n s_waitcnt lgkmcnt(0)\n s_barrier\n ds_read_b32 v18, v{VKR}\n s_waitcnt lgkmcnt(0)")
    rowmax(20, 18)
    e("v_cmp_eq_u32 s[40:41], v18, v20\n v_cndmask_b32_e64 v22, v18, 0, s[40:41]")
    rowmax(21, 22)
    e(f"""
s_cmp_lg_u32 s56, 0
s_cbranch_scc1 L_nokey
s_mov_b64 exec, 1
buffer_store_dwordx2 v[20:21], v23, s[36:39], s57 offen sc1
s_mov_b64 exec, -1
L_nokey:
""")
    stamp(11)
    e(f"""
s_mov_b64 s[40:41], 0xff
v_cndmask_b32_e64 v20, v21, v20, s[40:41]
v_not_b32 v20, v20
v_bfe_u32 v22, v20, 4, 3
v_cmp_eq_u32 s[46:47], s3, v22
s_and_b64 s[46:47], s[46:47], 0xffff
s_cbranch_scc0 L_noown
s_setprio {3 if oprio else 0}
L_noown:
""")
    if not hnearly: hncalc()
    e(f"""
v_and_b32 v20, 15, v20
v_mul_u32_u24 v20, 144, v20
v_lshl_add_u32 v20, v{VC7}, 4, v20
v_add_u32 v20, s50, v20
v_bfe_u32 v21, v1, 3, 1
v_mul_u32_u24 v21, 2304, v21
v_lshl_add_u32 v21, v{VC7}, 4, v21
s_mul_i32 s62, s58, 4608
s_lshl_b32 s57, s63, 7
s_add_u32 s62, s62, s57
s_add_u32 s62, s62, {CAND}
s_cmp_eq_u64 s[46:47], 0
s_cbranch_scc1 L_nocand
s_waitcnt lgkmcnt(0)
ds_read_b128 v[24:27], v20
ds_read_b128 v[28:31], v20 offset:2304
s_waitcnt lgkmcnt(0)
""")
    e("s_mov_b64 exec, s[46:47]\n buffer_store_dwordx4 v[24:27], v21, s[36:39], s62 offen sc1\n s_mov_b64 exec, -1\nL_nocand:")
    for i in range(8): e(f"v_lshlrev_b32 v{NF+2*i}, 16, v{NP+i}\n v_and_b32 v{NF+2*i+1}, 0xffff0000, v{NP+i}")
    for i in range(8): e(f"v_pk_add_f32 v[{NF+2*i}:{NF+2*i+1}], v[{NF+2*i}:{NF+2*i+1}], v[{HF+2*i}:{HF+2*i+1}]")
    for i in range(8): e(f"v_cvt_pk_bf16_f32 v{NP+i}, v{NF+2*i}, v{NF+2*i+1}")
    for T in range(4): e(f"ds_write_b64 v{VSW}, v[{NP+2*T}:{NP+2*T+1}] offset:{32*T}")
    srd(68, 20, 2359296)
    e(f"""
s_waitcnt lgkmcnt(0)
ds_read_b128 v[40:43], v{VSR}
ds_read_b128 v[44:47], v{VSR} offset:1152
s_add_u32 s57, s61, {8*1152}
s_waitcnt {"vmcnt(0) " if outwait else ""}lgkmcnt(0)
s_barrier
{"s_sleep %d" % outsleep if outsleep else ""}
buffer_store_dwordx4 v[40:43], v{VOUT}, s[68:71], s61 offen sc1
buffer_store_dwordx4 v[44:47], v{VOUT}, s[68:71], s57 offen sc1
s_cmp_eq_u64 s[46:47], 0
s_cbranch_scc1 L_s3end
s_waitcnt vmcnt(0)
s_mov_b64 exec, s[46:47]
buffer_store_dwordx4 v[28:31], v21, s[36:39], s62 offen offset:1152 sc1
L_s3end:
""")
    if wb: e("s_sub_u32 s57, s27, 25\n s_or_b32 s57, s57, s3\n s_cmp_lg_u32 s57, 0\n s_cbranch_scc1 L_nowb\n s_waitcnt vmcnt(0)\n buffer_wbl2 sc1\nL_nowb:")
    stamp(12)
    fin()
    e(f"L_ss:\n buffer_store_dwordx3 v[16:18], v{VST}, s[36:39], s52 offen sc1\n s_waitcnt vmcnt(0)\n s_branch L_sb")
    for gi, g in enumerate(groups):
        a.lab(f"L_oretry{gi}")
        e(f"s_add_u32 s59, s59, 1\n s_cmp_ge_u32 s59, {SPIN}\n s_cbranch_scc1 L_ook{gi}")
        for x in oloads(g): e(x)
        e("s_waitcnt vmcnt(0)")
        ocheck(g)
        e(f"s_cbranch_vccnz L_oretry{gi}\n s_branch L_ook{gi}")

    a.lab("L_B")
    e(f"""
s_cmp_ge_u32 s27, 24
s_cbranch_scc1 L_X
v_min_u32 v3, 26, v1
v_mul_u32_u24 v4, 57, v3
v_lshrrev_b32 v4, 9, v4            ; section
v_mul_u32_u24 v4, 1008, v4
v_lshl_add_u32 v2, v3, 4, v4
s_mul_i32 s56, s55, 3456
s_mul_i32 s57, s26, 144
s_add_u32 s56, s56, s57
s_mov_b32 s34, 1990656
s_mov_b32 s35, 0x20000
s_mov_b32 s32, s6
s_mov_b32 s33, s7
""")
    for st_ in range(9):
        e(f"buffer_load_dwordx4 v[{16+4*st_}:{19+4*st_}], v2, s[32:35], s56 offen\n buffer_load_dword v114, v6, s[28:31], 0 offen offset:{128*min(st_+1, 8)}")
        if st_ < 8: e(f"s_add_u32 s56, s56, {64*3456}\n s_barrier")
    srd(36, 24, 0x10000000); srd(64, 22, 256)
    e("v_mov_b32 v113, 0\n buffer_load_dword v112, v113, s[64:67], 0 offen offset:128 sc1")
    for st_ in range(9):
        if st_ in (0, 6, 7, 8): e(f"s_waitcnt vmcnt({2*(8-max(st_,5 if st_ == 0 else st_))+2})")
        r = 16 + 4*st_; d = 88 if st_ == 0 else 96
        for q in range(4): e(f"v_lshlrev_b32 v{d+2*q}, 16, v{r+q}\n v_and_b32 v{d+2*q+1}, 0xffff0000, v{r+q}")
        if st_:
            for q in range(4): e(f"v_pk_add_f32 v[{88+2*q}:{89+2*q}], v[{88+2*q}:{89+2*q}], v[{96+2*q}:{97+2*q}]")
    stamp(13)
    e(f"""
s_lshl_b32 s57, s3, 10
v_lshl_add_u32 v2, v3, 5, s57
ds_write_b128 v2, v[88:91]
ds_write_b128 v2, v[92:95] offset:16
v_min_u32 v2, 53, v1
v_lshlrev_b32 v2, 4, v2
s_waitcnt lgkmcnt(0)
s_barrier
s_cmp_lg_u32 s3, 0
s_cbranch_scc1 L_W2
""")
    for i_ in range(8): e(f"ds_read_b128 v[{32+4*i_}:{35+4*i_}], v2 offset:{1024*i_}")
    e(f"s_lshl_b32 s57, s26, 3\n s_add_u32 s57, s57, s47\n s_lshl_b32 s57, s57, 10\n s_add_u32 s57, s57, {CS}\n s_waitcnt lgkmcnt(0)")
    for st in (16, 8, 4):
        for i_ in range(0, st, 2): e(f"v_pk_add_f32 v[{32+i_}:{33+i_}], v[{32+i_}:{33+i_}], v[{32+st+i_}:{33+st+i_}]")
    for q in range(4): e(f"v_min_u32 v{32+q}, -2, v{32+q}")
    flags_wait("w", True, 128, 112, 113)
    e("buffer_store_dwordx4 v[32:35], v2, s[36:39], s57 offen sc1")
    a.lab("L_W2")
    e("s_waitcnt vmcnt(1)\n s_barrier")
    stamp(1)
    e("s_branch L_F")

    a.lab("L_X")
    e(f"""
v_lshrrev_b32 v2, 3, v1
v_and_b32 v3, 7, v1
v_mul_u32_u24 v4, 1152, v2
v_lshl_add_u32 v4, v3, 4, v4
s_lshl_b32 s57, s26, 5
s_add_u32 s55, s55, s57
s_sub_u32 s55, s55, 64
s_mul_i32 s56, s55, {8*1152}
v_mov_b32 v8, 0
v_mov_b32 v10, 0
v_mov_b32 v28, 0
s_mov_b32 s58, 0x3f803f80
""")
    for st_ in range(9):
        e(f"buffer_load_dwordx4 v[{32+4*st_}:{35+4*st_}], v4, s[28:31], s56 offen offset:{128*st_}\n buffer_load_dword v114, v6, s[28:31], 0 offen offset:{128*min(st_+1, 8)}")
        if st_ < 8: e("s_barrier")
    srd(36, 24, 0x10000000); srd(64, 22, 256)
    e("buffer_load_dword v27, v28, s[64:67], 0 offen offset:128 sc1")
    for st_ in range(9):
        if st_ in (0, 6, 7, 8): e(f"s_waitcnt vmcnt({2*(8-max(st_,5 if st_ == 0 else st_))+2})")
        for r in range(32+4*st_, 36+4*st_): e(f"v_dot2c_f32_bf16 v8, s58, v{r}\n v_dot2c_f32_bf16 v10, v{r}, v{r}")
    for m_ in ("quad_perm:[1,0,3,2]", "quad_perm:[2,3,0,1]", "row_half_mirror"):
        for d in (8, 10): e(f"v_add_f32_dpp v{d}, v{d}, v{d} {m_} row_mask:0xf bank_mask:0xf")
    e(f"""
v_mul_f32 v16, {inv:#x}, v8
v_mul_f32 v18, {inv:#x}, v10
v_fma_f32 v18, -v16, v16, v18
v_max_f32 v18, 0, v18
v_cvt_pk_bf16_f32 v20, v16, v18
v_lshlrev_b32 v16, 16, v20
v_and_b32 v18, 0xffff0000, v20
v_add_f32 v18, {f2u(1e-5):#x}, v18
v_cvt_pk_bf16_f32 v18, v18, v18
v_and_b32 v18, 0xffff0000, v18
v_sqrt_f32 v18, v18
v_cvt_pk_bf16_f32 v18, v18, v18
v_and_b32 v18, 0xffff0000, v18
v_rcp_f32 v18, v18
v_cmp_eq_u32 s[40:41], 1, v3
v_lshlrev_b32 v20, 2, v2
v_lshl_add_u32 v20, v3, 13, v20
v_mul_f32 v18, {f2u(LOG2E):#x}, v18
v_mul_f32_e64 v19, -v16, v18
v_cndmask_b32_e64 v18, v18, v19, s[40:41]
v_min_u32 v18, -2, v18
s_lshl_b32 s56, s55, 5
s_add_u32 s56, s56, {XST}
""")
    flags_wait("x", True, 128)
    e(f"""
s_mov_b32 s58, 0x03030303
s_mov_b32 s59, 0x03030303
s_mov_b64 exec, s[58:59]
buffer_store_dword v18, v20, s[36:39], s56 offen sc1
s_mov_b64 exec, -1
""")
    stamp(1)
    e("s_cmp_eq_u32 s27, 24\n s_cbranch_scc1 L_F")
    e("s_cmp_lt_u32 s27, 27\n s_cbranch_scc1 L_HS3")
    fin()
    a.lab("L_HS3")
    e("s_sub_u32 s53, s27, 9\n s_cmp_lt_u32 s3, 4\n s_cbranch_scc1 L_HS3b")
    wo_setup(); wo_dma("h")
    e("s_cmp_lg_u32 s54, 3\n s_cbranch_scc1 L_HS3b")
    flags_wait("h", False, 132, nap=4)
    sw_calc()
    a.lab("L_HS3b")
    e("s_waitcnt vmcnt(0) lgkmcnt(0)\n s_barrier\n s_branch L_s3pre")

    a.lab("L_R")
    e(f"""
s_cmp_lg_u32 s3, 0
s_cbranch_scc1 L_R1
s_getpc_b64 s[40:41]
L_pc:
s_sub_u32 s40, s40, L_pc-{NAME}
s_subb_u32 s41, s41, 0
s_sub_u32 s57, s27, 28
s_lshl_b32 s57, s57, 13
v_lshl_add_u32 v2, v1, 7, s57
v_min_u32 v2, L_codeend-{NAME}-4, v2
global_load_dword v6, v2, s[40:41]
L_R1:
v_mov_b32 v8, -1
v_mov_b32 v9, -1
v_mov_b32 v10, -1
v_mov_b32 v11, -1
v_lshlrev_b32 v12, 4, v1
s_lshl_b32 s48, s26, 2
s_add_u32 s48, s48, s47
s_sub_u32 s48, s48, 12
s_lshl_b32 s57, s48, 3
s_add_u32 s57, s57, s3
s_mul_i32 s56, s48, 3
s_min_u32 s55, s3, 2
s_add_u32 s56, s56, s55
s_lshl_b32 s56, s56, 10
s_add_u32 s56, s56, {XST}
s_mul_i32 s57, s57, 14336
s_add_u32 s58, s57, 14336
s_waitcnt lgkmcnt(0)
""")
    srd(36, 24, 0x10000000); srd(64, 22, 256)
    e(f"""
s_cmp_ge_u32 s3, 3
s_cbranch_scc1 L_R0
buffer_store_dwordx4 v[8:11], v12, s[36:39], s56 offen sc1
L_R0:
s_waitcnt vmcnt(0)
s_barrier
s_cmp_lg_u32 s3, 0
s_cbranch_scc1 L_R21
""")
    arrive("q", 0, 128, 32)
    stamp(1)
    e(f"""
L_R21:
s_barrier
L_R2:
buffer_store_dwordx4 v[8:11], v12, s[36:39], s57 offen {rflag}
s_add_u32 s57, s57, 1024
s_cmp_lt_u32 s57, s58
s_cbranch_scc1 L_R2
L_R4:
s_waitcnt vmcnt(0)
s_barrier
s_cmp_lg_u32 s3, 0
s_cbranch_scc1 L_R3
""")
    arrive("r", 4, 132, 32)
    a.lab("L_R3")
    srd(68, 8, 663552)
    e("s_sub_u32 s56, s27, 28\n s_lshl_b32 s56, s56, 3\n s_add_u32 s56, s56, s3\n s_lshl_b32 s56, s56, 13\n v_lshlrev_b32 v2, 7, v1")
    for i in range(3):
        e(f"s_barrier\n buffer_load_dword v100, v2, s[68:71], s56 offen\n s_add_u32 s56, s56, {32*8192}")
    if stamps: e("s_waitcnt vmcnt(0)")
    stamp(2)
    fin()

    a.lab("L_F")
    if nof:
        e(f"s_sleep {nof}")
    e(f"""
s_mul_i32 s48, s26, 9
s_add_u32 s48, s48, s47            ; fi
""")
    GW = 16; DW = 88
    srd(32, 18, 5308416); srd(68, 14, 5308416)
    e(f"""
s_and_b32 s56, s3, 1
s_lshl_b32 s56, s56, 4
s_bfe_u32 s57, s3, 0x10001
s_lshl_b32 s57, s57, 2
s_add_u32 s56, s56, s57
s_lshr_b32 s57, s3, 2
s_lshl_b32 s57, s57, 5
s_add_u32 s55, s56, s57
s_lshl_b32 s57, s48, 6
s_add_u32 s56, s55, s57
s_mul_i32 s56, s56, 1152
s_mul_i32 s57, s3, 9216
v_lshlrev_b32 v2, 4, v1
v_lshrrev_b32 v3, 5, v1
v_mul_u32_u24 v3, 4608, v3
v_add_u32 v3, v3, v2
""")
    for t in range(9):
        e(f"s_add_u32 m0, s57, {F_WU + t*1024}\n s_add_u32 s58, s56, {t*1024 + (4608 if t > 4 else 0)}\n buffer_load_dwordx4 v{3 if t == 4 else 2}, s[32:35], s58 offen nt lds")
        if fthr >= 0: e(f"s_waitcnt vmcnt({fthr})")
    def gu_dma(tag, base):
        e(f"""
s_lshl_b32 s56, s48, 7
s_lshl_b32 s57, s3, 10
s_add_u32 s57, s57, {base}
s_mov_b32 s58, 0
L_Fl{tag}:
s_mov_b32 m0, s57
s_add_u32 s57, s57, 8192
buffer_load_dwordx4 v4, s[68:71], s56 offen nt lds
{'s_waitcnt vmcnt(%d)' % fthr if fthr >= 0 else ''}
s_add_u32 s56, s56, {64*9216}
s_add_u32 s58, s58, 1
s_cmp_lt_u32 s58, 9
s_cbranch_scc1 L_Fl{tag}
""")
    e(f"""
v_lshrrev_b32 v2, 3, v1            ; rr
v_and_b32 v3, 7, v1
v_xor_b32 v3, v3, v2
v_lshlrev_b32 v3, 4, v3
v_lshrrev_b32 v4, 2, v2
v_and_b32 v5, 3, v2
v_lshl_add_u32 v4, v4, 3, v5
v_add_u32 v4, s55, v4              ; k local
v_mul_u32_u24 v4, 9216, v4
v_add_u32 v4, v4, v3
""")
    gu_dma("g", F_WG)
    e(f"""
v_lshrrev_b32 v2, 2, v13
v_lshl_add_u32 v2, v14, 2, v2
v_mul_u32_u24 v2, 1152, v2
v_and_b32 v3, 3, v13
v_lshl_add_u32 v2, v3, 3, v2
v_add_u32 v2, {F_WU}, v2
s_lshl_b32 s56, s3, 5
v_add_u32 v5, s56, v2
s_min_u32 s56, s3, 3
s_lshl_b32 s56, s56, 5
v_add_u32 v6, s56, v2
v_lshlrev_b32 v251, 2, v1
s_mov_b32 s68, s16
s_mov_b32 s69, s17
s_waitcnt vmcnt(9)
s_barrier
""")
    for i in range(5):
        for k in range(2):
            for hf in range(2):
                d = DW + 8*i + 4*k + 2*hf
                e(f"ds_read_b64_tr_b16 v[{d}:{d+1}], v{6 if i == 4 else 5} offset:{(k*32+hf*16)*1152 + 256*i}")
    e("s_waitcnt lgkmcnt(0)\n s_barrier")
    gu_dma("u", F_WU)
    e(f"""
v_lshrrev_b32 v2, 2, v13
v_lshl_add_u32 v2, v14, 2, v2      ; rho
v_and_b32 v3, 7, v2
v_xor_b32 v3, s3, v3
v_lshlrev_b32 v3, 4, v3
v_lshl_add_u32 v3, v2, 7, v3
v_and_b32 v4, 1, v13
v_lshl_add_u32 v3, v4, 3, v3
v_bfe_u32 v4, v13, 1, 1
s_mov_b32 s56, {F_WU}
v_mad_u32_u24 v5, v4, s56, v3
v_add_u32 v6, 0x9000, v5
v_mov_b32 v249, 0
""")
    flags_wait("f", False, 132, 250, 249)
    e("s_barrier")
    for k in range(18):
        for hf in range(2):
            off = (k*32+hf*16)*128
            reg = 5
            if k >= 9: off -= 0x9000; reg = 6
            e(f"ds_read_b64_tr_b16 v[{GW+4*k+2*hf}:{GW+4*k+2*hf+1}], v{reg} offset:{off}")
    e(f"""
v_lshlrev_b32 v7, 4, v0            ; tid*16
v_and_b32 v2, 1, v13
v_mul_u32_u24 v8, 1168, v2
v_lshl_add_u32 v8, v14, 4, v8
v_add_u32 v8, {F_HN}, v8
v_lshlrev_b32 v9, 7, v2
v_lshl_add_u32 v10, v14, 4, v9
v_add_u32 v10, {F_ACT}, v10
v_lshl_add_u32 v9, v14, 3, v9
s_lshl_b32 s56, s3, 4
s_add_u32 s56, s56, {F_ACT}
v_add_u32 v9, s56, v9
v_and_b32 v3, 6, v13
v_add_u32 v9, v9, v3
s_mov_b32 s46, 0xcccccccc
s_mov_b32 s47, 0xcccccccc
s_mov_b32 s52, 0xf0f0f0f0
s_mov_b32 s53, 0xf0f0f0f0
v_mul_u32_u24 v11, 2304, v2
v_lshl_add_u32 v11, v14, 4, v11    ; y voffset
v_lshlrev_b32 v12, 7, v13
v_cmp_le_u32 vcc, 72, v0
v_cndmask_b32_e64 v128, 0, 1, vcc
v_mul_u32_u24 v129, 1152, v128
v_sub_u32 v129, v7, v129
v_lshl_add_u32 v130, v128, 4, v7
v_add_u32 v130, {F_HN}, v130
s_mul_i32 s60, s48, 4608
s_lshl_b32 s56, s3, 6
s_add_u32 s60, s60, s56
s_add_u32 s60, s60, {YP}
s_lshl_b32 s57, s26, 11
{'' if krep else 's_mov_b32 s57, 0'}
s_add_u32 s57, s57, {KEY}
s_mov_b32 s59, 0
s_movk_i32 s58, 144
s_movk_i32 s55, 2304
s_waitcnt lgkmcnt(0)
""")
    stamp(2)
    e(f"""
s_add_u32 s56, s3, 1
s_and_b32 s56, s56, 7
s_cmp_ge_u32 s56, 4
s_cbranch_scc1 L_f2
v_cmp_gt_u32 s[42:43], s58, v0
v_cmp_eq_u32 s[44:45], 1, v128
L_k0:
buffer_load_dwordx2 v[132:133], v12, s[36:39], s57 offen sc1
s_waitcnt vmcnt(0)
v_max_u32 v2, v132, v133
v_cmp_eq_u32 vcc, -1, v2
s_cbranch_vccz L_k1
{'s_sleep %d' % ksleep if ksleep else ''}
s_add_u32 s59, s59, 1
s_cmp_lt_u32 s59, {SPIN}
s_cbranch_scc1 L_k0
L_k1:
""")
    stamp(3)
    rowmax(136, 132)
    e("v_cmp_eq_u32 s[40:41], v132, v136\n v_cndmask_b32_e64 v2, v132, v133, s[40:41]")
    rowmax(137, 2)
    e(f"""
v_not_b32 v2, v136
v_not_b32 v3, v137
v_bfe_u32 v2, v2, 7, 4
v_bfe_u32 v3, v3, 7, 4
v_cmp_eq_u32 s[40:41], v2, v3
v_lshlrev_b32 v2, 1, v2
v_lshlrev_b32 v3, 1, v3
v_addc_co_u32_e64 v3, s[40:41], 0, v3, s[40:41]
s_cmp_eq_u32 s3, 7
s_cbranch_scc1 L_f3
v_cndmask_b32_e64 v2, v2, v3, s[44:45]
v_mad_u32_u24 v2, v2, s55, v129
s_mov_b64 exec, s[42:43]
s_mov_b32 s57, {CAND}
s_mov_b32 s59, 0
L_f0:
buffer_load_dwordx4 v[132:135], v2, s[36:39], s57 offen sc1
s_waitcnt vmcnt(0)
v_max3_u32 v3, v132, v133, v134
v_max_u32 v3, v3, v135
v_cmp_eq_u32 vcc, -1, v3
s_cbranch_vccz L_f1
s_add_u32 s59, s59, 1
s_cmp_lt_u32 s59, {SPIN}
s_cbranch_scc1 L_f0
L_f1:
ds_write_b128 v130, v[132:135]
s_mov_b64 exec, -1
s_waitcnt lgkmcnt(0)
s_branch L_f2
L_f3:
v_readfirstlane_b32 s50, v136
v_readfirstlane_b32 s51, v137
v_readfirstlane_b32 s61, v2
v_readfirstlane_b32 s62, v3
L_f2:
s_barrier
""")
    stamp(4)
    HB = 140
    for k in range(18): e(f"ds_read_b128 v[{HB+4*k}:{HB+4*k+3}], v8 offset:{64*k}")
    for k in range(18):
        e(f"s_waitcnt lgkmcnt({min(17-k,15)})")
        e(f"v_mfma_f32_16x16x32_bf16 v[132:135], v[{GW+4*k}:{GW+4*k+3}], v[{HB+4*k}:{HB+4*k+3}], " + ("0" if k == 0 else "v[132:135]"))
    e(f"""
v_cndmask_b32_e64 v132, v132, v133, s[46:47]
v_cndmask_b32_e64 v134, v134, v135, s[46:47]
v_cndmask_b32_e64 v132, v132, v134, s[52:53]
v_cvt_pk_bf16_f32 v132, v132, v132
v_and_b32 v136, 0xffff0000, v132
v_and_b32 v138, 0xffff0000, v132
v_permlane32_swap_b32 v136, v138
v_mul_f32 v140, {f2u(-LOG2E):#x}, v136
v_exp_f32 v140, v140
v_add_f32 v140, 1.0, v140
v_rcp_f32 v140, v140
v_mul_f32 v136, v136, v140
v_cvt_pk_bf16_f32 v136, v136, v136
v_and_b32 v136, 0xffff0000, v136
v_mul_f32 v136, v136, v138
v_cvt_pk_bf16_f32 v136, v136, v136
s_mov_b64 exec, 0xff00ff
ds_write_b16 v9, v136
s_mov_b64 exec, -1
s_waitcnt lgkmcnt(0)
s_barrier
ds_read_b128 v[140:143], v10
ds_read_b128 v[144:147], v10 offset:64
s_mov_b32 s56, 0x30003
s_mov_b32 s57, 0x30003
s_cmp_ge_u32 s3, 4
s_waitcnt lgkmcnt(0)
""")
    def dm(i, k):
        c = 148 + 4*i
        return f"v_mfma_f32_16x16x32_bf16 v[{c}:{c+3}], v[{DW+8*i+4*k}:{DW+8*i+4*k+3}], v[{140+4*k}:{143+4*k}], " + ("0" if k == 0 else f"v[{c}:{c+3}]")
    for i in range(4):
        for k in range(2): e(dm(i, k))
    e("s_cbranch_scc1 L_y0")
    for k in range(2): e(dm(4, k))
    a.lab("L_y0")
    e("s_mov_b64 exec, s[56:57]")
    for i in range(5):
        c = 148 + 4*i
        if i == 4: e("s_cbranch_scc1 L_y1")
        e(f"buffer_store_dwordx4 v[{c}:{c+3}], v11, s[36:39], s60 offen offset:{512*i} sc1")
    a.lab("L_y1")
    e("s_mov_b64 exec, -1")
    stamp(5)
    e("s_cmp_lg_u32 s3, 7\n s_cbranch_scc1 L_fin\n s_cmp_ge_u32 s48, 36\n s_cbranch_scc1 L_fin")
    e(f"""
s_cmp_ge_u32 s48, 18
s_cselect_b32 s50, s51, s50
s_cselect_b32 s61, s62, s61
s_cselect_b32 s56, 18, 0
s_mul_i32 s61, s61, 2304
s_andn2_b32 s52, 0x7ff, s50
s_sub_u32 s56, s48, s56
s_lshl_b32 s56, s56, 6
s_add_u32 s61, s61, s56
s_add_u32 s61, s61, {CAND}
s_mul_i32 s52, s52, 1152
s_add_u32 s52, s52, s56
s_lshl_b32 s62, s48, 7
s_add_u32 s62, s62, {YP}
v_and_b32 v2, 7, v1
v_lshlrev_b32 v4, 3, v2
v_lshrrev_b32 v3, 3, v1
v_mul_u32_u24 v3, 4608, v3
v_lshl_add_u32 v3, v2, 4, v3
s_ashr_i32 s56, s50, 31
s_not_b32 s56, s56
s_or_b32 s56, s56, 0x80000000
s_xor_b32 s56, s56, s50
s_and_b32 s56, s56, 0xffff0000
v_mov_b32 v5, {f2u(-LOG2E):#x}
v_mul_f32 v5, s56, v5
v_exp_f32 v5, v5
v_add_f32 v5, 1.0, v5
v_rcp_f32 v5, v5
v_cvt_pk_bf16_f32 v5, v5, v5
v_and_b32 v5, 0xffff0000, v5
s_mov_b32 s59, 0
{"s_waitcnt vmcnt(0)" if dwait else "s_sleep %d" % dsleep}
{"s_memrealtime s[88:89]" if stamps else ""}
L_d0:
s_mov_b32 s57, s62
""")
    for i in range(9):
        e(f"buffer_load_dwordx4 v[{16+4*i}:{19+4*i}], v3, s[36:39], s57 offen sc1")
        if i < 8: e(f"s_add_u32 s57, s57, {8*4608}")
    e("buffer_load_dwordx2 v[52:53], v4, s[36:39], s61 offen sc1\n buffer_load_dwordx2 v[54:55], v4, s[36:39], s61 offen offset:1152 sc1\n s_waitcnt vmcnt(0)")
    e("v_max3_u32 v2, v16, v17, v18")
    for i in range(19, 55, 2): e(f"v_max3_u32 v2, v2, v{i}, v{i+1}")
    e(f"""
v_max_u32 v2, v2, v55
v_cmp_eq_u32 vcc, -1, v2
s_cbranch_vccz L_d1
s_add_u32 s59, s59, 1
s_cmp_lt_u32 s59, {SPIN}
s_cbranch_scc1 L_d0
L_d1:
""")
    stamp(6)
    for st in (16, 8, 4):
        for i in range(0, st, 2): e(f"v_pk_add_f32 v[{16+i}:{17+i}], v[{16+i}:{17+i}], v[{16+st+i}:{17+st+i}]")
    e("v_pk_add_f32 v[16:17], v[16:17], v[48:49]\n v_pk_add_f32 v[18:19], v[18:19], v[50:51]")
    for q in range(4): e(f"v_add_f32_dpp v{16+q}, v{16+q}, v{16+q} row_ror:8 row_mask:0xf bank_mask:0xf")
    for wh in (16, 32):
        for q in range(4): e(f"v_mov_b32 v{20+q}, v{16+q}")
        for q in range(4): e(f"v_permlane{wh}_swap_b32 v{16+q}, v{20+q}")
        for q in range(4): e(f"v_add_f32 v{16+q}, v{16+q}, v{20+q}")
    def rnd4():
        for h in range(2): e(f"v_cvt_pk_bf16_f32 v{24+h}, v{16+2*h}, v{17+2*h}")
        for h in range(2): e(f"v_lshlrev_b32 v{16+2*h}, 16, v{24+h}\n v_and_b32 v{17+2*h}, 0xffff0000, v{24+h}")
    rnd4()
    for q in range(4): e(f"v_mul_f32 v{16+q}, v{16+q}, v5")
    for src in (52, 54):
        rnd4()
        for h in range(2): e(f"v_lshlrev_b32 v{20+2*h}, 16, v{src+h}\n v_and_b32 v{21+2*h}, 0xffff0000, v{src+h}")
        for q in range(4): e(f"v_add_f32 v{16+q}, v{16+q}, v{20+q}")
    for h in range(2): e(f"v_cvt_pk_bf16_f32 v{24+h}, v{16+2*h}, v{17+2*h}")
    srd(68, 20, 2359296)
    e(f"s_mov_b64 exec, 0xff\n buffer_store_dwordx2 v[24:25], v4, s[68:71], s52 offen {fstore}")
    stamp(7)
    a.lab("L_fin")
    fin()
    a.lab("L_end")
    e("s_endpgm")
    a.lab("L_codeend")

    assert not any('op_sel:' in l for l in a.L)
    if cyc: a.L = [l.replace('s_memrealtime', 's_memtime') for l in a.L]
    lines, n = hazard.fix(a.L)
    if doalign: lines, nw, npad = align.run(lines)
    import os
    ref = "sequential_preLN__linear_attn_block__moe_arch_mod__prompt.s.ref"
    hdr = open(ref).read().split("; @launch")[0] if os.path.exists(ref) else ""
    hdr += f"""; @launch grid=(256,1,1) block=(512,1,1) lds=163840
.amdgcn_target "amdgcn-amd-amdhsa--gfx950"
.text
.globl {NAME}
.p2align 8
.type {NAME},@function
"""
    tail = f"""
.section .rodata,"a"
.p2align 6
.amdhsa_kernel {NAME}
  .amdhsa_next_free_vgpr 256
  .amdhsa_next_free_sgpr 102
  .amdhsa_accum_offset 256
  .amdhsa_group_segment_fixed_size 0
  .amdhsa_kernarg_size 88
  .amdhsa_user_sgpr_count 2
  .amdhsa_user_sgpr_kernarg_segment_ptr 1
  .amdhsa_system_sgpr_workgroup_id_x 1
.end_amdhsa_kernel
"""
    return hdr + "\n".join(lines) + "\n" + tail

if __name__ == "__main__":
    assert all((n*1821)>>16 == n//36 for n in range(108))
    assert all((n*13108)>>16 == n//5 for n in range(192))
    assert all((n*57)>>9 == n//9 for n in range(27))
    print(gen(stamps=len(sys.argv) > 1))
```

```python
import sys, struct
from asmlib import *
import hazard, align

NAME = "sequential_preLN__linear_attn_block__moe_arch_mod__prompt_kernel"
KVP = 0
OB  = KVP + 16*8*3072
ST  = OB + 128*16*1152
KEY = ST + 128*9*256
XID = KEY + 9*2048
CAND = XID + 2048
YP  = CAND + 16*2*2304
assert YP + 72*4608 <= 256*14336
XST = 4<<20
CS  = XST + 32768
assert CS + 64*3840 <= XST + 256*2048
TS_OFF = 0x8000000
XS = 32768; STG = XS + 16384; NBUF = 3
L_WO = 0; L_KVRED = 73728; L_PQ = 106496
L_RS = 153600; L_MRS = L_RS + 1024; L_CS = L_MRS + 1024; L_KT = L_CS + 1024; L_SW = L_KT + 1536
L_STAGE = L_KVRED
L_WR = L_SW + 64
L_KEY = L_WR + 1280
L_KTA = L_KEY + 64
L_XT = L_PQ + 30720
assert L_XT + 16384 == L_RS and L_KTA + 3072 <= 163840
F_WG = 0; F_WU = 73728; F_WD = 0; F_HN = 147456; F_ACT = F_HN + 2560; F_KEYS = F_ACT + 256; F_RED = F_KEYS + 256
SPIN = 1 << 17
def f2u(x): return struct.unpack("<I", struct.pack("<f", x))[0]
LOG2E = 1.4426950408889634

def gen(stamps=False, owait=1, await_=1, cwait=0, dwait=1, rflag='sc1', diag=None, doalign=1, gate=1, fstore='sc1', ksleep=0, merged=0, LAG=3, hintall=0, hsleep=2, obar=0, hprio=1, ahead=3, outwait=0, rot=0, krep=1, dsleep=0, csleep=0, asleep=0, osleep=0, wfl='', xfl='', lprio=0, worder=1, cyc=0, flip=0, nof=0, st0=0, s3prio=0, fthr=-1, latepre=0, x_nochk=0, x_nord=0, x_nomf=0, x_nold=0, x_fl='sc1', fast=1, fasta=1, nanchk=1, oprio=1, hnearly=0, qswap=1, lchk=0, cpf=0, yscale=0, hscale=0, fearly=1, eflag=0, sweep=4, wopf=1, upf=0, hread=1, upfl='', wb=0, lf=1,  outsleep=0, outfl='sc1'):
    NPRE = 6
    a = Asm()
    e = a.e
    def stamp(i):
        if stamps or diag: e(f"s_memrealtime s[{72+2*i}:{73+2*i}]")
    def fin():
        if diag:
            wg, wave, idx, K = diag
            lb = a.new("L_dg")
            e("s_waitcnt vmcnt(0) lgkmcnt(0)")
            if idx == "xcc":
                e(f"s_getreg_b32 s44, hwreg(HW_REG_XCC_ID)\n s_and_b32 s44, s44, 7\n s_and_b32 s45, s2, 7\n s_cmp_eq_u32 s44, s45\n s_cbranch_scc1 {lb}e\n s_add_u32 s44, s72, 10000")
            else:
                e(f"s_cmp_lg_u32 s2, {wg}\n s_cbranch_scc1 {lb}e\n s_cmp_lg_u32 s3, {wave}\n s_cbranch_scc1 {lb}e")
                if idx == "rnd": e(f"s_lshr_b32 s44, s72, 3\n s_mul_i32 s44, s44, 0x9e3779b1\n s_lshr_b32 s44, s44, 24\n s_cmp_ge_u32 s44, {K}\n s_cbranch_scc1 {lb}e\n s_add_u32 s44, s72, 10000")
                elif idx == "fix": e(f"s_add_u32 s44, s72, {K}")
                else: e(f"s_sub_u32 s44, s{72+2*idx}, s72\n s_min_u32 s44, s44, 10000\n s_mul_i32 s44, s44, {K}\n s_add_u32 s44, s44, s72")
            e(f"{lb}:\n s_memrealtime s[46:47]\n s_waitcnt lgkmcnt(0)\n s_sub_u32 s45, s46, s44\n s_cmp_lt_i32 s45, 0\n s_cbranch_scc1 {lb}\n{lb}e:")
        if stamps:
            e("s_waitcnt vmcnt(0) lgkmcnt(0)")
            e("s_mov_b64 exec, -1")
            e(f"s_lshl_b32 s44, s2, 3\n s_add_u32 s44, s44, s3\n s_lshl_b32 s44, s44, 6\n s_add_u32 s44, s44, {TS_OFF}\n v_mov_b32 v2, 0")
            for i in range(15):
                e(f"v_mov_b32 v3, s{72+2*i}\n buffer_store_dword v3, v2, s[36:39], s44 offen offset:{4*i}")
        e("s_endpgm")
    def srd(d, p, n):
        e(f"s_mov_b32 s{d}, s{p}\n s_mov_b32 s{d+1}, s{p+1}\n s_mov_b32 s{d+2}, {n}\n s_mov_b32 s{d+3}, 0x20000")
    def rowmax(d, s):
        e(f"v_max_u32_dpp v{d}, v{s}, v{s} quad_perm:[1,0,3,2] row_mask:0xf bank_mask:0xf")
        e(f"v_max_u32_dpp v{d}, v{d}, v{d} quad_perm:[2,3,0,1] row_mask:0xf bank_mask:0xf")
        e(f"v_max_u32_dpp v{d}, v{d}, v{d} row_half_mirror row_mask:0xf bank_mask:0xf")
        e(f"v_max_u32_dpp v{d}, v{d}, v{d} row_mirror row_mask:0xf bank_mask:0xf")
    def rowsum(d):
        for m in ("quad_perm:[1,0,3,2]", "quad_perm:[2,3,0,1]", "row_half_mirror", "row_mirror"):
            e(f"v_add_f32_dpp v{d}, v{d}, v{d} {m} row_mask:0xf bank_mask:0xf")
    def xsum(d, t, which, op="v_add_f32"):
        e(f"v_mov_b32 v{t}, v{d}\n v_permlane{which}_swap_b32 v{d}, v{t}\n {op} v{d}, v{d}, v{t}")

    a.lab(NAME)
    e("""
s_load_dwordx16 s[4:19], s[0:1], 0
s_load_dwordx4 s[20:23], s[0:1], 64
s_load_dwordx2 s[24:25], s[0:1], 80
""")
    if stamps:
        for i in range(1, 15): e(f"s_mov_b64 s[{72+2*i}:{73+2*i}], 0")
    stamp(0)
    e(f"""
v_lshrrev_b32 v2, 6, v0
v_and_b32 v1, 63, v0
s_cmp_ge_u32 s2, 256
v_readfirstlane_b32 s3, v2
s_cbranch_scc1 L_end
s_and_b32 s26, s2, 7
s_lshr_b32 s27, s2, 3          ; slot
s_lshr_b32 s45, s26, 1         ; rbg
s_and_b32 s46, s2, 1           ; half
v_and_b32 v13, 15, v1
v_lshrrev_b32 v14, 4, v1
s_and_b32 s54, s3, 3           ; w
s_cmp_lt_u32 s27, 16
s_cbranch_scc1 L_A
s_sub_u32 s47, s27, 16             ; h
s_mov_b32 s35, 0x20000
s_cmp_lt_u32 s27, 24
s_cbranch_scc1 L_W0
s_cmp_lt_u32 s27, 28
s_cbranch_scc1 L_X0
s_cmp_lg_u32 s3, 0
s_cbranch_scc1 L_R
s_getpc_b64 s[40:41]
s_and_b32 s57, s27, 3
s_lshl_b32 s57, s57, 13
v_lshl_add_u32 v2, v1, 7, s57
v_min_u32 v2, L_codeend-L_X0, v2
global_load_dword v6, v2, s[40:41]
s_branch L_R
L_X0:
v_lshrrev_b32 v7, 3, v1
v_and_b32 v3, 7, v1
v_mul_u32_u24 v2, 1152, v7
v_lshl_add_u32 v2, v3, 4, v2
v_add_u32 v5, {8*1152}, v2
s_lshl_b32 s55, s45, 2
s_add_u32 s55, s55, s47
s_lshl_b32 s55, s55, 3
s_add_u32 s55, s55, s3
s_sub_u32 s55, s55, 64
s_mul_i32 s56, s55, {16*1152}
s_movk_i32 s57, 128
s_mov_b32 s34, 2359296
s_waitcnt lgkmcnt(0)
s_mov_b64 s[32:33], s[4:5]
s_branch L_E0
L_W0:
v_add_u32 v3, 64, v1
v_min_u32 v3, 119, v3
v_mul_u32_u24 v4, 1639, v1
v_lshrrev_b32 v4, 16, v4
v_lshlrev_b32 v2, 4, v1
v_lshl_add_u32 v2, v4, 9, v2
v_mul_u32_u24 v4, 1639, v3
v_lshrrev_b32 v4, 16, v4
v_lshlrev_b32 v5, 4, v3
v_lshl_add_u32 v5, v4, 9, v5
s_lshl_b32 s56, s47, 3
s_add_u32 s56, s56, s3
s_mul_i32 s56, s56, 3456
s_lshl_b32 s57, s46, 9
s_add_u32 s56, s56, s57
s_mov_b32 s57, {64*3456}
s_mov_b32 s34, 1990656
s_waitcnt lgkmcnt(0)
s_mov_b64 s[32:33], s[6:7]
L_E0:
buffer_load_dwordx4 v[16:19], v2, s[32:35], s56 offen
buffer_load_dwordx4 v[20:23], v5, s[32:35], s56 offen
s_add_u32 s56, s56, s57
s_barrier
buffer_load_dwordx4 v[24:27], v2, s[32:35], s56 offen
buffer_load_dwordx4 v[28:31], v5, s[32:35], s56 offen
s_add_u32 s56, s56, s57
s_branch L_B
L_A:
s_and_b32 s47, s27, 7
s_lshl_b32 s48, s46, 3
s_add_u32 s48, s48, s47        ; hp
s_lshr_b32 s49, s27, 3
s_lshl_b32 s50, s45, 1
s_add_u32 s50, s50, s49        ; rb (0..7)
s_lshr_b32 s51, s48, 1
s_mul_i32 s51, s51, 144
s_and_b32 s47, s27, 1          ; p
s_lshl_b32 s52, s47, 3
s_mov_b32 s53, s27
{'s_xor_b32 s3, s3, 4' if flip else ''}
s_cmp_lt_u32 s3, 4
s_cbranch_scc1 L_compute
""")
    OF = 16; AC = 116; WR = 132; BR = 140; BA = 236
    VST, VSW, VSR, VOUT, VC7, VTOK, VSUM = 249, 250, 251, 252, 253, 254, 255
    VKW, VKR, VXA, VWA, VM1, VM2 = 11, 5, 112, 113, 114, 115
    XR = 240
    def bread(k):
        r = []
        for T in range(4):
            for hf in range(2):
                d = BR + (k % NPRE)*16 + 4*T + 2*hf
                off = ((k*32 + hf*16)*128) & 0xffff
                r.append(f"ds_read_b64_tr_b16 v[{d}:{d+1}], v{BA+T} offset:{off}")
        return r
    def s3_scal(v=True):
        e(f"""
s_cmp_ge_u32 s53, 9
s_cselect_b32 s57, 9, 0
s_cselect_b32 s58, 8, 0
s_sub_u32 s63, s53, s57            ; cb
s_lshl_b32 s60, s26, 4
s_add_u32 s60, s60, s58
s_add_u32 s60, s60, s3             ; tb
s_mul_i32 s61, s60, {16*1152}
s_add_u32 s62, s61, {OB}
s_lshl_b32 s57, s63, 7
s_add_u32 s61, s61, s57
s_mul_i32 s50, s3, 4608
s_add_u32 s50, s50, {L_STAGE}
s_mul_i32 s51, s60, {9*256}
s_add_u32 s51, s51, {ST}
s_lshl_b32 s52, s63, 8
s_add_u32 s52, s52, s51
s_mov_b32 s44, 0x00f0000f
s_mov_b32 s45, 0xf0000f00
s_mov_b32 s46, 0x22222222
s_mov_b32 s47, 0x22222222
s_mov_b32 s48, 0xcccccccc
s_mov_b32 s49, 0xcccccccc
s_mov_b32 s42, 0x88888888
s_mov_b32 s43, 0x88888888
""")
        if v: e(f"v_lshlrev_b32 v{VST}, 4, v13\n v_lshrrev_b32 v{VOUT}, 3, v1")
    def s3_addr1():
        e(f"""
v_lshrrev_b32 v2, 2, v13
v_lshl_add_u32 v2, v14, 2, v2      ; rho
v_bfe_u32 v3, v2, 1, 2
v_lshlrev_b32 v2, 7, v2
v_and_b32 v4, 3, v13
v_lshl_add_u32 v2, v4, 3, v2
v_lshl_add_u32 v{BA}, v3, 5, v2
v_xor_b32 v{BA+1}, 32, v{BA}
v_xor_b32 v{BA+2}, 64, v{BA}
v_xor_b32 v{BA+3}, 96, v{BA}
s_lshl_b32 s57, s63, 7
s_add_u32 s57, s57, {L_WR}
v_lshl_add_u32 v{VWA}, v14, 3, s57
v_lshrrev_b32 v2, 1, v14
v_and_b32 v3, 7, v13
v_xor_b32 v2, v2, v3
v_lshlrev_b32 v2, 4, v2
v_lshl_add_u32 v2, v13, 7, v2
v_and_b32 v3, 1, v14
v_lshl_add_u32 v2, v3, 3, v2
s_lshl_b32 s57, s3, 11
s_add_u32 s57, s57, {L_XT}
v_add_u32 v{VXA}, s57, v2
""")
    def s3_reads():
        for T in range(4):
            e(f"v_xor_b32 v4, {32*T}, v{VXA}\n ds_read_b64 v[{XR+2*T}:{XR+2*T+1}], v4")
            e(f"ds_read_b64 v[{WR+2*T}:{WR+2*T+1}], v{VWA} offset:{32*T}")
        e(f"v_mov_b32 v2, {L_SW}\n ds_read_b32 v{VSUM}, v2")
        for k in range(NPRE):
            for x in bread(k): e(x)
    def s3_addr2(sb=50, st=60, m=40):
        e(f"""
v_and_b32 v2, 3, v13
v_cmp_eq_u32 s[{m}:{m+1}], 2, v2
v_cndmask_b32_e64 v{VM1}, 0, -1, s[{m}:{m+1}]
v_mov_b32 v4, 0x3f803f80
v_cmp_eq_u32 s[{m}:{m+1}], 0, v2
v_cndmask_b32_e64 v{VM2}, 0, v4, s[{m}:{m+1}]
v_mul_u32_u24 v{VSW}, 144, v13
v_lshl_add_u32 v{VSW}, v14, 3, v{VSW}
v_add_u32 v{VSW}, s{sb}, v{VSW}
v_add_u32 v{VSR}, v{VOUT}, v1
v_lshl_add_u32 v{VSR}, v{VSR}, 4, s{sb}
v_mul_u32_u24 v{VOUT}, 1152, v{VOUT}
v_and_b32 v{VC7}, 7, v1
v_lshl_add_u32 v{VOUT}, v{VC7}, 4, v{VOUT}
v_lshl_add_u32 v{VTOK}, s{st}, 4, v13
v_sub_u32 v{VTOK}, 2047, v{VTOK}
s_lshl_b32 s57, s3, 3
s_add_u32 s57, s57, {L_KEY}
v_mov_b32 v{VKW}, s57
v_lshlrev_b32 v{VKR}, 2, v13
v_add_u32 v{VKR}, {L_KEY}, v{VKR}
""")
    def s3_unpack():
        e("s_waitcnt lgkmcnt(15)")
        for i in range(8): e(f"v_lshlrev_b32 v{AC+2*i}, 16, v{XR+i}\n v_and_b32 v{AC+2*i+1}, 0xffff0000, v{XR+i}\n v_and_or_b32 v{WR+i}, v{WR+i}, v{VM1}, v{VM2}")
    e(f"""
s_setprio 2
s_lshl_b32 s55, s50, 5
s_add_u32 s55, s55, s54
s_lshl_b32 s55, s55, 3
v_lshrrev_b32 v2, 3, v1
v_add_u32 v2, s55, v2
v_mul_u32_u24 v16, 1152, v2
s_and_b32 s56, s54, 1
s_lshl_b32 s57, s56, 2
v_add_u32 v3, s57, v14
v_and_b32 v2, 7, v1
v_xor_b32 v2, v2, v3
v_lshl_add_u32 v16, v2, 4, v16
v_lshrrev_b32 v2, 1, v13
v_xor_b32 v2, v2, v3
v_and_b32 v3, 1, v1
v_lshl_add_u32 v2, v2, 1, v3
v_min_u32 v2, 14, v2
v_mul_u32_u24 v3, 52, v2
v_lshrrev_b32 v3, 8, v3
v_lshlrev_b32 v2, 4, v2
v_and_b32 v4, {qswap}, v3
v_xor_b32 v4, s47, v4
v_lshl_add_u32 v2, v4, 6, v2
v_xor_b32 v15, 1, v3
v_lshrrev_b32 v4, 1, v3
v_sub_u32 v15, v15, v4
v_mul_u32_u24 v15, 1152, v15
v_mul_u32_u24 v3, 80, v3
v_sub_u32 v2, v2, v3
s_lshl_b32 s55, s54, 3
v_add_u32 v3, s55, v14
v_mul_u32_u24 v3, 3456, v3
v_add3_u32 v17, v2, v3, v15
s_lshl_b32 s41, s54, 10
s_mov_b32 s55, 0
s_mov_b32 s56, s51
s_mov_b32 s43, 0
s_mov_b32 s44, -1
s_mov_b32 s30, 2359296
s_mov_b32 s31, 0x20000
s_mov_b32 s34, 1990656
s_mov_b32 s35, 0x20000
s_waitcnt lgkmcnt(0)
s_mov_b32 s28, s4
s_mov_b32 s29, s5
s_mov_b32 s32, s6
s_mov_b32 s33, s7
""")
    def issue():
        e("s_mov_b32 s57, s55")
        for i in range(8):
            iw = (i//2 if i % 2 == 0 else 9) if worder else i
            if iw < 4:
                e(f"s_add_u32 m0, s41, {XS + iw*4096}\n s_add_u32 s58, s56, {((iw>>1)*32 + (iw&1)*4)*3456}")
                e(f"buffer_load_dwordx4 v17, s[32:35], s58 offen {wfl} lds")
            e(f"s_add_u32 m0, s41, {i*4096}")
            if i: e(f"s_add_u32 s57, s57, {2*18432}")
            e(f"buffer_load_dwordx4 v16, s[28:31], s57 offen {xfl} lds")
        e(f"""
s_add_u32 s55, s55, 128
s_add_u32 s56, s56, {64*3456}
s_add_u32 s43, s43, 1
s_add_u32 s41, s41, {STG}
s_cmp_eq_u32 s43, {NBUF}
s_cselect_b32 s57, {NBUF*STG}, 0
s_cselect_b32 s43, 0, s43
s_sub_u32 s41, s41, s57
s_add_u32 s44, s44, 1
""")
    if st0: stamp(5)
    a.lab("L_hloop0")
    issue()
    e("""
s_cmp_eq_u32 s44, 0
s_cbranch_scc1 L_hloop0
s_waitcnt vmcnt(12)
s_barrier
s_cmp_lg_u32 s44, 2
s_cbranch_scc1 L_hloop0
""")
    e("s_setprio 0")
    stamp(14)
    issue()
    e(f"""
v_lshl_add_u32 v2, s54, 6, v1      ; n = 64w + lane
s_lshl_b32 s57, s50, 10
s_lshl_b32 s60, s46, 14
s_add_u32 s60, s60, s57
s_add_u32 s60, s60, {XST}
v_lshlrev_b32 v18, 2, v2
v_min_u32 v3, 107, v2
v_mul_u32_u24 v4, 1821, v3
v_lshrrev_b32 v4, 16, v4           ; sec = c/36
v_xor_b32 v5, 1, v4
v_lshrrev_b32 v6, 1, v4
v_sub_u32 v5, v5, v6
v_mul_u32_u24 v5, 320, v5
v_and_b32 v6, {qswap}, v4
v_xor_b32 v6, s47, v6
v_mad_u32_u24 v5, v6, 36, v5
v_mul_u32_u24 v4, 36, v4
v_sub_u32 v3, v3, v4
v_add_u32 v3, v3, v5
v_lshlrev_b32 v19, 2, v3
s_lshl_b32 s61, s51, 1
s_lshl_b32 s57, s46, 10
s_sub_u32 s61, s61, s57
s_mul_i32 s57, s26, {8*3840}
s_add_u32 s61, s61, s57
s_add_u32 s61, s61, {CS}
""")
    e(f"""
v_cmp_gt_u32 vcc, 190, v2
v_cndmask_b32_e64 v3, 0, v2, vcc       ; gamma or 0
v_cndmask_b32 v23, 0, -1, vcc
v_mov_b32 v24, v23
v_mul_u32_u24 v4, 13108, v3
v_lshrrev_b32 v4, 16, v4           ; col
v_mul_u32_u24 v5, 5, v4
v_sub_u32 v5, v3, v5               ; i
v_cmp_le_u32 vcc, 18, v4
v_cndmask_b32 v6, 0, 1, vcc        ; head for col<36
v_cmp_le_u32 vcc, 36, v4
v_subrev_u32 v7, 36, v4
v_cndmask_b32_e64 v6, v6, v7, vcc      ; head
v_cndmask_b32 v4, v4, 36, vcc      ; e (36 = ones column)
v_mov_b32 v12, {f2u(1/LOG2E**2):#x}
v_mov_b32 v11, {f2u(1/LOG2E):#x}
v_cndmask_b32_e64 v12, v12, v11, vcc
v_lshl_add_u32 v7, v6, 2, v5       ; delta = i + 4*head
v_add_u32 v4, 72, v4               ; tile column index 72+e
v_lshrrev_b32 v8, 4, v4
v_subrev_u32 v8, 4, v8             ; TB-4
v_and_b32 v4, 15, v4               ; lane col
v_lshrrev_b32 v9, 2, v7            ; TA
v_mad_u32_u24 v8, v9, 3, v8
v_lshrrev_b32 v10, 1, v9
v_sub_u32 v8, v8, v10
v_and_b32 v9, 3, v7
v_lshl_add_u32 v4, v9, 4, v4
v_lshlrev_b32 v4, 4, v4
v_lshl_add_u32 v22, v8, 10, v4
v_add_u32 v22, {L_KVRED}, v22      ; lds source
v_cmp_eq_u32 vcc, 4, v7
v_cndmask_b32 v8, -1, 0, vcc       ; 0 when delta==4
v_subrev_u32 v9, 1, v6             ; head0: -1, head1: 0
v_or_b32 v9, v9, v8
v_and_b32 v23, v23, v9             ; lo mask
v_sub_u32 v9, 0, v6
v_or_b32 v9, v9, v8
v_and_b32 v24, v24, v9             ; hi mask
v_lshlrev_b32 v25, 4, v2           ; gamma*16
v_lshlrev_b32 v26, 3, v2
v_add_u32 v26, {L_KT}, v26
s_xor_b32 s62, s48, {qswap}
s_mul_i32 s62, s62, {8*3072}       ; KVP base of the head pair of q
s_lshl_b32 s52, s48, 3
s_add_u32 s52, s52, s50
s_mul_i32 s52, s52, 3072           ; own slot
""".replace("v_cndmask_b32 v23, 0, -1, vcc", "v_cndmask_b32_e64 v23, 0, -1, vcc").replace("v_cndmask_b32 v6, 0, 1, vcc", "v_cndmask_b32_e64 v6, 0, 1, vcc").replace("v_cndmask_b32 v4, v4, 36, vcc", "v_cndmask_b32_e64 v4, v4, 36, vcc").replace("v_cndmask_b32 v8, -1, 0, vcc", "v_cndmask_b32_e64 v8, -1, 0, vcc"))
    def wo_setup():
        e(f"""
s_cmp_ge_u32 s53, 9
s_cselect_b32 s57, 9, 0
s_sub_u32 s63, s53, s57            ; cb
v_lshrrev_b32 v2, 3, v1            ; rr
v_and_b32 v3, 7, v1
v_bfe_u32 v4, v1, 4, 2
v_lshlrev_b32 v4, 1, v4
v_xor_b32 v3, v3, v4
v_lshlrev_b32 v3, 4, v3
s_lshl_b32 s57, s63, 7
v_add_u32 v3, s57, v3
v_lshrrev_b32 v4, 2, v2
v_and_b32 v5, 3, v2
v_mad_u32_u24 v6, v4, 10, v5
s_and_b32 s57, s54, 1
s_mul_i32 s58, s57, 18
s_lshr_b32 s59, s54, 1
s_lshl_b32 s42, s59, 2
s_add_u32 s58, s58, s42
v_add_u32 v6, s58, v6
v_mul_u32_u24 v6, 1152, v6
v_add_u32 v20, v6, v3
v_mul_u32_u24 v4, 72, v4
v_bfe_u32 v5, v2, 1, 1
v_mad_u32_u24 v4, v5, 18, v4
v_and_b32 v5, 1, v2
v_add_u32 v4, v4, v5
s_mul_i32 s57, s57, 144
s_mul_i32 s59, s59, 36
s_add_u32 s57, s57, s59
s_add_u32 s57, s57, 8
v_add_u32 v4, s57, v4
v_mul_u32_u24 v4, 1152, v4
v_add_u32 v21, v4, v3
v_and_b32 v3, 7, v1
v_xor_b32 v3, v3, v2
v_mul_u32_u24 v4, 1152, v2
v_lshl_add_u32 v29, v3, 4, v4
s_cmp_ge_u32 s53, 9
s_cselect_b32 s57, 16, 0
s_lshl_b32 s49, s26, 5
s_add_u32 s49, s49, s57
s_add_u32 s49, s49, s54
s_mul_i32 s49, s49, {8*1152}
s_lshl_b32 s57, s63, 7
s_add_u32 s49, s49, s57
""")
    def wo_dma(tag, part=0):
        if part >= 0:
            srd(68, 8, 663552)
            e(f"s_lshl_b32 s42, s54, 10\n s_lshl_b32 s40, s63, 1\n s_and_b32 s40, s40, {15 if rot else 0}\n s_mul_i32 s40, s40, {36*1152}")
        e(f"""
L_wod{tag}:
s_mov_b32 m0, s42
s_add_u32 s42, s42, 4096
buffer_load_dwordx4 v20, s[68:71], s40 offen lds
s_add_u32 s40, s40, {36*1152}
s_cmp_eq_u32 s40, {16*36*1152}
s_cselect_b32 s40, 0, s40
s_cmp_lt_u32 s42, {(part if part > 0 else 16)*4096}
s_cbranch_scc1 L_wod{tag}
""")
        if part <= 0:
            e(f"""
s_mov_b32 m0, s42
s_add_u32 s42, s42, 4096
buffer_load_dwordx4 v21, s[68:71], 0 offen lds
s_mov_b32 m0, s42
s_mov_b32 s40, {288*1152}
buffer_load_dwordx4 v21, s[68:71], s40 offen lds
s_lshl_b32 s42, s54, 10
""")
            for i in range(4):
                e(f"s_add_u32 m0, s42, {L_XT + 4096*i}\n s_add_u32 s40, s49, {i*32*1152}\n buffer_load_dwordx4 v29, s[28:31], s40 offen lds")
    def sw_calc():
        srd(68, 12, 1152)
        e("v_lshlrev_b32 v2, 2, v1")
        for i in range(5): e(f"buffer_load_dword v{30+i}, v2, s[68:71], 0 offen offset:{256*i}")
        e("v_mov_b32 v3, 0\n s_mov_b32 s57, 0x3f803f80\n s_waitcnt vmcnt(0)")
        e(f"v_add_u32 v2, {L_WR}, v2")
        for i in range(5): e(f"ds_write_b32 v2, v{30+i} offset:{256*i}")
        for i in range(5): e(f"v_dot2c_f32_bf16 v3, s57, v{30+i}")
        rowsum(3); xsum(3, 4, 16); xsum(3, 4, 32)
        e(f"v_mov_b32 v4, {L_SW}\n ds_write_b32 v4, v3")
        e(f"""
s_getreg_b32 s57, hwreg(HW_REG_XCC_ID)
s_and_b32 s57, s57, 15
v_mov_b32 v36, s57
v_mov_b32 v37, 0
s_cmp_ge_u32 s53, 9
s_cselect_b32 s57, 128, 0
s_lshl_b32 s58, s26, 8
s_add_u32 s57, s57, s58
s_lshl_b32 s58, s63, 2
s_add_u32 s57, s57, s58
s_add_u32 s57, s57, {XID}
s_mov_b64 exec, 1
buffer_store_dword v36, v37, s[36:39], s57 offen sc1
s_mov_b64 exec, -1
""")
    def flags_wait(tag, issued, off, fv=27, av=28, nap=0):
        e(f"s_mov_b32 s59, 0")
        if issued: e(f"s_branch L_fl1{tag}")
        a.lab(f"L_fl0{tag}")
        if nap: e(f"s_sleep {nap}")
        e(f"""
buffer_load_dword v{fv}, v{av}, s[64:67], 0 offen offset:{off} sc1
L_fl1{tag}:
s_waitcnt vmcnt(0)
v_cmp_eq_u32 vcc, 0, v{fv}
s_cbranch_vccz L_fl2{tag}
s_add_u32 s59, s59, 1
s_cmp_lt_u32 s59, {SPIN}
s_cbranch_scc1 L_fl0{tag}
L_fl2{tag}:
""")
    def up_prefetch(first, n):
        srd(68, 16, 5308416)
        e(f"""
v_min_u32 v2, 62, v1
v_mul_u32_u24 v3, 57, v2
v_lshrrev_b32 v3, 9, v3
v_mul_u32_u24 v3, {9216-1152}, v3
v_lshl_add_u32 v2, v2, 7, v3
s_sub_u32 s56, s27, {25 if first == 0 else 28}
s_lshl_b32 s56, s56, 3
s_add_u32 s56, s56, s3
s_add_u32 s56, s56, {first}
s_mul_i32 s56, s56, {7*9216}
s_mul_i32 s57, s26, 1152
s_add_u32 s56, s56, s57
""")
        for i in range(n): e(f"buffer_load_dword v100, v2, s[68:71], s56 offen {upfl}\n s_add_u32 s56, s56, {(24 if first == 0 else 32)*7*9216}")
    def code_touch(sidx, v):
        lb = a.new("L_pc")
        e(f"""
s_getpc_b64 s[40:41]
{lb}:
s_sub_u32 s40, s40, {lb}-{NAME}
s_subb_u32 s41, s41, 0
s_lshl_b32 s57, s{sidx}, 13
v_lshl_add_u32 v{v}, v1, 7, s57
v_min_u32 v{v}, L_codeend-{NAME}-4, v{v}
global_load_dword v{v+1}, v{v}, s[40:41]
""")
    def arrive(tag, cnt_off, done_off, n):
        e(f"""
v_mov_b32 v20, 1
v_mov_b32 v21, 0
s_mov_b64 exec, 1
buffer_atomic_add v20, v21, s[64:67], 0 offen offset:{cnt_off} sc0
s_waitcnt vmcnt(0)
v_cmp_eq_u32 vcc, {n-1}, v20
s_cbranch_vccz L_ar{tag}
buffer_store_dword v20, v21, s[64:67], 0 offen offset:{done_off} sc1
L_ar{tag}:
s_mov_b64 exec, -1
""")
    e("s_waitcnt vmcnt(12)\n s_barrier")
    issue()
    wo_setup()
    e(f"""
v_lshrrev_b32 v2, 3, v13           ; head
v_bfe_u32 v3, v13, 2, 1            ; odd
v_and_b32 v4, 3, v13               ; r
v_mul_u32_u24 v5, 18, v2
v_mad_u32_u24 v5, v3, 10, v5
v_add_u32 v5, v5, v4
v_lshl_add_u32 v5, s54, 2, v5
s_mov_b64 s[70:71], -1
s_cmp_lg_u32 s54, 2
s_cbranch_scc1 L_kta
v_add_u32 v6, 36, v2
v_cmp_eq_u32 s[68:69], 2, v4
v_cndmask_b32_e64 v5, v5, v6, s[68:69]
v_lshl_add_u32 v6, v3, 2, v4
v_cmp_gt_u32 s[70:71], 2, v6
s_or_b64 s[70:71], s[70:71], s[68:69]
L_kta:
v_lshlrev_b32 v6, 2, v2
v_sub_u32 v6, v14, v6
v_mov_b32 v7, 190
s_mul_i32 s57, s54, 768
s_add_u32 s57, s57, {L_KTA}
v_lshl_add_u32 v8, v1, 2, s57
s_mov_b32 s57, {L_KT}
""")
    for t in range(3):
        e(f"v_add_u32 v9, {4*t}, v6\n v_cmp_gt_u32 s[68:69], 5, v9\n v_mad_u32_u24 v9, v5, 5, v9\n s_and_b64 s[68:69], s[68:69], s[70:71]\n v_cndmask_b32_e64 v9, v7, v9, s[68:69]\n v_lshl_add_u32 v9, v9, 3, s57\n ds_write_b32 v8, v9 offset:{256*t}")
    e("v_mov_b32 v28, 0")
    srd(36, 24, 0x10000000)
    srd(64, 22, 256)
    if lprio: e(f"s_setprio {lprio}")
    e("s_waitcnt vmcnt(12)\n s_barrier")
    issue()
    e(f"s_mul_i32 s58, s3, 4608\n s_add_u32 s58, s58, {L_STAGE}\n s_cmp_ge_u32 s53, 9\n s_cselect_b32 s59, 8, 0\n s_lshl_b32 s57, s26, 4\n s_add_u32 s59, s59, s57\n s_add_u32 s59, s59, s3\n v_lshlrev_b32 v{VST}, 4, v13\n v_lshrrev_b32 v{VOUT}, 3, v1")
    s3_addr1(); s3_addr2(58, 59, 68)
    a.lab("L_hloop1")
    e("s_waitcnt vmcnt(12)\n s_barrier")
    issue()
    e(f"s_cmp_lg_u32 s44, {7 if eflag else 8}\n s_cbranch_scc1 L_hloop1")
    e("buffer_load_dword v27, v28, s[64:67], 0 offen offset:128 sc1\n s_waitcnt vmcnt(13)\n s_barrier")
    if eflag: issue()
    else: stamp(4)
    e(f"s_waitcnt vmcnt({12 if eflag else 0})\n v_cmp_eq_u32 vcc, 0, v27\n s_cbranch_vccz L_fok")
    flags_wait("a", False, 128)
    a.lab("L_fok")
    def statloads():
        e("buffer_load_dword v30, v18, s[36:39], s60 offen sc1\n s_add_u32 s57, s60, 8192\n buffer_load_dword v31, v18, s[36:39], s57 offen sc1\n s_mov_b32 s57, s61")
        for i in range(8):
            e(f"buffer_load_dword v{32+i}, v19, s[36:39], s57 offen sc1")
            if i < 7: e("s_add_u32 s57, s57, 3840")
    statloads()
    e("buffer_load_dword v27, v28, s[64:67], 0 offen offset:132 sc1")
    if eflag:
        e("s_waitcnt vmcnt(23)\n s_barrier")
        stamp(4)
        wo_dma("a", 8)
        e("s_waitcnt vmcnt(19)\n s_barrier")
        stamp(6)
    else:
        e("s_barrier")
        stamp(6)
        wo_dma("a", 8)
    e("s_mov_b32 s59, 0\n s_waitcnt vmcnt(8)\n s_branch L_st1")
    a.lab("L_st0")
    statloads()
    e(f"""
s_waitcnt vmcnt(0)
L_st1:
v_max3_u32 v2, v30, v31, v32
v_max3_u32 v2, v2, v33, v34
v_max3_u32 v2, v2, v35, v36
v_max3_u32 v2, v2, v37, v38
v_max_u32 v2, v2, v39
v_cmp_eq_u32 vcc, -1, v2
s_cbranch_vccz L_st2
s_add_u32 s59, s59, 1
s_cmp_lt_u32 s59, {SPIN}
s_cbranch_scc1 L_st0
L_st2:
{"s_memrealtime s[98:99]" if stamps else ""}
v_add_u32 v18, {L_RS}, v18
v_pk_add_f32 v[32:33], v[32:33], v[36:37]
v_pk_add_f32 v[34:35], v[34:35], v[38:39]
v_pk_add_f32 v[32:33], v[32:33], v[34:35]
v_add_f32 v32, v32, v33
ds_write_b32 v18, v30
ds_write_b32 v18, v31 offset:1024
ds_write_b32 v18, v32 offset:2048
""")
    e("s_waitcnt lgkmcnt(0)\n s_barrier")
    stamp(1)
    wo_dma("b", -8)
    flags_wait("r", True, 132)
    e("s_mov_b32 s32, s52\n s_mov_b32 s34, s62\n s_cmp_lg_u32 s54, 3\n s_cbranch_scc1 L_hpub")
    sw_calc()
    a.lab("L_hpub")
    s3_scal(False)
    e("s_cmp_lg_u32 s54, 3\n s_cbranch_scc1 L_hpub2\n s_waitcnt lgkmcnt(0)\n s_barrier")
    s3_reads(); s3_unpack()
    e("s_barrier\n s_mov_b32 s33, 1\n s_branch L_s3a")
    a.lab("L_hpub2")
    if hprio: e("s_setprio 2")
    e("s_mov_b32 s59, 0\n s_barrier")
    for i in range(4): e(f"ds_read_b128 v[{32+4*i}:{35+4*i}], v22 offset:{8192*i}")
    e("s_waitcnt lgkmcnt(0)")
    e("v_pk_add_f32 v[32:33], v[32:33], v[36:37]\n v_pk_add_f32 v[34:35], v[34:35], v[38:39]\n v_pk_add_f32 v[40:41], v[40:41], v[44:45]\n v_pk_add_f32 v[42:43], v[42:43], v[46:47]")
    e("v_pk_add_f32 v[32:33], v[32:33], v[40:41]\n v_pk_add_f32 v[34:35], v[34:35], v[42:43]")
    e("buffer_store_dwordx4 v[32:35], v25, s[36:39], s32 offen sc1")
    stamp(2)
    if hread:
        e("s_setprio 0"); s3_reads(); e("s_setprio 2")
    e("s_waitcnt vmcnt(0)")
    a.lab("L_hA")
    e("s_mov_b32 s57, s34")
    for i in range(8):
        e(f"buffer_load_dwordx4 v[{64+4*i}:{67+4*i}], v25, s[36:39], s57 offen sc1")
        if i < 7: e("s_add_u32 s57, s57, 3072")
    for i in range(1, 8):
        e(f"s_waitcnt vmcnt({7-i})")
        for h in range(2):
            src = 64 if i == 1 else 32
            e(f"v_pk_add_f32 v[{32+2*h}:{33+2*h}], v[{src+2*h}:{src+1+2*h}], v[{64+4*i+2*h}:{65+4*i+2*h}]")
    e("v_pk_add_f32 v[36:37], v[32:33], v[34:35]\n v_cmp_u_f32 vcc, v36, v37\n s_cbranch_vccnz L_hA1\nL_hA2:")
    e("""
v_pk_mul_f32 v[32:33], v[32:33], v[12:13] op_sel_hi:[1,0]
v_pk_mul_f32 v[34:35], v[34:35], v[12:13] op_sel_hi:[1,0]
v_cvt_pk_bf16_f32 v32, v32, v33
v_cvt_pk_bf16_f32 v33, v34, v35
v_and_b32 v32, v32, v23
v_and_b32 v33, v33, v24
ds_write_b64 v26, v[32:33]
s_waitcnt lgkmcnt(0)
s_barrier
""")
    stamp(3)
    if hprio: e("s_setprio 0")
    e(f"s_branch {'L_s3un' if hread else 'L_s3rd'}")
    a.lab("L_hA1")
    e("v_max3_u32 v2, v64, v65, v66")
    for i in range(67, 95, 2): e(f"v_max3_u32 v2, v2, v{i}, v{i+1}")
    e(f"v_max_u32 v2, v2, v95\n v_cmp_eq_u32 vcc, -1, v2\n s_cbranch_vccz L_hA2\n s_add_u32 s59, s59, 1\n s_cmp_lt_u32 s59, {SPIN}\n s_cbranch_scc1 L_hA\n s_branch L_hA2")

    a.lab("L_compute")
    e(f"""
v_lshrrev_b32 v15, 1, v13
v_xor_b32 v15, v15, v14
v_lshlrev_b32 v15, 4, v15
v_lshl_add_u32 v4, v13, 7, v15
s_lshl_b32 s55, s54, 13
v_add_u32 v4, s55, v4
v_xor_b32 v5, 64, v4
v_lshrrev_b32 v2, 2, v13
v_lshl_add_u32 v2, v14, 2, v2
v_and_b32 v3, 3, v13
v_and_b32 v15, 7, v2
v_lshlrev_b32 v15, 5, v15
v_lshlrev_b32 v2, 8, v2
v_add_u32 v2, {XS}, v2
v_add_u32 v16, 3, v3
v_and_b32 v16, 4, v16
v_lshlrev_b32 v16, 1, v16
v_and_b32 v17, 2, v3
v_lshlrev_b32 v17, 2, v17
v_lshlrev_b32 v3, 3, v3
v_add_u32 v3, s52, v3
s_lshl_b32 s56, s47, 1
s_sub_u32 s57, 2, s56
s_lshl_b32 s58, s47, 4
s_sub_u32 s58, 8, s58
""")
    if qswap: e("v_mul_u32_u24 v16, s57, v16\n v_mul_u32_u24 v17, s56, v17\n v_add_u32 v17, s58, v17")
    for T in range(7):
        secs = [min((4*T+c)//9, 2) for c in range(4)]
        e(f"v_add_u32 v{6+T}, {32*T + 8*secs[0]}, v3")
        if T == 2: e(f"v_add_u32 v{6+T}, v{6+T}, v16")
        if T == 4: e(f"v_add_u32 v{6+T}, v{6+T}, v17")
        if T == 3 and qswap: e(f"v_add_u32 v{6+T}, s58, v{6+T}")
        e(f"v_xor_b32 v{6+T}, v{6+T}, v15\n v_add_u32 v{6+T}, v{6+T}, v2")
    e(f"""
s_lshl_b32 s55, s54, 8
s_add_u32 s55, s55, {L_RS}
v_lshl_add_u32 v249, v14, 4, s55
v_lshlrev_b32 v250, 2, v13
v_add_u32 v250, {L_CS}, v250
v_cmp_le_u32 s[40:41], 12, v13
v_cndmask_b32_e64 v251, 0, -1, s[40:41]
s_mul_i32 s55, s54, 7680
s_add_u32 s55, s55, {L_PQ}
v_mul_u32_u24 v252, 40, v13
v_lshl_add_u32 v252, v14, 3, v252
v_add_u32 v252, s55, v252
v_lshrrev_b32 v254, 2, v13
v_add_u32 v254, v254, v13
v_lshl_add_u32 v254, v254, 3, s55
v_mul_u32_u24 v253, 160, v14
v_add_u32 v253, v253, v254
s_lshl_b32 s55, s54, 13
s_add_u32 s55, s55, {L_KVRED}
v_lshl_add_u32 v255, v1, 4, s55
""")
    ACC = 16; F = [128, 172]
    for i in range(4): e(f"v_mov_b32 v{F[1]+i}, 0")
    for i in range(28): e(f"v_mfma_f32_16x16x32_bf16 v[{ACC+4*i}:{ACC+4*i+3}], v[{F[1]}:{F[1]+3}], v[{F[1]}:{F[1]+3}], 0")
    def reads(fs, kk):
        r = [f"ds_read_b128 v[{F[fs]+4*j}:{F[fs]+4*j+3}], v{4+kk} offset:{j*2048}" for j in range(4)]
        for T in range(7):
            for hf in range(2):
                d = F[fs]+16+4*T+2*hf
                r.append(f"ds_read_b64_tr_b16 v[{d}:{d+1}], v{6+T} offset:{(kk*32+hf*16)*256}")
        return r
    def acc(j, T): return ACC + (j*7+T)*4
    def mfmas(fs):
        m = []
        for T in range(7):
            for j in range(4):
                c = acc(j, T); b = F[fs]+16+4*T
                m.append(f"v_mfma_f32_16x16x32_bf16 v[{c}:{c+3}], v[{F[fs]+4*j}:{F[fs]+4*j+3}], v[{b}:{b+3}], v[{c}:{c+3}]")
        return m
    def weave(m, r, extra):
        out = []
        for i, x in enumerate(m):
            out.append(x)
            if i < len(r): out.append(r[i])
            if i in extra: out.extend(extra[i])
        return out
    e(f"s_mov_b32 s55, 0\n s_mov_b32 s56, 0\n s_mov_b32 s58, {STG}\n s_waitcnt lgkmcnt(0)")
    srd(36, 24, 0x10000000)
    srd(28, 4, 2359296)
    stamp(14)
    e("s_barrier")
    stamp(1)
    for r in reads(0, 0): e(r)
    e("s_waitcnt lgkmcnt(0)\n s_branch L_cloop\n .p2align 3")
    a.lab("L_cloop2")
    for x in weave(mfmas(1), reads(0, 0), {}): e(x)
    e("s_waitcnt lgkmcnt(0)")
    a.lab("L_cloop")
    ex = {0: ["s_add_u32 s56, s56, 1", f"s_cmp_eq_u32 s56, {NBUF}"], 1: [f"s_cselect_b32 s57, {(-(NBUF-1)*STG) & 0xffffffff}, s58", "s_cselect_b32 s56, 0, s56"],
          2: ["v_add_u32 v4, s57, v4"], 4: ["v_add_u32 v5, s57, v5"], 22: ["s_add_u32 s55, s55, 1", "s_cmp_lt_u32 s55, 9"]}
    for T in range(7): ex.setdefault(6+2*T, []).append(f"v_add_u32 v{6+T}, s57, v{6+T}")
    for x in weave(mfmas(0), reads(1, 1), ex): e(x)
    e("s_waitcnt lgkmcnt(0)\n s_barrier\n s_cbranch_scc1 L_cloop2")
    RS, MRS = 128, 144
    CSR = [160, 162, 164, 166, 168, 170, 10]
    K = 4
    import math
    C1L = LOG2E*1.000001; E2M = LOG2E*math.exp(-1.000001); E2A = LOG2E*1e-6
    tr = [f"ds_read_b32 v{CSR[T]}, v250 offset:{64*T}" for T in range(7)]
    for j in range(4): tr += [f"ds_read_b128 v[{RS+4*j}:{RS+4*j+3}], v249 offset:{64*j}", f"ds_read_b128 v[{MRS+4*j}:{MRS+4*j+3}], v249 offset:{1024+64*j}"]
    tr += [f"v_mov_b32 v{K}, {f2u(C1L):#x}", f"v_mov_b32 v{K+2}, {f2u(E2M):#x}", f"v_mov_b32 v{K+4}, {f2u(E2A):#x}", "v_mov_b32 v2, 0x3f803f80"]
    for x in weave(mfmas(1), tr, {}): e(x)
    e("s_waitcnt lgkmcnt(0)")
    stamp(2)
    TMP = 204
    def phi(j, T, dst):
        c = acc(j, T); p = f"v[{CSR[T]}:{CSR[T]+1}]"; u = TMP; t = TMP+4
        for h in range(2): e(f"v_pk_fma_f32 v[{u+2*h}:{u+2*h+1}], v[{MRS+4*j+2*h}:{MRS+4*j+2*h+1}], {p}, v[{K}:{K+1}] op_sel_hi:[1,0,0]")
        for h in range(2): e(f"v_pk_fma_f32 v[{u+2*h}:{u+2*h+1}], v[{c+2*h}:{c+2*h+1}], v[{RS+4*j+2*h}:{RS+4*j+2*h+1}], v[{u+2*h}:{u+2*h+1}]")
        for q in range(4): e(f"v_exp_f32 v{t+q}, v{u+q}")
        for h in range(2): e(f"v_pk_fma_f32 v[{t+2*h}:{t+2*h+1}], v[{t+2*h}:{t+2*h+1}], v[{K+2}:{K+3}], v[{K+4}:{K+5}] op_sel_hi:[1,0,0]")
        for q in range(4): e(f"v_med3_f32 v{t+q}, v{u+q}, v{t+q}, v{K}")
        for h in range(2): e(f"v_cvt_pk_bf16_f32 v{dst+h}, v{t+2*h}, v{t+2*h+1}")
    def lin(j, T, dst):
        c = acc(j, T); p = f"v[{CSR[T]}:{CSR[T]+1}]"
        for h in range(2): e(f"v_pk_mul_f32 v[{TMP+8+2*h}:{TMP+9+2*h}], v[{MRS+4*j+2*h}:{MRS+4*j+2*h+1}], {p} op_sel_hi:[1,0]")
        for h in range(2): e(f"v_pk_fma_f32 v[{TMP+8+2*h}:{TMP+9+2*h}], v[{c+2*h}:{c+2*h+1}], v[{RS+4*j+2*h}:{RS+4*j+2*h+1}], v[{TMP+8+2*h}:{TMP+9+2*h}]")
        for h in range(2): e(f"v_cvt_pk_bf16_f32 v{dst+h}, v{TMP+8+2*h}, v{TMP+9+2*h}")
    PK = 216; KVA = 172
    pairs = [(0,0),(0,1),(0,2),(1,0),(1,1),(1,2),(2,1),(2,2)]
    def capture(fn):
        n0 = len(a.L); fn(); r = a.L[n0:]; del a.L[n0:]; return [x.strip() for x in r]
    Bop = lambda tb, jp: PK + 8*tb + 4*jp
    Aop = lambda ta, jp: acc(ta, 5) + 4*jp
    for T in range(3):
        for j in range(4): lin(j, 4+T, Bop(T, j >> 1) + 2*(j & 1))
    for r in range(8): e(f"v_bfi_b32 v{Bop(2, 0)+r}, v251, v2, v{Bop(2, 0)+r}")
    def kvwork(ta):
        m = []; w = []
        for jp in range(2):
            for n, (x, tb) in enumerate(pairs):
                if x != ta: continue
                c = KVA + 4*n
                m.append(f"v_mfma_f32_16x16x32_bf16 v[{c}:{c+3}], v[{Aop(ta, jp)}:{Aop(ta, jp)+3}], v[{Bop(tb, jp)}:{Bop(tb, jp)+3}], " + ("0" if jp == 0 else f"v[{c}:{c+3}]"))
                if jp: w.append(f"ds_write_b128 v255, v[{c}:{c+3}] offset:{n*1024}")
        return m, w
    side = []
    for T in range(3):
        v = capture(lambda: [phi(j, T, Aop(T, j >> 1) + 2*(j & 1)) for j in range(4)])
        k = 0
        for i, x in enumerate(v):
            e(x)
            if i % 6 == 5 and k < len(side): e(side[k]); k += 1
        for x in side[k:]: e(x)
        m, w = kvwork(T); side = m + w
    for x in side: e(x)
    e("s_waitcnt lgkmcnt(0)")
    stamp(13)
    e("s_barrier")
    stamp(3)
    for j in range(4): e(f"ds_write_b64 v252, v[{Aop(2, j >> 1) + 2*(j & 1)}:{Aop(2, j >> 1) + 2*(j & 1) + 1}] offset:{j*1920}")
    for j in range(4):
        for T in (3, 4):
            d = PK + (j*2 + T-3)*2
            phi(j, T, d)
            e(f"ds_write_b64 v252, v[{d}:{d+1}] offset:{j*1920 + (T-2)*640}")
    PQ = 16
    e("s_waitcnt lgkmcnt(0)")
    for j in range(4):
        for t in range(2): e(f"ds_read_b64_tr_b16 v[{PQ+6*j+2*t}:{PQ+6*j+2*t+1}], v253 offset:{j*1920 + (4+16*t)*40}")
        e(f"ds_read_b64_tr_b16 v[{PQ+6*j+4}:{PQ+6*j+5}], v254 offset:{j*1920 + 36*40}")
    KA = 44
    e(f"v_lshlrev_b32 v2, 2, v1\n v_add_u32 v2, {L_KTA}, v2")
    if lf:
        for i in range(9): e(f"ds_read_b32 v{240+i}, v2 offset:{256*i}")
    e(f"v_mov_b32 v{PQ+24}, 0\n v_mov_b32 v{PQ+25}, 0")
    for tau in range(3): e(f"v_mov_b32 v{KA+8*tau+6}, 0\n v_mov_b32 v{KA+8*tau+7}, 0")
    e(f"""
v_lshlrev_b32 v6, 4, v1
v_lshlrev_b32 v7, 4, v13
v_lshl_add_u32 v7, v14, 1, v7
s_xor_b32 s57, s48, {qswap}
s_lshr_b32 s58, s57, 1
s_lshl_b32 s58, s58, 8
s_and_b32 s59, s57, 1
s_lshl_b32 s59, s59, 3
s_add_u32 s58, s58, s59
s_add_u32 s58, s58, 16384
v_add_u32 v7, s58, v7
s_lshl_b32 s57, s57, 10
v_add_u32 v6, s57, v6
v_and_b32 v8, 1, v14
v_lshl_or_b32 v7, v8, 31, v7
v_mov_b32 v9, {f2u(1/LOG2E):#x}
v_mov_b32 v10, {f2u(1e-6):#x}
v_mov_b32 v8, v2
s_lshl_b32 s55, s50, 4
s_lshl_b32 s56, s54, 2
s_add_u32 s55, s55, s56
s_mul_i32 s55, s55, 18432
s_add_u32 s55, s55, {OB}
s_waitcnt lgkmcnt(0)
""")
    s3_scal()
    if not lf:
        s3_addr1(); s3_reads(); s3_addr2(); s3_unpack(); e("s_waitcnt lgkmcnt(0)")
        for i in range(9): e(f"ds_read_b32 v{240+i}, v8 offset:{256*i}")
        e("s_waitcnt lgkmcnt(0)")
    stamp(4)
    e("s_barrier")
    stamp(5)
    for tau in (2, 0, 1):
        for t in range(3): e(f"ds_read_b64 v[{KA+8*tau+2*t}:{KA+8*tau+2*t+1}], v{240+tau*3+t}")
    D = 68
    def s2m(j, tau, half):
        c = D + 12*j + 4*tau
        return f"v_mfma_f32_16x16x32_bf16 v[{c}:{c+3}], v[{KA+8*tau+4*half}:{KA+8*tau+4*half+3}], v[{PQ+6*j+4*half}:{PQ+6*j+4*half+3}], " + ("0" if half == 0 else f"v[{c}:{c+3}]")
    e("s_waitcnt lgkmcnt(6)")
    for half in range(2):
        for j in range(4): e(s2m(j, 2, half))
    e("s_waitcnt lgkmcnt(0)")
    mm = [s2m(j, tau, half) for j in range(4) for half in range(2) for tau in range(2)]
    dv = []
    for op in range(6):
        for j in range(4):
            r = D + 12*j + 10
            dv.append([f"v_mul_f32 v{r}, v9, v{r}", f"v_cvt_pk_bf16_f32 v{r}, v{r}, v{r}", f"v_and_b32 v{r}, 0xffff0000, v{r}", f"v_add_f32 v{r}, v10, v{r}", f"v_rcp_f32 v{r}, v{r}", f"v_mul_f32 v{r}, v9, v{r}"][op])
    for x in interleave(mm, dv, 2, 3): e(x)
    for j in range(4):
        c = D + 12*j; o = c
        for h in range(5): e(f"v_pk_mul_f32 v[{c+2*h}:{c+2*h+1}], v[{c+2*h}:{c+2*h+1}], v[{c+10}:{c+11}] op_sel_hi:[1,0]")
        for h in range(5): e(f"v_cvt_pk_bf16_f32 v{o+h}, v{c+2*h}, v{c+2*h+1}")
        e(f"buffer_store_dwordx4 v[{o}:{o+3}], v6, s[36:39], s55 offen sc1\n buffer_store_dword v{o+4}, v7, s[36:39], s55 offen sc1")
        if j < 3: e(f"s_add_u32 s55, s55, {16*1152}")
    stamp(6)

    e(f"s_mov_b32 s33, {0 if lf else 1}\n s_branch L_s3a")
    a.lab("L_s3pre")
    s3_scal(); s3_addr1(); s3_addr2()
    a.lab("L_s3rd")
    s3_reads()
    a.lab("L_s3un")
    e("s_mov_b32 s33, 1")
    s3_unpack()
    a.lab("L_s3a")
    e("v_lshlrev_b32 v6, 4, v1\n s_mov_b32 s35, 0")
    e(f"""
{"" if hintall else "s_cmp_lt_u32 s27, 16"}
{"" if hintall else "s_cbranch_scc1 L_oload"}
s_cmp_lg_u32 s3, 7
s_cbranch_scc1 L_oload
v_mov_b32 v2, 0
s_mov_b32 s59, 0
s_add_u32 s57, s62, 1024
L_ohint:
s_sleep {hsleep}
buffer_load_dword v3, v2, s[36:39], s57 offen offset:1020 sc1
s_waitcnt vmcnt(0)
v_cmp_eq_u32 vcc, -1, v3
s_cbranch_vccz L_oload
s_add_u32 s59, s59, 1
s_cmp_lt_u32 s59, {SPIN}
s_cbranch_scc1 L_ohint
L_oload:
{"s_sleep %d" % osleep if osleep else ""}
s_waitcnt {"vmcnt(0) " if owait else ""}lgkmcnt(0)
s_barrier
""")
    stamp(7)
    if s3prio: e(f"s_cmp_lt_u32 s3, 4\n s_cbranch_scc1 L_s3p\n s_setprio {s3prio}\nL_s3p:")
    groups = [[2*i, 2*i+1] for i in range(9)]
    def oreg(k): return OF + 4*(k % (2*ahead+2))
    def oloads(g):
        r = []
        for k in g:
            o = oreg(k)
            if k % 2 == 0: r.append(f"s_add_u32 s57, s62, {k*1024}")
            r.append(f"buffer_load_dwordx4 v[{o}:{o+3}], v6, s[36:39], s57 offen offset:{1024*(k%2)} {x_fl}")
        return r
    def ocheck(g):
        o = oreg(g[0])
        if lchk and g[0] < 16:
            e(f"v_max_u32 v2, v{o+3}, v{o+7}\n v_cmp_eq_u32 vcc, -1, v2"); return
        e(f"v_max3_u32 v2, v{o}, v{o+1}, v{o+2}\n v_max3_u32 v3, v{o+3}, v{o+4}, v{o+5}\n v_max3_u32 v2, v2, v{o+6}, v{o+7}\n v_max_u32 v2, v2, v3\n v_cmp_eq_u32 vcc, -1, v2")
    cnt = lambda i: 0 if i > 8 else 2
    e(f"""
s_lshr_b32 s57, s60, 3
s_lshl_b32 s57, s57, 7
s_add_u32 s57, s57, {XID}
v_min_u32 v8, 8, v1
v_lshlrev_b32 v8, 2, v8
buffer_load_dword v15, v8, s[36:39], s57 offen sc1
s_getreg_b32 s53, hwreg(HW_REG_XCC_ID)
s_and_b32 s53, s53, 15
""")
    a.lab("L_redo")
    for g in groups[:ahead]:
        for x in oloads(g): e(x)
    e("s_cmp_eq_u32 s33, 0\n s_cbranch_scc0 L_s3b")
    s3_addr1(); s3_reads(); s3_addr2(); s3_unpack()
    e("s_waitcnt lgkmcnt(0)")
    a.lab("L_s3b")
    e("s_mov_b32 s59, 0")
    for gi, g in enumerate(groups):
        e(f"s_waitcnt vmcnt({sum(cnt(gi+d) for d in range(1, ahead))})")
        if gi + ahead < 9 and not x_nold:
            for x in oloads(groups[gi+ahead]): e(x)
        if gi == 9 - ahead:
            e(f"""
v_cmp_ne_u32 s[54:55], s53, v15
s_cmp_eq_u64 s[54:55], 0
s_cselect_b32 s53, {fast}, 0
s_cmp_eq_u32 s53, 0
s_cbranch_scc1 L_npt
v_min_u32 v8, 17, v1
v_lshlrev_b32 v8, 7, v8
buffer_load_dword v15, v8, s[36:39], s51 offen
L_npt:
""")
        if not x_nochk:
            ocheck(g)
            e(f"s_cbranch_vccnz L_oretry{gi}")
        a.lab(f"L_ook{gi}")
        for k in g:
            if k >= NPRE and (NPRE < 9 or k == NPRE): e(f"s_waitcnt lgkmcnt({min(8*(min(k+NPRE-1, 17) - k), 15) if NPRE < 9 else 0})")
            m = []
            for T in range(4):
                b = BR + (k % NPRE)*16 + 4*T
                m.append(f"v_mfma_f32_16x16x32_bf16 v[{AC+4*T}:{AC+4*T+3}], v[{b}:{b+3}], v[{oreg(k)}:{oreg(k)+3}], v[{AC+4*T}:{AC+4*T+3}]")
            if k+NPRE == 16:
                for T in range(4): e(f"v_add_u32 v{BA+T}, 0x10000, v{BA+T}")
            r = bread(k+NPRE) if k+NPRE < 18 and not x_nord else []
            for T in range(4):
                if not x_nomf: e(m[T])
                for x in r[2*T:2*T+2]: e(x)
    stamp(8)
    if lchk: e(f"v_cmp_u_f32 vcc, v{AC}, v{AC}\n s_cbranch_vccnz L_nan\nL_nanok:")
    HP = 64; HF = 72
    for i in range(8): e(f"v_cvt_pk_bf16_f32 v{HP+i}, v{AC+2*i}, v{AC+2*i+1}")
    e(f"""
v_mfma_f32_16x16x32_bf16 v[20:23], v[{HP}:{HP+3}], v[{HP}:{HP+3}], 0
v_mfma_f32_16x16x32_bf16 v[16:19], v[{WR}:{WR+3}], v[{HP}:{HP+3}], 0
v_mfma_f32_16x16x32_bf16 v[20:23], v[{HP+4}:{HP+7}], v[{HP+4}:{HP+7}], v[20:23]
v_mfma_f32_16x16x32_bf16 v[16:19], v[{WR+4}:{WR+7}], v[{HP+4}:{HP+7}], v[16:19]
v_cndmask_b32_e64 v20, v20, v21, s[46:47]
v_cndmask_b32_e64 v22, v22, v23, s[42:43]
v_cndmask_b32_e64 v17, v20, v22, s[48:49]
s_mov_b64 exec, s[44:45]
s_cmp_eq_u32 s53, 0
s_cbranch_scc1 L_ss
buffer_store_dwordx3 v[16:18], v{VST}, s[36:39], s52 offen
L_sb:
s_mov_b64 exec, -1
""")
    stamp(9)
    for i in range(8): e(f"v_lshlrev_b32 v{HF+2*i}, 16, v{HP+i}\n v_and_b32 v{HF+2*i+1}, 0xffff0000, v{HP+i}")
    for T in range(4): e(f"ds_write_b64 v{VSW}, v[{HP+2*T}:{HP+2*T+1}] offset:{2304+32*T}")
    e(f"""
s_mov_b32 s59, 0
{"s_waitcnt vmcnt(0)" if cwait else ""}
L_c1:
buffer_load_dwordx3 v[20:22], v6, s[36:39], s51 offen sc1
buffer_load_dwordx3 v[24:26], v6, s[36:39], s51 offen offset:1024 sc1
buffer_load_dwordx3 v[28:30], v{VST}, s[36:39], s51 offen offset:2048 sc1
s_waitcnt vmcnt(0)
v_max3_u32 v2, v20, v21, v22
v_max3_u32 v3, v24, v25, v26
v_max3_u32 v4, v28, v29, v30
v_max3_u32 v2, v2, v3, v4
v_cmp_eq_u32 vcc, -1, v2
s_cbranch_vccz L_c1ok
s_add_u32 s59, s59, 1
s_cmp_lt_u32 s59, {SPIN}
s_cbranch_scc1 L_c1
L_c1ok:
""")
    stamp(10)
    for q in range(3): e(f"v_add_f32 v{16+q}, v{20+q}, v{24+q}\n v_add_f32 v{20+q}, v{20+q}, v{24+q}")
    for q in range(3): e(f"v_permlane16_swap_b32 v{16+q}, v{20+q}")
    for q in range(3): e(f"v_add_f32 v{24+q}, v{16+q}, v{20+q}\n v_add_f32 v{16+q}, v{16+q}, v{20+q}")
    for q in range(3): e(f"v_permlane32_swap_b32 v{16+q}, v{24+q}")
    for q in range(3): e(f"v_add_f32 v{16+q}, v{16+q}, v{24+q}")
    for q in range(3): e(f"v_add_f32 v{16+q}, v{16+q}, v{28+q}")
    inv = f2u(1.0/576)
    e(f"""
v_mul_f32 v16, {inv:#x}, v16        ; mean
v_mul_f32 v17, {inv:#x}, v17
v_fma_f32 v17, -v16, v16, v17       ; var
v_max_f32 v17, 0, v17
v_cvt_pk_bf16_f32 v20, v16, v17
v_lshlrev_b32 v16, 16, v20
v_and_b32 v17, 0xffff0000, v20
v_add_f32 v17, {f2u(1e-5):#x}, v17
v_cvt_pk_bf16_f32 v17, v17, v17
v_and_b32 v17, 0xffff0000, v17
v_sqrt_f32 v17, v17
v_fma_f32 v18, -v16, v{VSUM}, v18
v_cvt_pk_bf16_f32 v17, v17, v17
v_and_b32 v17, 0xffff0000, v17
v_rcp_f32 v56, v17
v_mul_f32 v18, v18, v56
v_cvt_pk_bf16_f32 v18, v18, v18
v_ashrrev_i32 v20, 31, v18
v_or_b32 v20, 0x80000000, v20
v_xor_b32 v18, v18, v20
s_mov_b32 s57, 0xffff0000
v_and_or_b32 v18, v18, s57, v{VTOK}    ; key
""")
    NP = 32; NF = 40
    def hncalc():
        for i in range(8): e(f"v_pk_add_f32 v[{NF+2*i}:{NF+2*i+1}], v[{HF+2*i}:{HF+2*i+1}], v[16:17] op_sel_hi:[1,0] neg_lo:[0,1] neg_hi:[0,1]")
        for i in range(8): e(f"v_cvt_pk_bf16_f32 v{NP+i}, v{NF+2*i}, v{NF+2*i+1}")
        for i in range(8): e(f"v_lshlrev_b32 v{NF+2*i}, 16, v{NP+i}\n v_and_b32 v{NF+2*i+1}, 0xffff0000, v{NP+i}")
        for i in range(8): e(f"v_pk_mul_f32 v[{NF+2*i}:{NF+2*i+1}], v[{NF+2*i}:{NF+2*i+1}], v[56:57] op_sel_hi:[1,0]")
        for i in range(8): e(f"v_cvt_pk_bf16_f32 v{NP+i}, v{NF+2*i}, v{NF+2*i+1}")
        for T in range(4): e(f"ds_write_b64 v{VSW}, v[{NP+2*T}:{NP+2*T+1}] offset:{32*T}")
    rowmax(20, 18)
    e("v_cmp_eq_u32 s[40:41], v18, v20\n v_cndmask_b32_e64 v22, v18, 0, s[40:41]")
    rowmax(21, 22)
    if hnearly: hncalc()
    e(f"ds_write_b64 v{VKW}, v[20:21]\n s_lshr_b32 s58, s60, 3\n s_lshl_b32 s57, s58, 7\n s_add_u32 s57, s57, {KEY}\n s_lshl_b32 s56, s63, 11\n s_add_u32 s57, s57, s56\n {'s_mov_b32 s56, s3' if krep else 's_or_b32 s56, s63, s3'}\n v_mov_b32 v23, 0\n s_waitcnt lgkmcnt(0)\n s_barrier\n ds_read_b32 v18, v{VKR}\n s_waitcnt lgkmcnt(0)")
    rowmax(20, 18)
    e("v_cmp_eq_u32 s[40:41], v18, v20\n v_cndmask_b32_e64 v22, v18, 0, s[40:41]")
    rowmax(21, 22)
    e(f"""
s_cmp_lg_u32 s56, 0
s_cbranch_scc1 L_nokey
s_mov_b64 exec, 1
buffer_store_dwordx2 v[20:21], v23, s[36:39], s57 offen sc1
s_mov_b64 exec, -1
L_nokey:
""")
    stamp(11)
    e(f"""
s_mov_b64 s[40:41], 0xff
v_cndmask_b32_e64 v20, v21, v20, s[40:41]
v_not_b32 v20, v20
v_bfe_u32 v22, v20, 4, 3
v_cmp_eq_u32 s[46:47], s3, v22
s_and_b64 s[46:47], s[46:47], 0xffff
s_cbranch_scc0 L_noown
s_setprio {3 if oprio else 0}
L_noown:
""")
    if not hnearly: hncalc()
    e(f"""
v_and_b32 v20, 15, v20
v_mul_u32_u24 v20, 144, v20
v_lshl_add_u32 v20, v{VC7}, 4, v20
v_add_u32 v20, s50, v20
v_bfe_u32 v21, v1, 3, 1
v_mul_u32_u24 v21, 2304, v21
v_lshl_add_u32 v21, v{VC7}, 4, v21
s_mul_i32 s62, s58, 4608
s_lshl_b32 s57, s63, 7
s_add_u32 s62, s62, s57
s_add_u32 s62, s62, {CAND}
s_cmp_eq_u64 s[46:47], 0
s_cbranch_scc1 L_nocand
s_waitcnt lgkmcnt(0)
ds_read_b128 v[24:27], v20
ds_read_b128 v[28:31], v20 offset:2304
s_waitcnt lgkmcnt(0)
""")
    e("s_mov_b64 exec, s[46:47]\n buffer_store_dwordx4 v[24:27], v21, s[36:39], s62 offen sc1\n s_mov_b64 exec, -1\nL_nocand:")
    for i in range(8): e(f"v_lshlrev_b32 v{NF+2*i}, 16, v{NP+i}\n v_and_b32 v{NF+2*i+1}, 0xffff0000, v{NP+i}")
    for i in range(8): e(f"v_pk_add_f32 v[{NF+2*i}:{NF+2*i+1}], v[{NF+2*i}:{NF+2*i+1}], v[{HF+2*i}:{HF+2*i+1}]")
    if hscale:
        for i in range(16): e(f"v_mul_f32 v{NF+i}, {f2u(hscale):#x}, v{NF+i}")
    for i in range(8): e(f"v_cvt_pk_bf16_f32 v{NP+i}, v{NF+2*i}, v{NF+2*i+1}")
    for T in range(4): e(f"ds_write_b64 v{VSW}, v[{NP+2*T}:{NP+2*T+1}] offset:{32*T}")
    srd(68, 20, 2359296)
    e(f"""
s_waitcnt lgkmcnt(0)
ds_read_b128 v[40:43], v{VSR}
ds_read_b128 v[44:47], v{VSR} offset:1152
s_add_u32 s57, s61, {8*1152}
s_waitcnt {"vmcnt(0) " if outwait else ""}lgkmcnt(0)
s_barrier
s_cmp_eq_u64 s[46:47], 0
s_cbranch_scc0 L_own
{"s_sleep %d" % outsleep if outsleep else ""}
buffer_store_dwordx4 v[40:43], v{VOUT}, s[68:71], s61 offen {outfl}
buffer_store_dwordx4 v[44:47], v{VOUT}, s[68:71], s57 offen {outfl}
s_branch L_s3end
L_own:
buffer_store_dwordx4 v[40:43], v{VOUT}, s[68:71], s61 offen sc1
buffer_store_dwordx4 v[44:47], v{VOUT}, s[68:71], s57 offen sc1
s_waitcnt vmcnt(0)
s_mov_b64 exec, s[46:47]
buffer_store_dwordx4 v[28:31], v21, s[36:39], s62 offen offset:1152 sc1
L_s3end:
""")
    if wb: e("s_sub_u32 s57, s27, 25\n s_or_b32 s57, s57, s3\n s_cmp_lg_u32 s57, 0\n s_cbranch_scc1 L_nowb\n s_waitcnt vmcnt(0)\n buffer_wbl2 sc1\nL_nowb:")
    stamp(12)
    fin()
    if lchk:
        e(f"L_nan:\n s_add_u32 s35, s35, 1\n s_cmp_ge_u32 s35, 2000\n s_cbranch_scc1 L_nanok\n s_mov_b32 s33, 0\n s_movk_i32 s53, 99\n v_lshrrev_b32 v{VOUT}, 3, v1\n s_branch L_redo")
    e(f"L_ss:\n buffer_store_dwordx3 v[16:18], v{VST}, s[36:39], s52 offen sc1\n s_waitcnt vmcnt(0)\n s_branch L_sb")
    for gi, g in enumerate(groups):
        a.lab(f"L_oretry{gi}")
        e(f"s_add_u32 s59, s59, 1\n s_cmp_ge_u32 s59, {SPIN}\n s_cbranch_scc1 L_ook{gi}")
        for x in oloads(g): e(x)
        e("s_waitcnt vmcnt(0)")
        ocheck(g)
        e(f"s_cbranch_vccnz L_oretry{gi}\n s_branch L_ook{gi}")

    a.lab("L_B")
    e("s_barrier\n s_cmp_ge_u32 s27, 24\n s_cbranch_scc1 L_X")
    def wacc(st_):
        for p in range(2):
            r = 16 + 8*st_ + 4*p
            d = 88 + 8*p if st_ == 0 else 104
            for q in range(4): e(f"v_lshlrev_b32 v{d+2*q}, 16, v{r+q}\n v_and_b32 v{d+2*q+1}, 0xffff0000, v{r+q}")
            if st_:
                for q in range(4): e(f"v_pk_add_f32 v[{88+8*p+2*q}:{89+8*p+2*q}], v[{88+8*p+2*q}:{89+8*p+2*q}], v[{104+2*q}:{105+2*q}]")
    NL = 2; macc = wacc
    for st_ in range(2, 9):
        e(f"buffer_load_dwordx4 v[{16+8*st_}:{19+8*st_}], v2, s[32:35], s56 offen\n buffer_load_dwordx4 v[{20+8*st_}:{23+8*st_}], v5, s[32:35], s56 offen")
        if st_ < 8: e("s_add_u32 s56, s56, s57\n s_barrier")
        if st_ == 2:
            srd(36, 24, 0x10000000); srd(64, 22, 256); e("v_mov_b32 v113, 0")
        if st_ == 8: e("buffer_load_dword v112, v113, s[64:67], 0 offen offset:128 sc1")
        if st_ >= LAG:
            e(f"s_waitcnt vmcnt({NL*LAG + (st_ == 8)})"); macc(st_-LAG)
    for st_ in range(9-LAG, 9):
        e(f"s_waitcnt vmcnt({NL*(8-st_)+1})"); macc(st_)
    stamp(13)
    e(f"""
s_mul_i32 s57, s3, 3840
v_lshl_add_u32 v2, v1, 5, s57
v_lshl_add_u32 v5, v3, 5, s57
ds_write_b128 v2, v[88:91]
ds_write_b128 v2, v[92:95] offset:16
ds_write_b128 v5, v[96:99]
ds_write_b128 v5, v[100:103] offset:16
v_min_u32 v2, 239, v0
v_lshlrev_b32 v2, 4, v2
s_waitcnt lgkmcnt(0)
s_barrier
s_cmp_ge_u32 s3, 4
s_cbranch_scc1 L_W2
""")
    for i_ in range(8): e(f"ds_read_b128 v[{32+4*i_}:{35+4*i_}], v2 offset:{3840*i_}")
    e(f"s_lshl_b32 s57, s26, 3\n s_add_u32 s57, s57, s47\n s_mul_i32 s57, s57, 3840\n s_add_u32 s57, s57, {CS}\n s_waitcnt lgkmcnt(0)")
    for st in (16, 8, 4):
        for i_ in range(0, st, 2): e(f"v_pk_add_f32 v[{32+i_}:{33+i_}], v[{32+i_}:{33+i_}], v[{32+st+i_}:{33+st+i_}]")
    for q in range(4): e(f"v_min_u32 v{32+q}, -2, v{32+q}")
    flags_wait("w", True, 128, 112, 113)
    e("buffer_store_dwordx4 v[32:35], v2, s[36:39], s57 offen sc1")
    a.lab("L_W2")
    if not fearly: e("s_barrier")
    stamp(1)
    e("s_branch L_F")

    a.lab("L_X")
    e("v_mov_b32 v8, 0\n v_mov_b32 v9, 0\n v_mov_b32 v10, 0\n v_mov_b32 v11, 0\n s_mov_b32 s58, 0x3f803f80")
    def xacc(st_):
        for q in range(4):
            for p in range(2):
                r = 16 + 8*st_ + 4*p + q
                e(f"v_dot2c_f32_bf16 v{8+p}, s58, v{r}\n v_dot2c_f32_bf16 v{10+p}, v{r}, v{r}")
    for st_ in range(2, 9):
        e(f"buffer_load_dwordx4 v[{16+8*st_}:{19+8*st_}], v2, s[32:35], s56 offen\n buffer_load_dwordx4 v[{20+8*st_}:{23+8*st_}], v5, s[32:35], s56 offen")
        if st_ < 8: e("s_add_u32 s56, s56, s57\n s_barrier")
        if st_ >= LAG:
            e(f"s_waitcnt vmcnt({2*LAG})"); xacc(st_-LAG)
    for st_ in range(9-LAG, 9):
        e(f"s_waitcnt vmcnt({2*(8-st_)})"); xacc(st_)
    srd(36, 24, 0x10000000); srd(64, 22, 256); srd(28, 4, 2359296)
    e("v_mov_b32 v28, 0\n buffer_load_dword v27, v28, s[64:67], 0 offen offset:128 sc1")
    for m_ in ("quad_perm:[1,0,3,2]", "quad_perm:[2,3,0,1]", "row_half_mirror"):
        for d in range(8, 12): e(f"v_add_f32_dpp v{d}, v{d}, v{d} {m_} row_mask:0xf bank_mask:0xf")
    e(f"""
v_and_b32 v5, 1, v1
v_cmp_eq_u32 vcc, 1, v5
v_cndmask_b32 v16, v8, v9, vcc
v_cndmask_b32 v18, v10, v11, vcc
v_mul_f32 v16, {inv:#x}, v16
v_mul_f32 v18, {inv:#x}, v18
v_fma_f32 v18, -v16, v16, v18
v_max_f32 v18, 0, v18
v_cvt_pk_bf16_f32 v20, v16, v18
v_lshlrev_b32 v16, 16, v20
v_and_b32 v18, 0xffff0000, v20
v_add_f32 v18, {f2u(1e-5):#x}, v18
v_cvt_pk_bf16_f32 v18, v18, v18
v_and_b32 v18, 0xffff0000, v18
v_sqrt_f32 v18, v18
v_cvt_pk_bf16_f32 v18, v18, v18
v_and_b32 v18, 0xffff0000, v18
v_rcp_f32 v18, v18
v_lshl_add_u32 v20, v5, 3, v7
v_lshlrev_b32 v20, 2, v20
v_mul_f32 v18, {f2u(LOG2E):#x}, v18
v_mul_f32_e64 v19, -v16, v18
v_min_u32 v18, -2, v18
v_min_u32 v19, -2, v19
s_lshl_b32 s56, s55, 6
s_lshl_b32 s57, s46, 14
s_add_u32 s56, s56, s57
s_add_u32 s56, s56, {XST}
s_add_u32 s57, s56, 8192
""")
    flags_wait("x", True, 128)
    e(f"""
s_mov_b32 s58, 0x03030303
s_mov_b32 s59, 0x03030303
s_mov_b64 exec, s[58:59]
buffer_store_dword v18, v20, s[36:39], s56 offen sc1
buffer_store_dword v19, v20, s[36:39], s57 offen sc1
s_mov_b64 exec, -1
""")
    stamp(1)
    e("s_cmp_eq_u32 s27, 24\n s_cbranch_scc1 L_F")
    srd(68, 8, 663552)
    e("s_sub_u32 s56, s27, 25\n s_lshl_b32 s56, s56, 3\n s_add_u32 s56, s56, s3\n s_lshl_b32 s56, s56, 13\n v_lshlrev_b32 v2, 7, v1")
    for i in range(4 if wopf == 1 else 0):
        e(f"buffer_load_dword v100, v2, s[68:71], s56 offen\n s_add_u32 s56, s56, {24*8192}\n s_barrier")
    if upf == 1: up_prefetch(0, 2)
    if stamps: e("s_waitcnt vmcnt(0)")
    stamp(2)
    e("s_cmp_lt_u32 s27, 27\n s_cbranch_scc1 L_HS3")
    fin()
    a.lab("L_HS3")
    e("s_sub_u32 s53, s27, 9\n s_cmp_lt_u32 s3, 4\n s_cbranch_scc1 L_HS3b")
    wo_setup(); wo_dma("h")
    e("s_cmp_lg_u32 s54, 3\n s_cbranch_scc1 L_HS3b")
    flags_wait("h", False, 132, nap=4)
    sw_calc()
    a.lab("L_HS3b")
    if cpf & 2:
        e("s_waitcnt vmcnt(0) lgkmcnt(0)\n s_barrier\n s_cmp_ge_u32 s3, 4\n s_cbranch_scc1 L_s3pre")
        code_touch(54, 102)
        e("s_branch L_s3pre")
    e("s_waitcnt vmcnt(0) lgkmcnt(0)\n s_barrier\n s_branch L_s3pre")

    a.lab("L_R")
    e(f"""
v_mov_b32 v8, -1
v_mov_b32 v9, -1
v_mov_b32 v10, -1
v_mov_b32 v11, -1
v_lshlrev_b32 v12, 4, v1
s_lshl_b32 s48, s26, 2
s_add_u32 s48, s48, s47
s_sub_u32 s48, s48, 12
s_lshl_b32 s57, s48, 3
s_add_u32 s57, s57, s3
s_lshl_b32 s56, s57, 11
s_add_u32 s56, s56, {XST}
s_mul_i32 s57, s57, 14336
s_add_u32 s58, s57, 14336
s_waitcnt lgkmcnt(0)
""")
    srd(36, 24, 0x10000000); srd(64, 22, 256)
    e(f"""
buffer_store_dwordx4 v[8:11], v12, s[36:39], s56 offen sc1
buffer_store_dwordx4 v[8:11], v12, s[36:39], s56 offen offset:1024 sc1
""")
    if sweep:
        srd(28, 4, 2359296); srd(32, 6, 1990656); srd(68, 8, 663552)
        e(f"""
s_cmp_ge_u32 s3, 4
s_cbranch_scc1 L_Rw
v_mul_u32_u24 v2, 1152, v1
s_mul_i32 s55, s48, {64*1152}
s_lshl_b32 s59, s3, 7
s_add_u32 s55, s55, s59
{"buffer_load_dword v100, v2, s[28:31], s55 offen offset:640" if sweep & 1 else "s_nop 0"}
v_lshlrev_b32 v2, 7, v1
s_mul_i32 s55, s48, 3
s_add_u32 s55, s55, s3
s_lshl_b32 s55, s55, 13
s_cmp_eq_u32 s3, 3
s_cselect_b32 s55, 0x100000, s55
{"buffer_load_dword v100, v2, s[68:71], s55 offen" if sweep & 4 else "s_nop 0"}
s_waitcnt vmcnt({bin(sweep & 5).count("1")})
s_branch L_Rx
L_Rw:
v_min_u32 v2, 53, v1
v_lshlrev_b32 v2, 7, v2
s_lshl_b32 s55, s3, 5
s_add_u32 s55, s55, s48
s_add_u32 s55, s55, 32
s_mul_i32 s55, s55, 6912
{"buffer_load_dword v100, v2, s[32:35], s55 offen" if sweep & 2 else "s_nop 0"}
s_waitcnt vmcnt({1 if sweep & 2 else 0})
L_Rx:
""")
    else: e("s_waitcnt vmcnt(0)")
    e(f"""
s_barrier
s_cmp_lg_u32 s3, 0
s_cbranch_scc1 L_R21
""")
    arrive("q", 0, 128, 32)
    stamp(1)
    e(f"""
L_R21:
s_barrier
L_R2:
buffer_store_dwordx4 v[8:11], v12, s[36:39], s57 offen {rflag}
s_add_u32 s57, s57, 1024
s_cmp_lt_u32 s57, s58
s_cbranch_scc1 L_R2
L_R4:
s_waitcnt vmcnt(0)
s_barrier
s_cmp_lg_u32 s3, 0
s_cbranch_scc1 L_R3
""")
    arrive("r", 4, 132, 32)
    a.lab("L_R3")
    if cpf & 1:
        e("s_cmp_lg_u32 s27, 28\n s_cbranch_scc1 L_nct\n s_cmp_lt_u32 s3, 4\n s_cbranch_scc1 L_nct")
        code_touch(54, 102)
        a.lab("L_nct")
    if upf:
        e("s_barrier")
        up_prefetch(48 if upf == 1 else 19, 2)
        if stamps: e("s_waitcnt vmcnt(0)")
    if wopf == 2:
        srd(68, 8, 663552)
        e("s_sub_u32 s56, s27, 28\n s_lshl_b32 s56, s56, 3\n s_add_u32 s56, s56, s3\n s_lshl_b32 s56, s56, 13\n v_lshlrev_b32 v2, 7, v1")
        for i in range(3):
            e(f"s_barrier\n buffer_load_dword v100, v2, s[68:71], s56 offen\n s_add_u32 s56, s56, {32*8192}")
    stamp(2)
    fin()

    a.lab("L_F")
    if nof:
        e(f"s_sleep {nof}")
    e(f"""
s_mul_i32 s48, s26, 9
s_add_u32 s48, s48, s47            ; fi
""")
    GW = 16; DW = 88
    srd(32, 18, 5308416); srd(68, 14, 5308416)
    e(f"""
s_and_b32 s56, s3, 1
s_lshl_b32 s56, s56, 4
s_bfe_u32 s57, s3, 0x10001
s_lshl_b32 s57, s57, 2
s_add_u32 s56, s56, s57
s_lshr_b32 s57, s3, 2
s_lshl_b32 s57, s57, 5
s_add_u32 s55, s56, s57
s_lshl_b32 s57, s48, 6
s_add_u32 s56, s55, s57
s_mul_i32 s56, s56, 1152
s_mul_i32 s57, s3, 9216
v_lshlrev_b32 v2, 4, v1
v_lshrrev_b32 v3, 5, v1
v_mul_u32_u24 v3, 4608, v3
v_add_u32 v3, v3, v2
""")
    for t in range(9):
        e(f"s_add_u32 m0, s57, {F_WU + t*1024}\n s_add_u32 s58, s56, {t*1024 + (4608 if t > 4 else 0)}\n buffer_load_dwordx4 v{3 if t == 4 else 2}, s[32:35], s58 offen nt lds")
        if fthr >= 0: e(f"s_waitcnt vmcnt({fthr})")
    def gu_dma(tag, base):
        e(f"""
s_lshl_b32 s56, s48, 7
s_lshl_b32 s57, s3, 10
s_add_u32 s57, s57, {base}
s_mov_b32 s58, 0
L_Fl{tag}:
s_mov_b32 m0, s57
s_add_u32 s57, s57, 8192
buffer_load_dwordx4 v4, s[68:71], s56 offen nt lds
{'s_waitcnt vmcnt(%d)' % fthr if fthr >= 0 else ''}
s_add_u32 s56, s56, {64*9216}
s_add_u32 s58, s58, 1
s_cmp_lt_u32 s58, 9
s_cbranch_scc1 L_Fl{tag}
""")
    e(f"""
v_lshrrev_b32 v2, 3, v1            ; rr
v_and_b32 v3, 7, v1
v_xor_b32 v3, v3, v2
v_lshlrev_b32 v3, 4, v3
v_lshrrev_b32 v4, 2, v2
v_and_b32 v5, 3, v2
v_lshl_add_u32 v4, v4, 3, v5
v_add_u32 v4, s55, v4              ; k local
v_mul_u32_u24 v4, 9216, v4
v_add_u32 v4, v4, v3
""")
    if fearly: e("s_barrier")
    gu_dma("g", F_WG)
    e(f"""
v_lshrrev_b32 v2, 2, v13
v_lshl_add_u32 v2, v14, 2, v2
v_mul_u32_u24 v2, 1152, v2
v_and_b32 v3, 3, v13
v_lshl_add_u32 v2, v3, 3, v2
v_add_u32 v2, {F_WU}, v2
s_lshl_b32 s56, s3, 5
v_add_u32 v5, s56, v2
s_min_u32 s56, s3, 3
s_lshl_b32 s56, s56, 5
v_add_u32 v6, s56, v2
v_lshlrev_b32 v251, 2, v1
s_mov_b32 s68, s16
s_mov_b32 s69, s17
s_waitcnt vmcnt(9)
s_barrier
""")
    for i in range(5):
        for k in range(2):
            for hf in range(2):
                d = DW + 8*i + 4*k + 2*hf
                e(f"ds_read_b64_tr_b16 v[{d}:{d+1}], v{6 if i == 4 else 5} offset:{(k*32+hf*16)*1152 + 256*i}")
    e("s_waitcnt lgkmcnt(0)\n s_barrier")
    gu_dma("u", F_WU)
    e(f"""
v_lshrrev_b32 v2, 2, v13
v_lshl_add_u32 v2, v14, 2, v2      ; rho
v_and_b32 v3, 7, v2
v_xor_b32 v3, s3, v3
v_lshlrev_b32 v3, 4, v3
v_lshl_add_u32 v3, v2, 7, v3
v_and_b32 v4, 1, v13
v_lshl_add_u32 v3, v4, 3, v3
v_bfe_u32 v4, v13, 1, 1
s_mov_b32 s56, {F_WU}
v_mad_u32_u24 v5, v4, s56, v3
v_add_u32 v6, 0x9000, v5
v_mov_b32 v249, 0
""")
    flags_wait("f", False, 132, 250, 249)
    e("s_barrier")
    for k in range(18):
        for hf in range(2):
            off = (k*32+hf*16)*128
            reg = 5
            if k >= 9: off -= 0x9000; reg = 6
            e(f"ds_read_b64_tr_b16 v[{GW+4*k+2*hf}:{GW+4*k+2*hf+1}], v{reg} offset:{off}")
    e(f"""
v_lshlrev_b32 v7, 4, v0            ; tid*16
v_and_b32 v2, 1, v13
v_mul_u32_u24 v8, 1168, v2
v_lshl_add_u32 v8, v14, 4, v8
v_add_u32 v8, {F_HN}, v8
v_lshlrev_b32 v9, 7, v2
v_lshl_add_u32 v10, v14, 4, v9
v_add_u32 v10, {F_ACT}, v10
v_lshl_add_u32 v9, v14, 3, v9
s_lshl_b32 s56, s3, 4
s_add_u32 s56, s56, {F_ACT}
v_add_u32 v9, s56, v9
v_and_b32 v3, 6, v13
v_add_u32 v9, v9, v3
s_mov_b32 s46, 0xcccccccc
s_mov_b32 s47, 0xcccccccc
s_mov_b32 s52, 0xf0f0f0f0
s_mov_b32 s53, 0xf0f0f0f0
v_mul_u32_u24 v11, 2304, v2
v_lshl_add_u32 v11, v14, 4, v11    ; y voffset
v_lshlrev_b32 v12, 7, v13
v_cmp_le_u32 vcc, 72, v0
v_cndmask_b32_e64 v128, 0, 1, vcc
v_mul_u32_u24 v129, 1152, v128
v_sub_u32 v129, v7, v129
v_lshl_add_u32 v130, v128, 4, v7
v_add_u32 v130, {F_HN}, v130
s_mul_i32 s60, s48, 4608
s_lshl_b32 s56, s3, 6
s_add_u32 s60, s60, s56
s_add_u32 s60, s60, {YP}
s_lshl_b32 s57, s26, 11
{'' if krep else 's_mov_b32 s57, 0'}
s_add_u32 s57, s57, {KEY}
s_mov_b32 s59, 0
s_movk_i32 s58, 144
s_movk_i32 s55, 2304
s_waitcnt lgkmcnt(0)
""")
    stamp(2)
    e(f"""
s_add_u32 s56, s3, 1
s_and_b32 s56, s56, 7
s_cmp_ge_u32 s56, 4
s_cbranch_scc1 L_f2
v_cmp_gt_u32 s[42:43], s58, v0
v_cmp_eq_u32 s[44:45], 1, v128
L_k0:
buffer_load_dwordx2 v[132:133], v12, s[36:39], s57 offen sc1
s_waitcnt vmcnt(0)
v_max_u32 v2, v132, v133
v_cmp_eq_u32 vcc, -1, v2
s_cbranch_vccz L_k1
{'s_sleep %d' % ksleep if ksleep else ''}
s_add_u32 s59, s59, 1
s_cmp_lt_u32 s59, {SPIN}
s_cbranch_scc1 L_k0
L_k1:
""")
    stamp(3)
    rowmax(136, 132)
    e("v_cmp_eq_u32 s[40:41], v132, v136\n v_cndmask_b32_e64 v2, v132, v133, s[40:41]")
    rowmax(137, 2)
    e(f"""
v_not_b32 v2, v136
v_not_b32 v3, v137
v_bfe_u32 v2, v2, 7, 4
v_bfe_u32 v3, v3, 7, 4
v_cmp_eq_u32 s[40:41], v2, v3
v_lshlrev_b32 v2, 1, v2
v_lshlrev_b32 v3, 1, v3
v_addc_co_u32_e64 v3, s[40:41], 0, v3, s[40:41]
s_cmp_eq_u32 s3, 7
s_cbranch_scc1 L_f3
v_cndmask_b32_e64 v2, v2, v3, s[44:45]
v_mad_u32_u24 v2, v2, s55, v129
s_mov_b64 exec, s[42:43]
s_mov_b32 s57, {CAND}
s_mov_b32 s59, 0
L_f0:
buffer_load_dwordx4 v[132:135], v2, s[36:39], s57 offen sc1
s_waitcnt vmcnt(0)
v_max3_u32 v3, v132, v133, v134
v_max_u32 v3, v3, v135
v_cmp_eq_u32 vcc, -1, v3
s_cbranch_vccz L_f1
s_add_u32 s59, s59, 1
s_cmp_lt_u32 s59, {SPIN}
s_cbranch_scc1 L_f0
L_f1:
ds_write_b128 v130, v[132:135]
s_mov_b64 exec, -1
s_waitcnt lgkmcnt(0)
s_branch L_f2
L_f3:
v_readfirstlane_b32 s50, v136
v_readfirstlane_b32 s51, v137
v_readfirstlane_b32 s61, v2
v_readfirstlane_b32 s62, v3
L_f2:
s_barrier
""")
    stamp(4)
    HB = 140
    for k in range(18): e(f"ds_read_b128 v[{HB+4*k}:{HB+4*k+3}], v8 offset:{64*k}")
    for k in range(18):
        e(f"s_waitcnt lgkmcnt({min(17-k,15)})")
        e(f"v_mfma_f32_16x16x32_bf16 v[132:135], v[{GW+4*k}:{GW+4*k+3}], v[{HB+4*k}:{HB+4*k+3}], " + ("0" if k == 0 else "v[132:135]"))
    e(f"""
v_cndmask_b32_e64 v132, v132, v133, s[46:47]
v_cndmask_b32_e64 v134, v134, v135, s[46:47]
v_cndmask_b32_e64 v132, v132, v134, s[52:53]
v_cvt_pk_bf16_f32 v132, v132, v132
v_and_b32 v136, 0xffff0000, v132
v_and_b32 v138, 0xffff0000, v132
v_permlane32_swap_b32 v136, v138
v_mul_f32 v140, {f2u(-LOG2E):#x}, v136
v_exp_f32 v140, v140
v_add_f32 v140, 1.0, v140
v_rcp_f32 v140, v140
v_mul_f32 v136, v136, v140
v_cvt_pk_bf16_f32 v136, v136, v136
v_and_b32 v136, 0xffff0000, v136
v_mul_f32 v136, v136, v138
v_cvt_pk_bf16_f32 v136, v136, v136
s_mov_b64 exec, 0xff00ff
ds_write_b16 v9, v136
s_mov_b64 exec, -1
s_waitcnt lgkmcnt(0)
s_barrier
ds_read_b128 v[140:143], v10
ds_read_b128 v[144:147], v10 offset:64
s_mov_b32 s56, 0x30003
s_mov_b32 s57, 0x30003
s_cmp_ge_u32 s3, 4
s_waitcnt lgkmcnt(0)
""")
    def dm(i, k):
        c = 148 + 4*i
        return f"v_mfma_f32_16x16x32_bf16 v[{c}:{c+3}], v[{DW+8*i+4*k}:{DW+8*i+4*k+3}], v[{140+4*k}:{143+4*k}], " + ("0" if k == 0 else f"v[{c}:{c+3}]")
    for i in range(4):
        for k in range(2): e(dm(i, k))
    e("s_cbranch_scc1 L_y0")
    for k in range(2): e(dm(4, k))
    a.lab("L_y0")
    e("s_mov_b64 exec, s[56:57]")
    for i in range(5):
        c = 148 + 4*i
        if i == 4: e("s_cbranch_scc1 L_y1")
        e(f"buffer_store_dwordx4 v[{c}:{c+3}], v11, s[36:39], s60 offen offset:{512*i} sc1")
    a.lab("L_y1")
    e("s_mov_b64 exec, -1")
    stamp(5)
    e("s_cmp_lg_u32 s3, 7\n s_cbranch_scc1 L_fin\n s_cmp_ge_u32 s48, 36\n s_cbranch_scc1 L_fin")
    e(f"""
s_cmp_ge_u32 s48, 18
s_cselect_b32 s50, s51, s50
s_cselect_b32 s61, s62, s61
s_cselect_b32 s56, 18, 0
s_mul_i32 s61, s61, 2304
s_andn2_b32 s52, 0x7ff, s50
s_sub_u32 s56, s48, s56
s_lshl_b32 s56, s56, 6
s_add_u32 s61, s61, s56
s_add_u32 s61, s61, {CAND}
s_mul_i32 s52, s52, 1152
s_add_u32 s52, s52, s56
s_lshl_b32 s62, s48, 7
s_add_u32 s62, s62, {YP}
v_and_b32 v2, 7, v1
v_lshlrev_b32 v4, 3, v2
v_lshrrev_b32 v3, 3, v1
v_mul_u32_u24 v3, 4608, v3
v_lshl_add_u32 v3, v2, 4, v3
s_ashr_i32 s56, s50, 31
s_not_b32 s56, s56
s_or_b32 s56, s56, 0x80000000
s_xor_b32 s56, s56, s50
s_and_b32 s56, s56, 0xffff0000
v_mov_b32 v5, {f2u(-LOG2E):#x}
v_mul_f32 v5, s56, v5
v_exp_f32 v5, v5
v_add_f32 v5, 1.0, v5
v_rcp_f32 v5, v5
v_cvt_pk_bf16_f32 v5, v5, v5
v_and_b32 v5, 0xffff0000, v5
s_mov_b32 s59, 0
{"s_waitcnt vmcnt(0)" if dwait else "s_sleep %d" % dsleep}
{"s_memrealtime s[88:89]" if stamps else ""}
L_d0:
s_mov_b32 s57, s62
""")
    for i in range(9):
        e(f"buffer_load_dwordx4 v[{16+4*i}:{19+4*i}], v3, s[36:39], s57 offen sc1")
        if i < 8: e(f"s_add_u32 s57, s57, {8*4608}")
    e("buffer_load_dwordx2 v[52:53], v4, s[36:39], s61 offen sc1\n buffer_load_dwordx2 v[54:55], v4, s[36:39], s61 offen offset:1152 sc1\n s_waitcnt vmcnt(0)")
    e("v_max3_u32 v2, v16, v17, v18")
    for i in range(19, 55, 2): e(f"v_max3_u32 v2, v2, v{i}, v{i+1}")
    e(f"""
v_max_u32 v2, v2, v55
v_cmp_eq_u32 vcc, -1, v2
s_cbranch_vccz L_d1
s_add_u32 s59, s59, 1
s_cmp_lt_u32 s59, {SPIN}
s_cbranch_scc1 L_d0
L_d1:
""")
    stamp(6)
    for st in (16, 8, 4):
        for i in range(0, st, 2): e(f"v_pk_add_f32 v[{16+i}:{17+i}], v[{16+i}:{17+i}], v[{16+st+i}:{17+st+i}]")
    e("v_pk_add_f32 v[16:17], v[16:17], v[48:49]\n v_pk_add_f32 v[18:19], v[18:19], v[50:51]")
    for q in range(4): e(f"v_add_f32_dpp v{16+q}, v{16+q}, v{16+q} row_ror:8 row_mask:0xf bank_mask:0xf")
    for wh in (16, 32):
        for q in range(4): e(f"v_mov_b32 v{20+q}, v{16+q}")
        for q in range(4): e(f"v_permlane{wh}_swap_b32 v{16+q}, v{20+q}")
        for q in range(4): e(f"v_add_f32 v{16+q}, v{16+q}, v{20+q}")
    def rnd4():
        for h in range(2): e(f"v_cvt_pk_bf16_f32 v{24+h}, v{16+2*h}, v{17+2*h}")
        for h in range(2): e(f"v_lshlrev_b32 v{16+2*h}, 16, v{24+h}\n v_and_b32 v{17+2*h}, 0xffff0000, v{24+h}")
    rnd4()
    if yscale: e(f"v_mul_f32 v5, {f2u(yscale):#x}, v5")
    for q in range(4): e(f"v_mul_f32 v{16+q}, v{16+q}, v5")
    for src in (52, 54):
        rnd4()
        for h in range(2): e(f"v_lshlrev_b32 v{20+2*h}, 16, v{src+h}\n v_and_b32 v{21+2*h}, 0xffff0000, v{src+h}")
        for q in range(4): e(f"v_add_f32 v{16+q}, v{16+q}, v{20+q}")
    for h in range(2): e(f"v_cvt_pk_bf16_f32 v{24+h}, v{16+2*h}, v{17+2*h}")
    srd(68, 20, 2359296)
    e(f"s_mov_b64 exec, 0xff\n buffer_store_dwordx2 v[24:25], v4, s[68:71], s52 offen {fstore}")
    stamp(7)
    a.lab("L_fin")
    fin()
    a.lab("L_end")
    e("s_endpgm")
    a.lab("L_codeend")

    assert not any('op_sel:' in l for l in a.L)
    if cyc: a.L = [l.replace('s_memrealtime', 's_memtime') for l in a.L]
    lines, n = hazard.fix(a.L)
    if doalign: lines, nw, npad = align.run(lines)
    import os
    ref = "sequential_preLN__linear_attn_block__moe_arch_mod__prompt.s.ref"
    hdr = open(ref).read().split("; @launch")[0] if os.path.exists(ref) else ""
    hdr += f"""; @launch grid=(256,1,1) block=(512,1,1) lds=163840
.amdgcn_target "amdgcn-amd-amdhsa--gfx950"
.text
.globl {NAME}
.p2align 8
.type {NAME},@function
"""
    tail = f"""
.section .rodata,"a"
.p2align 6
.amdhsa_kernel {NAME}
  .amdhsa_next_free_vgpr 256
  .amdhsa_next_free_sgpr 102
  .amdhsa_accum_offset 256
  .amdhsa_group_segment_fixed_size 0
  .amdhsa_kernarg_size 88
  .amdhsa_user_sgpr_count 2
  .amdhsa_user_sgpr_kernarg_segment_ptr 1
  .amdhsa_system_sgpr_workgroup_id_x 1
.end_amdhsa_kernel
"""
    return hdr + "\n".join(lines) + "\n" + tail

if __name__ == "__main__":
    assert all((n*1821)>>16 == n//36 for n in range(108))
    assert all((n*13108)>>16 == n//5 for n in range(192))
    assert all((n*57)>>9 == n//9 for n in range(63))
    print(gen(stamps=len(sys.argv) > 1))
```

```python
import sys, struct
from asmlib import *
import hazard, align

NAME = "sequential_preLN__linear_attn_block__moe_arch_mod__prompt_kernel"
KVP = 0
OB  = KVP + 16*8*3072
ST  = OB + 128*16*1152
KEY = ST + 128*9*256
XID = KEY + 9*2048
CAND = XID + 2048
YP  = CAND + 16*2*2304
assert YP + 72*4608 <= 256*14336
XST = 4<<20
CS  = XST + 32768
assert CS + 64*3840 <= XST + 256*2048
TS_OFF = 0x8000000
XS = 32768; STG = XS + 16384; NBUF = 3
L_WO = 0; L_KVRED = 73728; L_PQ = 106496
L_RS = 153600; L_MRS = L_RS + 1024; L_CS = L_MRS + 1024; L_KT = L_CS + 1024; L_SW = L_KT + 1536
L_STAGE = L_KVRED
L_WR = L_SW + 64
L_KEY = L_WR + 1280
L_KTA = L_KEY + 64
L_XT = L_PQ + 30720
assert L_XT + 16384 == L_RS and L_KTA + 3072 <= 163840
F_WG = 0; F_WU = 73728; F_WD = 0; F_HN = 147456; F_ACT = F_HN + 2560; F_KEYS = F_ACT + 256; F_RED = F_KEYS + 256
SPIN = 1 << 17
def f2u(x): return struct.unpack("<I", struct.pack("<f", x))[0]
LOG2E = 1.4426950408889634

def gen(stamps=False, owait=1, await_=1, cwait=0, dwait=1, rflag='sc1', diag=None, doalign=1, gate=1, fstore='sc1', ksleep=0, merged=0, LAG=3, hintall=0, hsleep=2, obar=0, hprio=1, ahead=3, outwait=0, rot=0, krep=1, dsleep=0, csleep=0, asleep=0, osleep=0, wfl='', xfl='', lprio=0, worder=1, cyc=0, flip=0, nof=0, st0=0, s3prio=0, fthr=-1, latepre=0, x_nochk=0, x_nord=0, x_nomf=0, x_nold=0, x_fl='sc1', fast=1, fasta=1, nanchk=1, oprio=1, hnearly=0, qswap=1, lchk=0, cpf=0, yscale=0, hscale=0, fearly=1, eflag=0, sweep=4, wopf=1, upf=0, hread=1, upfl='', wb=0, lf=1,  outsleep=0, outfl='sc1'):
    NPRE = 6
    a = Asm()
    e = a.e
    def stamp(i):
        if stamps or diag: e(f"s_memrealtime s[{72+2*i}:{73+2*i}]")
    def fin():
        if diag:
            wg, wave, idx, K = diag
            lb = a.new("L_dg")
            e("s_waitcnt vmcnt(0) lgkmcnt(0)")
            if idx == "xcc":
                e(f"s_getreg_b32 s44, hwreg(HW_REG_XCC_ID)\n s_and_b32 s44, s44, 7\n s_and_b32 s45, s2, 7\n s_cmp_eq_u32 s44, s45\n s_cbranch_scc1 {lb}e\n s_add_u32 s44, s72, 10000")
            else:
                e(f"s_cmp_lg_u32 s2, {wg}\n s_cbranch_scc1 {lb}e\n s_cmp_lg_u32 s3, {wave}\n s_cbranch_scc1 {lb}e")
                if idx == "rnd": e(f"s_lshr_b32 s44, s72, 3\n s_mul_i32 s44, s44, 0x9e3779b1\n s_lshr_b32 s44, s44, 24\n s_cmp_ge_u32 s44, {K}\n s_cbranch_scc1 {lb}e\n s_add_u32 s44, s72, 10000")
                elif idx == "fix": e(f"s_add_u32 s44, s72, {K}")
                else: e(f"s_sub_u32 s44, s{72+2*idx}, s72\n s_min_u32 s44, s44, 10000\n s_mul_i32 s44, s44, {K}\n s_add_u32 s44, s44, s72")
            e(f"{lb}:\n s_memrealtime s[46:47]\n s_waitcnt lgkmcnt(0)\n s_sub_u32 s45, s46, s44\n s_cmp_lt_i32 s45, 0\n s_cbranch_scc1 {lb}\n{lb}e:")
        if stamps:
            e("s_waitcnt vmcnt(0) lgkmcnt(0)")
            e("s_mov_b64 exec, -1")
            e(f"s_lshl_b32 s44, s2, 3\n s_add_u32 s44, s44, s3\n s_lshl_b32 s44, s44, 6\n s_add_u32 s44, s44, {TS_OFF}\n v_mov_b32 v2, 0")
            for i in range(15):
                e(f"v_mov_b32 v3, s{72+2*i}\n buffer_store_dword v3, v2, s[36:39], s44 offen offset:{4*i}")
        e("s_endpgm")
    def srd(d, p, n):
        e(f"s_mov_b32 s{d}, s{p}\n s_mov_b32 s{d+1}, s{p+1}\n s_mov_b32 s{d+2}, {n}\n s_mov_b32 s{d+3}, 0x20000")
    def rowmax(d, s):
        e(f"v_max_u32_dpp v{d}, v{s}, v{s} quad_perm:[1,0,3,2] row_mask:0xf bank_mask:0xf")
        e(f"v_max_u32_dpp v{d}, v{d}, v{d} quad_perm:[2,3,0,1] row_mask:0xf bank_mask:0xf")
        e(f"v_max_u32_dpp v{d}, v{d}, v{d} row_half_mirror row_mask:0xf bank_mask:0xf")
        e(f"v_max_u32_dpp v{d}, v{d}, v{d} row_mirror row_mask:0xf bank_mask:0xf")
    def rowsum(d):
        for m in ("quad_perm:[1,0,3,2]", "quad_perm:[2,3,0,1]", "row_half_mirror", "row_mirror"):
            e(f"v_add_f32_dpp v{d}, v{d}, v{d} {m} row_mask:0xf bank_mask:0xf")
    def xsum(d, t, which, op="v_add_f32"):
        e(f"v_mov_b32 v{t}, v{d}\n v_permlane{which}_swap_b32 v{d}, v{t}\n {op} v{d}, v{d}, v{t}")

    a.lab(NAME)
    e("""
s_load_dwordx16 s[4:19], s[0:1], 0
s_load_dwordx4 s[20:23], s[0:1], 64
s_load_dwordx2 s[24:25], s[0:1], 80
""")
    if stamps:
        for i in range(1, 15): e(f"s_mov_b64 s[{72+2*i}:{73+2*i}], 0")
    stamp(0)
    e(f"""
v_lshrrev_b32 v2, 6, v0
v_and_b32 v1, 63, v0
s_cmp_ge_u32 s2, 256
v_readfirstlane_b32 s3, v2
s_cbranch_scc1 L_end
s_and_b32 s26, s2, 7
s_lshr_b32 s27, s2, 3          ; slot
s_lshr_b32 s45, s26, 1         ; rbg
s_and_b32 s46, s2, 1           ; half
v_and_b32 v13, 15, v1
v_lshrrev_b32 v14, 4, v1
s_and_b32 s54, s3, 3           ; w
s_cmp_lt_u32 s27, 16
s_cbranch_scc1 L_A
s_sub_u32 s47, s27, 16             ; h
s_mov_b32 s35, 0x20000
s_cmp_lt_u32 s27, 24
s_cbranch_scc1 L_W0
s_cmp_lt_u32 s27, 28
s_cbranch_scc1 L_X0
s_cmp_lg_u32 s3, 0
s_cbranch_scc1 L_R
s_getpc_b64 s[40:41]
s_and_b32 s57, s27, 3
s_lshl_b32 s57, s57, 13
v_lshl_add_u32 v2, v1, 7, s57
v_min_u32 v2, L_codeend-L_X0, v2
global_load_dword v6, v2, s[40:41]
s_branch L_R
L_X0:
v_lshrrev_b32 v7, 3, v1
v_and_b32 v3, 7, v1
v_mul_u32_u24 v2, 1152, v7
v_lshl_add_u32 v2, v3, 4, v2
v_add_u32 v5, {8*1152}, v2
s_lshl_b32 s55, s45, 2
s_add_u32 s55, s55, s47
s_lshl_b32 s55, s55, 3
s_add_u32 s55, s55, s3
s_sub_u32 s55, s55, 64
s_mul_i32 s56, s55, {16*1152}
s_movk_i32 s57, 128
s_mov_b32 s34, 2359296
s_waitcnt lgkmcnt(0)
s_mov_b64 s[32:33], s[4:5]
s_branch L_E0
L_W0:
v_add_u32 v3, 64, v1
v_min_u32 v3, 119, v3
v_mul_u32_u24 v4, 1639, v1
v_lshrrev_b32 v4, 16, v4
v_lshlrev_b32 v2, 4, v1
v_lshl_add_u32 v2, v4, 9, v2
v_mul_u32_u24 v4, 1639, v3
v_lshrrev_b32 v4, 16, v4
v_lshlrev_b32 v5, 4, v3
v_lshl_add_u32 v5, v4, 9, v5
s_lshl_b32 s56, s47, 3
s_add_u32 s56, s56, s3
s_mul_i32 s56, s56, 3456
s_lshl_b32 s57, s46, 9
s_add_u32 s56, s56, s57
s_mov_b32 s57, {64*3456}
s_mov_b32 s34, 1990656
s_waitcnt lgkmcnt(0)
s_mov_b64 s[32:33], s[6:7]
L_E0:
buffer_load_dwordx4 v[16:19], v2, s[32:35], s56 offen
buffer_load_dwordx4 v[20:23], v5, s[32:35], s56 offen
s_add_u32 s56, s56, s57
s_barrier
buffer_load_dwordx4 v[24:27], v2, s[32:35], s56 offen
buffer_load_dwordx4 v[28:31], v5, s[32:35], s56 offen
s_add_u32 s56, s56, s57
s_branch L_B
L_A:
s_and_b32 s47, s27, 7
s_lshl_b32 s48, s46, 3
s_add_u32 s48, s48, s47        ; hp
s_lshr_b32 s49, s27, 3
s_lshl_b32 s50, s45, 1
s_add_u32 s50, s50, s49        ; rb (0..7)
s_lshr_b32 s51, s48, 1
s_mul_i32 s51, s51, 144
s_and_b32 s47, s27, 1          ; p
s_lshl_b32 s52, s47, 3
s_mov_b32 s53, s27
{'s_xor_b32 s3, s3, 4' if flip else ''}
s_cmp_lt_u32 s3, 4
s_cbranch_scc1 L_compute
""")
    OF = 16; AC = 116; WR = 132; BR = 140; BA = 236
    VST, VSW, VSR, VOUT, VC7, VTOK, VSUM = 249, 250, 251, 252, 253, 254, 255
    VKW, VKR, VXA, VWA, VM1, VM2 = 11, 5, 112, 113, 114, 115
    XR = 240
    def bread(k):
        r = []
        for T in range(4):
            for hf in range(2):
                d = BR + (k % NPRE)*16 + 4*T + 2*hf
                off = ((k*32 + hf*16)*128) & 0xffff
                r.append(f"ds_read_b64_tr_b16 v[{d}:{d+1}], v{BA+T} offset:{off}")
        return r
    def s3_scal(v=True):
        e(f"""
s_cmp_ge_u32 s53, 9
s_cselect_b32 s57, 9, 0
s_cselect_b32 s58, 8, 0
s_sub_u32 s63, s53, s57            ; cb
s_lshl_b32 s60, s26, 4
s_add_u32 s60, s60, s58
s_add_u32 s60, s60, s3             ; tb
s_mul_i32 s61, s60, {16*1152}
s_add_u32 s62, s61, {OB}
s_lshl_b32 s57, s63, 7
s_add_u32 s61, s61, s57
s_mul_i32 s50, s3, 4608
s_add_u32 s50, s50, {L_STAGE}
s_mul_i32 s51, s60, {9*256}
s_add_u32 s51, s51, {ST}
s_lshl_b32 s52, s63, 8
s_add_u32 s52, s52, s51
s_mov_b32 s44, 0x00f0000f
s_mov_b32 s45, 0xf0000f00
s_mov_b32 s46, 0x22222222
s_mov_b32 s47, 0x22222222
s_mov_b32 s48, 0xcccccccc
s_mov_b32 s49, 0xcccccccc
s_mov_b32 s42, 0x88888888
s_mov_b32 s43, 0x88888888
""")
        if v: e(f"v_lshlrev_b32 v{VST}, 4, v13\n v_lshrrev_b32 v{VOUT}, 3, v1")
    def s3_addr1():
        e(f"""
v_lshrrev_b32 v2, 2, v13
v_lshl_add_u32 v2, v14, 2, v2      ; rho
v_bfe_u32 v3, v2, 1, 2
v_lshlrev_b32 v2, 7, v2
v_and_b32 v4, 3, v13
v_lshl_add_u32 v2, v4, 3, v2
v_lshl_add_u32 v{BA}, v3, 5, v2
v_xor_b32 v{BA+1}, 32, v{BA}
v_xor_b32 v{BA+2}, 64, v{BA}
v_xor_b32 v{BA+3}, 96, v{BA}
s_lshl_b32 s57, s63, 7
s_add_u32 s57, s57, {L_WR}
v_lshl_add_u32 v{VWA}, v14, 3, s57
v_lshrrev_b32 v2, 1, v14
v_and_b32 v3, 7, v13
v_xor_b32 v2, v2, v3
v_lshlrev_b32 v2, 4, v2
v_lshl_add_u32 v2, v13, 7, v2
v_and_b32 v3, 1, v14
v_lshl_add_u32 v2, v3, 3, v2
s_lshl_b32 s57, s3, 11
s_add_u32 s57, s57, {L_XT}
v_add_u32 v{VXA}, s57, v2
""")
    def s3_reads():
        for T in range(4):
            e(f"v_xor_b32 v4, {32*T}, v{VXA}\n ds_read_b64 v[{XR+2*T}:{XR+2*T+1}], v4")
            e(f"ds_read_b64 v[{WR+2*T}:{WR+2*T+1}], v{VWA} offset:{32*T}")
        e(f"v_mov_b32 v2, {L_SW}\n ds_read_b32 v{VSUM}, v2")
        for k in range(NPRE):
            for x in bread(k): e(x)
    def s3_addr2(sb=50, st=60, m=40):
        e(f"""
v_and_b32 v2, 3, v13
v_cmp_eq_u32 s[{m}:{m+1}], 2, v2
v_cndmask_b32_e64 v{VM1}, 0, -1, s[{m}:{m+1}]
v_mov_b32 v4, 0x3f803f80
v_cmp_eq_u32 s[{m}:{m+1}], 0, v2
v_cndmask_b32_e64 v{VM2}, 0, v4, s[{m}:{m+1}]
v_mul_u32_u24 v{VSW}, 144, v13
v_lshl_add_u32 v{VSW}, v14, 3, v{VSW}
v_add_u32 v{VSW}, s{sb}, v{VSW}
v_add_u32 v{VSR}, v{VOUT}, v1
v_lshl_add_u32 v{VSR}, v{VSR}, 4, s{sb}
v_mul_u32_u24 v{VOUT}, 1152, v{VOUT}
v_and_b32 v{VC7}, 7, v1
v_lshl_add_u32 v{VOUT}, v{VC7}, 4, v{VOUT}
v_lshl_add_u32 v{VTOK}, s{st}, 4, v13
v_sub_u32 v{VTOK}, 2047, v{VTOK}
s_lshl_b32 s57, s3, 3
s_add_u32 s57, s57, {L_KEY}
v_mov_b32 v{VKW}, s57
v_lshlrev_b32 v{VKR}, 2, v13
v_add_u32 v{VKR}, {L_KEY}, v{VKR}
""")
    def s3_unpack():
        e("s_waitcnt lgkmcnt(15)")
        for i in range(8): e(f"v_lshlrev_b32 v{AC+2*i}, 16, v{XR+i}\n v_and_b32 v{AC+2*i+1}, 0xffff0000, v{XR+i}\n v_and_or_b32 v{WR+i}, v{WR+i}, v{VM1}, v{VM2}")
    e(f"""
s_setprio 2
s_lshl_b32 s55, s50, 5
s_add_u32 s55, s55, s54
s_lshl_b32 s55, s55, 3
v_lshrrev_b32 v2, 3, v1
v_add_u32 v2, s55, v2
v_mul_u32_u24 v16, 1152, v2
s_and_b32 s56, s54, 1
s_lshl_b32 s57, s56, 2
v_add_u32 v3, s57, v14
v_and_b32 v2, 7, v1
v_xor_b32 v2, v2, v3
v_lshl_add_u32 v16, v2, 4, v16
v_lshrrev_b32 v2, 1, v13
v_xor_b32 v2, v2, v3
v_and_b32 v3, 1, v1
v_lshl_add_u32 v2, v2, 1, v3
v_min_u32 v2, 14, v2
v_mul_u32_u24 v3, 52, v2
v_lshrrev_b32 v3, 8, v3
v_lshlrev_b32 v2, 4, v2
v_and_b32 v4, {qswap}, v3
v_xor_b32 v4, s47, v4
v_lshl_add_u32 v2, v4, 6, v2
v_xor_b32 v15, 1, v3
v_lshrrev_b32 v4, 1, v3
v_sub_u32 v15, v15, v4
v_mul_u32_u24 v15, 1152, v15
v_mul_u32_u24 v3, 80, v3
v_sub_u32 v2, v2, v3
s_lshl_b32 s55, s54, 3
v_add_u32 v3, s55, v14
v_mul_u32_u24 v3, 3456, v3
v_add3_u32 v17, v2, v3, v15
s_lshl_b32 s41, s54, 10
s_mov_b32 s55, 0
s_mov_b32 s56, s51
s_mov_b32 s43, 0
s_mov_b32 s44, -1
s_mov_b32 s30, 2359296
s_mov_b32 s31, 0x20000
s_mov_b32 s34, 1990656
s_mov_b32 s35, 0x20000
s_waitcnt lgkmcnt(0)
s_mov_b32 s28, s4
s_mov_b32 s29, s5
s_mov_b32 s32, s6
s_mov_b32 s33, s7
""")
    def issue():
        e("s_mov_b32 s57, s55")
        for i in range(8):
            iw = (i//2 if i % 2 == 0 else 9) if worder else i
            if iw < 4:
                e(f"s_add_u32 m0, s41, {XS + iw*4096}\n s_add_u32 s58, s56, {((iw>>1)*32 + (iw&1)*4)*3456}")
                e(f"buffer_load_dwordx4 v17, s[32:35], s58 offen {wfl} lds")
            e(f"s_add_u32 m0, s41, {i*4096}")
            if i: e(f"s_add_u32 s57, s57, {2*18432}")
            e(f"buffer_load_dwordx4 v16, s[28:31], s57 offen {xfl} lds")
        e(f"""
s_add_u32 s55, s55, 128
s_add_u32 s56, s56, {64*3456}
s_add_u32 s43, s43, 1
s_add_u32 s41, s41, {STG}
s_cmp_eq_u32 s43, {NBUF}
s_cselect_b32 s57, {NBUF*STG}, 0
s_cselect_b32 s43, 0, s43
s_sub_u32 s41, s41, s57
s_add_u32 s44, s44, 1
""")
    if st0: stamp(5)
    a.lab("L_hloop0")
    issue()
    e("""
s_cmp_eq_u32 s44, 0
s_cbranch_scc1 L_hloop0
s_waitcnt vmcnt(12)
s_barrier
s_cmp_lg_u32 s44, 2
s_cbranch_scc1 L_hloop0
""")
    e("s_setprio 0")
    stamp(14)
    issue()
    e(f"""
v_lshl_add_u32 v2, s54, 6, v1      ; n = 64w + lane
s_lshl_b32 s57, s50, 10
s_lshl_b32 s60, s46, 14
s_add_u32 s60, s60, s57
s_add_u32 s60, s60, {XST}
v_lshlrev_b32 v18, 2, v2
v_min_u32 v3, 107, v2
v_mul_u32_u24 v4, 1821, v3
v_lshrrev_b32 v4, 16, v4           ; sec = c/36
v_xor_b32 v5, 1, v4
v_lshrrev_b32 v6, 1, v4
v_sub_u32 v5, v5, v6
v_mul_u32_u24 v5, 320, v5
v_and_b32 v6, {qswap}, v4
v_xor_b32 v6, s47, v6
v_mad_u32_u24 v5, v6, 36, v5
v_mul_u32_u24 v4, 36, v4
v_sub_u32 v3, v3, v4
v_add_u32 v3, v3, v5
v_lshlrev_b32 v19, 2, v3
s_lshl_b32 s61, s51, 1
s_lshl_b32 s57, s46, 10
s_sub_u32 s61, s61, s57
s_mul_i32 s57, s26, {8*3840}
s_add_u32 s61, s61, s57
s_add_u32 s61, s61, {CS}
""")
    e(f"""
v_cmp_gt_u32 vcc, 190, v2
v_cndmask_b32_e64 v3, 0, v2, vcc       ; gamma or 0
v_cndmask_b32 v23, 0, -1, vcc
v_mov_b32 v24, v23
v_mul_u32_u24 v4, 13108, v3
v_lshrrev_b32 v4, 16, v4           ; col
v_mul_u32_u24 v5, 5, v4
v_sub_u32 v5, v3, v5               ; i
v_cmp_le_u32 vcc, 18, v4
v_cndmask_b32 v6, 0, 1, vcc        ; head for col<36
v_cmp_le_u32 vcc, 36, v4
v_subrev_u32 v7, 36, v4
v_cndmask_b32_e64 v6, v6, v7, vcc      ; head
v_cndmask_b32 v4, v4, 36, vcc      ; e (36 = ones column)
v_mov_b32 v12, {f2u(1/LOG2E**2):#x}
v_mov_b32 v11, {f2u(1/LOG2E):#x}
v_cndmask_b32_e64 v12, v12, v11, vcc
v_lshl_add_u32 v7, v6, 2, v5       ; delta = i + 4*head
v_add_u32 v4, 72, v4               ; tile column index 72+e
v_lshrrev_b32 v8, 4, v4
v_subrev_u32 v8, 4, v8             ; TB-4
v_and_b32 v4, 15, v4               ; lane col
v_lshrrev_b32 v9, 2, v7            ; TA
v_mad_u32_u24 v8, v9, 3, v8
v_lshrrev_b32 v10, 1, v9
v_sub_u32 v8, v8, v10
v_and_b32 v9, 3, v7
v_lshl_add_u32 v4, v9, 4, v4
v_lshlrev_b32 v4, 4, v4
v_lshl_add_u32 v22, v8, 10, v4
v_add_u32 v22, {L_KVRED}, v22      ; lds source
v_cmp_eq_u32 vcc, 4, v7
v_cndmask_b32 v8, -1, 0, vcc       ; 0 when delta==4
v_subrev_u32 v9, 1, v6             ; head0: -1, head1: 0
v_or_b32 v9, v9, v8
v_and_b32 v23, v23, v9             ; lo mask
v_sub_u32 v9, 0, v6
v_or_b32 v9, v9, v8
v_and_b32 v24, v24, v9             ; hi mask
v_lshlrev_b32 v25, 4, v2           ; gamma*16
v_lshlrev_b32 v26, 3, v2
v_add_u32 v26, {L_KT}, v26
s_xor_b32 s62, s48, {qswap}
s_mul_i32 s62, s62, {8*3072}       ; KVP base of the head pair of q
s_lshl_b32 s52, s48, 3
s_add_u32 s52, s52, s50
s_mul_i32 s52, s52, 3072           ; own slot
""".replace("v_cndmask_b32 v23, 0, -1, vcc", "v_cndmask_b32_e64 v23, 0, -1, vcc").replace("v_cndmask_b32 v6, 0, 1, vcc", "v_cndmask_b32_e64 v6, 0, 1, vcc").replace("v_cndmask_b32 v4, v4, 36, vcc", "v_cndmask_b32_e64 v4, v4, 36, vcc").replace("v_cndmask_b32 v8, -1, 0, vcc", "v_cndmask_b32_e64 v8, -1, 0, vcc"))
    def wo_setup():
        e(f"""
s_cmp_ge_u32 s53, 9
s_cselect_b32 s57, 9, 0
s_sub_u32 s63, s53, s57            ; cb
v_lshrrev_b32 v2, 3, v1            ; rr
v_and_b32 v3, 7, v1
v_bfe_u32 v4, v1, 4, 2
v_lshlrev_b32 v4, 1, v4
v_xor_b32 v3, v3, v4
v_lshlrev_b32 v3, 4, v3
s_lshl_b32 s57, s63, 7
v_add_u32 v3, s57, v3
v_lshrrev_b32 v4, 2, v2
v_and_b32 v5, 3, v2
v_mad_u32_u24 v6, v4, 10, v5
s_and_b32 s57, s54, 1
s_mul_i32 s58, s57, 18
s_lshr_b32 s59, s54, 1
s_lshl_b32 s42, s59, 2
s_add_u32 s58, s58, s42
v_add_u32 v6, s58, v6
v_mul_u32_u24 v6, 1152, v6
v_add_u32 v20, v6, v3
v_mul_u32_u24 v4, 72, v4
v_bfe_u32 v5, v2, 1, 1
v_mad_u32_u24 v4, v5, 18, v4
v_and_b32 v5, 1, v2
v_add_u32 v4, v4, v5
s_mul_i32 s57, s57, 144
s_mul_i32 s59, s59, 36
s_add_u32 s57, s57, s59
s_add_u32 s57, s57, 8
v_add_u32 v4, s57, v4
v_mul_u32_u24 v4, 1152, v4
v_add_u32 v21, v4, v3
v_and_b32 v3, 7, v1
v_xor_b32 v3, v3, v2
v_mul_u32_u24 v4, 1152, v2
v_lshl_add_u32 v29, v3, 4, v4
s_cmp_ge_u32 s53, 9
s_cselect_b32 s57, 16, 0
s_lshl_b32 s49, s26, 5
s_add_u32 s49, s49, s57
s_add_u32 s49, s49, s54
s_mul_i32 s49, s49, {8*1152}
s_lshl_b32 s57, s63, 7
s_add_u32 s49, s49, s57
""")
    def wo_dma(tag, part=0):
        if part >= 0:
            srd(68, 8, 663552)
            e(f"s_lshl_b32 s42, s54, 10\n s_lshl_b32 s40, s63, 1\n s_and_b32 s40, s40, {15 if rot else 0}\n s_mul_i32 s40, s40, {36*1152}")
        e(f"""
L_wod{tag}:
s_mov_b32 m0, s42
s_add_u32 s42, s42, 4096
buffer_load_dwordx4 v20, s[68:71], s40 offen lds
s_add_u32 s40, s40, {36*1152}
s_cmp_eq_u32 s40, {16*36*1152}
s_cselect_b32 s40, 0, s40
s_cmp_lt_u32 s42, {(part if part > 0 else 16)*4096}
s_cbranch_scc1 L_wod{tag}
""")
        if part <= 0:
            e(f"""
s_mov_b32 m0, s42
s_add_u32 s42, s42, 4096
buffer_load_dwordx4 v21, s[68:71], 0 offen lds
s_mov_b32 m0, s42
s_mov_b32 s40, {288*1152}
buffer_load_dwordx4 v21, s[68:71], s40 offen lds
s_lshl_b32 s42, s54, 10
""")
            for i in range(4):
                e(f"s_add_u32 m0, s42, {L_XT + 4096*i}\n s_add_u32 s40, s49, {i*32*1152}\n buffer_load_dwordx4 v29, s[28:31], s40 offen lds")
    def sw_calc():
        srd(68, 12, 1152)
        e("v_lshlrev_b32 v2, 2, v1")
        for i in range(5): e(f"buffer_load_dword v{30+i}, v2, s[68:71], 0 offen offset:{256*i}")
        e("v_mov_b32 v3, 0\n s_mov_b32 s57, 0x3f803f80\n s_waitcnt vmcnt(0)")
        e(f"v_add_u32 v2, {L_WR}, v2")
        for i in range(5): e(f"ds_write_b32 v2, v{30+i} offset:{256*i}")
        for i in range(5): e(f"v_dot2c_f32_bf16 v3, s57, v{30+i}")
        rowsum(3); xsum(3, 4, 16); xsum(3, 4, 32)
        e(f"v_mov_b32 v4, {L_SW}\n ds_write_b32 v4, v3")
        e(f"""
s_getreg_b32 s57, hwreg(HW_REG_XCC_ID)
s_and_b32 s57, s57, 15
v_mov_b32 v36, s57
v_mov_b32 v37, 0
s_cmp_ge_u32 s53, 9
s_cselect_b32 s57, 128, 0
s_lshl_b32 s58, s26, 8
s_add_u32 s57, s57, s58
s_lshl_b32 s58, s63, 2
s_add_u32 s57, s57, s58
s_add_u32 s57, s57, {XID}
s_mov_b64 exec, 1
buffer_store_dword v36, v37, s[36:39], s57 offen sc1
s_mov_b64 exec, -1
""")
    def flags_wait(tag, issued, off, fv=27, av=28, nap=0):
        e(f"s_mov_b32 s59, 0")
        if issued: e(f"s_branch L_fl1{tag}")
        a.lab(f"L_fl0{tag}")
        if nap: e(f"s_sleep {nap}")
        e(f"""
buffer_load_dword v{fv}, v{av}, s[64:67], 0 offen offset:{off} sc1
L_fl1{tag}:
s_waitcnt vmcnt(0)
v_cmp_eq_u32 vcc, 0, v{fv}
s_cbranch_vccz L_fl2{tag}
s_add_u32 s59, s59, 1
s_cmp_lt_u32 s59, {SPIN}
s_cbranch_scc1 L_fl0{tag}
L_fl2{tag}:
""")
    def up_prefetch(first, n):
        srd(68, 16, 5308416)
        e(f"""
v_min_u32 v2, 62, v1
v_mul_u32_u24 v3, 57, v2
v_lshrrev_b32 v3, 9, v3
v_mul_u32_u24 v3, {9216-1152}, v3
v_lshl_add_u32 v2, v2, 7, v3
s_sub_u32 s56, s27, {25 if first == 0 else 28}
s_lshl_b32 s56, s56, 3
s_add_u32 s56, s56, s3
s_add_u32 s56, s56, {first}
s_mul_i32 s56, s56, {7*9216}
s_mul_i32 s57, s26, 1152
s_add_u32 s56, s56, s57
""")
        for i in range(n): e(f"buffer_load_dword v100, v2, s[68:71], s56 offen {upfl}\n s_add_u32 s56, s56, {(24 if first == 0 else 32)*7*9216}")
    def code_touch(sidx, v):
        lb = a.new("L_pc")
        e(f"""
s_getpc_b64 s[40:41]
{lb}:
s_sub_u32 s40, s40, {lb}-{NAME}
s_subb_u32 s41, s41, 0
s_lshl_b32 s57, s{sidx}, 13
v_lshl_add_u32 v{v}, v1, 7, s57
v_min_u32 v{v}, L_codeend-{NAME}-4, v{v}
global_load_dword v{v+1}, v{v}, s[40:41]
""")
    def arrive(tag, cnt_off, done_off, n):
        e(f"""
v_mov_b32 v20, 1
v_mov_b32 v21, 0
s_mov_b64 exec, 1
buffer_atomic_add v20, v21, s[64:67], 0 offen offset:{cnt_off} sc0
s_waitcnt vmcnt(0)
v_cmp_eq_u32 vcc, {n-1}, v20
s_cbranch_vccz L_ar{tag}
buffer_store_dword v20, v21, s[64:67], 0 offen offset:{done_off} sc1
L_ar{tag}:
s_mov_b64 exec, -1
""")
    e("s_waitcnt vmcnt(12)\n s_barrier")
    issue()
    wo_setup()
    e(f"""
v_lshrrev_b32 v2, 3, v13           ; head
v_bfe_u32 v3, v13, 2, 1            ; odd
v_and_b32 v4, 3, v13               ; r
v_mul_u32_u24 v5, 18, v2
v_mad_u32_u24 v5, v3, 10, v5
v_add_u32 v5, v5, v4
v_lshl_add_u32 v5, s54, 2, v5
s_mov_b64 s[70:71], -1
s_cmp_lg_u32 s54, 2
s_cbranch_scc1 L_kta
v_add_u32 v6, 36, v2
v_cmp_eq_u32 s[68:69], 2, v4
v_cndmask_b32_e64 v5, v5, v6, s[68:69]
v_lshl_add_u32 v6, v3, 2, v4
v_cmp_gt_u32 s[70:71], 2, v6
s_or_b64 s[70:71], s[70:71], s[68:69]
L_kta:
v_lshlrev_b32 v6, 2, v2
v_sub_u32 v6, v14, v6
v_mov_b32 v7, 190
s_mul_i32 s57, s54, 768
s_add_u32 s57, s57, {L_KTA}
v_lshl_add_u32 v8, v1, 2, s57
s_mov_b32 s57, {L_KT}
""")
    for t in range(3):
        e(f"v_add_u32 v9, {4*t}, v6\n v_cmp_gt_u32 s[68:69], 5, v9\n v_mad_u32_u24 v9, v5, 5, v9\n s_and_b64 s[68:69], s[68:69], s[70:71]\n v_cndmask_b32_e64 v9, v7, v9, s[68:69]\n v_lshl_add_u32 v9, v9, 3, s57\n ds_write_b32 v8, v9 offset:{256*t}")
    e("v_mov_b32 v28, 0")
    srd(36, 24, 0x10000000)
    srd(64, 22, 256)
    if lprio: e(f"s_setprio {lprio}")
    e("s_waitcnt vmcnt(12)\n s_barrier")
    issue()
    e(f"s_mul_i32 s58, s3, 4608\n s_add_u32 s58, s58, {L_STAGE}\n s_cmp_ge_u32 s53, 9\n s_cselect_b32 s59, 8, 0\n s_lshl_b32 s57, s26, 4\n s_add_u32 s59, s59, s57\n s_add_u32 s59, s59, s3\n v_lshlrev_b32 v{VST}, 4, v13\n v_lshrrev_b32 v{VOUT}, 3, v1")
    s3_addr1(); s3_addr2(58, 59, 68)
    a.lab("L_hloop1")
    e("s_waitcnt vmcnt(12)\n s_barrier")
    issue()
    e(f"s_cmp_lg_u32 s44, {7 if eflag else 8}\n s_cbranch_scc1 L_hloop1")
    e("buffer_load_dword v27, v28, s[64:67], 0 offen offset:128 sc1\n s_waitcnt vmcnt(13)\n s_barrier")
    if eflag: issue()
    else: stamp(4)
    e(f"s_waitcnt vmcnt({12 if eflag else 0})\n v_cmp_eq_u32 vcc, 0, v27\n s_cbranch_vccz L_fok")
    flags_wait("a", False, 128)
    a.lab("L_fok")
    def statloads():
        e("buffer_load_dword v30, v18, s[36:39], s60 offen sc1\n s_add_u32 s57, s60, 8192\n buffer_load_dword v31, v18, s[36:39], s57 offen sc1\n s_mov_b32 s57, s61")
        for i in range(8):
            e(f"buffer_load_dword v{32+i}, v19, s[36:39], s57 offen sc1")
            if i < 7: e("s_add_u32 s57, s57, 3840")
    statloads()
    e("buffer_load_dword v27, v28, s[64:67], 0 offen offset:132 sc1")
    if eflag:
        e("s_waitcnt vmcnt(23)\n s_barrier")
        stamp(4)
        wo_dma("a", 8)
        e("s_waitcnt vmcnt(19)\n s_barrier")
        stamp(6)
    else:
        e("s_barrier")
        stamp(6)
        wo_dma("a", 8)
    e("s_mov_b32 s59, 0\n s_waitcnt vmcnt(8)\n s_branch L_st1")
    a.lab("L_st0")
    statloads()
    e(f"""
s_waitcnt vmcnt(0)
L_st1:
v_max3_u32 v2, v30, v31, v32
v_max3_u32 v2, v2, v33, v34
v_max3_u32 v2, v2, v35, v36
v_max3_u32 v2, v2, v37, v38
v_max_u32 v2, v2, v39
v_cmp_eq_u32 vcc, -1, v2
s_cbranch_vccz L_st2
s_add_u32 s59, s59, 1
s_cmp_lt_u32 s59, {SPIN}
s_cbranch_scc1 L_st0
L_st2:
{"s_memrealtime s[98:99]" if stamps else ""}
v_add_u32 v18, {L_RS}, v18
v_pk_add_f32 v[32:33], v[32:33], v[36:37]
v_pk_add_f32 v[34:35], v[34:35], v[38:39]
v_pk_add_f32 v[32:33], v[32:33], v[34:35]
v_add_f32 v32, v32, v33
ds_write_b32 v18, v30
ds_write_b32 v18, v31 offset:1024
ds_write_b32 v18, v32 offset:2048
""")
    e("s_waitcnt lgkmcnt(0)\n s_barrier")
    stamp(1)
    wo_dma("b", -8)
    flags_wait("r", True, 132)
    e("s_mov_b32 s32, s52\n s_mov_b32 s34, s62\n s_cmp_lg_u32 s54, 3\n s_cbranch_scc1 L_hpub")
    sw_calc()
    a.lab("L_hpub")
    s3_scal(False)
    e("s_cmp_lg_u32 s54, 3\n s_cbranch_scc1 L_hpub2\n s_waitcnt lgkmcnt(0)\n s_barrier")
    s3_reads(); s3_unpack()
    e("s_barrier\n s_mov_b32 s33, 1\n s_branch L_s3a")
    a.lab("L_hpub2")
    if hprio: e("s_setprio 2")
    e("s_mov_b32 s59, 0\n s_barrier")
    for i in range(4): e(f"ds_read_b128 v[{32+4*i}:{35+4*i}], v22 offset:{8192*i}")
    e("s_waitcnt lgkmcnt(0)")
    e("v_pk_add_f32 v[32:33], v[32:33], v[36:37]\n v_pk_add_f32 v[34:35], v[34:35], v[38:39]\n v_pk_add_f32 v[40:41], v[40:41], v[44:45]\n v_pk_add_f32 v[42:43], v[42:43], v[46:47]")
    e("v_pk_add_f32 v[32:33], v[32:33], v[40:41]\n v_pk_add_f32 v[34:35], v[34:35], v[42:43]")
    e("buffer_store_dwordx4 v[32:35], v25, s[36:39], s32 offen sc1")
    stamp(2)
    if hread:
        e("s_setprio 0"); s3_reads(); e("s_setprio 2")
    e("s_waitcnt vmcnt(0)" if await_ else f"s_sleep {asleep}")
    a.lab("L_hA")
    e("s_mov_b32 s57, s34")
    for i in range(8):
        e(f"buffer_load_dwordx4 v[{64+4*i}:{67+4*i}], v25, s[36:39], s57 offen sc1")
        if i < 7: e("s_add_u32 s57, s57, 3072")
    for i in range(1, 8):
        e(f"s_waitcnt vmcnt({7-i})")
        for h in range(2):
            src = 64 if i == 1 else 32
            e(f"v_pk_add_f32 v[{32+2*h}:{33+2*h}], v[{src+2*h}:{src+1+2*h}], v[{64+4*i+2*h}:{65+4*i+2*h}]")
    e("v_pk_add_f32 v[36:37], v[32:33], v[34:35]\n v_cmp_u_f32 vcc, v36, v37\n s_cbranch_vccnz L_hA1\nL_hA2:")
    e("""
v_pk_mul_f32 v[32:33], v[32:33], v[12:13] op_sel_hi:[1,0]
v_pk_mul_f32 v[34:35], v[34:35], v[12:13] op_sel_hi:[1,0]
v_cvt_pk_bf16_f32 v32, v32, v33
v_cvt_pk_bf16_f32 v33, v34, v35
v_and_b32 v32, v32, v23
v_and_b32 v33, v33, v24
ds_write_b64 v26, v[32:33]
s_waitcnt lgkmcnt(0)
s_barrier
""")
    stamp(3)
    if hprio: e("s_setprio 0")
    e(f"s_branch {'L_s3un' if hread else 'L_s3rd'}")
    a.lab("L_hA1")
    e("v_max3_u32 v2, v64, v65, v66")
    for i in range(67, 95, 2): e(f"v_max3_u32 v2, v2, v{i}, v{i+1}")
    e(f"v_max_u32 v2, v2, v95\n v_cmp_eq_u32 vcc, -1, v2\n s_cbranch_vccz L_hA2\n s_add_u32 s59, s59, 1\n s_cmp_lt_u32 s59, {SPIN}\n s_cbranch_scc1 L_hA\n s_branch L_hA2")

    a.lab("L_compute")
    e(f"""
v_lshrrev_b32 v15, 1, v13
v_xor_b32 v15, v15, v14
v_lshlrev_b32 v15, 4, v15
v_lshl_add_u32 v4, v13, 7, v15
s_lshl_b32 s55, s54, 13
v_add_u32 v4, s55, v4
v_xor_b32 v5, 64, v4
v_lshrrev_b32 v2, 2, v13
v_lshl_add_u32 v2, v14, 2, v2
v_and_b32 v3, 3, v13
v_and_b32 v15, 7, v2
v_lshlrev_b32 v15, 5, v15
v_lshlrev_b32 v2, 8, v2
v_add_u32 v2, {XS}, v2
v_add_u32 v16, 3, v3
v_and_b32 v16, 4, v16
v_lshlrev_b32 v16, 1, v16
v_and_b32 v17, 2, v3
v_lshlrev_b32 v17, 2, v17
v_lshlrev_b32 v3, 3, v3
v_add_u32 v3, s52, v3
s_lshl_b32 s56, s47, 1
s_sub_u32 s57, 2, s56
s_lshl_b32 s58, s47, 4
s_sub_u32 s58, 8, s58
""")
    if qswap: e("v_mul_u32_u24 v16, s57, v16\n v_mul_u32_u24 v17, s56, v17\n v_add_u32 v17, s58, v17")
    for T in range(7):
        secs = [min((4*T+c)//9, 2) for c in range(4)]
        e(f"v_add_u32 v{6+T}, {32*T + 8*secs[0]}, v3")
        if T == 2: e(f"v_add_u32 v{6+T}, v{6+T}, v16")
        if T == 4: e(f"v_add_u32 v{6+T}, v{6+T}, v17")
        if T == 3 and qswap: e(f"v_add_u32 v{6+T}, s58, v{6+T}")
        e(f"v_xor_b32 v{6+T}, v{6+T}, v15\n v_add_u32 v{6+T}, v{6+T}, v2")
    e(f"""
s_lshl_b32 s55, s54, 8
s_add_u32 s55, s55, {L_RS}
v_lshl_add_u32 v249, v14, 4, s55
v_lshlrev_b32 v250, 2, v13
v_add_u32 v250, {L_CS}, v250
v_cmp_le_u32 s[40:41], 12, v13
v_cndmask_b32_e64 v251, 0, -1, s[40:41]
s_mul_i32 s55, s54, 7680
s_add_u32 s55, s55, {L_PQ}
v_mul_u32_u24 v252, 40, v13
v_lshl_add_u32 v252, v14, 3, v252
v_add_u32 v252, s55, v252
v_lshrrev_b32 v254, 2, v13
v_add_u32 v254, v254, v13
v_lshl_add_u32 v254, v254, 3, s55
v_mul_u32_u24 v253, 160, v14
v_add_u32 v253, v253, v254
s_lshl_b32 s55, s54, 13
s_add_u32 s55, s55, {L_KVRED}
v_lshl_add_u32 v255, v1, 4, s55
""")
    ACC = 16; F = [128, 172]
    for i in range(4): e(f"v_mov_b32 v{F[1]+i}, 0")
    for i in range(28): e(f"v_mfma_f32_16x16x32_bf16 v[{ACC+4*i}:{ACC+4*i+3}], v[{F[1]}:{F[1]+3}], v[{F[1]}:{F[1]+3}], 0")
    def reads(fs, kk):
        r = [f"ds_read_b128 v[{F[fs]+4*j}:{F[fs]+4*j+3}], v{4+kk} offset:{j*2048}" for j in range(4)]
        for T in range(7):
            for hf in range(2):
                d = F[fs]+16+4*T+2*hf
                r.append(f"ds_read_b64_tr_b16 v[{d}:{d+1}], v{6+T} offset:{(kk*32+hf*16)*256}")
        return r
    def acc(j, T): return ACC + (j*7+T)*4
    def mfmas(fs):
        m = []
        for T in range(7):
            for j in range(4):
                c = acc(j, T); b = F[fs]+16+4*T
                m.append(f"v_mfma_f32_16x16x32_bf16 v[{c}:{c+3}], v[{F[fs]+4*j}:{F[fs]+4*j+3}], v[{b}:{b+3}], v[{c}:{c+3}]")
        return m
    def weave(m, r, extra):
        out = []
        for i, x in enumerate(m):
            out.append(x)
            if i < len(r): out.append(r[i])
            if i in extra: out.extend(extra[i])
        return out
    e(f"s_mov_b32 s55, 0\n s_mov_b32 s56, 0\n s_mov_b32 s58, {STG}\n s_waitcnt lgkmcnt(0)")
    srd(36, 24, 0x10000000)
    srd(28, 4, 2359296)
    stamp(14)
    e("s_barrier")
    stamp(1)
    for r in reads(0, 0): e(r)
    e("s_waitcnt lgkmcnt(0)\n s_branch L_cloop\n .p2align 3")
    a.lab("L_cloop2")
    for x in weave(mfmas(1), reads(0, 0), {}): e(x)
    e("s_waitcnt lgkmcnt(0)")
    a.lab("L_cloop")
    ex = {0: ["s_add_u32 s56, s56, 1", f"s_cmp_eq_u32 s56, {NBUF}"], 1: [f"s_cselect_b32 s57, {(-(NBUF-1)*STG) & 0xffffffff}, s58", "s_cselect_b32 s56, 0, s56"],
          2: ["v_add_u32 v4, s57, v4"], 4: ["v_add_u32 v5, s57, v5"], 22: ["s_add_u32 s55, s55, 1", "s_cmp_lt_u32 s55, 9"]}
    for T in range(7): ex.setdefault(6+2*T, []).append(f"v_add_u32 v{6+T}, s57, v{6+T}")
    for x in weave(mfmas(0), reads(1, 1), ex): e(x)
    e("s_waitcnt lgkmcnt(0)\n s_barrier\n s_cbranch_scc1 L_cloop2")
    RS, MRS = 128, 144
    CSR = [160, 162, 164, 166, 168, 170, 10]
    K = 4
    import math
    C1L = LOG2E*1.000001; E2M = LOG2E*math.exp(-1.000001); E2A = LOG2E*1e-6
    tr = [f"ds_read_b32 v{CSR[T]}, v250 offset:{64*T}" for T in range(7)]
    for j in range(4): tr += [f"ds_read_b128 v[{RS+4*j}:{RS+4*j+3}], v249 offset:{64*j}", f"ds_read_b128 v[{MRS+4*j}:{MRS+4*j+3}], v249 offset:{1024+64*j}"]
    tr += [f"v_mov_b32 v{K}, {f2u(C1L):#x}", f"v_mov_b32 v{K+2}, {f2u(E2M):#x}", f"v_mov_b32 v{K+4}, {f2u(E2A):#x}", "v_mov_b32 v2, 0x3f803f80"]
    for x in weave(mfmas(1), tr, {}): e(x)
    e("s_waitcnt lgkmcnt(0)")
    stamp(2)
    TMP = 204
    def phi(j, T, dst):
        c = acc(j, T); p = f"v[{CSR[T]}:{CSR[T]+1}]"; u = TMP; t = TMP+4
        for h in range(2): e(f"v_pk_fma_f32 v[{u+2*h}:{u+2*h+1}], v[{MRS+4*j+2*h}:{MRS+4*j+2*h+1}], {p}, v[{K}:{K+1}] op_sel_hi:[1,0,0]")
        for h in range(2): e(f"v_pk_fma_f32 v[{u+2*h}:{u+2*h+1}], v[{c+2*h}:{c+2*h+1}], v[{RS+4*j+2*h}:{RS+4*j+2*h+1}], v[{u+2*h}:{u+2*h+1}]")
        for q in range(4): e(f"v_exp_f32 v{t+q}, v{u+q}")
        for h in range(2): e(f"v_pk_fma_f32 v[{t+2*h}:{t+2*h+1}], v[{t+2*h}:{t+2*h+1}], v[{K+2}:{K+3}], v[{K+4}:{K+5}] op_sel_hi:[1,0,0]")
        for q in range(4): e(f"v_med3_f32 v{t+q}, v{u+q}, v{t+q}, v{K}")
        for h in range(2): e(f"v_cvt_pk_bf16_f32 v{dst+h}, v{t+2*h}, v{t+2*h+1}")
    def lin(j, T, dst):
        c = acc(j, T); p = f"v[{CSR[T]}:{CSR[T]+1}]"
        for h in range(2): e(f"v_pk_mul_f32 v[{TMP+8+2*h}:{TMP+9+2*h}], v[{MRS+4*j+2*h}:{MRS+4*j+2*h+1}], {p} op_sel_hi:[1,0]")
        for h in range(2): e(f"v_pk_fma_f32 v[{TMP+8+2*h}:{TMP+9+2*h}], v[{c+2*h}:{c+2*h+1}], v[{RS+4*j+2*h}:{RS+4*j+2*h+1}], v[{TMP+8+2*h}:{TMP+9+2*h}]")
        for h in range(2): e(f"v_cvt_pk_bf16_f32 v{dst+h}, v{TMP+8+2*h}, v{TMP+9+2*h}")
    PK = 216; KVA = 172
    pairs = [(0,0),(0,1),(0,2),(1,0),(1,1),(1,2),(2,1),(2,2)]
    def capture(fn):
        n0 = len(a.L); fn(); r = a.L[n0:]; del a.L[n0:]; return [x.strip() for x in r]
    Bop = lambda tb, jp: PK + 8*tb + 4*jp
    Aop = lambda ta, jp: acc(ta, 5) + 4*jp
    for T in range(3):
        for j in range(4): lin(j, 4+T, Bop(T, j >> 1) + 2*(j & 1))
    for r in range(8): e(f"v_bfi_b32 v{Bop(2, 0)+r}, v251, v2, v{Bop(2, 0)+r}")
    def kvwork(ta):
        m = []; w = []
        for jp in range(2):
            for n, (x, tb) in enumerate(pairs):
                if x != ta: continue
                c = KVA + 4*n
                m.append(f"v_mfma_f32_16x16x32_bf16 v[{c}:{c+3}], v[{Aop(ta, jp)}:{Aop(ta, jp)+3}], v[{Bop(tb, jp)}:{Bop(tb, jp)+3}], " + ("0" if jp == 0 else f"v[{c}:{c+3}]"))
                if jp: w.append(f"ds_write_b128 v255, v[{c}:{c+3}] offset:{n*1024}")
        return m, w
    side = []
    for T in range(3):
        v = capture(lambda: [phi(j, T, Aop(T, j >> 1) + 2*(j & 1)) for j in range(4)])
        k = 0
        for i, x in enumerate(v):
            e(x)
            if i % 6 == 5 and k < len(side): e(side[k]); k += 1
        for x in side[k:]: e(x)
        m, w = kvwork(T); side = m + w
    for x in side: e(x)
    e("s_waitcnt lgkmcnt(0)")
    stamp(13)
    e("s_barrier")
    stamp(3)
    for j in range(4): e(f"ds_write_b64 v252, v[{Aop(2, j >> 1) + 2*(j & 1)}:{Aop(2, j >> 1) + 2*(j & 1) + 1}] offset:{j*1920}")
    for j in range(4):
        for T in (3, 4):
            d = PK + (j*2 + T-3)*2
            phi(j, T, d)
            e(f"ds_write_b64 v252, v[{d}:{d+1}] offset:{j*1920 + (T-2)*640}")
    PQ = 16
    e("s_waitcnt lgkmcnt(0)")
    for j in range(4):
        for t in range(2): e(f"ds_read_b64_tr_b16 v[{PQ+6*j+2*t}:{PQ+6*j+2*t+1}], v253 offset:{j*1920 + (4+16*t)*40}")
        e(f"ds_read_b64_tr_b16 v[{PQ+6*j+4}:{PQ+6*j+5}], v254 offset:{j*1920 + 36*40}")
    KA = 44
    e(f"v_lshlrev_b32 v2, 2, v1\n v_add_u32 v2, {L_KTA}, v2")
    if lf:
        for i in range(9): e(f"ds_read_b32 v{240+i}, v2 offset:{256*i}")
    e(f"v_mov_b32 v{PQ+24}, 0\n v_mov_b32 v{PQ+25}, 0")
    for tau in range(3): e(f"v_mov_b32 v{KA+8*tau+6}, 0\n v_mov_b32 v{KA+8*tau+7}, 0")
    e(f"""
v_lshlrev_b32 v6, 4, v1
v_lshlrev_b32 v7, 4, v13
v_lshl_add_u32 v7, v14, 1, v7
s_xor_b32 s57, s48, {qswap}
s_lshr_b32 s58, s57, 1
s_lshl_b32 s58, s58, 8
s_and_b32 s59, s57, 1
s_lshl_b32 s59, s59, 3
s_add_u32 s58, s58, s59
s_add_u32 s58, s58, 16384
v_add_u32 v7, s58, v7
s_lshl_b32 s57, s57, 10
v_add_u32 v6, s57, v6
v_and_b32 v8, 1, v14
v_lshl_or_b32 v7, v8, 31, v7
v_mov_b32 v9, {f2u(1/LOG2E):#x}
v_mov_b32 v10, {f2u(1e-6):#x}
v_mov_b32 v8, v2
s_lshl_b32 s55, s50, 4
s_lshl_b32 s56, s54, 2
s_add_u32 s55, s55, s56
s_mul_i32 s55, s55, 18432
s_add_u32 s55, s55, {OB}
s_waitcnt lgkmcnt(0)
""")
    s3_scal()
    if not lf:
        s3_addr1(); s3_reads(); s3_addr2(); s3_unpack(); e("s_waitcnt lgkmcnt(0)")
        for i in range(9): e(f"ds_read_b32 v{240+i}, v8 offset:{256*i}")
        e("s_waitcnt lgkmcnt(0)")
    stamp(4)
    e("s_barrier")
    stamp(5)
    for tau in (2, 0, 1):
        for t in range(3): e(f"ds_read_b64 v[{KA+8*tau+2*t}:{KA+8*tau+2*t+1}], v{240+tau*3+t}")
    D = 68
    def s2m(j, tau, half):
        c = D + 12*j + 4*tau
        return f"v_mfma_f32_16x16x32_bf16 v[{c}:{c+3}], v[{KA+8*tau+4*half}:{KA+8*tau+4*half+3}], v[{PQ+6*j+4*half}:{PQ+6*j+4*half+3}], " + ("0" if half == 0 else f"v[{c}:{c+3}]")
    e("s_waitcnt lgkmcnt(6)")
    for half in range(2):
        for j in range(4): e(s2m(j, 2, half))
    e("s_waitcnt lgkmcnt(0)")
    mm = [s2m(j, tau, half) for j in range(4) for half in range(2) for tau in range(2)]
    dv = []
    for op in range(6):
        for j in range(4):
            r = D + 12*j + 10
            dv.append([f"v_mul_f32 v{r}, v9, v{r}", f"v_cvt_pk_bf16_f32 v{r}, v{r}, v{r}", f"v_and_b32 v{r}, 0xffff0000, v{r}", f"v_add_f32 v{r}, v10, v{r}", f"v_rcp_f32 v{r}, v{r}", f"v_mul_f32 v{r}, v9, v{r}"][op])
    for x in interleave(mm, dv, 2, 3): e(x)
    for j in range(4):
        c = D + 12*j; o = c
        for h in range(5): e(f"v_pk_mul_f32 v[{c+2*h}:{c+2*h+1}], v[{c+2*h}:{c+2*h+1}], v[{c+10}:{c+11}] op_sel_hi:[1,0]")
        for h in range(5): e(f"v_cvt_pk_bf16_f32 v{o+h}, v{c+2*h}, v{c+2*h+1}")
        e(f"buffer_store_dwordx4 v[{o}:{o+3}], v6, s[36:39], s55 offen sc1\n buffer_store_dword v{o+4}, v7, s[36:39], s55 offen sc1")
        if j < 3: e(f"s_add_u32 s55, s55, {16*1152}")
    stamp(6)

    e(f"s_mov_b32 s33, {0 if lf else 1}\n s_branch L_s3a")
    a.lab("L_s3pre")
    s3_scal(); s3_addr1(); s3_addr2()
    a.lab("L_s3rd")
    s3_reads()
    a.lab("L_s3un")
    e("s_mov_b32 s33, 1")
    s3_unpack()
    a.lab("L_s3a")
    e("v_lshlrev_b32 v6, 4, v1\n s_mov_b32 s35, 0")
    e(f"""
{"" if hintall else "s_cmp_lt_u32 s27, 16"}
{"" if hintall else "s_cbranch_scc1 L_oload"}
s_cmp_lg_u32 s3, 7
s_cbranch_scc1 L_oload
v_mov_b32 v2, 0
s_mov_b32 s59, 0
s_add_u32 s57, s62, 1024
L_ohint:
s_sleep {hsleep}
buffer_load_dword v3, v2, s[36:39], s57 offen offset:1020 sc1
s_waitcnt vmcnt(0)
v_cmp_eq_u32 vcc, -1, v3
s_cbranch_vccz L_oload
s_add_u32 s59, s59, 1
s_cmp_lt_u32 s59, {SPIN}
s_cbranch_scc1 L_ohint
L_oload:
{"s_sleep %d" % osleep if osleep else ""}
s_waitcnt {"vmcnt(0) " if owait else ""}lgkmcnt(0)
s_barrier
""")
    stamp(7)
    if s3prio: e(f"s_cmp_lt_u32 s3, 4\n s_cbranch_scc1 L_s3p\n s_setprio {s3prio}\nL_s3p:")
    groups = [[2*i, 2*i+1] for i in range(9)]
    def oreg(k): return OF + 4*(k % (2*ahead+2))
    def oloads(g):
        r = []
        for k in g:
            o = oreg(k)
            if k % 2 == 0: r.append(f"s_add_u32 s57, s62, {k*1024}")
            r.append(f"buffer_load_dwordx4 v[{o}:{o+3}], v6, s[36:39], s57 offen offset:{1024*(k%2)} {x_fl}")
        return r
    def ocheck(g):
        o = oreg(g[0])
        if lchk and g[0] < 16:
            e(f"v_max_u32 v2, v{o+3}, v{o+7}\n v_cmp_eq_u32 vcc, -1, v2"); return
        e(f"v_max3_u32 v2, v{o}, v{o+1}, v{o+2}\n v_max3_u32 v3, v{o+3}, v{o+4}, v{o+5}\n v_max3_u32 v2, v2, v{o+6}, v{o+7}\n v_max_u32 v2, v2, v3\n v_cmp_eq_u32 vcc, -1, v2")
    cnt = lambda i: 0 if i > 8 else 2
    e(f"""
s_lshr_b32 s57, s60, 3
s_lshl_b32 s57, s57, 7
s_add_u32 s57, s57, {XID}
v_min_u32 v8, 8, v1
v_lshlrev_b32 v8, 2, v8
buffer_load_dword v15, v8, s[36:39], s57 offen sc1
s_getreg_b32 s53, hwreg(HW_REG_XCC_ID)
s_and_b32 s53, s53, 15
""")
    a.lab("L_redo")
    for g in groups[:ahead]:
        for x in oloads(g): e(x)
    e("s_cmp_eq_u32 s33, 0\n s_cbranch_scc0 L_s3b")
    s3_addr1(); s3_reads(); s3_addr2(); s3_unpack()
    e("s_waitcnt lgkmcnt(0)")
    a.lab("L_s3b")
    e("s_mov_b32 s59, 0")
    for gi, g in enumerate(groups):
        e(f"s_waitcnt vmcnt({sum(cnt(gi+d) for d in range(1, ahead))})")
        if gi + ahead < 9 and not x_nold:
            for x in oloads(groups[gi+ahead]): e(x)
        if gi == 9 - ahead:
            e(f"""
v_cmp_ne_u32 s[54:55], s53, v15
s_cmp_eq_u64 s[54:55], 0
s_cselect_b32 s53, {fast}, 0
s_cmp_eq_u32 s53, 0
s_cbranch_scc1 L_npt
v_min_u32 v8, 17, v1
v_lshlrev_b32 v8, 7, v8
buffer_load_dword v15, v8, s[36:39], s51 offen
L_npt:
""")
        if not x_nochk:
            ocheck(g)
            e(f"s_cbranch_vccnz L_oretry{gi}")
        a.lab(f"L_ook{gi}")
        for k in g:
            if k >= NPRE and (NPRE < 9 or k == NPRE): e(f"s_waitcnt lgkmcnt({min(8*(min(k+NPRE-1, 17) - k), 15) if NPRE < 9 else 0})")
            m = []
            for T in range(4):
                b = BR + (k % NPRE)*16 + 4*T
                m.append(f"v_mfma_f32_16x16x32_bf16 v[{AC+4*T}:{AC+4*T+3}], v[{b}:{b+3}], v[{oreg(k)}:{oreg(k)+3}], v[{AC+4*T}:{AC+4*T+3}]")
            if k+NPRE == 16:
                for T in range(4): e(f"v_add_u32 v{BA+T}, 0x10000, v{BA+T}")
            r = bread(k+NPRE) if k+NPRE < 18 and not x_nord else []
            for T in range(4):
                if not x_nomf: e(m[T])
                for x in r[2*T:2*T+2]: e(x)
    stamp(8)
    if lchk: e(f"v_cmp_u_f32 vcc, v{AC}, v{AC}\n s_cbranch_vccnz L_nan\nL_nanok:")
    HP = 64; HF = 72
    for i in range(8): e(f"v_cvt_pk_bf16_f32 v{HP+i}, v{AC+2*i}, v{AC+2*i+1}")
    e(f"""
v_mfma_f32_16x16x32_bf16 v[20:23], v[{HP}:{HP+3}], v[{HP}:{HP+3}], 0
v_mfma_f32_16x16x32_bf16 v[16:19], v[{WR}:{WR+3}], v[{HP}:{HP+3}], 0
v_mfma_f32_16x16x32_bf16 v[20:23], v[{HP+4}:{HP+7}], v[{HP+4}:{HP+7}], v[20:23]
v_mfma_f32_16x16x32_bf16 v[16:19], v[{WR+4}:{WR+7}], v[{HP+4}:{HP+7}], v[16:19]
v_cndmask_b32_e64 v20, v20, v21, s[46:47]
v_cndmask_b32_e64 v22, v22, v23, s[42:43]
v_cndmask_b32_e64 v17, v20, v22, s[48:49]
s_mov_b64 exec, s[44:45]
s_cmp_eq_u32 s53, 0
s_cbranch_scc1 L_ss
buffer_store_dwordx3 v[16:18], v{VST}, s[36:39], s52 offen
L_sb:
s_mov_b64 exec, -1
""")
    stamp(9)
    for i in range(8): e(f"v_lshlrev_b32 v{HF+2*i}, 16, v{HP+i}\n v_and_b32 v{HF+2*i+1}, 0xffff0000, v{HP+i}")
    for T in range(4): e(f"ds_write_b64 v{VSW}, v[{HP+2*T}:{HP+2*T+1}] offset:{2304+32*T}")
    e(f"""
s_mov_b32 s59, 0
{"s_waitcnt vmcnt(0)" if cwait else ""}
L_c1:
buffer_load_dwordx3 v[20:22], v6, s[36:39], s51 offen sc1
buffer_load_dwordx3 v[24:26], v6, s[36:39], s51 offen offset:1024 sc1
buffer_load_dwordx3 v[28:30], v{VST}, s[36:39], s51 offen offset:2048 sc1
s_waitcnt vmcnt(0)
v_max3_u32 v2, v20, v21, v22
v_max3_u32 v3, v24, v25, v26
v_max3_u32 v4, v28, v29, v30
v_max3_u32 v2, v2, v3, v4
v_cmp_eq_u32 vcc, -1, v2
s_cbranch_vccz L_c1ok
s_add_u32 s59, s59, 1
s_cmp_lt_u32 s59, {SPIN}
s_cbranch_scc1 L_c1
L_c1ok:
""")
    stamp(10)
    for q in range(3): e(f"v_add_f32 v{16+q}, v{20+q}, v{24+q}\n v_add_f32 v{20+q}, v{20+q}, v{24+q}")
    for q in range(3): e(f"v_permlane16_swap_b32 v{16+q}, v{20+q}")
    for q in range(3): e(f"v_add_f32 v{24+q}, v{16+q}, v{20+q}\n v_add_f32 v{16+q}, v{16+q}, v{20+q}")
    for q in range(3): e(f"v_permlane32_swap_b32 v{16+q}, v{24+q}")
    for q in range(3): e(f"v_add_f32 v{16+q}, v{16+q}, v{24+q}")
    for q in range(3): e(f"v_add_f32 v{16+q}, v{16+q}, v{28+q}")
    inv = f2u(1.0/576)
    e(f"""
v_mul_f32 v16, {inv:#x}, v16        ; mean
v_mul_f32 v17, {inv:#x}, v17
v_fma_f32 v17, -v16, v16, v17       ; var
v_max_f32 v17, 0, v17
v_cvt_pk_bf16_f32 v20, v16, v17
v_lshlrev_b32 v16, 16, v20
v_and_b32 v17, 0xffff0000, v20
v_add_f32 v17, {f2u(1e-5):#x}, v17
v_cvt_pk_bf16_f32 v17, v17, v17
v_and_b32 v17, 0xffff0000, v17
v_sqrt_f32 v17, v17
v_fma_f32 v18, -v16, v{VSUM}, v18
v_cvt_pk_bf16_f32 v17, v17, v17
v_and_b32 v17, 0xffff0000, v17
v_rcp_f32 v56, v17
v_mul_f32 v18, v18, v56
v_cvt_pk_bf16_f32 v18, v18, v18
v_ashrrev_i32 v20, 31, v18
v_or_b32 v20, 0x80000000, v20
v_xor_b32 v18, v18, v20
s_mov_b32 s57, 0xffff0000
v_and_or_b32 v18, v18, s57, v{VTOK}    ; key
""")
    NP = 32; NF = 40
    def hncalc():
        for i in range(8): e(f"v_pk_add_f32 v[{NF+2*i}:{NF+2*i+1}], v[{HF+2*i}:{HF+2*i+1}], v[16:17] op_sel_hi:[1,0] neg_lo:[0,1] neg_hi:[0,1]")
        for i in range(8): e(f"v_cvt_pk_bf16_f32 v{NP+i}, v{NF+2*i}, v{NF+2*i+1}")
        for i in range(8): e(f"v_lshlrev_b32 v{NF+2*i}, 16, v{NP+i}\n v_and_b32 v{NF+2*i+1}, 0xffff0000, v{NP+i}")
        for i in range(8): e(f"v_pk_mul_f32 v[{NF+2*i}:{NF+2*i+1}], v[{NF+2*i}:{NF+2*i+1}], v[56:57] op_sel_hi:[1,0]")
        for i in range(8): e(f"v_cvt_pk_bf16_f32 v{NP+i}, v{NF+2*i}, v{NF+2*i+1}")
        for T in range(4): e(f"ds_write_b64 v{VSW}, v[{NP+2*T}:{NP+2*T+1}] offset:{32*T}")
    rowmax(20, 18)
    e("v_cmp_eq_u32 s[40:41], v18, v20\n v_cndmask_b32_e64 v22, v18, 0, s[40:41]")
    rowmax(21, 22)
    if hnearly: hncalc()
    e(f"ds_write_b64 v{VKW}, v[20:21]\n s_lshr_b32 s58, s60, 3\n s_lshl_b32 s57, s58, 7\n s_add_u32 s57, s57, {KEY}\n s_lshl_b32 s56, s63, 11\n s_add_u32 s57, s57, s56\n {'s_mov_b32 s56, s3' if krep else 's_or_b32 s56, s63, s3'}\n v_mov_b32 v23, 0\n s_waitcnt lgkmcnt(0)\n s_barrier\n ds_read_b32 v18, v{VKR}\n s_waitcnt lgkmcnt(0)")
    rowmax(20, 18)
    e("v_cmp_eq_u32 s[40:41], v18, v20\n v_cndmask_b32_e64 v22, v18, 0, s[40:41]")
    rowmax(21, 22)
    e(f"""
s_cmp_lg_u32 s56, 0
s_cbranch_scc1 L_nokey
s_mov_b64 exec, 1
buffer_store_dwordx2 v[20:21], v23, s[36:39], s57 offen sc1
s_mov_b64 exec, -1
L_nokey:
""")
    stamp(11)
    e(f"""
s_mov_b64 s[40:41], 0xff
v_cndmask_b32_e64 v20, v21, v20, s[40:41]
v_not_b32 v20, v20
v_bfe_u32 v22, v20, 4, 3
v_cmp_eq_u32 s[46:47], s3, v22
s_and_b64 s[46:47], s[46:47], 0xffff
s_cbranch_scc0 L_noown
s_setprio {3 if oprio else 0}
L_noown:
""")
    if not hnearly: hncalc()
    e(f"""
v_and_b32 v20, 15, v20
v_mul_u32_u24 v20, 144, v20
v_lshl_add_u32 v20, v{VC7}, 4, v20
v_add_u32 v20, s50, v20
v_bfe_u32 v21, v1, 3, 1
v_mul_u32_u24 v21, 2304, v21
v_lshl_add_u32 v21, v{VC7}, 4, v21
s_mul_i32 s62, s58, 4608
s_lshl_b32 s57, s63, 7
s_add_u32 s62, s62, s57
s_add_u32 s62, s62, {CAND}
s_cmp_eq_u64 s[46:47], 0
s_cbranch_scc1 L_nocand
s_waitcnt lgkmcnt(0)
ds_read_b128 v[24:27], v20
ds_read_b128 v[28:31], v20 offset:2304
s_waitcnt lgkmcnt(0)
""")
    e("s_mov_b64 exec, s[46:47]\n buffer_store_dwordx4 v[24:27], v21, s[36:39], s62 offen sc1\n s_mov_b64 exec, -1\nL_nocand:")
    for i in range(8): e(f"v_lshlrev_b32 v{NF+2*i}, 16, v{NP+i}\n v_and_b32 v{NF+2*i+1}, 0xffff0000, v{NP+i}")
    for i in range(8): e(f"v_pk_add_f32 v[{NF+2*i}:{NF+2*i+1}], v[{NF+2*i}:{NF+2*i+1}], v[{HF+2*i}:{HF+2*i+1}]")
    if hscale:
        for i in range(16): e(f"v_mul_f32 v{NF+i}, {f2u(hscale):#x}, v{NF+i}")
    for i in range(8): e(f"v_cvt_pk_bf16_f32 v{NP+i}, v{NF+2*i}, v{NF+2*i+1}")
    for T in range(4): e(f"ds_write_b64 v{VSW}, v[{NP+2*T}:{NP+2*T+1}] offset:{32*T}")
    srd(68, 20, 2359296)
    e(f"""
s_waitcnt lgkmcnt(0)
ds_read_b128 v[40:43], v{VSR}
ds_read_b128 v[44:47], v{VSR} offset:1152
s_add_u32 s57, s61, {8*1152}
s_waitcnt {"vmcnt(0) " if outwait else ""}lgkmcnt(0)
s_barrier
s_cmp_eq_u64 s[46:47], 0
s_cbranch_scc0 L_own
{"s_sleep %d" % outsleep if outsleep else ""}
buffer_store_dwordx4 v[40:43], v{VOUT}, s[68:71], s61 offen {outfl}
buffer_store_dwordx4 v[44:47], v{VOUT}, s[68:71], s57 offen {outfl}
s_branch L_s3end
L_own:
buffer_store_dwordx4 v[40:43], v{VOUT}, s[68:71], s61 offen sc1
buffer_store_dwordx4 v[44:47], v{VOUT}, s[68:71], s57 offen sc1
s_waitcnt vmcnt(0)
s_mov_b64 exec, s[46:47]
buffer_store_dwordx4 v[28:31], v21, s[36:39], s62 offen offset:1152 sc1
L_s3end:
""")
    if wb: e("s_sub_u32 s57, s27, 25\n s_or_b32 s57, s57, s3\n s_cmp_lg_u32 s57, 0\n s_cbranch_scc1 L_nowb\n s_waitcnt vmcnt(0)\n buffer_wbl2 sc1\nL_nowb:")
    stamp(12)
    fin()
    if lchk:
        e(f"L_nan:\n s_add_u32 s35, s35, 1\n s_cmp_ge_u32 s35, 2000\n s_cbranch_scc1 L_nanok\n s_mov_b32 s33, 0\n s_movk_i32 s53, 99\n v_lshrrev_b32 v{VOUT}, 3, v1\n s_branch L_redo")
    e(f"L_ss:\n buffer_store_dwordx3 v[16:18], v{VST}, s[36:39], s52 offen sc1\n s_waitcnt vmcnt(0)\n s_branch L_sb")
    for gi, g in enumerate(groups):
        a.lab(f"L_oretry{gi}")
        e(f"s_add_u32 s59, s59, 1\n s_cmp_ge_u32 s59, {SPIN}\n s_cbranch_scc1 L_ook{gi}")
        for x in oloads(g): e(x)
        e("s_waitcnt vmcnt(0)")
        ocheck(g)
        e(f"s_cbranch_vccnz L_oretry{gi}\n s_branch L_ook{gi}")

    a.lab("L_B")
    e("s_barrier\n s_cmp_ge_u32 s27, 24\n s_cbranch_scc1 L_X")
    def wacc(st_):
        for p in range(2):
            r = 16 + 8*st_ + 4*p
            d = 88 + 8*p if st_ == 0 else 104
            for q in range(4): e(f"v_lshlrev_b32 v{d+2*q}, 16, v{r+q}\n v_and_b32 v{d+2*q+1}, 0xffff0000, v{r+q}")
            if st_:
                for q in range(4): e(f"v_pk_add_f32 v[{88+8*p+2*q}:{89+8*p+2*q}], v[{88+8*p+2*q}:{89+8*p+2*q}], v[{104+2*q}:{105+2*q}]")
    NL = 2; macc = wacc
    for st_ in range(2, 9):
        e(f"buffer_load_dwordx4 v[{16+8*st_}:{19+8*st_}], v2, s[32:35], s56 offen\n buffer_load_dwordx4 v[{20+8*st_}:{23+8*st_}], v5, s[32:35], s56 offen")
        if st_ < 8: e("s_add_u32 s56, s56, s57\n s_barrier")
        if st_ == 2:
            srd(36, 24, 0x10000000); srd(64, 22, 256); e("v_mov_b32 v113, 0")
        if st_ == 8: e("buffer_load_dword v112, v113, s[64:67], 0 offen offset:128 sc1")
        if st_ >= LAG:
            e(f"s_waitcnt vmcnt({NL*LAG + (st_ == 8)})"); macc(st_-LAG)
    for st_ in range(9-LAG, 9):
        e(f"s_waitcnt vmcnt({NL*(8-st_)+1})"); macc(st_)
    stamp(13)
    e(f"""
s_mul_i32 s57, s3, 3840
v_lshl_add_u32 v2, v1, 5, s57
v_lshl_add_u32 v5, v3, 5, s57
ds_write_b128 v2, v[88:91]
ds_write_b128 v2, v[92:95] offset:16
ds_write_b128 v5, v[96:99]
ds_write_b128 v5, v[100:103] offset:16
v_min_u32 v2, 239, v0
v_lshlrev_b32 v2, 4, v2
s_waitcnt lgkmcnt(0)
s_barrier
s_cmp_ge_u32 s3, 4
s_cbranch_scc1 L_W2
""")
    for i_ in range(8): e(f"ds_read_b128 v[{32+4*i_}:{35+4*i_}], v2 offset:{3840*i_}")
    e(f"s_lshl_b32 s57, s26, 3\n s_add_u32 s57, s57, s47\n s_mul_i32 s57, s57, 3840\n s_add_u32 s57, s57, {CS}\n s_waitcnt lgkmcnt(0)")
    for st in (16, 8, 4):
        for i_ in range(0, st, 2): e(f"v_pk_add_f32 v[{32+i_}:{33+i_}], v[{32+i_}:{33+i_}], v[{32+st+i_}:{33+st+i_}]")
    for q in range(4): e(f"v_min_u32 v{32+q}, -2, v{32+q}")
    flags_wait("w", True, 128, 112, 113)
    e("buffer_store_dwordx4 v[32:35], v2, s[36:39], s57 offen sc1")
    a.lab("L_W2")
    if not fearly: e("s_barrier")
    stamp(1)
    e("s_branch L_F")

    a.lab("L_X")
    e("v_mov_b32 v8, 0\n v_mov_b32 v9, 0\n v_mov_b32 v10, 0\n v_mov_b32 v11, 0\n s_mov_b32 s58, 0x3f803f80")
    def xacc(st_):
        for q in range(4):
            for p in range(2):
                r = 16 + 8*st_ + 4*p + q
                e(f"v_dot2c_f32_bf16 v{8+p}, s58, v{r}\n v_dot2c_f32_bf16 v{10+p}, v{r}, v{r}")
    for st_ in range(2, 9):
        e(f"buffer_load_dwordx4 v[{16+8*st_}:{19+8*st_}], v2, s[32:35], s56 offen\n buffer_load_dwordx4 v[{20+8*st_}:{23+8*st_}], v5, s[32:35], s56 offen")
        if st_ < 8: e("s_add_u32 s56, s56, s57\n s_barrier")
        if st_ >= LAG:
            e(f"s_waitcnt vmcnt({2*LAG})"); xacc(st_-LAG)
    for st_ in range(9-LAG, 9):
        e(f"s_waitcnt vmcnt({2*(8-st_)})"); xacc(st_)
    srd(36, 24, 0x10000000); srd(64, 22, 256); srd(28, 4, 2359296)
    e("v_mov_b32 v28, 0\n buffer_load_dword v27, v28, s[64:67], 0 offen offset:128 sc1")
    for m_ in ("quad_perm:[1,0,3,2]", "quad_perm:[2,3,0,1]", "row_half_mirror"):
        for d in range(8, 12): e(f"v_add_f32_dpp v{d}, v{d}, v{d} {m_} row_mask:0xf bank_mask:0xf")
    e(f"""
v_and_b32 v5, 1, v1
v_cmp_eq_u32 vcc, 1, v5
v_cndmask_b32 v16, v8, v9, vcc
v_cndmask_b32 v18, v10, v11, vcc
v_mul_f32 v16, {inv:#x}, v16
v_mul_f32 v18, {inv:#x}, v18
v_fma_f32 v18, -v16, v16, v18
v_max_f32 v18, 0, v18
v_cvt_pk_bf16_f32 v20, v16, v18
v_lshlrev_b32 v16, 16, v20
v_and_b32 v18, 0xffff0000, v20
v_add_f32 v18, {f2u(1e-5):#x}, v18
v_cvt_pk_bf16_f32 v18, v18, v18
v_and_b32 v18, 0xffff0000, v18
v_sqrt_f32 v18, v18
v_cvt_pk_bf16_f32 v18, v18, v18
v_and_b32 v18, 0xffff0000, v18
v_rcp_f32 v18, v18
v_lshl_add_u32 v20, v5, 3, v7
v_lshlrev_b32 v20, 2, v20
v_mul_f32 v18, {f2u(LOG2E):#x}, v18
v_mul_f32_e64 v19, -v16, v18
v_min_u32 v18, -2, v18
v_min_u32 v19, -2, v19
s_lshl_b32 s56, s55, 6
s_lshl_b32 s57, s46, 14
s_add_u32 s56, s56, s57
s_add_u32 s56, s56, {XST}
s_add_u32 s57, s56, 8192
""")
    flags_wait("x", True, 128)
    e(f"""
s_mov_b32 s58, 0x03030303
s_mov_b32 s59, 0x03030303
s_mov_b64 exec, s[58:59]
buffer_store_dword v18, v20, s[36:39], s56 offen sc1
buffer_store_dword v19, v20, s[36:39], s57 offen sc1
s_mov_b64 exec, -1
""")
    stamp(1)
    e("s_cmp_eq_u32 s27, 24\n s_cbranch_scc1 L_F")
    srd(68, 8, 663552)
    e("s_sub_u32 s56, s27, 25\n s_lshl_b32 s56, s56, 3\n s_add_u32 s56, s56, s3\n s_lshl_b32 s56, s56, 13\n v_lshlrev_b32 v2, 7, v1")
    for i in range(4 if wopf == 1 else 0):
        e(f"buffer_load_dword v100, v2, s[68:71], s56 offen\n s_add_u32 s56, s56, {24*8192}\n s_barrier")
    if upf == 1: up_prefetch(0, 2)
    if stamps: e("s_waitcnt vmcnt(0)")
    stamp(2)
    e("s_cmp_lt_u32 s27, 27\n s_cbranch_scc1 L_HS3")
    fin()
    a.lab("L_HS3")
    e("s_sub_u32 s53, s27, 9\n s_cmp_lt_u32 s3, 4\n s_cbranch_scc1 L_HS3b")
    wo_setup(); wo_dma("h")
    e("s_cmp_lg_u32 s54, 3\n s_cbranch_scc1 L_HS3b")
    flags_wait("h", False, 132, nap=4)
    sw_calc()
    a.lab("L_HS3b")
    if cpf & 2:
        e("s_waitcnt vmcnt(0) lgkmcnt(0)\n s_barrier\n s_cmp_ge_u32 s3, 4\n s_cbranch_scc1 L_s3pre")
        code_touch(54, 102)
        e("s_branch L_s3pre")
    e("s_waitcnt vmcnt(0) lgkmcnt(0)\n s_barrier\n s_branch L_s3pre")

    a.lab("L_R")
    e(f"""
v_mov_b32 v8, -1
v_mov_b32 v9, -1
v_mov_b32 v10, -1
v_mov_b32 v11, -1
v_lshlrev_b32 v12, 4, v1
s_lshl_b32 s48, s26, 2
s_add_u32 s48, s48, s47
s_sub_u32 s48, s48, 12
s_lshl_b32 s57, s48, 3
s_add_u32 s57, s57, s3
s_lshl_b32 s56, s57, 11
s_add_u32 s56, s56, {XST}
s_mul_i32 s57, s57, 14336
s_add_u32 s58, s57, 14336
s_waitcnt lgkmcnt(0)
""")
    srd(36, 24, 0x10000000); srd(64, 22, 256)
    e(f"""
buffer_store_dwordx4 v[8:11], v12, s[36:39], s56 offen sc1
buffer_store_dwordx4 v[8:11], v12, s[36:39], s56 offen offset:1024 sc1
""")
    if sweep:
        srd(28, 4, 2359296); srd(32, 6, 1990656); srd(68, 8, 663552)
        e(f"""
s_cmp_ge_u32 s3, 4
s_cbranch_scc1 L_Rw
v_mul_u32_u24 v2, 1152, v1
s_mul_i32 s55, s48, {64*1152}
s_lshl_b32 s59, s3, 7
s_add_u32 s55, s55, s59
{"buffer_load_dword v100, v2, s[28:31], s55 offen offset:640" if sweep & 1 else "s_nop 0"}
v_lshlrev_b32 v2, 7, v1
s_mul_i32 s55, s48, 3
s_add_u32 s55, s55, s3
s_lshl_b32 s55, s55, 13
s_cmp_eq_u32 s3, 3
s_cselect_b32 s55, 0x100000, s55
{"buffer_load_dword v100, v2, s[68:71], s55 offen" if sweep & 4 else "s_nop 0"}
s_waitcnt vmcnt({bin(sweep & 5).count("1")})
s_branch L_Rx
L_Rw:
v_min_u32 v2, 53, v1
v_lshlrev_b32 v2, 7, v2
s_lshl_b32 s55, s3, 5
s_add_u32 s55, s55, s48
s_add_u32 s55, s55, 32
s_mul_i32 s55, s55, 6912
{"buffer_load_dword v100, v2, s[32:35], s55 offen" if sweep & 2 else "s_nop 0"}
s_waitcnt vmcnt({1 if sweep & 2 else 0})
L_Rx:
""")
    else: e("s_waitcnt vmcnt(0)")
    e(f"""
s_barrier
s_cmp_lg_u32 s3, 0
s_cbranch_scc1 L_R21
""")
    arrive("q", 0, 128, 32)
    stamp(1)
    e(f"""
L_R21:
s_barrier
L_R2:
buffer_store_dwordx4 v[8:11], v12, s[36:39], s57 offen {rflag}
s_add_u32 s57, s57, 1024
s_cmp_lt_u32 s57, s58
s_cbranch_scc1 L_R2
L_R4:
s_waitcnt vmcnt(0)
s_barrier
s_cmp_lg_u32 s3, 0
s_cbranch_scc1 L_R3
""")
    arrive("r", 4, 132, 32)
    a.lab("L_R3")
    if cpf & 1:
        e("s_cmp_lg_u32 s27, 28\n s_cbranch_scc1 L_nct\n s_cmp_lt_u32 s3, 4\n s_cbranch_scc1 L_nct")
        code_touch(54, 102)
        a.lab("L_nct")
    if upf:
        e("s_barrier")
        up_prefetch(48 if upf == 1 else 19, 2)
        if stamps: e("s_waitcnt vmcnt(0)")
    if wopf == 2:
        srd(68, 8, 663552)
        e("s_sub_u32 s56, s27, 28\n s_lshl_b32 s56, s56, 3\n s_add_u32 s56, s56, s3\n s_lshl_b32 s56, s56, 13\n v_lshlrev_b32 v2, 7, v1")
        for i in range(3):
            e(f"s_barrier\n buffer_load_dword v100, v2, s[68:71], s56 offen\n s_add_u32 s56, s56, {32*8192}")
    stamp(2)
    fin()

    a.lab("L_F")
    if nof:
        e(f"s_sleep {nof}")
    e(f"""
s_mul_i32 s48, s26, 9
s_add_u32 s48, s48, s47            ; fi
""")
    GW = 16; DW = 88
    srd(32, 18, 5308416); srd(68, 14, 5308416)
    e(f"""
s_and_b32 s56, s3, 1
s_lshl_b32 s56, s56, 4
s_bfe_u32 s57, s3, 0x10001
s_lshl_b32 s57, s57, 2
s_add_u32 s56, s56, s57
s_lshr_b32 s57, s3, 2
s_lshl_b32 s57, s57, 5
s_add_u32 s55, s56, s57
s_lshl_b32 s57, s48, 6
s_add_u32 s56, s55, s57
s_mul_i32 s56, s56, 1152
s_mul_i32 s57, s3, 9216
v_lshlrev_b32 v2, 4, v1
v_lshrrev_b32 v3, 5, v1
v_mul_u32_u24 v3, 4608, v3
v_add_u32 v3, v3, v2
""")
    for t in range(9):
        e(f"s_add_u32 m0, s57, {F_WU + t*1024}\n s_add_u32 s58, s56, {t*1024 + (4608 if t > 4 else 0)}\n buffer_load_dwordx4 v{3 if t == 4 else 2}, s[32:35], s58 offen nt lds")
        if fthr >= 0: e(f"s_waitcnt vmcnt({fthr})")
    def gu_dma(tag, base):
        e(f"""
s_lshl_b32 s56, s48, 7
s_lshl_b32 s57, s3, 10
s_add_u32 s57, s57, {base}
s_mov_b32 s58, 0
L_Fl{tag}:
s_mov_b32 m0, s57
s_add_u32 s57, s57, 8192
buffer_load_dwordx4 v4, s[68:71], s56 offen nt lds
{'s_waitcnt vmcnt(%d)' % fthr if fthr >= 0 else ''}
s_add_u32 s56, s56, {64*9216}
s_add_u32 s58, s58, 1
s_cmp_lt_u32 s58, 9
s_cbranch_scc1 L_Fl{tag}
""")
    e(f"""
v_lshrrev_b32 v2, 3, v1            ; rr
v_and_b32 v3, 7, v1
v_xor_b32 v3, v3, v2
v_lshlrev_b32 v3, 4, v3
v_lshrrev_b32 v4, 2, v2
v_and_b32 v5, 3, v2
v_lshl_add_u32 v4, v4, 3, v5
v_add_u32 v4, s55, v4              ; k local
v_mul_u32_u24 v4, 9216, v4
v_add_u32 v4, v4, v3
""")
    if fearly: e("s_barrier")
    gu_dma("g", F_WG)
    e(f"""
v_lshrrev_b32 v2, 2, v13
v_lshl_add_u32 v2, v14, 2, v2
v_mul_u32_u24 v2, 1152, v2
v_and_b32 v3, 3, v13
v_lshl_add_u32 v2, v3, 3, v2
v_add_u32 v2, {F_WU}, v2
s_lshl_b32 s56, s3, 5
v_add_u32 v5, s56, v2
s_min_u32 s56, s3, 3
s_lshl_b32 s56, s56, 5
v_add_u32 v6, s56, v2
v_lshlrev_b32 v251, 2, v1
s_mov_b32 s68, s16
s_mov_b32 s69, s17
s_waitcnt vmcnt(9)
s_barrier
""")
    for i in range(5):
        for k in range(2):
            for hf in range(2):
                d = DW + 8*i + 4*k + 2*hf
                e(f"ds_read_b64_tr_b16 v[{d}:{d+1}], v{6 if i == 4 else 5} offset:{(k*32+hf*16)*1152 + 256*i}")
    e("s_waitcnt lgkmcnt(0)\n s_barrier")
    gu_dma("u", F_WU)
    e(f"""
v_lshrrev_b32 v2, 2, v13
v_lshl_add_u32 v2, v14, 2, v2      ; rho
v_and_b32 v3, 7, v2
v_xor_b32 v3, s3, v3
v_lshlrev_b32 v3, 4, v3
v_lshl_add_u32 v3, v2, 7, v3
v_and_b32 v4, 1, v13
v_lshl_add_u32 v3, v4, 3, v3
v_bfe_u32 v4, v13, 1, 1
s_mov_b32 s56, {F_WU}
v_mad_u32_u24 v5, v4, s56, v3
v_add_u32 v6, 0x9000, v5
v_mov_b32 v249, 0
""")
    flags_wait("f", False, 132, 250, 249)
    e("s_barrier")
    for k in range(18):
        for hf in range(2):
            off = (k*32+hf*16)*128
            reg = 5
            if k >= 9: off -= 0x9000; reg = 6
            e(f"ds_read_b64_tr_b16 v[{GW+4*k+2*hf}:{GW+4*k+2*hf+1}], v{reg} offset:{off}")
    e(f"""
v_lshlrev_b32 v7, 4, v0            ; tid*16
v_and_b32 v2, 1, v13
v_mul_u32_u24 v8, 1168, v2
v_lshl_add_u32 v8, v14, 4, v8
v_add_u32 v8, {F_HN}, v8
v_lshlrev_b32 v9, 7, v2
v_lshl_add_u32 v10, v14, 4, v9
v_add_u32 v10, {F_ACT}, v10
v_lshl_add_u32 v9, v14, 3, v9
s_lshl_b32 s56, s3, 4
s_add_u32 s56, s56, {F_ACT}
v_add_u32 v9, s56, v9
v_and_b32 v3, 6, v13
v_add_u32 v9, v9, v3
s_mov_b32 s46, 0xcccccccc
s_mov_b32 s47, 0xcccccccc
s_mov_b32 s52, 0xf0f0f0f0
s_mov_b32 s53, 0xf0f0f0f0
v_mul_u32_u24 v11, 2304, v2
v_lshl_add_u32 v11, v14, 4, v11    ; y voffset
v_lshlrev_b32 v12, 7, v13
v_cmp_le_u32 vcc, 72, v0
v_cndmask_b32_e64 v128, 0, 1, vcc
v_mul_u32_u24 v129, 1152, v128
v_sub_u32 v129, v7, v129
v_lshl_add_u32 v130, v128, 4, v7
v_add_u32 v130, {F_HN}, v130
s_mul_i32 s60, s48, 4608
s_lshl_b32 s56, s3, 6
s_add_u32 s60, s60, s56
s_add_u32 s60, s60, {YP}
s_lshl_b32 s57, s26, 11
{'' if krep else 's_mov_b32 s57, 0'}
s_add_u32 s57, s57, {KEY}
s_mov_b32 s59, 0
s_movk_i32 s58, 144
s_movk_i32 s55, 2304
s_waitcnt lgkmcnt(0)
""")
    stamp(2)
    e(f"""
s_add_u32 s56, s3, 1
s_and_b32 s56, s56, 7
s_cmp_ge_u32 s56, 4
s_cbranch_scc1 L_f2
v_cmp_gt_u32 s[42:43], s58, v0
v_cmp_eq_u32 s[44:45], 1, v128
L_k0:
buffer_load_dwordx2 v[132:133], v12, s[36:39], s57 offen sc1
s_waitcnt vmcnt(0)
v_max_u32 v2, v132, v133
v_cmp_eq_u32 vcc, -1, v2
s_cbranch_vccz L_k1
{'s_sleep %d' % ksleep if ksleep else ''}
s_add_u32 s59, s59, 1
s_cmp_lt_u32 s59, {SPIN}
s_cbranch_scc1 L_k0
L_k1:
""")
    stamp(3)
    rowmax(136, 132)
    e("v_cmp_eq_u32 s[40:41], v132, v136\n v_cndmask_b32_e64 v2, v132, v133, s[40:41]")
    rowmax(137, 2)
    e(f"""
v_not_b32 v2, v136
v_not_b32 v3, v137
v_bfe_u32 v2, v2, 7, 4
v_bfe_u32 v3, v3, 7, 4
v_cmp_eq_u32 s[40:41], v2, v3
v_lshlrev_b32 v2, 1, v2
v_lshlrev_b32 v3, 1, v3
v_addc_co_u32_e64 v3, s[40:41], 0, v3, s[40:41]
s_cmp_eq_u32 s3, 7
s_cbranch_scc1 L_f3
v_cndmask_b32_e64 v2, v2, v3, s[44:45]
v_mad_u32_u24 v2, v2, s55, v129
s_mov_b64 exec, s[42:43]
s_mov_b32 s57, {CAND}
s_mov_b32 s59, 0
L_f0:
buffer_load_dwordx4 v[132:135], v2, s[36:39], s57 offen sc1
s_waitcnt vmcnt(0)
v_max3_u32 v3, v132, v133, v134
v_max_u32 v3, v3, v135
v_cmp_eq_u32 vcc, -1, v3
s_cbranch_vccz L_f1
s_add_u32 s59, s59, 1
s_cmp_lt_u32 s59, {SPIN}
s_cbranch_scc1 L_f0
L_f1:
ds_write_b128 v130, v[132:135]
s_mov_b64 exec, -1
s_waitcnt lgkmcnt(0)
s_branch L_f2
L_f3:
v_readfirstlane_b32 s50, v136
v_readfirstlane_b32 s51, v137
v_readfirstlane_b32 s61, v2
v_readfirstlane_b32 s62, v3
L_f2:
s_barrier
""")
    stamp(4)
    HB = 140
    for k in range(18): e(f"ds_read_b128 v[{HB+4*k}:{HB+4*k+3}], v8 offset:{64*k}")
    for k in range(18):
        e(f"s_waitcnt lgkmcnt({min(17-k,15)})")
        e(f"v_mfma_f32_16x16x32_bf16 v[132:135], v[{GW+4*k}:{GW+4*k+3}], v[{HB+4*k}:{HB+4*k+3}], " + ("0" if k == 0 else "v[132:135]"))
    e(f"""
v_cndmask_b32_e64 v132, v132, v133, s[46:47]
v_cndmask_b32_e64 v134, v134, v135, s[46:47]
v_cndmask_b32_e64 v132, v132, v134, s[52:53]
v_cvt_pk_bf16_f32 v132, v132, v132
v_and_b32 v136, 0xffff0000, v132
v_and_b32 v138, 0xffff0000, v132
v_permlane32_swap_b32 v136, v138
v_mul_f32 v140, {f2u(-LOG2E):#x}, v136
v_exp_f32 v140, v140
v_add_f32 v140, 1.0, v140
v_rcp_f32 v140, v140
v_mul_f32 v136, v136, v140
v_cvt_pk_bf16_f32 v136, v136, v136
v_and_b32 v136, 0xffff0000, v136
v_mul_f32 v136, v136, v138
v_cvt_pk_bf16_f32 v136, v136, v136
s_mov_b64 exec, 0xff00ff
ds_write_b16 v9, v136
s_mov_b64 exec, -1
s_waitcnt lgkmcnt(0)
s_barrier
ds_read_b128 v[140:143], v10
ds_read_b128 v[144:147], v10 offset:64
s_mov_b32 s56, 0x30003
s_mov_b32 s57, 0x30003
s_cmp_ge_u32 s3, 4
s_waitcnt lgkmcnt(0)
""")
    def dm(i, k):
        c = 148 + 4*i
        return f"v_mfma_f32_16x16x32_bf16 v[{c}:{c+3}], v[{DW+8*i+4*k}:{DW+8*i+4*k+3}], v[{140+4*k}:{143+4*k}], " + ("0" if k == 0 else f"v[{c}:{c+3}]")
    for i in range(4):
        for k in range(2): e(dm(i, k))
    e("s_cbranch_scc1 L_y0")
    for k in range(2): e(dm(4, k))
    a.lab("L_y0")
    e("s_mov_b64 exec, s[56:57]")
    for i in range(5):
        c = 148 + 4*i
        if i == 4: e("s_cbranch_scc1 L_y1")
        e(f"buffer_store_dwordx4 v[{c}:{c+3}], v11, s[36:39], s60 offen offset:{512*i} sc1")
    a.lab("L_y1")
    e("s_mov_b64 exec, -1")
    stamp(5)
    e("s_cmp_lg_u32 s3, 7\n s_cbranch_scc1 L_fin\n s_cmp_ge_u32 s48, 36\n s_cbranch_scc1 L_fin")
    e(f"""
s_cmp_ge_u32 s48, 18
s_cselect_b32 s50, s51, s50
s_cselect_b32 s61, s62, s61
s_cselect_b32 s56, 18, 0
s_mul_i32 s61, s61, 2304
s_andn2_b32 s52, 0x7ff, s50
s_sub_u32 s56, s48, s56
s_lshl_b32 s56, s56, 6
s_add_u32 s61, s61, s56
s_add_u32 s61, s61, {CAND}
s_mul_i32 s52, s52, 1152
s_add_u32 s52, s52, s56
s_lshl_b32 s62, s48, 7
s_add_u32 s62, s62, {YP}
v_and_b32 v2, 7, v1
v_lshlrev_b32 v4, 3, v2
v_lshrrev_b32 v3, 3, v1
v_mul_u32_u24 v3, 4608, v3
v_lshl_add_u32 v3, v2, 4, v3
s_ashr_i32 s56, s50, 31
s_not_b32 s56, s56
s_or_b32 s56, s56, 0x80000000
s_xor_b32 s56, s56, s50
s_and_b32 s56, s56, 0xffff0000
v_mov_b32 v5, {f2u(-LOG2E):#x}
v_mul_f32 v5, s56, v5
v_exp_f32 v5, v5
v_add_f32 v5, 1.0, v5
v_rcp_f32 v5, v5
v_cvt_pk_bf16_f32 v5, v5, v5
v_and_b32 v5, 0xffff0000, v5
s_mov_b32 s59, 0
{"s_waitcnt vmcnt(0)" if dwait else "s_sleep %d" % dsleep}
{"s_memrealtime s[88:89]" if stamps else ""}
L_d0:
s_mov_b32 s57, s62
""")
    for i in range(9):
        e(f"buffer_load_dwordx4 v[{16+4*i}:{19+4*i}], v3, s[36:39], s57 offen sc1")
        if i < 8: e(f"s_add_u32 s57, s57, {8*4608}")
    e("buffer_load_dwordx2 v[52:53], v4, s[36:39], s61 offen sc1\n buffer_load_dwordx2 v[54:55], v4, s[36:39], s61 offen offset:1152 sc1\n s_waitcnt vmcnt(0)")
    e("v_max3_u32 v2, v16, v17, v18")
    for i in range(19, 55, 2): e(f"v_max3_u32 v2, v2, v{i}, v{i+1}")
    e(f"""
v_max_u32 v2, v2, v55
v_cmp_eq_u32 vcc, -1, v2
s_cbranch_vccz L_d1
s_add_u32 s59, s59, 1
s_cmp_lt_u32 s59, {SPIN}
s_cbranch_scc1 L_d0
L_d1:
""")
    stamp(6)
    for st in (16, 8, 4):
        for i in range(0, st, 2): e(f"v_pk_add_f32 v[{16+i}:{17+i}], v[{16+i}:{17+i}], v[{16+st+i}:{17+st+i}]")
    e("v_pk_add_f32 v[16:17], v[16:17], v[48:49]\n v_pk_add_f32 v[18:19], v[18:19], v[50:51]")
    for q in range(4): e(f"v_add_f32_dpp v{16+q}, v{16+q}, v{16+q} row_ror:8 row_mask:0xf bank_mask:0xf")
    for wh in (16, 32):
        for q in range(4): e(f"v_mov_b32 v{20+q}, v{16+q}")
        for q in range(4): e(f"v_permlane{wh}_swap_b32 v{16+q}, v{20+q}")
        for q in range(4): e(f"v_add_f32 v{16+q}, v{16+q}, v{20+q}")
    def rnd4():
        for h in range(2): e(f"v_cvt_pk_bf16_f32 v{24+h}, v{16+2*h}, v{17+2*h}")
        for h in range(2): e(f"v_lshlrev_b32 v{16+2*h}, 16, v{24+h}\n v_and_b32 v{17+2*h}, 0xffff0000, v{24+h}")
    rnd4()
    if yscale: e(f"v_mul_f32 v5, {f2u(yscale):#x}, v5")
    for q in range(4): e(f"v_mul_f32 v{16+q}, v{16+q}, v5")
    for src in (52, 54):
        rnd4()
        for h in range(2): e(f"v_lshlrev_b32 v{20+2*h}, 16, v{src+h}\n v_and_b32 v{21+2*h}, 0xffff0000, v{src+h}")
        for q in range(4): e(f"v_add_f32 v{16+q}, v{16+q}, v{20+q}")
    for h in range(2): e(f"v_cvt_pk_bf16_f32 v{24+h}, v{16+2*h}, v{17+2*h}")
    srd(68, 20, 2359296)
    e(f"s_mov_b64 exec, 0xff\n buffer_store_dwordx2 v[24:25], v4, s[68:71], s52 offen {fstore}")
    stamp(7)
    a.lab("L_fin")
    fin()
    a.lab("L_end")
    e("s_endpgm")
    a.lab("L_codeend")

    assert not any('op_sel:' in l for l in a.L)
    if cyc: a.L = [l.replace('s_memrealtime', 's_memtime') for l in a.L]
    lines, n = hazard.fix(a.L)
    if doalign: lines, nw, npad = align.run(lines)
    import os
    ref = "sequential_preLN__linear_attn_block__moe_arch_mod__prompt.s.ref"
    hdr = open(ref).read().split("; @launch")[0] if os.path.exists(ref) else ""
    hdr += f"""; @launch grid=(256,1,1) block=(512,1,1) lds=163840
.amdgcn_target "amdgcn-amd-amdhsa--gfx950"
.text
.globl {NAME}
.p2align 8
.type {NAME},@function
"""
    tail = f"""
.section .rodata,"a"
.p2align 6
.amdhsa_kernel {NAME}
  .amdhsa_next_free_vgpr 256
  .amdhsa_next_free_sgpr 102
  .amdhsa_accum_offset 256
  .amdhsa_group_segment_fixed_size 0
  .amdhsa_kernarg_size 88
  .amdhsa_user_sgpr_count 2
  .amdhsa_user_sgpr_kernarg_segment_ptr 1
  .amdhsa_system_sgpr_workgroup_id_x 1
.end_amdhsa_kernel
"""
    return hdr + "\n".join(lines) + "\n" + tail

if __name__ == "__main__":
    assert all((n*1821)>>16 == n//36 for n in range(108))
    assert all((n*13108)>>16 == n//5 for n in range(192))
    assert all((n*57)>>9 == n//9 for n in range(63))
    print(gen(stamps=len(sys.argv) > 1))
```

```python
import sys, struct
from asmlib import *
import hazard, align

NAME = "sequential_preLN__linear_attn_block__moe_arch_mod__prompt_kernel"
KVP = 0
OB  = KVP + 16*8*3072
ST  = OB + 128*16*1152
KEY = ST + 128*9*256
XID = KEY + 9*2048
CAND = XID + 2048
YP  = CAND + 16*2*2304
assert YP + 72*4608 <= 256*14336
XST = 4<<20
CS  = XST + 32768
assert CS + 64*3840 <= XST + 256*2048
TS_OFF = 0x8000000
XS = 32768; STG = XS + 16384; NBUF = 3
L_WO = 0; L_KVRED = 73728; L_PQ = 106496
L_RS = 153600; L_MRS = L_RS + 1024; L_CS = L_MRS + 1024; L_KT = L_CS + 1024; L_SW = L_KT + 1536
L_STAGE = L_KVRED
L_WR = L_SW + 64
L_KEY = L_WR + 1280
L_KTA = L_KEY + 64
L_XT = L_PQ + 30720
assert L_XT + 16384 == L_RS and L_KTA + 3072 <= 163840
F_WG = 0; F_WU = 73728; F_WD = 0; F_HN = 147456; F_ACT = F_HN + 2560; F_KEYS = F_ACT + 256; F_RED = F_KEYS + 256
SPIN = 1 << 17
def f2u(x): return struct.unpack("<I", struct.pack("<f", x))[0]
LOG2E = 1.4426950408889634

def gen(stamps=False, owait=1, await_=1, cwait=0, dwait=1, rflag='sc1', diag=None, doalign=1, gate=1, fstore='sc1', ksleep=1, merged=0, LAG=3, hintall=0, hsleep=2, obar=0, hprio=1, ahead=3, outwait=0, rot=0, krep=1, dsleep=0, csleep=0, asleep=0, osleep=0, wfl='', xfl='', lprio=0, worder=1, cyc=0, flip=0, nof=0, st0=0, s3prio=0, fthr=-1, latepre=0, x_nochk=0, x_nord=0, x_nomf=0, x_nold=0, x_fl='sc1', fast=1, fasta=1, nanchk=1, oprio=1, hnearly=0, qswap=1, lchk=0, cpf=0, pdec=(0,2,4,6), psetup=0, F2=132, dn=8, ypk=1, yscale=0, hscale=0, fearly=1, eflag=0, sweep=4, wopf=1, upf=0, hread=1, upfl='', wb=0, lf=1,  outsleep=0, outfl='sc1'):
    NPRE = 6
    a = Asm()
    e = a.e
    def stamp(i):
        if stamps or diag: e(f"s_memrealtime s[{72+2*i}:{73+2*i}]")
    def fin():
        if diag:
            wg, wave, idx, K = diag
            lb = a.new("L_dg")
            e("s_waitcnt vmcnt(0) lgkmcnt(0)")
            if idx == "xcc":
                e(f"s_getreg_b32 s44, hwreg(HW_REG_XCC_ID)\n s_and_b32 s44, s44, 7\n s_and_b32 s45, s2, 7\n s_cmp_eq_u32 s44, s45\n s_cbranch_scc1 {lb}e\n s_add_u32 s44, s72, 10000")
            else:
                e(f"s_cmp_lg_u32 s2, {wg}\n s_cbranch_scc1 {lb}e\n s_cmp_lg_u32 s3, {wave}\n s_cbranch_scc1 {lb}e")
                if idx == "rnd": e(f"s_lshr_b32 s44, s72, 3\n s_mul_i32 s44, s44, 0x9e3779b1\n s_lshr_b32 s44, s44, 24\n s_cmp_ge_u32 s44, {K}\n s_cbranch_scc1 {lb}e\n s_add_u32 s44, s72, 10000")
                elif idx == "fix": e(f"s_add_u32 s44, s72, {K}")
                else: e(f"s_sub_u32 s44, s{72+2*idx}, s72\n s_min_u32 s44, s44, 10000\n s_mul_i32 s44, s44, {K}\n s_add_u32 s44, s44, s72")
            e(f"{lb}:\n s_memrealtime s[46:47]\n s_waitcnt lgkmcnt(0)\n s_sub_u32 s45, s46, s44\n s_cmp_lt_i32 s45, 0\n s_cbranch_scc1 {lb}\n{lb}e:")
        if stamps:
            e("s_waitcnt vmcnt(0) lgkmcnt(0)")
            e("s_mov_b64 exec, -1")
            e(f"s_lshl_b32 s44, s2, 3\n s_add_u32 s44, s44, s3\n s_lshl_b32 s44, s44, 6\n s_add_u32 s44, s44, {TS_OFF}\n v_mov_b32 v2, 0")
            for i in range(15):
                e(f"v_mov_b32 v3, s{72+2*i}\n buffer_store_dword v3, v2, s[36:39], s44 offen offset:{4*i}")
        e("s_endpgm")
    def srd(d, p, n):
        e(f"s_mov_b32 s{d}, s{p}\n s_mov_b32 s{d+1}, s{p+1}\n s_mov_b32 s{d+2}, {n}\n s_mov_b32 s{d+3}, 0x20000")
    def rowmax(d, s):
        e(f"v_max_u32_dpp v{d}, v{s}, v{s} quad_perm:[1,0,3,2] row_mask:0xf bank_mask:0xf")
        e(f"v_max_u32_dpp v{d}, v{d}, v{d} quad_perm:[2,3,0,1] row_mask:0xf bank_mask:0xf")
        e(f"v_max_u32_dpp v{d}, v{d}, v{d} row_half_mirror row_mask:0xf bank_mask:0xf")
        e(f"v_max_u32_dpp v{d}, v{d}, v{d} row_mirror row_mask:0xf bank_mask:0xf")
    def rowsum(d):
        for m in ("quad_perm:[1,0,3,2]", "quad_perm:[2,3,0,1]", "row_half_mirror", "row_mirror"):
            e(f"v_add_f32_dpp v{d}, v{d}, v{d} {m} row_mask:0xf bank_mask:0xf")
    def xsum(d, t, which, op="v_add_f32"):
        e(f"v_mov_b32 v{t}, v{d}\n v_permlane{which}_swap_b32 v{d}, v{t}\n {op} v{d}, v{d}, v{t}")

    a.lab(NAME)
    e("""
s_load_dwordx16 s[4:19], s[0:1], 0
s_load_dwordx4 s[20:23], s[0:1], 64
s_load_dwordx2 s[24:25], s[0:1], 80
""")
    if stamps:
        for i in range(1, 15): e(f"s_mov_b64 s[{72+2*i}:{73+2*i}], 0")
    stamp(0)
    e(f"""
v_lshrrev_b32 v2, 6, v0
v_and_b32 v1, 63, v0
s_cmp_ge_u32 s2, 256
v_readfirstlane_b32 s3, v2
s_cbranch_scc1 L_end
s_and_b32 s26, s2, 7
s_lshr_b32 s27, s2, 3          ; slot
s_lshr_b32 s45, s26, 1         ; rbg
s_and_b32 s46, s2, 1           ; half
v_and_b32 v13, 15, v1
v_lshrrev_b32 v14, 4, v1
s_and_b32 s54, s3, 3           ; w
s_cmp_lt_u32 s27, 16
s_cbranch_scc1 L_A
s_sub_u32 s47, s27, 16             ; h
s_mov_b32 s35, 0x20000
s_cmp_lt_u32 s27, 24
s_cbranch_scc1 L_W0
s_cmp_lt_u32 s27, 28
s_cbranch_scc1 L_X0
s_cmp_lg_u32 s3, 0
s_cbranch_scc1 L_R
s_getpc_b64 s[40:41]
s_and_b32 s57, s27, 3
s_lshl_b32 s57, s57, 13
v_lshl_add_u32 v2, v1, 7, s57
v_min_u32 v2, L_codeend-L_X0, v2
global_load_dword v6, v2, s[40:41]
s_branch L_R
L_X0:
v_lshrrev_b32 v7, 3, v1
v_and_b32 v3, 7, v1
v_mul_u32_u24 v2, 1152, v7
v_lshl_add_u32 v2, v3, 4, v2
v_add_u32 v5, {8*1152}, v2
s_lshl_b32 s55, s45, 2
s_add_u32 s55, s55, s47
s_lshl_b32 s55, s55, 3
s_add_u32 s55, s55, s3
s_sub_u32 s55, s55, 64
s_mul_i32 s56, s55, {16*1152}
s_movk_i32 s57, 128
s_mov_b32 s34, 2359296
s_waitcnt lgkmcnt(0)
s_mov_b64 s[32:33], s[4:5]
s_branch L_E0
L_W0:
v_add_u32 v3, 64, v1
v_min_u32 v3, 119, v3
v_mul_u32_u24 v4, 1639, v1
v_lshrrev_b32 v4, 16, v4
v_lshlrev_b32 v2, 4, v1
v_lshl_add_u32 v2, v4, 9, v2
v_mul_u32_u24 v4, 1639, v3
v_lshrrev_b32 v4, 16, v4
v_lshlrev_b32 v5, 4, v3
v_lshl_add_u32 v5, v4, 9, v5
s_lshl_b32 s56, s47, 3
s_add_u32 s56, s56, s3
s_mul_i32 s56, s56, 3456
s_lshl_b32 s57, s46, 9
s_add_u32 s56, s56, s57
s_mov_b32 s57, {64*3456}
s_mov_b32 s34, 1990656
s_waitcnt lgkmcnt(0)
s_mov_b64 s[32:33], s[6:7]
L_E0:
buffer_load_dwordx4 v[16:19], v2, s[32:35], s56 offen
buffer_load_dwordx4 v[20:23], v5, s[32:35], s56 offen
s_add_u32 s56, s56, s57
s_barrier
buffer_load_dwordx4 v[24:27], v2, s[32:35], s56 offen
buffer_load_dwordx4 v[28:31], v5, s[32:35], s56 offen
s_add_u32 s56, s56, s57
s_branch L_B
L_A:
s_and_b32 s47, s27, 7
s_lshl_b32 s48, s46, 3
s_add_u32 s48, s48, s47        ; hp
s_lshr_b32 s49, s27, 3
s_lshl_b32 s50, s45, 1
s_add_u32 s50, s50, s49        ; rb (0..7)
s_lshr_b32 s51, s48, 1
s_mul_i32 s51, s51, 144
s_and_b32 s47, s27, 1          ; p
s_lshl_b32 s52, s47, 3
s_mov_b32 s53, s27
{'s_xor_b32 s3, s3, 4' if flip else ''}
s_cmp_lt_u32 s3, 4
s_cbranch_scc1 L_compute
""")
    OF = 16; AC = 116; WR = 132; BR = 140; BA = 236
    VST, VSW, VSR, VOUT, VC7, VTOK, VSUM = 249, 250, 251, 252, 253, 254, 255
    VKW, VKR, VXA, VWA, VM1, VM2 = 11, 5, 112, 113, 114, 115
    XR = 240
    def bread(k):
        r = []
        for T in range(4):
            for hf in range(2):
                d = BR + (k % NPRE)*16 + 4*T + 2*hf
                off = ((k*32 + hf*16)*128) & 0xffff
                r.append(f"ds_read_b64_tr_b16 v[{d}:{d+1}], v{BA+T} offset:{off}")
        return r
    def s3_scal(v=True):
        e(f"""
s_cmp_ge_u32 s53, 9
s_cselect_b32 s57, 9, 0
s_cselect_b32 s58, 8, 0
s_sub_u32 s63, s53, s57            ; cb
s_lshl_b32 s60, s26, 4
s_add_u32 s60, s60, s58
s_add_u32 s60, s60, s3             ; tb
s_mul_i32 s61, s60, {16*1152}
s_add_u32 s62, s61, {OB}
s_lshl_b32 s57, s63, 7
s_add_u32 s61, s61, s57
s_mul_i32 s50, s3, 4608
s_add_u32 s50, s50, {L_STAGE}
s_mul_i32 s51, s60, {9*256}
s_add_u32 s51, s51, {ST}
s_lshl_b32 s52, s63, 8
s_add_u32 s52, s52, s51
s_mov_b32 s44, 0x00f0000f
s_mov_b32 s45, 0xf0000f00
s_mov_b32 s46, 0x22222222
s_mov_b32 s47, 0x22222222
s_mov_b32 s48, 0xcccccccc
s_mov_b32 s49, 0xcccccccc
s_mov_b32 s42, 0x88888888
s_mov_b32 s43, 0x88888888
""")
        if v: e(f"v_lshlrev_b32 v{VST}, 4, v13\n v_lshrrev_b32 v{VOUT}, 3, v1")
    def s3_addr1():
        e(f"""
v_lshrrev_b32 v2, 2, v13
v_lshl_add_u32 v2, v14, 2, v2      ; rho
v_bfe_u32 v3, v2, 1, 2
v_lshlrev_b32 v2, 7, v2
v_and_b32 v4, 3, v13
v_lshl_add_u32 v2, v4, 3, v2
v_lshl_add_u32 v{BA}, v3, 5, v2
v_xor_b32 v{BA+1}, 32, v{BA}
v_xor_b32 v{BA+2}, 64, v{BA}
v_xor_b32 v{BA+3}, 96, v{BA}
s_lshl_b32 s57, s63, 7
s_add_u32 s57, s57, {L_WR}
v_lshl_add_u32 v{VWA}, v14, 3, s57
v_lshrrev_b32 v2, 1, v14
v_and_b32 v3, 7, v13
v_xor_b32 v2, v2, v3
v_lshlrev_b32 v2, 4, v2
v_lshl_add_u32 v2, v13, 7, v2
v_and_b32 v3, 1, v14
v_lshl_add_u32 v2, v3, 3, v2
s_lshl_b32 s57, s3, 11
s_add_u32 s57, s57, {L_XT}
v_add_u32 v{VXA}, s57, v2
""")
    def s3_reads():
        for T in range(4):
            e(f"v_xor_b32 v4, {32*T}, v{VXA}\n ds_read_b64 v[{XR+2*T}:{XR+2*T+1}], v4")
            e(f"ds_read_b64 v[{WR+2*T}:{WR+2*T+1}], v{VWA} offset:{32*T}")
        e(f"v_mov_b32 v2, {L_SW}\n ds_read_b32 v{VSUM}, v2")
        for k in range(NPRE):
            for x in bread(k): e(x)
    def s3_addr2(sb=50, st=60, m=40):
        e(f"""
v_and_b32 v2, 3, v13
v_cmp_eq_u32 s[{m}:{m+1}], 2, v2
v_cndmask_b32_e64 v{VM1}, 0, -1, s[{m}:{m+1}]
v_mov_b32 v4, 0x3f803f80
v_cmp_eq_u32 s[{m}:{m+1}], 0, v2
v_cndmask_b32_e64 v{VM2}, 0, v4, s[{m}:{m+1}]
v_mul_u32_u24 v{VSW}, 144, v13
v_lshl_add_u32 v{VSW}, v14, 3, v{VSW}
v_add_u32 v{VSW}, s{sb}, v{VSW}
v_add_u32 v{VSR}, v{VOUT}, v1
v_lshl_add_u32 v{VSR}, v{VSR}, 4, s{sb}
v_mul_u32_u24 v{VOUT}, 1152, v{VOUT}
v_and_b32 v{VC7}, 7, v1
v_lshl_add_u32 v{VOUT}, v{VC7}, 4, v{VOUT}
v_lshl_add_u32 v{VTOK}, s{st}, 4, v13
v_sub_u32 v{VTOK}, 2047, v{VTOK}
s_lshl_b32 s57, s3, 3
s_add_u32 s57, s57, {L_KEY}
v_mov_b32 v{VKW}, s57
v_lshlrev_b32 v{VKR}, 2, v13
v_add_u32 v{VKR}, {L_KEY}, v{VKR}
""")
    def s3_unpack():
        e("s_waitcnt lgkmcnt(15)")
        for i in range(8): e(f"v_lshlrev_b32 v{AC+2*i}, 16, v{XR+i}\n v_and_b32 v{AC+2*i+1}, 0xffff0000, v{XR+i}\n v_and_or_b32 v{WR+i}, v{WR+i}, v{VM1}, v{VM2}")
    e(f"""
s_setprio 2
s_lshl_b32 s55, s50, 5
s_add_u32 s55, s55, s54
s_lshl_b32 s55, s55, 3
v_lshrrev_b32 v2, 3, v1
v_add_u32 v2, s55, v2
v_mul_u32_u24 v16, 1152, v2
s_and_b32 s56, s54, 1
s_lshl_b32 s57, s56, 2
v_add_u32 v3, s57, v14
v_and_b32 v2, 7, v1
v_xor_b32 v2, v2, v3
v_lshl_add_u32 v16, v2, 4, v16
v_lshrrev_b32 v2, 1, v13
v_xor_b32 v2, v2, v3
v_and_b32 v3, 1, v1
v_lshl_add_u32 v2, v2, 1, v3
v_min_u32 v2, 14, v2
v_mul_u32_u24 v3, 52, v2
v_lshrrev_b32 v3, 8, v3
v_lshlrev_b32 v2, 4, v2
v_and_b32 v4, {qswap}, v3
v_xor_b32 v4, s47, v4
v_lshl_add_u32 v2, v4, 6, v2
v_xor_b32 v15, 1, v3
v_lshrrev_b32 v4, 1, v3
v_sub_u32 v15, v15, v4
v_mul_u32_u24 v15, 1152, v15
v_mul_u32_u24 v3, 80, v3
v_sub_u32 v2, v2, v3
s_lshl_b32 s55, s54, 3
v_add_u32 v3, s55, v14
v_mul_u32_u24 v3, 3456, v3
v_add3_u32 v17, v2, v3, v15
s_lshl_b32 s41, s54, 10
s_mov_b32 s55, 0
s_mov_b32 s56, s51
s_mov_b32 s43, 0
s_mov_b32 s44, -1
s_mov_b32 s30, 2359296
s_mov_b32 s31, 0x20000
s_mov_b32 s34, 1990656
s_mov_b32 s35, 0x20000
s_waitcnt lgkmcnt(0)
s_mov_b32 s28, s4
s_mov_b32 s29, s5
s_mov_b32 s32, s6
s_mov_b32 s33, s7
""")
    def issue():
        e("s_mov_b32 s57, s55")
        for i in range(8):
            iw = (i//2 if i % 2 == 0 else 9) if worder else i
            if iw < 4:
                e(f"s_add_u32 m0, s41, {XS + iw*4096}\n s_add_u32 s58, s56, {((iw>>1)*32 + (iw&1)*4)*3456}")
                e(f"buffer_load_dwordx4 v17, s[32:35], s58 offen {wfl} lds")
            e(f"s_add_u32 m0, s41, {i*4096}")
            if i: e(f"s_add_u32 s57, s57, {2*18432}")
            e(f"buffer_load_dwordx4 v16, s[28:31], s57 offen {xfl} lds")
        e(f"""
s_add_u32 s55, s55, 128
s_add_u32 s56, s56, {64*3456}
s_add_u32 s43, s43, 1
s_add_u32 s41, s41, {STG}
s_cmp_eq_u32 s43, {NBUF}
s_cselect_b32 s57, {NBUF*STG}, 0
s_cselect_b32 s43, 0, s43
s_sub_u32 s41, s41, s57
s_add_u32 s44, s44, 1
""")
    if st0: stamp(5)
    a.lab("L_hloop0")
    issue()
    e("""
s_cmp_eq_u32 s44, 0
s_cbranch_scc1 L_hloop0
s_waitcnt vmcnt(12)
s_barrier
s_cmp_lg_u32 s44, 2
s_cbranch_scc1 L_hloop0
""")
    e("s_setprio 0")
    stamp(14)
    issue()
    e(f"""
v_lshl_add_u32 v2, s54, 6, v1      ; n = 64w + lane
s_lshl_b32 s57, s50, 10
s_lshl_b32 s60, s46, 14
s_add_u32 s60, s60, s57
s_add_u32 s60, s60, {XST}
v_lshlrev_b32 v18, 2, v2
v_min_u32 v3, 107, v2
v_mul_u32_u24 v4, 1821, v3
v_lshrrev_b32 v4, 16, v4           ; sec = c/36
v_xor_b32 v5, 1, v4
v_lshrrev_b32 v6, 1, v4
v_sub_u32 v5, v5, v6
v_mul_u32_u24 v5, 320, v5
v_and_b32 v6, {qswap}, v4
v_xor_b32 v6, s47, v6
v_mad_u32_u24 v5, v6, 36, v5
v_mul_u32_u24 v4, 36, v4
v_sub_u32 v3, v3, v4
v_add_u32 v3, v3, v5
v_lshlrev_b32 v19, 2, v3
s_lshl_b32 s61, s51, 1
s_lshl_b32 s57, s46, 10
s_sub_u32 s61, s61, s57
s_mul_i32 s57, s26, {8*3840}
s_add_u32 s61, s61, s57
s_add_u32 s61, s61, {CS}
""")
    e(f"""
v_cmp_gt_u32 vcc, 190, v2
v_cndmask_b32_e64 v3, 0, v2, vcc       ; gamma or 0
v_cndmask_b32 v23, 0, -1, vcc
v_mov_b32 v24, v23
v_mul_u32_u24 v4, 13108, v3
v_lshrrev_b32 v4, 16, v4           ; col
v_mul_u32_u24 v5, 5, v4
v_sub_u32 v5, v3, v5               ; i
v_cmp_le_u32 vcc, 18, v4
v_cndmask_b32 v6, 0, 1, vcc        ; head for col<36
v_cmp_le_u32 vcc, 36, v4
v_subrev_u32 v7, 36, v4
v_cndmask_b32_e64 v6, v6, v7, vcc      ; head
v_cndmask_b32 v4, v4, 36, vcc      ; e (36 = ones column)
v_mov_b32 v12, {f2u(1/LOG2E**2):#x}
v_mov_b32 v11, {f2u(1/LOG2E):#x}
v_cndmask_b32_e64 v12, v12, v11, vcc
v_lshl_add_u32 v7, v6, 2, v5       ; delta = i + 4*head
v_add_u32 v4, 72, v4               ; tile column index 72+e
v_lshrrev_b32 v8, 4, v4
v_subrev_u32 v8, 4, v8             ; TB-4
v_and_b32 v4, 15, v4               ; lane col
v_lshrrev_b32 v9, 2, v7            ; TA
v_mad_u32_u24 v8, v9, 3, v8
v_lshrrev_b32 v10, 1, v9
v_sub_u32 v8, v8, v10
v_and_b32 v9, 3, v7
v_lshl_add_u32 v4, v9, 4, v4
v_lshlrev_b32 v4, 4, v4
v_lshl_add_u32 v22, v8, 10, v4
v_add_u32 v22, {L_KVRED}, v22      ; lds source
v_cmp_eq_u32 vcc, 4, v7
v_cndmask_b32 v8, -1, 0, vcc       ; 0 when delta==4
v_subrev_u32 v9, 1, v6             ; head0: -1, head1: 0
v_or_b32 v9, v9, v8
v_and_b32 v23, v23, v9             ; lo mask
v_sub_u32 v9, 0, v6
v_or_b32 v9, v9, v8
v_and_b32 v24, v24, v9             ; hi mask
v_lshlrev_b32 v25, 4, v2           ; gamma*16
v_lshlrev_b32 v26, 3, v2
v_add_u32 v26, {L_KT}, v26
s_xor_b32 s62, s48, {qswap}
s_mul_i32 s62, s62, {8*3072}       ; KVP base of the head pair of q
s_lshl_b32 s52, s48, 3
s_add_u32 s52, s52, s50
s_mul_i32 s52, s52, 3072           ; own slot
""".replace("v_cndmask_b32 v23, 0, -1, vcc", "v_cndmask_b32_e64 v23, 0, -1, vcc").replace("v_cndmask_b32 v6, 0, 1, vcc", "v_cndmask_b32_e64 v6, 0, 1, vcc").replace("v_cndmask_b32 v4, v4, 36, vcc", "v_cndmask_b32_e64 v4, v4, 36, vcc").replace("v_cndmask_b32 v8, -1, 0, vcc", "v_cndmask_b32_e64 v8, -1, 0, vcc"))
    def wo_setup():
        e(f"""
s_cmp_ge_u32 s53, 9
s_cselect_b32 s57, 9, 0
s_sub_u32 s63, s53, s57            ; cb
v_lshrrev_b32 v2, 3, v1            ; rr
v_and_b32 v3, 7, v1
v_bfe_u32 v4, v1, 4, 2
v_lshlrev_b32 v4, 1, v4
v_xor_b32 v3, v3, v4
v_lshlrev_b32 v3, 4, v3
s_lshl_b32 s57, s63, 7
v_add_u32 v3, s57, v3
v_lshrrev_b32 v4, 2, v2
v_and_b32 v5, 3, v2
v_mad_u32_u24 v6, v4, 10, v5
s_and_b32 s57, s54, 1
s_mul_i32 s58, s57, 18
s_lshr_b32 s59, s54, 1
s_lshl_b32 s42, s59, 2
s_add_u32 s58, s58, s42
v_add_u32 v6, s58, v6
v_mul_u32_u24 v6, 1152, v6
v_add_u32 v20, v6, v3
v_mul_u32_u24 v4, 72, v4
v_bfe_u32 v5, v2, 1, 1
v_mad_u32_u24 v4, v5, 18, v4
v_and_b32 v5, 1, v2
v_add_u32 v4, v4, v5
s_mul_i32 s57, s57, 144
s_mul_i32 s59, s59, 36
s_add_u32 s57, s57, s59
s_add_u32 s57, s57, 8
v_add_u32 v4, s57, v4
v_mul_u32_u24 v4, 1152, v4
v_add_u32 v21, v4, v3
v_and_b32 v3, 7, v1
v_xor_b32 v3, v3, v2
v_mul_u32_u24 v4, 1152, v2
v_lshl_add_u32 v29, v3, 4, v4
s_cmp_ge_u32 s53, 9
s_cselect_b32 s57, 16, 0
s_lshl_b32 s49, s26, 5
s_add_u32 s49, s49, s57
s_add_u32 s49, s49, s54
s_mul_i32 s49, s49, {8*1152}
s_lshl_b32 s57, s63, 7
s_add_u32 s49, s49, s57
""")
    def wo_dma(tag, part=0):
        if part >= 0:
            srd(68, 8, 663552)
            e(f"s_lshl_b32 s42, s54, 10\n s_mul_i32 s40, s63, {rot}\n s_and_b32 s40, s40, 15\n s_mul_i32 s40, s40, {36*1152}")
        e(f"""
L_wod{tag}:
s_mov_b32 m0, s42
s_add_u32 s42, s42, 4096
buffer_load_dwordx4 v20, s[68:71], s40 offen lds
s_add_u32 s40, s40, {36*1152}
s_cmp_eq_u32 s40, {16*36*1152}
s_cselect_b32 s40, 0, s40
s_cmp_lt_u32 s42, {(part if part > 0 else 16)*4096}
s_cbranch_scc1 L_wod{tag}
""")
        if part <= 0:
            e(f"""
s_mov_b32 m0, s42
s_add_u32 s42, s42, 4096
buffer_load_dwordx4 v21, s[68:71], 0 offen lds
s_mov_b32 m0, s42
s_mov_b32 s40, {288*1152}
buffer_load_dwordx4 v21, s[68:71], s40 offen lds
s_lshl_b32 s42, s54, 10
""")
            for i in range(4):
                e(f"s_add_u32 m0, s42, {L_XT + 4096*i}\n s_add_u32 s40, s49, {i*32*1152}\n buffer_load_dwordx4 v29, s[28:31], s40 offen lds")
    def sw_calc():
        srd(68, 12, 1152)
        e("v_lshlrev_b32 v2, 2, v1")
        for i in range(5): e(f"buffer_load_dword v{30+i}, v2, s[68:71], 0 offen offset:{256*i}")
        e("v_mov_b32 v3, 0\n s_mov_b32 s57, 0x3f803f80\n s_waitcnt vmcnt(0)")
        e(f"v_add_u32 v2, {L_WR}, v2")
        for i in range(5): e(f"ds_write_b32 v2, v{30+i} offset:{256*i}")
        for i in range(5): e(f"v_dot2c_f32_bf16 v3, s57, v{30+i}")
        rowsum(3); xsum(3, 4, 16); xsum(3, 4, 32)
        e(f"v_mov_b32 v4, {L_SW}\n ds_write_b32 v4, v3")
        e(f"""
s_getreg_b32 s57, hwreg(HW_REG_XCC_ID)
s_and_b32 s57, s57, 15
v_mov_b32 v36, s57
v_mov_b32 v37, 0
s_cmp_ge_u32 s53, 9
s_cselect_b32 s57, 128, 0
s_lshl_b32 s58, s26, 8
s_add_u32 s57, s57, s58
s_lshl_b32 s58, s63, 2
s_add_u32 s57, s57, s58
s_add_u32 s57, s57, {XID}
s_mov_b64 exec, 1
buffer_store_dword v36, v37, s[36:39], s57 offen sc1
s_mov_b64 exec, -1
""")
    def flags_wait(tag, issued, off, fv=27, av=28, nap=0):
        e(f"s_mov_b32 s59, 0")
        if issued: e(f"s_branch L_fl1{tag}")
        a.lab(f"L_fl0{tag}")
        if nap: e(f"s_sleep {nap}")
        e(f"""
buffer_load_dword v{fv}, v{av}, s[64:67], 0 offen offset:{off} sc1
L_fl1{tag}:
s_waitcnt vmcnt(0)
v_cmp_eq_u32 vcc, 0, v{fv}
s_cbranch_vccz L_fl2{tag}
s_add_u32 s59, s59, 1
s_cmp_lt_u32 s59, {SPIN}
s_cbranch_scc1 L_fl0{tag}
L_fl2{tag}:
""")
    def up_prefetch(first, n):
        srd(68, 16, 5308416)
        e(f"""
v_min_u32 v2, 62, v1
v_mul_u32_u24 v3, 57, v2
v_lshrrev_b32 v3, 9, v3
v_mul_u32_u24 v3, {9216-1152}, v3
v_lshl_add_u32 v2, v2, 7, v3
s_sub_u32 s56, s27, {25 if first == 0 else 28}
s_lshl_b32 s56, s56, 3
s_add_u32 s56, s56, s3
s_add_u32 s56, s56, {first}
s_mul_i32 s56, s56, {7*9216}
s_mul_i32 s57, s26, 1152
s_add_u32 s56, s56, s57
""")
        for i in range(n): e(f"buffer_load_dword v100, v2, s[68:71], s56 offen {upfl}\n s_add_u32 s56, s56, {(24 if first == 0 else 32)*7*9216}")
    def code_touch(sidx, v):
        lb = a.new("L_pc")
        e(f"""
s_getpc_b64 s[40:41]
{lb}:
s_sub_u32 s40, s40, {lb}-{NAME}
s_subb_u32 s41, s41, 0
s_lshl_b32 s57, s{sidx}, 13
v_lshl_add_u32 v{v}, v1, 7, s57
v_min_u32 v{v}, L_codeend-{NAME}-4, v{v}
global_load_dword v{v+1}, v{v}, s[40:41]
""")
    def arrive(tag, cnt_off, done_off, n):
        e(f"""
v_mov_b32 v20, 1
v_mov_b32 v21, 0
s_mov_b64 exec, 1
buffer_atomic_add v20, v21, s[64:67], 0 offen offset:{cnt_off} sc0
s_waitcnt vmcnt(0)
v_cmp_eq_u32 vcc, {n-1}, v20
s_cbranch_vccz L_ar{tag}
buffer_store_dword v20, v21, s[64:67], 0 offen offset:{done_off} sc1
L_ar{tag}:
s_mov_b64 exec, -1
""")
    e("s_waitcnt vmcnt(12)\n s_barrier")
    issue()
    wo_setup()
    e(f"""
v_lshrrev_b32 v2, 3, v13           ; head
v_bfe_u32 v3, v13, 2, 1            ; odd
v_and_b32 v4, 3, v13               ; r
v_mul_u32_u24 v5, 18, v2
v_mad_u32_u24 v5, v3, 10, v5
v_add_u32 v5, v5, v4
v_lshl_add_u32 v5, s54, 2, v5
s_mov_b64 s[70:71], -1
s_cmp_lg_u32 s54, 2
s_cbranch_scc1 L_kta
v_add_u32 v6, 36, v2
v_cmp_eq_u32 s[68:69], 2, v4
v_cndmask_b32_e64 v5, v5, v6, s[68:69]
v_lshl_add_u32 v6, v3, 2, v4
v_cmp_gt_u32 s[70:71], 2, v6
s_or_b64 s[70:71], s[70:71], s[68:69]
L_kta:
v_lshlrev_b32 v6, 2, v2
v_sub_u32 v6, v14, v6
v_mov_b32 v7, 190
s_mul_i32 s57, s54, 768
s_add_u32 s57, s57, {L_KTA}
v_lshl_add_u32 v8, v1, 2, s57
s_mov_b32 s57, {L_KT}
""")
    for t in range(3):
        e(f"v_add_u32 v9, {4*t}, v6\n v_cmp_gt_u32 s[68:69], 5, v9\n v_mad_u32_u24 v9, v5, 5, v9\n s_and_b64 s[68:69], s[68:69], s[70:71]\n v_cndmask_b32_e64 v9, v7, v9, s[68:69]\n v_lshl_add_u32 v9, v9, 3, s57\n ds_write_b32 v8, v9 offset:{256*t}")
    e("v_mov_b32 v28, 0")
    srd(36, 24, 0x10000000)
    srd(64, 22, 256)
    if lprio: e(f"s_setprio {lprio}")
    e("s_waitcnt vmcnt(12)\n s_barrier")
    issue()
    e(f"s_mul_i32 s58, s3, 4608\n s_add_u32 s58, s58, {L_STAGE}\n s_cmp_ge_u32 s53, 9\n s_cselect_b32 s59, 8, 0\n s_lshl_b32 s57, s26, 4\n s_add_u32 s59, s59, s57\n s_add_u32 s59, s59, s3\n v_lshlrev_b32 v{VST}, 4, v13\n v_lshrrev_b32 v{VOUT}, 3, v1")
    s3_addr1(); s3_addr2(58, 59, 68)
    a.lab("L_hloop1")
    e("s_waitcnt vmcnt(12)\n s_barrier")
    issue()
    e("s_cmp_lg_u32 s44, 7\n s_cbranch_scc1 L_hloop1")
    e("s_waitcnt vmcnt(12)\n s_barrier\n buffer_load_dword v27, v28, s[64:67], 0 offen offset:128 sc1")
    issue()
    e("s_waitcnt vmcnt(12)\n s_barrier")
    stamp(4)
    e("v_cmp_eq_u32 vcc, 0, v27\n s_cbranch_vccz L_fok")
    flags_wait("a", False, 128)
    a.lab("L_fok")
    def statloads():
        e("buffer_load_dword v30, v18, s[36:39], s60 offen sc1\n s_add_u32 s57, s60, 8192\n buffer_load_dword v31, v18, s[36:39], s57 offen sc1\n s_mov_b32 s57, s61")
        for i in range(8):
            e(f"buffer_load_dword v{32+i}, v19, s[36:39], s57 offen sc1")
            if i < 7: e("s_add_u32 s57, s57, 3840")
    statloads()
    e(f"buffer_load_dword v27, v28, s[64:67], 0 offen offset:{F2} sc1")
    e("s_waitcnt vmcnt(11)\n s_barrier")
    stamp(6)
    wo_dma("a", 8)
    e("s_mov_b32 s59, 0\n s_waitcnt vmcnt(8)\n s_branch L_st1")
    a.lab("L_st0")
    statloads()
    e(f"""
s_waitcnt vmcnt(0)
L_st1:
v_max3_u32 v2, v30, v31, v32
v_max3_u32 v2, v2, v33, v34
v_max3_u32 v2, v2, v35, v36
v_max3_u32 v2, v2, v37, v38
v_max_u32 v2, v2, v39
v_cmp_eq_u32 vcc, -1, v2
s_cbranch_vccz L_st2
s_add_u32 s59, s59, 1
s_cmp_lt_u32 s59, {SPIN}
s_cbranch_scc1 L_st0
L_st2:
{"s_memrealtime s[98:99]" if stamps else ""}
v_add_u32 v18, {L_RS}, v18
v_pk_add_f32 v[32:33], v[32:33], v[36:37]
v_pk_add_f32 v[34:35], v[34:35], v[38:39]
v_pk_add_f32 v[32:33], v[32:33], v[34:35]
v_add_f32 v32, v32, v33
ds_write_b32 v18, v30
ds_write_b32 v18, v31 offset:1024
ds_write_b32 v18, v32 offset:2048
""")
    e("s_waitcnt lgkmcnt(0)\n s_barrier")
    stamp(1)
    wo_dma("b", -8)
    flags_wait("r", True, F2)
    e("s_mov_b32 s32, s52\n s_mov_b32 s34, s62\n s_cmp_lg_u32 s54, 3\n s_cbranch_scc1 L_hpub")
    sw_calc()
    a.lab("L_hpub")
    s3_scal(False)
    e("s_cmp_lg_u32 s54, 3\n s_cbranch_scc1 L_hpub2\n s_waitcnt lgkmcnt(0)\n s_barrier")
    s3_reads(); s3_unpack()
    e("s_barrier\n s_mov_b32 s33, 1\n s_branch L_s3a")
    a.lab("L_hpub2")
    if hprio: e("s_setprio 2")
    e("s_mov_b32 s59, 0\n s_barrier")
    for i in range(4): e(f"ds_read_b128 v[{32+4*i}:{35+4*i}], v22 offset:{8192*i}")
    e("s_waitcnt lgkmcnt(0)")
    e("v_pk_add_f32 v[32:33], v[32:33], v[36:37]\n v_pk_add_f32 v[34:35], v[34:35], v[38:39]\n v_pk_add_f32 v[40:41], v[40:41], v[44:45]\n v_pk_add_f32 v[42:43], v[42:43], v[46:47]")
    e("v_pk_add_f32 v[32:33], v[32:33], v[40:41]\n v_pk_add_f32 v[34:35], v[34:35], v[42:43]")
    e("buffer_store_dwordx4 v[32:35], v25, s[36:39], s32 offen sc1")
    stamp(2)
    if hread:
        e("s_setprio 0"); s3_reads(); e("s_setprio 2")
    e("s_waitcnt vmcnt(0)" if await_ else f"s_sleep {asleep}")
    a.lab("L_hA")
    e("s_mov_b32 s57, s34")
    for i in range(8):
        e(f"buffer_load_dwordx4 v[{64+4*i}:{67+4*i}], v25, s[36:39], s57 offen sc1")
        if i < 7: e("s_add_u32 s57, s57, 3072")
    for i in range(1, 8):
        e(f"s_waitcnt vmcnt({7-i})")
        for h in range(2):
            src = 64 if i == 1 else 32
            e(f"v_pk_add_f32 v[{32+2*h}:{33+2*h}], v[{src+2*h}:{src+1+2*h}], v[{64+4*i+2*h}:{65+4*i+2*h}]")
    e("v_pk_add_f32 v[36:37], v[32:33], v[34:35]\n v_cmp_u_f32 vcc, v36, v37\n s_cbranch_vccnz L_hA1\nL_hA2:")
    e("""
v_pk_mul_f32 v[32:33], v[32:33], v[12:13] op_sel_hi:[1,0]
v_pk_mul_f32 v[34:35], v[34:35], v[12:13] op_sel_hi:[1,0]
v_cvt_pk_bf16_f32 v32, v32, v33
v_cvt_pk_bf16_f32 v33, v34, v35
v_and_b32 v32, v32, v23
v_and_b32 v33, v33, v24
ds_write_b64 v26, v[32:33]
s_waitcnt lgkmcnt(0)
s_barrier
""")
    stamp(3)
    if hprio: e("s_setprio 0")
    e(f"s_branch {'L_s3un' if hread else 'L_s3rd'}")
    a.lab("L_hA1")
    e("v_max3_u32 v2, v64, v65, v66")
    for i in range(67, 95, 2): e(f"v_max3_u32 v2, v2, v{i}, v{i+1}")
    e(f"v_max_u32 v2, v2, v95\n v_cmp_eq_u32 vcc, -1, v2\n s_cbranch_vccz L_hA2\n s_add_u32 s59, s59, 1\n s_cmp_lt_u32 s59, {SPIN}\n s_cbranch_scc1 L_hA\n s_branch L_hA2")

    a.lab("L_compute")
    e(f"""
v_lshrrev_b32 v15, 1, v13
v_xor_b32 v15, v15, v14
v_lshlrev_b32 v15, 4, v15
v_lshl_add_u32 v4, v13, 7, v15
s_lshl_b32 s55, s54, 13
v_add_u32 v4, s55, v4
v_xor_b32 v5, 64, v4
v_lshrrev_b32 v2, 2, v13
v_lshl_add_u32 v2, v14, 2, v2
v_and_b32 v3, 3, v13
v_and_b32 v15, 7, v2
v_lshlrev_b32 v15, 5, v15
v_lshlrev_b32 v2, 8, v2
v_add_u32 v2, {XS}, v2
v_add_u32 v16, 3, v3
v_and_b32 v16, 4, v16
v_lshlrev_b32 v16, 1, v16
v_and_b32 v17, 2, v3
v_lshlrev_b32 v17, 2, v17
v_lshlrev_b32 v3, 3, v3
v_add_u32 v3, s52, v3
s_lshl_b32 s56, s47, 1
s_sub_u32 s57, 2, s56
s_lshl_b32 s58, s47, 4
s_sub_u32 s58, 8, s58
""")
    if qswap: e("v_mul_u32_u24 v16, s57, v16\n v_mul_u32_u24 v17, s56, v17\n v_add_u32 v17, s58, v17")
    for T in range(7):
        secs = [min((4*T+c)//9, 2) for c in range(4)]
        e(f"v_add_u32 v{6+T}, {32*T + 8*secs[0]}, v3")
        if T == 2: e(f"v_add_u32 v{6+T}, v{6+T}, v16")
        if T == 4: e(f"v_add_u32 v{6+T}, v{6+T}, v17")
        if T == 3 and qswap: e(f"v_add_u32 v{6+T}, s58, v{6+T}")
        e(f"v_xor_b32 v{6+T}, v{6+T}, v15\n v_add_u32 v{6+T}, v{6+T}, v2")
    e(f"""
s_lshl_b32 s55, s54, 8
s_add_u32 s55, s55, {L_RS}
v_lshl_add_u32 v249, v14, 4, s55
v_lshlrev_b32 v250, 2, v13
v_add_u32 v250, {L_CS}, v250
v_cmp_le_u32 s[40:41], 12, v13
v_cndmask_b32_e64 v251, 0, -1, s[40:41]
s_mul_i32 s55, s54, 7680
s_add_u32 s55, s55, {L_PQ}
v_mul_u32_u24 v252, 40, v13
v_lshl_add_u32 v252, v14, 3, v252
v_add_u32 v252, s55, v252
v_lshrrev_b32 v254, 2, v13
v_add_u32 v254, v254, v13
v_lshl_add_u32 v254, v254, 3, s55
v_mul_u32_u24 v253, 160, v14
v_add_u32 v253, v253, v254
s_lshl_b32 s55, s54, 13
s_add_u32 s55, s55, {L_KVRED}
v_lshl_add_u32 v255, v1, 4, s55
""")
    ACC = 16; F = [128, 172]
    for i in range(4): e(f"v_mov_b32 v{F[1]+i}, 0")
    for i in range(28): e(f"v_mfma_f32_16x16x32_bf16 v[{ACC+4*i}:{ACC+4*i+3}], v[{F[1]}:{F[1]+3}], v[{F[1]}:{F[1]+3}], 0")
    def reads(fs, kk):
        r = [f"ds_read_b128 v[{F[fs]+4*j}:{F[fs]+4*j+3}], v{4+kk} offset:{j*2048}" for j in range(4)]
        for T in range(7):
            for hf in range(2):
                d = F[fs]+16+4*T+2*hf
                r.append(f"ds_read_b64_tr_b16 v[{d}:{d+1}], v{6+T} offset:{(kk*32+hf*16)*256}")
        return r
    def acc(j, T): return ACC + (j*7+T)*4
    def mfmas(fs):
        m = []
        for T in range(7):
            for j in range(4):
                c = acc(j, T); b = F[fs]+16+4*T
                m.append(f"v_mfma_f32_16x16x32_bf16 v[{c}:{c+3}], v[{F[fs]+4*j}:{F[fs]+4*j+3}], v[{b}:{b+3}], v[{c}:{c+3}]")
        return m
    def weave(m, r, extra):
        out = []
        for i, x in enumerate(m):
            out.append(x)
            if i < len(r): out.append(r[i])
            if i in extra: out.extend(extra[i])
        return out
    e(f"s_mov_b32 s55, 0\n s_mov_b32 s56, 0\n s_mov_b32 s58, {STG}\n s_waitcnt lgkmcnt(0)")
    srd(36, 24, 0x10000000)
    srd(28, 4, 2359296)
    stamp(14)
    e("s_barrier")
    stamp(1)
    for r in reads(0, 0): e(r)
    e("s_waitcnt lgkmcnt(0)\n s_branch L_cloop\n .p2align 3")
    a.lab("L_cloop2")
    for x in weave(mfmas(1), reads(0, 0), {}): e(x)
    e("s_waitcnt lgkmcnt(0)")
    a.lab("L_cloop")
    ex = {0: ["s_add_u32 s56, s56, 1", f"s_cmp_eq_u32 s56, {NBUF}"], 1: [f"s_cselect_b32 s57, {(-(NBUF-1)*STG) & 0xffffffff}, s58", "s_cselect_b32 s56, 0, s56"],
          2: ["v_add_u32 v4, s57, v4"], 4: ["v_add_u32 v5, s57, v5"], 22: ["s_add_u32 s55, s55, 1", "s_cmp_lt_u32 s55, 9"]}
    for T in range(7): ex.setdefault(6+2*T, []).append(f"v_add_u32 v{6+T}, s57, v{6+T}")
    for x in weave(mfmas(0), reads(1, 1), ex): e(x)
    e("s_waitcnt lgkmcnt(0)\n s_barrier\n s_cbranch_scc1 L_cloop2")
    RS, MRS = 128, 144
    CSR = [160, 162, 164, 166, 168, 170, 10]
    K = 4
    import math
    C1L = LOG2E*1.000001; E2M = LOG2E*math.exp(-1.000001); E2A = LOG2E*1e-6
    tr = [f"ds_read_b32 v{CSR[T]}, v250 offset:{64*T}" for T in range(7)]
    for j in range(4): tr += [f"ds_read_b128 v[{RS+4*j}:{RS+4*j+3}], v249 offset:{64*j}", f"ds_read_b128 v[{MRS+4*j}:{MRS+4*j+3}], v249 offset:{1024+64*j}"]
    tr += [f"v_mov_b32 v{K}, {f2u(C1L):#x}", f"v_mov_b32 v{K+2}, {f2u(E2M):#x}", f"v_mov_b32 v{K+4}, {f2u(E2A):#x}", "v_mov_b32 v2, 0x3f803f80"]
    for x in weave(mfmas(1), tr, {}): e(x)
    e("s_waitcnt lgkmcnt(0)")
    stamp(2)
    TMP = 204
    def phi(j, T, dst):
        c = acc(j, T); p = f"v[{CSR[T]}:{CSR[T]+1}]"; u = TMP; t = TMP+4
        for h in range(2): e(f"v_pk_fma_f32 v[{u+2*h}:{u+2*h+1}], v[{MRS+4*j+2*h}:{MRS+4*j+2*h+1}], {p}, v[{K}:{K+1}] op_sel_hi:[1,0,0]")
        for h in range(2): e(f"v_pk_fma_f32 v[{u+2*h}:{u+2*h+1}], v[{c+2*h}:{c+2*h+1}], v[{RS+4*j+2*h}:{RS+4*j+2*h+1}], v[{u+2*h}:{u+2*h+1}]")
        for q in range(4): e(f"v_exp_f32 v{t+q}, v{u+q}")
        for h in range(2): e(f"v_pk_fma_f32 v[{t+2*h}:{t+2*h+1}], v[{t+2*h}:{t+2*h+1}], v[{K+2}:{K+3}], v[{K+4}:{K+5}] op_sel_hi:[1,0,0]")
        for q in range(4): e(f"v_med3_f32 v{t+q}, v{u+q}, v{t+q}, v{K}")
        for h in range(2): e(f"v_cvt_pk_bf16_f32 v{dst+h}, v{t+2*h}, v{t+2*h+1}")
    def lin(j, T, dst):
        c = acc(j, T); p = f"v[{CSR[T]}:{CSR[T]+1}]"
        for h in range(2): e(f"v_pk_mul_f32 v[{TMP+8+2*h}:{TMP+9+2*h}], v[{MRS+4*j+2*h}:{MRS+4*j+2*h+1}], {p} op_sel_hi:[1,0]")
        for h in range(2): e(f"v_pk_fma_f32 v[{TMP+8+2*h}:{TMP+9+2*h}], v[{c+2*h}:{c+2*h+1}], v[{RS+4*j+2*h}:{RS+4*j+2*h+1}], v[{TMP+8+2*h}:{TMP+9+2*h}]")
        for h in range(2): e(f"v_cvt_pk_bf16_f32 v{dst+h}, v{TMP+8+2*h}, v{TMP+9+2*h}")
    PK = 216; KVA = 172
    pairs = [(0,0),(0,1),(0,2),(1,0),(1,1),(1,2),(2,1),(2,2)]
    def capture(fn):
        n0 = len(a.L); fn(); r = a.L[n0:]; del a.L[n0:]; return [x.strip() for x in r]
    Bop = lambda tb, jp: PK + 8*tb + 4*jp
    Aop = lambda ta, jp: acc(ta, 5) + 4*jp
    for T in range(3):
        for j in range(4): lin(j, 4+T, Bop(T, j >> 1) + 2*(j & 1))
    for r in range(8): e(f"v_bfi_b32 v{Bop(2, 0)+r}, v251, v2, v{Bop(2, 0)+r}")
    def kvwork(ta):
        m = []; w = []
        for jp in range(2):
            for n, (x, tb) in enumerate(pairs):
                if x != ta: continue
                c = KVA + 4*n
                m.append(f"v_mfma_f32_16x16x32_bf16 v[{c}:{c+3}], v[{Aop(ta, jp)}:{Aop(ta, jp)+3}], v[{Bop(tb, jp)}:{Bop(tb, jp)+3}], " + ("0" if jp == 0 else f"v[{c}:{c+3}]"))
                if jp: w.append(f"ds_write_b128 v255, v[{c}:{c+3}] offset:{n*1024}")
        return m, w
    side = []
    for T in range(3):
        v = capture(lambda: [phi(j, T, Aop(T, j >> 1) + 2*(j & 1)) for j in range(4)])
        k = 0
        for i, x in enumerate(v):
            e(x)
            if i % 6 == 5 and k < len(side): e(side[k]); k += 1
        for x in side[k:]: e(x)
        m, w = kvwork(T); side = m + w
    for x in side: e(x)
    e("s_waitcnt lgkmcnt(0)")
    stamp(13)
    e("s_barrier")
    stamp(3)
    for j in range(4): e(f"ds_write_b64 v252, v[{Aop(2, j >> 1) + 2*(j & 1)}:{Aop(2, j >> 1) + 2*(j & 1) + 1}] offset:{j*1920}")
    for j in range(4):
        for T in (3, 4):
            d = PK + (j*2 + T-3)*2
            phi(j, T, d)
            e(f"ds_write_b64 v252, v[{d}:{d+1}] offset:{j*1920 + (T-2)*640}")
    PQ = 16
    e("s_waitcnt lgkmcnt(0)")
    for j in range(4):
        for t in range(2): e(f"ds_read_b64_tr_b16 v[{PQ+6*j+2*t}:{PQ+6*j+2*t+1}], v253 offset:{j*1920 + (4+16*t)*40}")
        e(f"ds_read_b64_tr_b16 v[{PQ+6*j+4}:{PQ+6*j+5}], v254 offset:{j*1920 + 36*40}")
    KA = 44
    e(f"v_lshlrev_b32 v2, 2, v1\n v_add_u32 v2, {L_KTA}, v2")
    if lf:
        for i in range(9): e(f"ds_read_b32 v{240+i}, v2 offset:{256*i}")
    e(f"v_mov_b32 v{PQ+24}, 0\n v_mov_b32 v{PQ+25}, 0")
    for tau in range(3): e(f"v_mov_b32 v{KA+8*tau+6}, 0\n v_mov_b32 v{KA+8*tau+7}, 0")
    e(f"""
v_lshlrev_b32 v6, 4, v1
v_lshlrev_b32 v7, 4, v13
v_lshl_add_u32 v7, v14, 1, v7
s_xor_b32 s57, s48, {qswap}
s_lshr_b32 s58, s57, 1
s_lshl_b32 s58, s58, 8
s_and_b32 s59, s57, 1
s_lshl_b32 s59, s59, 3
s_add_u32 s58, s58, s59
s_add_u32 s58, s58, 16384
v_add_u32 v7, s58, v7
s_lshl_b32 s57, s57, 10
v_add_u32 v6, s57, v6
v_and_b32 v8, 1, v14
v_lshl_or_b32 v7, v8, 31, v7
v_mov_b32 v9, {f2u(1/LOG2E):#x}
v_mov_b32 v10, {f2u(1e-6):#x}
v_mov_b32 v8, v2
s_lshl_b32 s55, s50, 4
s_lshl_b32 s56, s54, 2
s_add_u32 s55, s55, s56
s_mul_i32 s55, s55, 18432
s_add_u32 s55, s55, {OB}
s_waitcnt lgkmcnt(0)
""")
    s3_scal()
    if not lf:
        s3_addr1(); s3_reads(); s3_addr2(); s3_unpack(); e("s_waitcnt lgkmcnt(0)")
        for i in range(9): e(f"ds_read_b32 v{240+i}, v8 offset:{256*i}")
        e("s_waitcnt lgkmcnt(0)")
    stamp(4)
    e("s_barrier")
    stamp(5)
    for tau in (2, 0, 1):
        for t in range(3): e(f"ds_read_b64 v[{KA+8*tau+2*t}:{KA+8*tau+2*t+1}], v{240+tau*3+t}")
    D = 68
    def s2m(j, tau, half):
        c = D + 12*j + 4*tau
        return f"v_mfma_f32_16x16x32_bf16 v[{c}:{c+3}], v[{KA+8*tau+4*half}:{KA+8*tau+4*half+3}], v[{PQ+6*j+4*half}:{PQ+6*j+4*half+3}], " + ("0" if half == 0 else f"v[{c}:{c+3}]")
    e("s_waitcnt lgkmcnt(6)")
    for half in range(2):
        for j in range(4): e(s2m(j, 2, half))
    e("s_waitcnt lgkmcnt(0)")
    mm = [s2m(j, tau, half) for j in range(4) for half in range(2) for tau in range(2)]
    dv = []
    for op in range(6):
        for j in range(4):
            r = D + 12*j + 10
            dv.append([f"v_mul_f32 v{r}, v9, v{r}", f"v_cvt_pk_bf16_f32 v{r}, v{r}, v{r}", f"v_and_b32 v{r}, 0xffff0000, v{r}", f"v_add_f32 v{r}, v10, v{r}", f"v_rcp_f32 v{r}, v{r}", f"v_mul_f32 v{r}, v9, v{r}"][op])
    for x in interleave(mm, dv, 2, 3): e(x)
    for j in range(4):
        c = D + 12*j; o = c
        for h in range(5): e(f"v_pk_mul_f32 v[{c+2*h}:{c+2*h+1}], v[{c+2*h}:{c+2*h+1}], v[{c+10}:{c+11}] op_sel_hi:[1,0]")
        for h in range(5): e(f"v_cvt_pk_bf16_f32 v{o+h}, v{c+2*h}, v{c+2*h+1}")
        e(f"buffer_store_dwordx4 v[{o}:{o+3}], v6, s[36:39], s55 offen sc1\n buffer_store_dword v{o+4}, v7, s[36:39], s55 offen sc1")
        if j < 3: e(f"s_add_u32 s55, s55, {16*1152}")
    stamp(6)

    e(f"s_mov_b32 s33, {0 if lf else 1}\n s_branch L_s3a")
    a.lab("L_s3pre")
    s3_scal(); s3_addr1(); s3_addr2()
    a.lab("L_s3rd")
    s3_reads()
    a.lab("L_s3un")
    e("s_mov_b32 s33, 1")
    s3_unpack()
    a.lab("L_s3a")
    e(f"v_lshlrev_b32 v6, 4, v1\n s_mov_b32 s35, 0\n s_mul_i32 s56, s63, {rot*1024}")
    e(f"""
{"" if hintall else "s_cmp_lt_u32 s27, 16"}
{"" if hintall else "s_cbranch_scc1 L_oload"}
s_cmp_lg_u32 s3, 7
s_cbranch_scc1 L_oload
v_mov_b32 v2, 0
s_mov_b32 s59, 0
s_add_u32 s57, s62, 1024
L_ohint:
s_sleep {hsleep}
buffer_load_dword v3, v2, s[36:39], s57 offen offset:1020 sc1
s_waitcnt vmcnt(0)
v_cmp_eq_u32 vcc, -1, v3
s_cbranch_vccz L_oload
s_add_u32 s59, s59, 1
s_cmp_lt_u32 s59, {SPIN}
s_cbranch_scc1 L_ohint
L_oload:
{"s_sleep %d" % osleep if osleep else ""}
s_waitcnt {"vmcnt(0) " if owait else ""}lgkmcnt(0)
s_barrier
""")
    stamp(7)
    if s3prio: e(f"s_cmp_lt_u32 s3, 4\n s_cbranch_scc1 L_s3p\n s_setprio {s3prio}\nL_s3p:")
    groups = [[2*i, 2*i+1] for i in range(9)]
    def oreg(k): return OF + 4*(k % (2*ahead+2))
    def oloads(g):
        r = []
        for k in g:
            o = oreg(k)
            if k % 2 == 0:
                if rot and k < 16: r.append(f"s_add_u32 s57, s56, {k*1024}\n s_and_b32 s57, s57, 0x3fff\n s_add_u32 s57, s57, s62")
                else: r.append(f"s_add_u32 s57, s62, {k*1024}")
            r.append(f"buffer_load_dwordx4 v[{o}:{o+3}], v6, s[36:39], s57 offen offset:{1024*(k%2)} {x_fl}")
        return r
    def ocheck(g):
        o = oreg(g[0])
        if lchk and g[0] < 16:
            e(f"v_max_u32 v2, v{o+3}, v{o+7}\n v_cmp_eq_u32 vcc, -1, v2"); return
        e(f"v_max3_u32 v2, v{o}, v{o+1}, v{o+2}\n v_max3_u32 v3, v{o+3}, v{o+4}, v{o+5}\n v_max3_u32 v2, v2, v{o+6}, v{o+7}\n v_max_u32 v2, v2, v3\n v_cmp_eq_u32 vcc, -1, v2")
    cnt = lambda i: 0 if i > 8 else 2
    e(f"""
s_lshr_b32 s57, s60, 3
s_lshl_b32 s57, s57, 7
s_add_u32 s57, s57, {XID}
v_min_u32 v8, 8, v1
v_lshlrev_b32 v8, 2, v8
buffer_load_dword v15, v8, s[36:39], s57 offen sc1
s_getreg_b32 s53, hwreg(HW_REG_XCC_ID)
s_and_b32 s53, s53, 15
""")
    if psetup: e("s_setprio 3")
    a.lab("L_redo")
    for g in groups[:ahead]:
        for x in oloads(g): e(x)
    e("s_cmp_eq_u32 s33, 0\n s_cbranch_scc0 L_s3b")
    s3_addr1(); s3_reads(); s3_addr2(); s3_unpack()
    e("s_waitcnt lgkmcnt(0)")
    a.lab("L_s3b")
    e("s_mov_b32 s59, 0")
    for gi, g in enumerate(groups):
        e(f"s_waitcnt vmcnt({sum(cnt(gi+d) for d in range(1, ahead))})")
        if gi + ahead < 9 and not x_nold:
            for x in oloads(groups[gi+ahead]): e(x)
        if gi == 9 - ahead:
            e(f"""
v_cmp_ne_u32 s[54:55], s53, v15
s_cmp_eq_u64 s[54:55], 0
s_cselect_b32 s53, {fast}, 0
s_cmp_eq_u32 s53, 0
s_cbranch_scc1 L_npt
v_min_u32 v8, 17, v1
v_lshlrev_b32 v8, 7, v8
buffer_load_dword v15, v8, s[36:39], s51 offen
L_npt:
""")
        if not x_nochk:
            ocheck(g)
            e(f"s_cbranch_vccnz L_oretry{gi}")
        a.lab(f"L_ook{gi}")
        if gi in pdec: e(f"s_setprio {3 - pdec.index(gi)}")
        for k in g:
            if k >= NPRE and (NPRE < 9 or k == NPRE): e(f"s_waitcnt lgkmcnt({min(8*(min(k+NPRE-1, 17) - k), 15) if NPRE < 9 else 0})")
            m = []
            for T in range(4):
                b = BR + (k % NPRE)*16 + 4*T
                m.append(f"v_mfma_f32_16x16x32_bf16 v[{AC+4*T}:{AC+4*T+3}], v[{b}:{b+3}], v[{oreg(k)}:{oreg(k)+3}], v[{AC+4*T}:{AC+4*T+3}]")
            if k+NPRE == 16:
                for T in range(4): e(f"v_add_u32 v{BA+T}, 0x10000, v{BA+T}")
            r = bread(k+NPRE) if k+NPRE < 18 and not x_nord else []
            for T in range(4):
                if not x_nomf: e(m[T])
                for x in r[2*T:2*T+2]: e(x)
    stamp(8)
    if lchk: e(f"v_cmp_u_f32 vcc, v{AC}, v{AC}\n s_cbranch_vccnz L_nan\nL_nanok:")
    HP = 64; HF = 72
    for i in range(8): e(f"v_cvt_pk_bf16_f32 v{HP+i}, v{AC+2*i}, v{AC+2*i+1}")
    e(f"""
v_mfma_f32_16x16x32_bf16 v[20:23], v[{HP}:{HP+3}], v[{HP}:{HP+3}], 0
v_mfma_f32_16x16x32_bf16 v[16:19], v[{WR}:{WR+3}], v[{HP}:{HP+3}], 0
v_mfma_f32_16x16x32_bf16 v[20:23], v[{HP+4}:{HP+7}], v[{HP+4}:{HP+7}], v[20:23]
v_mfma_f32_16x16x32_bf16 v[16:19], v[{WR+4}:{WR+7}], v[{HP+4}:{HP+7}], v[16:19]
v_cndmask_b32_e64 v20, v20, v21, s[46:47]
v_cndmask_b32_e64 v22, v22, v23, s[42:43]
v_cndmask_b32_e64 v17, v20, v22, s[48:49]
s_mov_b64 exec, s[44:45]
s_cmp_eq_u32 s53, 0
s_cbranch_scc1 L_ss
buffer_store_dwordx3 v[16:18], v{VST}, s[36:39], s52 offen
L_sb:
s_mov_b64 exec, -1
""")
    stamp(9)
    for i in range(8): e(f"v_lshlrev_b32 v{HF+2*i}, 16, v{HP+i}\n v_and_b32 v{HF+2*i+1}, 0xffff0000, v{HP+i}")
    for T in range(4): e(f"ds_write_b64 v{VSW}, v[{HP+2*T}:{HP+2*T+1}] offset:{2304+32*T}")
    e(f"""
s_mov_b32 s59, 0
{"s_waitcnt vmcnt(0)" if cwait else ""}
L_c1:
buffer_load_dwordx3 v[20:22], v6, s[36:39], s51 offen sc1
buffer_load_dwordx3 v[24:26], v6, s[36:39], s51 offen offset:1024 sc1
buffer_load_dwordx3 v[28:30], v{VST}, s[36:39], s51 offen offset:2048 sc1
s_waitcnt vmcnt(0)
v_max3_u32 v2, v20, v21, v22
v_max3_u32 v3, v24, v25, v26
v_max3_u32 v4, v28, v29, v30
v_max3_u32 v2, v2, v3, v4
v_cmp_eq_u32 vcc, -1, v2
s_cbranch_vccz L_c1ok
s_add_u32 s59, s59, 1
s_cmp_lt_u32 s59, {SPIN}
s_cbranch_scc1 L_c1
L_c1ok:
""")
    stamp(10)
    for q in range(3): e(f"v_add_f32 v{16+q}, v{20+q}, v{24+q}\n v_add_f32 v{20+q}, v{20+q}, v{24+q}")
    for q in range(3): e(f"v_permlane16_swap_b32 v{16+q}, v{20+q}")
    for q in range(3): e(f"v_add_f32 v{24+q}, v{16+q}, v{20+q}\n v_add_f32 v{16+q}, v{16+q}, v{20+q}")
    for q in range(3): e(f"v_permlane32_swap_b32 v{16+q}, v{24+q}")
    for q in range(3): e(f"v_add_f32 v{16+q}, v{16+q}, v{24+q}")
    for q in range(3): e(f"v_add_f32 v{16+q}, v{16+q}, v{28+q}")
    inv = f2u(1.0/576)
    e(f"""
v_mul_f32 v16, {inv:#x}, v16        ; mean
v_mul_f32 v17, {inv:#x}, v17
v_fma_f32 v17, -v16, v16, v17       ; var
v_max_f32 v17, 0, v17
v_cvt_pk_bf16_f32 v20, v16, v17
v_lshlrev_b32 v16, 16, v20
v_and_b32 v17, 0xffff0000, v20
v_add_f32 v17, {f2u(1e-5):#x}, v17
v_cvt_pk_bf16_f32 v17, v17, v17
v_and_b32 v17, 0xffff0000, v17
v_sqrt_f32 v17, v17
v_fma_f32 v18, -v16, v{VSUM}, v18
v_cvt_pk_bf16_f32 v17, v17, v17
v_and_b32 v17, 0xffff0000, v17
v_rcp_f32 v56, v17
v_mul_f32 v18, v18, v56
v_cvt_pk_bf16_f32 v18, v18, v18
v_ashrrev_i32 v20, 31, v18
v_or_b32 v20, 0x80000000, v20
v_xor_b32 v18, v18, v20
s_mov_b32 s57, 0xffff0000
v_and_or_b32 v18, v18, s57, v{VTOK}    ; key
""")
    NP = 32; NF = 40
    def hncalc():
        for i in range(8): e(f"v_pk_add_f32 v[{NF+2*i}:{NF+2*i+1}], v[{HF+2*i}:{HF+2*i+1}], v[16:17] op_sel_hi:[1,0] neg_lo:[0,1] neg_hi:[0,1]")
        for i in range(8): e(f"v_cvt_pk_bf16_f32 v{NP+i}, v{NF+2*i}, v{NF+2*i+1}")
        for i in range(8): e(f"v_lshlrev_b32 v{NF+2*i}, 16, v{NP+i}\n v_and_b32 v{NF+2*i+1}, 0xffff0000, v{NP+i}")
        for i in range(8): e(f"v_pk_mul_f32 v[{NF+2*i}:{NF+2*i+1}], v[{NF+2*i}:{NF+2*i+1}], v[56:57] op_sel_hi:[1,0]")
        for i in range(8): e(f"v_cvt_pk_bf16_f32 v{NP+i}, v{NF+2*i}, v{NF+2*i+1}")
        for T in range(4): e(f"ds_write_b64 v{VSW}, v[{NP+2*T}:{NP+2*T+1}] offset:{32*T}")
    rowmax(20, 18)
    e("v_cmp_eq_u32 s[40:41], v18, v20\n v_cndmask_b32_e64 v22, v18, 0, s[40:41]")
    rowmax(21, 22)
    if hnearly: hncalc()
    e(f"ds_write_b64 v{VKW}, v[20:21]\n s_lshr_b32 s58, s60, 3\n s_lshl_b32 s57, s58, 7\n s_add_u32 s57, s57, {KEY}\n s_lshl_b32 s56, s63, 11\n s_add_u32 s57, s57, s56\n {'s_mov_b32 s56, s3' if krep else 's_or_b32 s56, s63, s3'}\n v_mov_b32 v23, 0\n s_waitcnt lgkmcnt(0)\n s_barrier\n ds_read_b32 v18, v{VKR}\n s_waitcnt lgkmcnt(0)")
    rowmax(20, 18)
    e("v_cmp_eq_u32 s[40:41], v18, v20\n v_cndmask_b32_e64 v22, v18, 0, s[40:41]")
    rowmax(21, 22)
    e(f"""
s_cmp_lg_u32 s56, 0
s_cbranch_scc1 L_nokey
s_mov_b64 exec, 1
buffer_store_dwordx2 v[20:21], v23, s[36:39], s57 offen sc1
s_mov_b64 exec, -1
L_nokey:
""")
    stamp(11)
    e(f"""
s_mov_b64 s[40:41], 0xff
v_cndmask_b32_e64 v20, v21, v20, s[40:41]
v_not_b32 v20, v20
v_bfe_u32 v22, v20, 4, 3
v_cmp_eq_u32 s[46:47], s3, v22
s_and_b64 s[46:47], s[46:47], 0xffff
s_cbranch_scc0 L_noown
s_setprio {3 if oprio else 0}
L_noown:
""")
    if not hnearly: hncalc()
    e(f"""
v_and_b32 v20, 15, v20
v_mul_u32_u24 v20, 144, v20
v_lshl_add_u32 v20, v{VC7}, 4, v20
v_add_u32 v20, s50, v20
v_bfe_u32 v21, v1, 3, 1
v_mul_u32_u24 v21, 2304, v21
v_lshl_add_u32 v21, v{VC7}, 4, v21
s_mul_i32 s62, s58, 4608
s_lshl_b32 s57, s63, 7
s_add_u32 s62, s62, s57
s_add_u32 s62, s62, {CAND}
s_cmp_eq_u64 s[46:47], 0
s_cbranch_scc1 L_nocand
s_waitcnt lgkmcnt(0)
ds_read_b128 v[24:27], v20
ds_read_b128 v[28:31], v20 offset:2304
s_waitcnt lgkmcnt(0)
""")
    e("s_mov_b64 exec, s[46:47]\n buffer_store_dwordx4 v[24:27], v21, s[36:39], s62 offen sc1\n s_mov_b64 exec, -1\nL_nocand:")
    for i in range(8): e(f"v_lshlrev_b32 v{NF+2*i}, 16, v{NP+i}\n v_and_b32 v{NF+2*i+1}, 0xffff0000, v{NP+i}")
    for i in range(8): e(f"v_pk_add_f32 v[{NF+2*i}:{NF+2*i+1}], v[{NF+2*i}:{NF+2*i+1}], v[{HF+2*i}:{HF+2*i+1}]")
    if hscale:
        for i in range(16): e(f"v_mul_f32 v{NF+i}, {f2u(hscale):#x}, v{NF+i}")
    for i in range(8): e(f"v_cvt_pk_bf16_f32 v{NP+i}, v{NF+2*i}, v{NF+2*i+1}")
    for T in range(4): e(f"ds_write_b64 v{VSW}, v[{NP+2*T}:{NP+2*T+1}] offset:{32*T}")
    srd(68, 20, 2359296)
    e(f"""
s_waitcnt lgkmcnt(0)
ds_read_b128 v[40:43], v{VSR}
ds_read_b128 v[44:47], v{VSR} offset:1152
s_add_u32 s57, s61, {8*1152}
s_waitcnt {"vmcnt(0) " if outwait else ""}lgkmcnt(0)
s_barrier
s_cmp_eq_u64 s[46:47], 0
s_cbranch_scc0 L_own
{"s_sleep %d" % outsleep if outsleep else ""}
buffer_store_dwordx4 v[40:43], v{VOUT}, s[68:71], s61 offen {outfl}
buffer_store_dwordx4 v[44:47], v{VOUT}, s[68:71], s57 offen {outfl}
s_branch L_s3end
L_own:
buffer_store_dwordx4 v[40:43], v{VOUT}, s[68:71], s61 offen sc1
buffer_store_dwordx4 v[44:47], v{VOUT}, s[68:71], s57 offen sc1
s_waitcnt vmcnt(0)
s_mov_b64 exec, s[46:47]
buffer_store_dwordx4 v[28:31], v21, s[36:39], s62 offen offset:1152 sc1
L_s3end:
""")
    if wb: e("s_sub_u32 s57, s27, 25\n s_or_b32 s57, s57, s3\n s_cmp_lg_u32 s57, 0\n s_cbranch_scc1 L_nowb\n s_waitcnt vmcnt(0)\n buffer_wbl2 sc1\nL_nowb:")
    stamp(12)
    fin()
    if lchk:
        e(f"L_nan:\n s_add_u32 s35, s35, 1\n s_cmp_ge_u32 s35, 2000\n s_cbranch_scc1 L_nanok\n s_mov_b32 s33, 0\n s_movk_i32 s53, 99\n v_lshrrev_b32 v{VOUT}, 3, v1\n s_branch L_redo")
    e(f"L_ss:\n buffer_store_dwordx3 v[16:18], v{VST}, s[36:39], s52 offen sc1\n s_waitcnt vmcnt(0)\n s_branch L_sb")
    for gi, g in enumerate(groups):
        a.lab(f"L_oretry{gi}")
        e(f"s_add_u32 s59, s59, 1\n s_cmp_ge_u32 s59, {SPIN}\n s_cbranch_scc1 L_ook{gi}")
        for x in oloads(g): e(x)
        e("s_waitcnt vmcnt(0)")
        ocheck(g)
        e(f"s_cbranch_vccnz L_oretry{gi}\n s_branch L_ook{gi}")

    a.lab("L_B")
    e("s_barrier\n s_cmp_ge_u32 s27, 24\n s_cbranch_scc1 L_X")
    def wacc(st_):
        for p in range(2):
            r = 16 + 8*st_ + 4*p
            d = 88 + 8*p if st_ == 0 else 104
            for q in range(4): e(f"v_lshlrev_b32 v{d+2*q}, 16, v{r+q}\n v_and_b32 v{d+2*q+1}, 0xffff0000, v{r+q}")
            if st_:
                for q in range(4): e(f"v_pk_add_f32 v[{88+8*p+2*q}:{89+8*p+2*q}], v[{88+8*p+2*q}:{89+8*p+2*q}], v[{104+2*q}:{105+2*q}]")
    NL = 2; macc = wacc
    for st_ in range(2, 9):
        e(f"buffer_load_dwordx4 v[{16+8*st_}:{19+8*st_}], v2, s[32:35], s56 offen\n buffer_load_dwordx4 v[{20+8*st_}:{23+8*st_}], v5, s[32:35], s56 offen")
        if st_ < 8: e("s_add_u32 s56, s56, s57\n s_barrier")
        if st_ == 2:
            srd(36, 24, 0x10000000); srd(64, 22, 256); e("v_mov_b32 v113, 0")
        if st_ == 8: e("buffer_load_dword v112, v113, s[64:67], 0 offen offset:128 sc1")
        if st_ >= LAG:
            e(f"s_waitcnt vmcnt({NL*LAG + (st_ == 8)})"); macc(st_-LAG)
    for st_ in range(9-LAG, 9):
        e(f"s_waitcnt vmcnt({NL*(8-st_)+1})"); macc(st_)
    stamp(13)
    e(f"""
s_mul_i32 s57, s3, 3840
v_lshl_add_u32 v2, v1, 5, s57
v_lshl_add_u32 v5, v3, 5, s57
ds_write_b128 v2, v[88:91]
ds_write_b128 v2, v[92:95] offset:16
ds_write_b128 v5, v[96:99]
ds_write_b128 v5, v[100:103] offset:16
v_min_u32 v2, 239, v0
v_lshlrev_b32 v2, 4, v2
s_waitcnt lgkmcnt(0)
s_barrier
s_cmp_ge_u32 s3, 4
s_cbranch_scc1 L_W2
""")
    for i_ in range(8): e(f"ds_read_b128 v[{32+4*i_}:{35+4*i_}], v2 offset:{3840*i_}")
    e(f"s_lshl_b32 s57, s26, 3\n s_add_u32 s57, s57, s47\n s_mul_i32 s57, s57, 3840\n s_add_u32 s57, s57, {CS}\n s_waitcnt lgkmcnt(0)")
    for st in (16, 8, 4):
        for i_ in range(0, st, 2): e(f"v_pk_add_f32 v[{32+i_}:{33+i_}], v[{32+i_}:{33+i_}], v[{32+st+i_}:{33+st+i_}]")
    for q in range(4): e(f"v_min_u32 v{32+q}, -2, v{32+q}")
    flags_wait("w", True, 128, 112, 113)
    e("buffer_store_dwordx4 v[32:35], v2, s[36:39], s57 offen sc1")
    a.lab("L_W2")
    if not fearly: e("s_barrier")
    stamp(1)
    e("s_branch L_F")

    a.lab("L_X")
    e("v_mov_b32 v8, 0\n v_mov_b32 v9, 0\n v_mov_b32 v10, 0\n v_mov_b32 v11, 0\n s_mov_b32 s58, 0x3f803f80")
    def xacc(st_):
        for q in range(4):
            for p in range(2):
                r = 16 + 8*st_ + 4*p + q
                e(f"v_dot2c_f32_bf16 v{8+p}, s58, v{r}\n v_dot2c_f32_bf16 v{10+p}, v{r}, v{r}")
    for st_ in range(2, 9):
        e(f"buffer_load_dwordx4 v[{16+8*st_}:{19+8*st_}], v2, s[32:35], s56 offen\n buffer_load_dwordx4 v[{20+8*st_}:{23+8*st_}], v5, s[32:35], s56 offen")
        if st_ < 8: e("s_add_u32 s56, s56, s57\n s_barrier")
        if st_ >= LAG:
            e(f"s_waitcnt vmcnt({2*LAG})"); xacc(st_-LAG)
    for st_ in range(9-LAG, 9):
        e(f"s_waitcnt vmcnt({2*(8-st_)})"); xacc(st_)
    srd(36, 24, 0x10000000); srd(64, 22, 256); srd(28, 4, 2359296)
    e("v_mov_b32 v28, 0\n buffer_load_dword v27, v28, s[64:67], 0 offen offset:128 sc1")
    for m_ in ("quad_perm:[1,0,3,2]", "quad_perm:[2,3,0,1]", "row_half_mirror"):
        for d in range(8, 12): e(f"v_add_f32_dpp v{d}, v{d}, v{d} {m_} row_mask:0xf bank_mask:0xf")
    e(f"""
v_and_b32 v5, 1, v1
v_cmp_eq_u32 vcc, 1, v5
v_cndmask_b32 v16, v8, v9, vcc
v_cndmask_b32 v18, v10, v11, vcc
v_mul_f32 v16, {inv:#x}, v16
v_mul_f32 v18, {inv:#x}, v18
v_fma_f32 v18, -v16, v16, v18
v_max_f32 v18, 0, v18
v_cvt_pk_bf16_f32 v20, v16, v18
v_lshlrev_b32 v16, 16, v20
v_and_b32 v18, 0xffff0000, v20
v_add_f32 v18, {f2u(1e-5):#x}, v18
v_cvt_pk_bf16_f32 v18, v18, v18
v_and_b32 v18, 0xffff0000, v18
v_sqrt_f32 v18, v18
v_cvt_pk_bf16_f32 v18, v18, v18
v_and_b32 v18, 0xffff0000, v18
v_rcp_f32 v18, v18
v_lshl_add_u32 v20, v5, 3, v7
v_lshlrev_b32 v20, 2, v20
v_mul_f32 v18, {f2u(LOG2E):#x}, v18
v_mul_f32_e64 v19, -v16, v18
v_min_u32 v18, -2, v18
v_min_u32 v19, -2, v19
s_lshl_b32 s56, s55, 6
s_lshl_b32 s57, s46, 14
s_add_u32 s56, s56, s57
s_add_u32 s56, s56, {XST}
s_add_u32 s57, s56, 8192
""")
    flags_wait("x", True, 128)
    e(f"""
s_mov_b32 s58, 0x03030303
s_mov_b32 s59, 0x03030303
s_mov_b64 exec, s[58:59]
buffer_store_dword v18, v20, s[36:39], s56 offen sc1
buffer_store_dword v19, v20, s[36:39], s57 offen sc1
s_mov_b64 exec, -1
""")
    stamp(1)
    e("s_cmp_eq_u32 s27, 24\n s_cbranch_scc1 L_F")
    srd(68, 8, 663552)
    e("s_sub_u32 s56, s27, 25\n s_lshl_b32 s56, s56, 3\n s_add_u32 s56, s56, s3\n s_lshl_b32 s56, s56, 13\n v_lshlrev_b32 v2, 7, v1")
    for i in range(4 if wopf == 1 else 0):
        e(f"buffer_load_dword v100, v2, s[68:71], s56 offen\n s_add_u32 s56, s56, {24*8192}\n s_barrier")
    if upf == 1: up_prefetch(0, 2)
    if stamps: e("s_waitcnt vmcnt(0)")
    stamp(2)
    e("s_cmp_lt_u32 s27, 27\n s_cbranch_scc1 L_HS3")
    fin()
    a.lab("L_HS3")
    e("s_sub_u32 s53, s27, 9\n s_cmp_lt_u32 s3, 4\n s_cbranch_scc1 L_HS3b")
    wo_setup(); wo_dma("h")
    e("s_cmp_lg_u32 s54, 3\n s_cbranch_scc1 L_HS3b")
    flags_wait("h", False, F2, nap=4)
    sw_calc()
    a.lab("L_HS3b")
    if cpf & 2:
        e("s_waitcnt vmcnt(0) lgkmcnt(0)\n s_barrier\n s_cmp_ge_u32 s3, 4\n s_cbranch_scc1 L_s3pre")
        code_touch(54, 102)
        e("s_branch L_s3pre")
    e("s_waitcnt vmcnt(0) lgkmcnt(0)\n s_barrier\n s_branch L_s3pre")

    a.lab("L_R")
    e(f"""
v_mov_b32 v8, -1
v_mov_b32 v9, -1
v_mov_b32 v10, -1
v_mov_b32 v11, -1
v_lshlrev_b32 v12, 4, v1
s_lshl_b32 s48, s26, 2
s_add_u32 s48, s48, s47
s_sub_u32 s48, s48, 12
s_lshl_b32 s57, s48, 3
s_add_u32 s57, s57, s3
s_lshl_b32 s56, s57, 11
s_add_u32 s56, s56, {XST}
s_mul_i32 s57, s57, 14336
s_add_u32 s58, s57, 14336
s_waitcnt lgkmcnt(0)
""")
    srd(36, 24, 0x10000000); srd(64, 22, 256)
    e(f"""
buffer_store_dwordx4 v[8:11], v12, s[36:39], s56 offen sc1
buffer_store_dwordx4 v[8:11], v12, s[36:39], s56 offen offset:1024 sc1
""")
    if sweep:
        srd(28, 4, 2359296); srd(32, 6, 1990656); srd(68, 8, 663552)
        e(f"""
s_cmp_ge_u32 s3, 4
s_cbranch_scc1 L_Rw
v_mul_u32_u24 v2, 1152, v1
s_mul_i32 s55, s48, {64*1152}
s_lshl_b32 s59, s3, 7
s_add_u32 s55, s55, s59
{"buffer_load_dword v100, v2, s[28:31], s55 offen offset:640" if sweep & 1 else "s_nop 0"}
v_lshlrev_b32 v2, 7, v1
s_mul_i32 s55, s48, 3
s_add_u32 s55, s55, s3
s_lshl_b32 s55, s55, 13
s_cmp_eq_u32 s3, 3
s_cselect_b32 s55, 0x100000, s55
{"buffer_load_dword v100, v2, s[68:71], s55 offen" if sweep & 4 else "s_nop 0"}
s_waitcnt vmcnt({bin(sweep & 5).count("1")})
s_branch L_Rx
L_Rw:
v_min_u32 v2, 53, v1
v_lshlrev_b32 v2, 7, v2
s_lshl_b32 s55, s3, 5
s_add_u32 s55, s55, s48
s_add_u32 s55, s55, 32
s_mul_i32 s55, s55, 6912
{"buffer_load_dword v100, v2, s[32:35], s55 offen" if sweep & 2 else "s_nop 0"}
s_waitcnt vmcnt({1 if sweep & 2 else 0})
L_Rx:
""")
    else: e("s_waitcnt vmcnt(0)")
    e(f"""
s_barrier
s_cmp_lg_u32 s3, 0
s_cbranch_scc1 L_R21
""")
    arrive("q", 0, 128, 32)
    stamp(1)
    e(f"""
L_R21:
s_barrier
L_R2:
buffer_store_dwordx4 v[8:11], v12, s[36:39], s57 offen {rflag}
s_add_u32 s57, s57, 1024
s_cmp_lt_u32 s57, s58
s_cbranch_scc1 L_R2
L_R4:
s_waitcnt vmcnt(0)
s_barrier
s_cmp_lg_u32 s3, 0
s_cbranch_scc1 L_R3
""")
    arrive("r", 4, F2, 32)
    a.lab("L_R3")
    if cpf & 1:
        e("s_cmp_lg_u32 s27, 28\n s_cbranch_scc1 L_nct\n s_cmp_lt_u32 s3, 4\n s_cbranch_scc1 L_nct")
        code_touch(54, 102)
        a.lab("L_nct")
    if upf:
        e("s_barrier")
        up_prefetch(48 if upf == 1 else 19, 2)
        if stamps: e("s_waitcnt vmcnt(0)")
    if wopf == 2:
        srd(68, 8, 663552)
        e("s_sub_u32 s56, s27, 28\n s_lshl_b32 s56, s56, 3\n s_add_u32 s56, s56, s3\n s_lshl_b32 s56, s56, 13\n v_lshlrev_b32 v2, 7, v1")
        for i in range(3):
            e(f"s_barrier\n buffer_load_dword v100, v2, s[68:71], s56 offen\n s_add_u32 s56, s56, {32*8192}")
    stamp(2)
    fin()

    a.lab("L_F")
    GW = 16; DW = 160; HB = 232; GA = 248
    srd(32, 18, 5308416); srd(68, 14, 5308416)
    e(f"""
s_mul_i32 s48, s26, 9
s_add_u32 s48, s48, s47            ; fi
s_and_b32 s56, s3, 1
s_lshl_b32 s56, s56, 4
s_bfe_u32 s57, s3, 0x10001
s_lshl_b32 s57, s57, 2
s_add_u32 s56, s56, s57
s_lshr_b32 s57, s3, 2
s_lshl_b32 s57, s57, 5
s_add_u32 s55, s56, s57
s_lshl_b32 s57, s48, 6
s_add_u32 s56, s55, s57
s_mul_i32 s56, s56, 1152
s_mul_i32 s57, s3, 9216
v_lshlrev_b32 v2, 4, v1
v_lshrrev_b32 v3, 5, v1
v_mul_u32_u24 v3, 4608, v3
v_add_u32 v3, v3, v2
""")
    for t in range(9):
        e(f"s_add_u32 m0, s57, {F_WU + t*1024}\n s_add_u32 s58, s56, {t*1024 + (4608 if t > 4 else 0)}\n buffer_load_dwordx4 v{3 if t == 4 else 2}, s[32:35], s58 offen nt lds")
    def gu_dma(tag, base):
        e(f"""
s_lshl_b32 s56, s48, 7
s_lshl_b32 s57, s3, 10
s_add_u32 s57, s57, {base}
s_mov_b32 s58, 0
L_Fl{tag}:
s_mov_b32 m0, s57
s_add_u32 s57, s57, 8192
buffer_load_dwordx4 v4, s[68:71], s56 offen nt lds
s_add_u32 s56, s56, {64*9216}
s_add_u32 s58, s58, 1
s_cmp_lt_u32 s58, 9
s_cbranch_scc1 L_Fl{tag}
""")
    e(f"""
v_lshrrev_b32 v2, 3, v1            ; rr
v_and_b32 v3, 7, v1
v_xor_b32 v3, v3, v2
v_lshlrev_b32 v3, 4, v3
v_lshrrev_b32 v4, 2, v2
v_and_b32 v5, 3, v2
v_lshl_add_u32 v4, v4, 3, v5
v_add_u32 v4, s55, v4              ; k local
v_mul_u32_u24 v4, 9216, v4
v_add_u32 v4, v4, v3
s_barrier
""")
    gu_dma("g", F_WG)
    e(f"""
v_lshrrev_b32 v2, 2, v13
v_lshl_add_u32 v2, v14, 2, v2
v_mul_u32_u24 v2, 1152, v2
v_and_b32 v3, 3, v13
v_lshl_add_u32 v2, v3, 3, v2
s_mul_i32 s56, s54, 288
s_add_u32 s56, s56, {F_WU}
v_add_u32 v5, s56, v2
s_mov_b32 s68, s16
s_mov_b32 s69, s17
s_waitcnt vmcnt(9)
s_barrier
s_cmp_ge_u32 s3, 4
s_cbranch_scc1 L_Fa
""")
    for i in range(9):
        for k in range(2):
            for hf in range(2):
                d = DW + 8*i + 4*k + 2*hf
                e(f"ds_read_b64_tr_b16 v[{d}:{d+1}], v5 offset:{(k*32+hf*16)*1152 + 32*i}")
    e("L_Fa:\n s_waitcnt lgkmcnt(0)\n s_barrier")
    gu_dma("u", F_WU)
    e(f"""
v_lshrrev_b32 v2, 2, v13
v_lshl_add_u32 v2, v14, 2, v2      ; rho
v_and_b32 v3, 7, v2
s_lshl_b32 s56, s54, 1
v_xor_b32 v3, s56, v3
v_lshlrev_b32 v3, 4, v3
v_lshl_add_u32 v3, v2, 7, v3
v_and_b32 v4, 1, v13
v_lshl_add_u32 v3, v4, 3, v3
v_bfe_u32 v4, v13, 1, 1
s_mov_b32 s56, {F_WU}
v_mad_u32_u24 v5, v4, s56, v3
v_xor_b32 v6, 16, v5
v_add_u32 v7, 0x9000, v5
v_add_u32 v8, 0x9000, v6
v_mov_b32 v249, 0
""")
    flags_wait("f", False, F2, 250, 249, nap=4)
    e("s_waitcnt vmcnt(0)\n s_barrier\n s_cmp_ge_u32 s3, 4\n s_cbranch_scc1 L_Fb")
    for k in range(18):
        for t in range(2):
            for hf in range(2):
                off = (k*32+hf*16)*128; reg = 5+t
                if k >= 9: off -= 0x9000; reg = 7+t
                d = GW + 8*k + 4*t + 2*hf
                e(f"ds_read_b64_tr_b16 v[{d}:{d+1}], v{reg} offset:{off}")
    e(f"""
L_Fb:
s_waitcnt lgkmcnt(0)
s_cmp_lt_u32 s3, 4
s_cbranch_scc1 L_Fd
s_sub_u32 s49, s2, 128
s_cmp_lg_u32 s3, 7
s_cbranch_scc1 L_fin
s_cmp_ge_u32 s49, 36
s_cbranch_scc1 L_fin
L_Fd:
v_lshlrev_b32 v7, 4, v0            ; tid*16
v_and_b32 v2, 1, v13
v_mul_u32_u24 v8, 1168, v2
v_lshl_add_u32 v8, v14, 4, v8
v_add_u32 v8, {F_HN}, v8
v_lshlrev_b32 v9, 7, v2
v_lshl_add_u32 v10, v14, 4, v9
v_add_u32 v10, {F_ACT}, v10
v_lshl_add_u32 v9, v14, 3, v9
s_lshl_b32 s56, s54, 5
s_add_u32 s56, s56, {F_ACT}
v_add_u32 v9, s56, v9
v_and_b32 v3, 6, v13
v_add_u32 v9, v9, v3
v_lshrrev_b32 v3, 3, v13
v_lshl_add_u32 v9, v3, 4, v9
s_mov_b32 s46, 0xcccccccc
s_mov_b32 s47, 0xcccccccc
s_mov_b32 s52, 0xf0f0f0f0
s_mov_b32 s53, 0xf0f0f0f0
s_mov_b32 s34, 0xff00ff00
s_mov_b32 s35, 0xff00ff00
v_mul_u32_u24 v11, 2304, v2
v_lshl_add_u32 v11, v14, 4, v11    ; y voffset
v_bfe_u32 v3, v13, 1, 2
v_lshl_add_u32 v15, v3, 6, v11
v_lshrrev_b32 v3, 3, v13
v_lshl_or_b32 v15, v3, 31, v15
v_cmp_lt_u32 s[40:41], 1, v13
v_cndmask_b32_e64 v3, 0, 1, s[40:41]
v_lshl_or_b32 v11, v3, 31, v11
v_lshlrev_b32 v12, 7, v13
s_movk_i32 s58, 72
v_cmp_le_u32 s[44:45], s58, v0
v_cndmask_b32_e64 v4, 0, 1, s[44:45]
v_mul_u32_u24 v5, 1152, v4
v_sub_u32 v5, v7, v5
v_lshl_add_u32 v6, v4, 4, v7
v_add_u32 v6, {F_HN}, v6
s_mul_i32 s60, s48, 4608
s_mul_i32 s56, s54, 576
s_add_u32 s60, s60, s56
s_add_u32 s60, s60, {YP}
s_lshl_b32 s57, s26, 11
s_add_u32 s57, s57, {KEY}
s_mov_b32 s59, 0
s_movk_i32 s58, 144
s_movk_i32 s55, 2304
v_cmp_gt_u32 s[42:43], s58, v0
""")
    stamp(2)
    e(f"""
s_cmp_eq_u32 s3, 3
s_cbranch_scc1 L_f2
L_k0:
buffer_load_dwordx2 v[{HB}:{HB+1}], v12, s[36:39], s57 offen sc1
s_waitcnt vmcnt(0)
v_max_u32 v2, v{HB}, v{HB+1}
v_cmp_eq_u32 vcc, -1, v2
s_cbranch_vccz L_k1
{'s_sleep %d' % ksleep if ksleep else ''}
s_add_u32 s59, s59, 1
s_cmp_lt_u32 s59, {SPIN}
s_cbranch_scc1 L_k0
L_k1:
""")
    stamp(3)
    rowmax(HB+4, HB)
    e(f"v_cmp_eq_u32 s[40:41], v{HB}, v{HB+4}\n v_cndmask_b32_e64 v2, v{HB}, v{HB+1}, s[40:41]")
    rowmax(HB+5, 2)
    e(f"""
v_not_b32 v2, v{HB+4}
v_not_b32 v3, v{HB+5}
v_bfe_u32 v2, v2, 7, 4
v_bfe_u32 v3, v3, 7, 4
v_cmp_eq_u32 s[40:41], v2, v3
v_lshlrev_b32 v2, 1, v2
v_lshlrev_b32 v3, 1, v3
v_addc_co_u32_e64 v3, s[40:41], 0, v3, s[40:41]
s_cmp_eq_u32 s3, 7
s_cbranch_scc1 L_fz
v_cndmask_b32_e64 v2, v2, v3, s[44:45]
v_mad_u32_u24 v2, v2, s55, v5
s_mov_b64 exec, s[42:43]
s_mov_b32 s57, {CAND}
s_mov_b32 s59, 0
L_f0:
buffer_load_dwordx4 v[{HB}:{HB+3}], v2, s[36:39], s57 offen sc1
s_waitcnt vmcnt(0)
v_max3_u32 v3, v{HB}, v{HB+1}, v{HB+2}
v_max_u32 v3, v3, v{HB+3}
v_cmp_eq_u32 vcc, -1, v3
s_cbranch_vccz L_f1
s_add_u32 s59, s59, 1
s_cmp_lt_u32 s59, {SPIN}
s_cbranch_scc1 L_f0
L_f1:
ds_write_b128 v6, v[{HB}:{HB+3}]
s_mov_b64 exec, -1
s_waitcnt lgkmcnt(0)
L_f2:
s_barrier
""")
    stamp(4)
    hreg = lambda k: HB + 4*k if k < 4 else GW + 8*((k-4)//2) + 4*(k % 2)
    for k in range(4): e(f"ds_read_b128 v[{hreg(k)}:{hreg(k)+3}], v8 offset:{64*k}")
    issued = 4
    for k in range(18):
        e(f"s_waitcnt lgkmcnt({issued-1-k})")
        for t in range(2):
            e(f"v_mfma_f32_16x16x32_bf16 v[{GA+4*t}:{GA+4*t+3}], v[{GW+8*k+4*t}:{GW+8*k+4*t+3}], v[{hreg(k)}:{hreg(k)+3}], " + ("0" if k == 0 else f"v[{GA+4*t}:{GA+4*t+3}]"))
        for j in (4+2*k, 5+2*k):
            if j < 18: e(f"ds_read_b128 v[{hreg(j)}:{hreg(j)+3}], v8 offset:{64*j}"); issued += 1
    for i in range(4): e(f"v_cndmask_b32_e64 v{GA+2*i}, v{GA+2*i}, v{GA+2*i+1}, s[46:47]")
    e(f"""
v_cndmask_b32_e64 v{GA}, v{GA}, v{GA+2}, s[52:53]
v_cndmask_b32_e64 v{GA+4}, v{GA+4}, v{GA+6}, s[52:53]
v_cndmask_b32_e64 v2, v{GA}, v{GA+4}, s[34:35]
v_cvt_pk_bf16_f32 v2, v2, v2
v_and_b32 v3, 0xffff0000, v2
v_and_b32 v4, 0xffff0000, v2
v_permlane32_swap_b32 v3, v4
v_mul_f32 v2, {f2u(-LOG2E):#x}, v3
v_exp_f32 v2, v2
v_add_f32 v2, 1.0, v2
v_rcp_f32 v2, v2
v_mul_f32 v3, v3, v2
v_cvt_pk_bf16_f32 v3, v3, v3
v_and_b32 v3, 0xffff0000, v3
v_mul_f32 v3, v3, v4
v_cvt_pk_bf16_f32 v3, v3, v3
s_mov_b32 exec_hi, 0
ds_write_b16 v9, v3
s_mov_b32 exec_hi, -1
s_waitcnt lgkmcnt(0)
s_barrier
ds_read_b128 v[{HB}:{HB+3}], v10
ds_read_b128 v[{HB+4}:{HB+7}], v10 offset:64
s_mov_b32 s56, 0x30003
s_mov_b32 s57, 0x30003
s_waitcnt lgkmcnt(0)
""")
    def dm(i, k):
        c = 16 + 4*i
        return f"v_mfma_f32_16x16x32_bf16 v[{c}:{c+3}], v[{DW+8*i+4*k}:{DW+8*i+4*k+3}], v[{HB+4*k}:{HB+4*k+3}], " + ("0" if k == 0 else f"v[{c}:{c+3}]")
    if not ypk:
        for i in range(9):
            for k in range(2): e(dm(i, k))
        e("s_mov_b64 exec, s[56:57]")
        for i in range(9): e(f"buffer_store_dwordx4 v[{16+4*i}:{19+4*i}], v11, s[36:39], s60 offen offset:{64*i} sc1")
    else:
        def quad(b):
            c = 16 + 16*b; r = []
            for q in range(4): r += [f"v_cndmask_b32_e64 v{c+q}, v{c+q}, v{c+4+q}, s[46:47]", f"v_cndmask_b32_e64 v{c+8+q}, v{c+8+q}, v{c+12+q}, s[46:47]"]
            for q in range(4): r.append(f"v_cndmask_b32_e64 v{c+q}, v{c+q}, v{c+8+q}, s[52:53]")
            r.append(f"buffer_store_dwordx4 v[{c}:{c+3}], v15, s[36:39], s60 offen offset:{256*b} sc1")
            return r
        m = [dm(i, k) for i in (8, 0, 1, 2, 3, 4, 5, 6, 7) for k in range(2)]
        for x in m[:10]: e(x)
        e(f"buffer_store_dwordx4 v[48:51], v11, s[36:39], s60 offen offset:512 sc1")
        for x in interleave(m[10:], quad(0), 2, 2): e(x)
        for x in quad(1): e(x)
        dn = 2
    stamp(5)
    e(f"s_waitcnt vmcnt({dn})\n s_barrier")
    a.lab("L_fin")
    fin()
    e(f"""
L_fz:
v_readfirstlane_b32 s50, v{HB+4}
v_readfirstlane_b32 s51, v{HB+5}
v_readfirstlane_b32 s61, v2
v_readfirstlane_b32 s62, v3
s_cmp_ge_u32 s49, 18
s_cselect_b32 s50, s51, s50
s_cselect_b32 s61, s62, s61
s_cselect_b32 s56, 18, 0
s_mul_i32 s61, s61, 2304
s_andn2_b32 s52, 0x7ff, s50
s_sub_u32 s56, s49, s56
s_lshl_b32 s56, s56, 6
s_add_u32 s61, s61, s56
s_add_u32 s61, s61, {CAND}
s_mul_i32 s52, s52, 1152
s_add_u32 s52, s52, s56
s_lshl_b32 s62, s49, 7
s_add_u32 s62, s62, {YP}
v_and_b32 v2, 7, v1
v_lshlrev_b32 v4, 3, v2
v_lshrrev_b32 v3, 3, v1
v_mul_u32_u24 v3, 4608, v3
v_lshl_add_u32 v3, v2, 4, v3
s_ashr_i32 s56, s50, 31
s_not_b32 s56, s56
s_or_b32 s56, s56, 0x80000000
s_xor_b32 s56, s56, s50
s_and_b32 s56, s56, 0xffff0000
v_mov_b32 v5, {f2u(-LOG2E):#x}
v_mul_f32 v5, s56, v5
v_exp_f32 v5, v5
v_add_f32 v5, 1.0, v5
v_rcp_f32 v5, v5
v_cvt_pk_bf16_f32 v5, v5, v5
v_and_b32 v5, 0xffff0000, v5
s_mov_b32 s59, 0
""")
    srd(68, 20, 2359296)
    e(f"""
s_barrier
s_barrier
L_h0:
buffer_load_dwordx2 v[52:53], v4, s[36:39], s61 offen sc1
buffer_load_dwordx2 v[54:55], v4, s[36:39], s61 offen offset:1152 sc1
s_waitcnt vmcnt(0)
v_max3_u32 v2, v52, v53, v54
v_max_u32 v2, v2, v55
v_cmp_eq_u32 vcc, -1, v2
s_cbranch_vccz L_h1
s_add_u32 s59, s59, 1
s_cmp_lt_u32 s59, {SPIN}
s_cbranch_scc1 L_h0
L_h1:
""")
    for h in range(4): e(f"v_lshlrev_b32 v{56+2*h}, 16, v{52+h}\n v_and_b32 v{57+2*h}, 0xffff0000, v{52+h}")
    e("s_barrier")
    stamp(8)
    e("L_d0:\n s_mov_b32 s57, s62")
    for i in range(9):
        e(f"buffer_load_dwordx4 v[{16+4*i}:{19+4*i}], v3, s[36:39], s57 offen sc1")
        if i < 8: e(f"s_add_u32 s57, s57, {8*4608}")
    for i in range(1, 9):
        e(f"s_waitcnt vmcnt({8-i})")
        for h in range(2):
            src = 16 if i == 1 else 8
            e(f"v_pk_add_f32 v[{8+2*h}:{9+2*h}], v[{src+2*h}:{src+1+2*h}], v[{16+4*i+2*h}:{17+4*i+2*h}]")
    e("v_pk_add_f32 v[6:7], v[8:9], v[10:11]\n v_cmp_u_f32 vcc, v6, v7\n s_cbranch_vccz L_d1")
    e("v_max3_u32 v2, v16, v17, v18")
    for i in range(19, 51, 2): e(f"v_max3_u32 v2, v2, v{i}, v{i+1}")
    e(f"v_max_u32 v2, v2, v51\n v_cmp_eq_u32 vcc, -1, v2\n s_cbranch_vccz L_d1\n s_add_u32 s59, s59, 1\n s_cmp_lt_u32 s59, {SPIN}\n s_cbranch_scc1 L_d0\nL_d1:")
    stamp(6)
    for q in range(4): e(f"v_add_f32_dpp v{16+q}, v{8+q}, v{8+q} row_ror:8 row_mask:0xf bank_mask:0xf\n v_add_f32_dpp v{20+q}, v{8+q}, v{8+q} row_ror:8 row_mask:0xf bank_mask:0xf")
    for q in range(4): e(f"v_permlane16_swap_b32 v{16+q}, v{20+q}")
    for h in range(2): e(f"v_pk_add_f32 v[{24+2*h}:{25+2*h}], v[{16+2*h}:{17+2*h}], v[{20+2*h}:{21+2*h}]\n v_pk_add_f32 v[{16+2*h}:{17+2*h}], v[{16+2*h}:{17+2*h}], v[{20+2*h}:{21+2*h}]")
    for q in range(4): e(f"v_permlane32_swap_b32 v{16+q}, v{24+q}")
    for h in range(2): e(f"v_pk_add_f32 v[{16+2*h}:{17+2*h}], v[{16+2*h}:{17+2*h}], v[{24+2*h}:{25+2*h}]")
    def rnd4():
        for h in range(2): e(f"v_cvt_pk_bf16_f32 v{24+h}, v{16+2*h}, v{17+2*h}")
        for h in range(2): e(f"v_lshlrev_b32 v{16+2*h}, 16, v{24+h}\n v_and_b32 v{17+2*h}, 0xffff0000, v{24+h}")
    rnd4()
    for q in range(4): e(f"v_mul_f32 v{16+q}, v{16+q}, v5")
    for src in (56, 60):
        rnd4()
        for h in range(2): e(f"v_pk_add_f32 v[{16+2*h}:{17+2*h}], v[{16+2*h}:{17+2*h}], v[{src+2*h}:{src+1+2*h}]")
    for h in range(2): e(f"v_cvt_pk_bf16_f32 v{24+h}, v{16+2*h}, v{17+2*h}")
    e("s_mov_b64 exec, 0xff\n buffer_store_dwordx2 v[24:25], v4, s[68:71], s52 offen sc1")
    stamp(7)
    fin()
    a.lab("L_end")
    e("s_endpgm")
    a.lab("L_codeend")

    assert not any('op_sel:' in l for l in a.L)
    if cyc: a.L = [l.replace('s_memrealtime', 's_memtime') for l in a.L]
    lines, n = hazard.fix(a.L)
    if doalign: lines, nw, npad = align.run(lines)
    import os
    ref = "sequential_preLN__linear_attn_block__moe_arch_mod__prompt.s.ref"
    hdr = open(ref).read().split("; @launch")[0] if os.path.exists(ref) else ""
    hdr += f"""; @launch grid=(256,1,1) block=(512,1,1) lds=163840
.amdgcn_target "amdgcn-amd-amdhsa--gfx950"
.text
.globl {NAME}
.p2align 8
.type {NAME},@function
"""
    tail = f"""
.section .rodata,"a"
.p2align 6
.amdhsa_kernel {NAME}
  .amdhsa_next_free_vgpr 256
  .amdhsa_next_free_sgpr 102
  .amdhsa_accum_offset 256
  .amdhsa_group_segment_fixed_size 0
  .amdhsa_kernarg_size 88
  .amdhsa_user_sgpr_count 2
  .amdhsa_user_sgpr_kernarg_segment_ptr 1
  .amdhsa_system_sgpr_workgroup_id_x 1
.end_amdhsa_kernel
"""
    return hdr + "\n".join(lines) + "\n" + tail

if __name__ == "__main__":
    assert all((n*1821)>>16 == n//36 for n in range(108))
    assert all((n*13108)>>16 == n//5 for n in range(192))
    assert all((n*57)>>9 == n//9 for n in range(63))
    print(gen(stamps=len(sys.argv) > 1))
```

```python
import sys, struct
from asmlib import *
import hazard, align

NAME = "sequential_preLN__linear_attn_block__moe_arch_mod__prompt_kernel"
KVP = 0
OB  = KVP + 16*8*3072
ST  = OB + 128*16*1152
KEY = ST + 128*9*256
XID = KEY + 9*2048
CAND = XID + 2048
YP  = CAND + 16*2*2304
assert YP + 72*4608 <= 256*14336
XST = 4<<20
CS  = XST + 32768
assert CS + 64*3840 <= XST + 256*2048
TS_OFF = 0x8000000
XS = 32768; STG = XS + 16384; NBUF = 3
L_WO = 0; L_KVRED = 73728; L_PQ = 106496
L_RS = 153600; L_MRS = L_RS + 1024; L_CS = L_MRS + 1024; L_KT = L_CS + 1024; L_SW = L_KT + 1536
L_STAGE = L_KVRED
L_WR = L_SW + 64
L_KEY = L_WR + 1280
L_KTA = L_KEY + 64
L_HC = 147456
L_XT = L_PQ + 30720
assert L_XT + 16384 == L_RS and L_KTA + 3072 <= 163840
F_WG = 0; F_WU = 73728; F_WD = 0; F_HN = 147456; F_ACT = F_HN + 2560; F_KEYS = F_ACT + 256; F_RED = F_KEYS + 256
SPIN = 1 << 17
def f2u(x): return struct.unpack("<I", struct.pack("<f", x))[0]
LOG2E = 1.4426950408889634

def gen(stamps=False, owait=1, await_=1, cwait=0, dwait=1, rflag='sc1', diag=None, doalign=1, gate=1, fstore='sc1', ksleep=1, merged=0, LAG=3, hintall=0, hsleep=2, obar=0, hprio=1, ahead=3, outwait=0, rot=0, krep=1, dsleep=0, csleep=0, asleep=0, osleep=0, wfl='', xfl='', lprio=1, worder=1, cyc=0, flip=0, nof=0, st0=0, s3prio=0, fthr=-1, latepre=0, x_nochk=0, x_nord=0, x_nomf=0, x_nold=0, x_fl='sc1', fast=1, fasta=1, nanchk=1, oprio=1, hnearly=0, qswap=1, lchk=0, cpf=0, pre0=100, f0=5, epos=(3,5,9), ftouch=1, wa=4, wb_=4, dec=0, sb=0, lb=10, rdel=0, pdec=(0,2,4,6), psetup=0, F2=132, dn=8, ypk=1, yscale=0, hscale=0, fearly=1, eflag=0, sweep=4, wopf=2, upf=0, hread=1, upfl='', wb=0, lf=1,  outsleep=0, outfl='sc1'):
    NPRE = 6
    if dec: hread = 0
    a = Asm()
    e = a.e
    def stamp(i):
        if sb and i: return
        if stamps or diag: e(f"s_memrealtime s[{72+2*i}:{73+2*i}]")
    def fin():
        if diag:
            wg, wave, idx, K = diag
            lb = a.new("L_dg")
            e("s_waitcnt vmcnt(0) lgkmcnt(0)")
            if idx == "xcc":
                e(f"s_getreg_b32 s44, hwreg(HW_REG_XCC_ID)\n s_and_b32 s44, s44, 7\n s_and_b32 s45, s2, 7\n s_cmp_eq_u32 s44, s45\n s_cbranch_scc1 {lb}e\n s_add_u32 s44, s72, 10000")
            else:
                e(f"s_cmp_lg_u32 s2, {wg}\n s_cbranch_scc1 {lb}e\n s_cmp_lg_u32 s3, {wave}\n s_cbranch_scc1 {lb}e")
                if idx == "rnd": e(f"s_lshr_b32 s44, s72, 3\n s_mul_i32 s44, s44, 0x9e3779b1\n s_lshr_b32 s44, s44, 24\n s_cmp_ge_u32 s44, {K}\n s_cbranch_scc1 {lb}e\n s_add_u32 s44, s72, 10000")
                elif idx == "fix": e(f"s_add_u32 s44, s72, {K}")
                else: e(f"s_sub_u32 s44, s{72+2*idx}, s72\n s_min_u32 s44, s44, 10000\n s_mul_i32 s44, s44, {K}\n s_add_u32 s44, s44, s72")
            e(f"{lb}:\n s_memrealtime s[46:47]\n s_waitcnt lgkmcnt(0)\n s_sub_u32 s45, s46, s44\n s_cmp_lt_i32 s45, 0\n s_cbranch_scc1 {lb}\n{lb}e:")
        if stamps:
            e("s_waitcnt vmcnt(0) lgkmcnt(0)")
            e("s_mov_b64 exec, -1")
            e(f"s_lshl_b32 s44, s2, 3\n s_add_u32 s44, s44, s3\n s_lshl_b32 s44, s44, 6\n s_add_u32 s44, s44, {TS_OFF}\n v_mov_b32 v2, 0")
            for i in range(15):
                e(f"v_mov_b32 v3, s{72+2*i}\n buffer_store_dword v3, v2, s[36:39], s44 offen offset:{4*i}")
        e("s_endpgm")
    def srd(d, p, n):
        e(f"s_mov_b32 s{d}, s{p}\n s_mov_b32 s{d+1}, s{p+1}\n s_mov_b32 s{d+2}, {n}\n s_mov_b32 s{d+3}, 0x20000")
    def rowmax(d, s):
        e(f"v_max_u32_dpp v{d}, v{s}, v{s} quad_perm:[1,0,3,2] row_mask:0xf bank_mask:0xf")
        e(f"v_max_u32_dpp v{d}, v{d}, v{d} quad_perm:[2,3,0,1] row_mask:0xf bank_mask:0xf")
        e(f"v_max_u32_dpp v{d}, v{d}, v{d} row_half_mirror row_mask:0xf bank_mask:0xf")
        e(f"v_max_u32_dpp v{d}, v{d}, v{d} row_mirror row_mask:0xf bank_mask:0xf")
    def rowsum(d):
        for m in ("quad_perm:[1,0,3,2]", "quad_perm:[2,3,0,1]", "row_half_mirror", "row_mirror"):
            e(f"v_add_f32_dpp v{d}, v{d}, v{d} {m} row_mask:0xf bank_mask:0xf")
    def xsum(d, t, which, op="v_add_f32"):
        e(f"v_mov_b32 v{t}, v{d}\n v_permlane{which}_swap_b32 v{d}, v{t}\n {op} v{d}, v{d}, v{t}")

    a.lab(NAME)
    e("""
s_load_dwordx16 s[4:19], s[0:1], 0
s_load_dwordx4 s[20:23], s[0:1], 64
s_load_dwordx2 s[24:25], s[0:1], 80
""")
    if stamps:
        for i in range(1, 15): e(f"s_mov_b64 s[{72+2*i}:{73+2*i}], 0")
    stamp(0)
    e(f"""
v_lshrrev_b32 v2, 6, v0
v_and_b32 v1, 63, v0
s_cmp_ge_u32 s2, 256
v_readfirstlane_b32 s3, v2
s_cbranch_scc1 L_end
s_and_b32 s26, s2, 7
s_lshr_b32 s27, s2, 3          ; slot
s_lshr_b32 s45, s26, 1         ; rbg
s_and_b32 s46, s2, 1           ; half
v_and_b32 v13, 15, v1
v_lshrrev_b32 v14, 4, v1
s_and_b32 s54, s3, 3           ; w
s_cmp_lt_u32 s27, 16
s_cbranch_scc1 L_A
s_sub_u32 s47, s27, 16             ; h
s_mov_b32 s35, 0x20000
s_cmp_lt_u32 s27, 24
s_cbranch_scc1 L_W0
s_cmp_lt_u32 s27, 28
s_cbranch_scc1 L_X0
s_cmp_gt_u32 s3, 1
s_cbranch_scc1 L_R
s_getpc_b64 s[40:41]
L_pc0:
s_and_b32 s57, s27, 3
s_lshl_b32 s57, s57, 1
s_add_u32 s57, s57, s3
s_mul_i32 s57, s57, 5120
v_min_u32 v2, 39, v1
v_lshl_add_u32 v2, v2, 7, s57
v_min_u32 v2, L_codeend-L_pc0-4, v2
global_load_dword v6, v2, s[40:41]
s_branch L_R
L_X0:
v_lshrrev_b32 v7, 3, v1
v_and_b32 v3, 7, v1
v_mul_u32_u24 v2, 1152, v7
v_lshl_add_u32 v2, v3, 4, v2
v_add_u32 v5, {8*1152}, v2
s_lshl_b32 s55, s45, 2
s_add_u32 s55, s55, s47
s_lshl_b32 s55, s55, 3
s_add_u32 s55, s55, s3
s_sub_u32 s55, s55, 64
s_mul_i32 s56, s55, {16*1152}
s_movk_i32 s57, 128
s_mov_b32 s34, 2359296
s_waitcnt lgkmcnt(0)
s_mov_b64 s[32:33], s[4:5]
s_branch L_E0
L_W0:
v_add_u32 v3, 64, v1
v_min_u32 v3, 119, v3
v_mul_u32_u24 v4, 1639, v1
v_lshrrev_b32 v4, 16, v4
v_lshlrev_b32 v2, 4, v1
v_lshl_add_u32 v2, v4, 9, v2
v_mul_u32_u24 v4, 1639, v3
v_lshrrev_b32 v4, 16, v4
v_lshlrev_b32 v5, 4, v3
v_lshl_add_u32 v5, v4, 9, v5
s_lshl_b32 s56, s47, 3
s_add_u32 s56, s56, s3
s_mul_i32 s56, s56, 3456
s_lshl_b32 s57, s46, 9
s_add_u32 s56, s56, s57
s_mov_b32 s57, {64*3456}
s_mov_b32 s34, 1990656
s_waitcnt lgkmcnt(0)
s_mov_b64 s[32:33], s[6:7]
L_E0:
buffer_load_dwordx4 v[16:19], v2, s[32:35], s56 offen
buffer_load_dwordx4 v[20:23], v5, s[32:35], s56 offen
s_add_u32 s56, s56, s57
s_barrier
buffer_load_dwordx4 v[24:27], v2, s[32:35], s56 offen
buffer_load_dwordx4 v[28:31], v5, s[32:35], s56 offen
s_add_u32 s56, s56, s57
s_branch L_B
L_A:
s_and_b32 s47, s27, 7
s_lshl_b32 s48, s46, 3
s_add_u32 s48, s48, s47        ; hp
s_lshr_b32 s49, s27, 3
s_lshl_b32 s50, s45, 1
s_add_u32 s50, s50, s49        ; rb (0..7)
s_lshr_b32 s51, s48, 1
s_mul_i32 s51, s51, 144
s_and_b32 s47, s27, 1          ; p
s_lshl_b32 s52, s47, 3
s_mov_b32 s53, s27
{'s_xor_b32 s3, s3, 4' if flip else ''}
s_cmp_lt_u32 s3, 4
s_cbranch_scc1 L_compute
""")
    OF = 16; AC = 116; WR = 132; BR = 140; BA = 236
    VST, VSW, VSR, VOUT, VC7, VTOK, VSUM = 249, 250, 251, 252, 253, 254, 255
    VKW, VKR, VXA, VWA, VM1, VM2 = 11, 5, 112, 113, 114, 115
    XR = 240
    def bread(k):
        r = []
        for T in range(4):
            for hf in range(2):
                d = BR + (k % NPRE)*16 + 4*T + 2*hf
                off = ((k*32 + hf*16)*128) & 0xffff
                r.append(f"ds_read_b64_tr_b16 v[{d}:{d+1}], v{BA+T} offset:{off}")
        return r
    def s3_scal(v=True):
        e(f"""
s_cmp_ge_u32 s53, 9
s_cselect_b32 s57, 9, 0
s_cselect_b32 s58, 8, 0
s_sub_u32 s63, s53, s57            ; cb
s_lshl_b32 s60, s26, 4
s_add_u32 s60, s60, s58
s_add_u32 s60, s60, s3             ; tb
s_mul_i32 s61, s60, {16*1152}
s_add_u32 s62, s61, {OB}
s_lshl_b32 s57, s63, 7
s_add_u32 s61, s61, s57
s_mul_i32 s50, s3, 4608
s_add_u32 s50, s50, {L_STAGE}
s_mul_i32 s51, s60, {9*256}
s_add_u32 s51, s51, {ST}
s_lshl_b32 s52, s63, 8
s_add_u32 s52, s52, s51
s_mov_b32 s44, 0x00f0000f
s_mov_b32 s45, 0xf0000f00
s_mov_b32 s46, 0x22222222
s_mov_b32 s47, 0x22222222
s_mov_b32 s48, 0xcccccccc
s_mov_b32 s49, 0xcccccccc
s_mov_b32 s42, 0x88888888
s_mov_b32 s43, 0x88888888
""")
        if v: e(f"v_lshlrev_b32 v{VST}, 4, v13\n v_lshrrev_b32 v{VOUT}, 3, v1")
    def s3_addr1():
        e(f"""
v_lshrrev_b32 v2, 2, v13
v_lshl_add_u32 v2, v14, 2, v2      ; rho
v_bfe_u32 v3, v2, 1, 2
v_lshlrev_b32 v2, 7, v2
v_and_b32 v4, 3, v13
v_lshl_add_u32 v2, v4, 3, v2
v_lshl_add_u32 v{BA}, v3, 5, v2
v_xor_b32 v{BA+1}, 32, v{BA}
v_xor_b32 v{BA+2}, 64, v{BA}
v_xor_b32 v{BA+3}, 96, v{BA}
s_lshl_b32 s57, s63, 7
s_add_u32 s57, s57, {L_WR}
v_lshl_add_u32 v{VWA}, v14, 3, s57
v_lshrrev_b32 v2, 1, v14
v_and_b32 v3, 7, v13
v_xor_b32 v2, v2, v3
v_lshlrev_b32 v2, 4, v2
v_lshl_add_u32 v2, v13, 7, v2
v_and_b32 v3, 1, v14
v_lshl_add_u32 v2, v3, 3, v2
s_lshl_b32 s57, s3, 11
s_add_u32 s57, s57, {L_XT}
v_add_u32 v{VXA}, s57, v2
""")
    def s3_reads():
        for T in range(4):
            e(f"v_xor_b32 v4, {32*T}, v{VXA}\n ds_read_b64 v[{XR+2*T}:{XR+2*T+1}], v4")
            e(f"ds_read_b64 v[{WR+2*T}:{WR+2*T+1}], v{VWA} offset:{32*T}")
        e(f"v_mov_b32 v2, {L_SW}\n ds_read_b32 v{VSUM}, v2")
        for k in range(NPRE):
            for x in bread(k): e(x)
    def s3_addr2(sb=50, st=60, m=40):
        e(f"""
v_and_b32 v2, 3, v13
v_cmp_eq_u32 s[{m}:{m+1}], 2, v2
v_cndmask_b32_e64 v{VM1}, 0, -1, s[{m}:{m+1}]
v_mov_b32 v4, 0x3f803f80
v_cmp_eq_u32 s[{m}:{m+1}], 0, v2
v_cndmask_b32_e64 v{VM2}, 0, v4, s[{m}:{m+1}]
v_mul_u32_u24 v{VSW}, 144, v13
v_lshl_add_u32 v{VSW}, v14, 3, v{VSW}
v_add_u32 v{VSW}, s{sb}, v{VSW}
v_add_u32 v{VSR}, v{VOUT}, v1
v_lshl_add_u32 v{VSR}, v{VSR}, 4, s{sb}
v_mul_u32_u24 v{VOUT}, 1152, v{VOUT}
v_and_b32 v{VC7}, 7, v1
v_lshl_add_u32 v{VOUT}, v{VC7}, 4, v{VOUT}
v_lshl_add_u32 v{VTOK}, s{st}, 4, v13
v_sub_u32 v{VTOK}, 2047, v{VTOK}
s_lshl_b32 s57, s3, 3
s_add_u32 s57, s57, {L_KEY}
v_mov_b32 v{VKW}, s57
v_lshlrev_b32 v{VKR}, 2, v13
v_add_u32 v{VKR}, {L_KEY}, v{VKR}
""")
    def s3_unpack():
        e("s_waitcnt lgkmcnt(15)")
        for i in range(8): e(f"v_lshlrev_b32 v{AC+2*i}, 16, v{XR+i}\n v_and_b32 v{AC+2*i+1}, 0xffff0000, v{XR+i}\n v_and_or_b32 v{WR+i}, v{WR+i}, v{VM1}, v{VM2}")
    e(f"""
s_setprio 2
s_lshl_b32 s55, s50, 5
s_add_u32 s55, s55, s54
s_lshl_b32 s55, s55, 3
v_lshrrev_b32 v2, 3, v1
v_add_u32 v2, s55, v2
v_mul_u32_u24 v16, 1152, v2
s_and_b32 s56, s54, 1
s_lshl_b32 s57, s56, 2
v_add_u32 v3, s57, v14
v_and_b32 v2, 7, v1
v_xor_b32 v2, v2, v3
v_lshl_add_u32 v16, v2, 4, v16
v_lshrrev_b32 v2, 1, v13
v_xor_b32 v2, v2, v3
v_and_b32 v3, 1, v1
v_lshl_add_u32 v2, v2, 1, v3
v_min_u32 v2, 14, v2
v_mul_u32_u24 v3, 52, v2
v_lshrrev_b32 v3, 8, v3
v_lshlrev_b32 v2, 4, v2
v_and_b32 v4, {qswap}, v3
v_xor_b32 v4, s47, v4
v_lshl_add_u32 v2, v4, 6, v2
v_xor_b32 v15, 1, v3
v_lshrrev_b32 v4, 1, v3
v_sub_u32 v15, v15, v4
v_mul_u32_u24 v15, 1152, v15
v_mul_u32_u24 v3, 80, v3
v_sub_u32 v2, v2, v3
s_lshl_b32 s55, s54, 3
v_add_u32 v3, s55, v14
v_mul_u32_u24 v3, 3456, v3
v_add3_u32 v17, v2, v3, v15
s_lshl_b32 s41, s54, 10
s_mov_b32 s55, 0
s_mov_b32 s56, s51
s_mov_b32 s43, 0
s_mov_b32 s44, -1
s_mov_b32 s30, 2359296
s_mov_b32 s31, 0x20000
s_mov_b32 s34, 1990656
s_mov_b32 s35, 0x20000
s_waitcnt lgkmcnt(0)
s_mov_b32 s28, s4
s_mov_b32 s29, s5
s_mov_b32 s32, s6
s_mov_b32 s33, s7
""")
    def issue(fill=(), f0=0):
        fill = list(fill); per = -(-len(fill)//(8-f0))
        e("s_mov_b32 s10, s55")
        for i in range(8):
            iw = (i//2 if i % 2 == 0 else 9) if worder else i
            if iw < 4:
                e(f"s_add_u32 m0, s41, {XS + iw*4096}\n s_add_u32 s11, s56, {((iw>>1)*32 + (iw&1)*4)*3456}")
                e(f"buffer_load_dwordx4 v17, s[32:35], s11 offen {wfl} lds")
            e(f"s_add_u32 m0, s41, {i*4096}")
            if i: e(f"s_add_u32 s10, s10, {2*18432}")
            e(f"buffer_load_dwordx4 v16, s[28:31], s10 offen {xfl} lds")
            for x in (fill[(i-f0)*per:(i-f0+1)*per] if i >= f0 else []): e(x)
        e(f"""
s_add_u32 s55, s55, 128
s_add_u32 s56, s56, {64*3456}
s_add_u32 s43, s43, 1
s_add_u32 s41, s41, {STG}
s_cmp_eq_u32 s43, {NBUF}
s_cselect_b32 s10, {NBUF*STG}, 0
s_cselect_b32 s43, 0, s43
s_sub_u32 s41, s41, s10
s_add_u32 s44, s44, 1
""")
    if st0: stamp(5)
    n0 = len(a.L)
    e(f"""
v_lshl_add_u32 v2, s54, 6, v1      ; n = 64w + lane
s_lshl_b32 s57, s50, 10
s_lshl_b32 s60, s46, 14
s_add_u32 s60, s60, s57
s_add_u32 s60, s60, {XST}
v_lshlrev_b32 v18, 2, v2
v_min_u32 v3, 107, v2
v_mul_u32_u24 v4, 1821, v3
v_lshrrev_b32 v4, 16, v4           ; sec = c/36
v_xor_b32 v5, 1, v4
v_lshrrev_b32 v6, 1, v4
v_sub_u32 v5, v5, v6
v_mul_u32_u24 v5, 320, v5
v_and_b32 v6, {qswap}, v4
v_xor_b32 v6, s47, v6
v_mad_u32_u24 v5, v6, 36, v5
v_mul_u32_u24 v4, 36, v4
v_sub_u32 v3, v3, v4
v_add_u32 v3, v3, v5
v_lshlrev_b32 v19, 2, v3
s_lshl_b32 s61, s51, 1
s_lshl_b32 s57, s46, 10
s_sub_u32 s61, s61, s57
s_mul_i32 s57, s26, {8*3840}
s_add_u32 s61, s61, s57
s_add_u32 s61, s61, {CS}
""")
    e("v_mov_b32 v28, 0")
    srd(36, 24, 0x10000000); srd(64, 22, 256)
    def wo_setup():
        e(f"""
s_cmp_ge_u32 s53, 9
s_cselect_b32 s57, 9, 0
s_sub_u32 s63, s53, s57            ; cb
v_lshrrev_b32 v2, 3, v1            ; rr
v_and_b32 v3, 7, v1
v_bfe_u32 v4, v1, 4, 2
v_lshlrev_b32 v4, 1, v4
v_xor_b32 v3, v3, v4
v_lshlrev_b32 v3, 4, v3
s_lshl_b32 s57, s63, 7
v_add_u32 v3, s57, v3
v_lshrrev_b32 v4, 2, v2
v_and_b32 v5, 3, v2
v_mad_u32_u24 v6, v4, 10, v5
s_and_b32 s57, s54, 1
s_mul_i32 s58, s57, 18
s_lshr_b32 s59, s54, 1
s_lshl_b32 s42, s59, 2
s_add_u32 s58, s58, s42
v_add_u32 v6, s58, v6
v_mul_u32_u24 v6, 1152, v6
v_add_u32 v20, v6, v3
v_mul_u32_u24 v4, 72, v4
v_bfe_u32 v5, v2, 1, 1
v_mad_u32_u24 v4, v5, 18, v4
v_and_b32 v5, 1, v2
v_add_u32 v4, v4, v5
s_mul_i32 s57, s57, 144
s_mul_i32 s59, s59, 36
s_add_u32 s57, s57, s59
s_add_u32 s57, s57, 8
v_add_u32 v4, s57, v4
v_mul_u32_u24 v4, 1152, v4
v_add_u32 v21, v4, v3
v_and_b32 v3, 7, v1
v_xor_b32 v3, v3, v2
v_mul_u32_u24 v4, 1152, v2
v_lshl_add_u32 v29, v3, 4, v4
s_cmp_ge_u32 s53, 9
s_cselect_b32 s57, 16, 0
s_lshl_b32 s49, s26, 5
s_add_u32 s49, s49, s57
s_add_u32 s49, s49, s54
s_mul_i32 s49, s49, {8*1152}
s_lshl_b32 s57, s63, 7
s_add_u32 s49, s49, s57
""")
    def wo_dma(tag, part=0, cont=False):
        if part >= 0 and not cont:
            srd(68, 8, 663552)
            e(f"s_lshl_b32 s42, s54, 10\n s_mul_i32 s40, s63, {rot}\n s_and_b32 s40, s40, 15\n s_mul_i32 s40, s40, {36*1152}")
        e(f"""
L_wod{tag}:
s_mov_b32 m0, s42
s_add_u32 s42, s42, 4096
buffer_load_dwordx4 v20, s[68:71], s40 offen lds
s_add_u32 s40, s40, {36*1152}
s_cmp_eq_u32 s40, {16*36*1152}
s_cselect_b32 s40, 0, s40
s_cmp_lt_u32 s42, {(part if part > 0 else 16)*4096}
s_cbranch_scc1 L_wod{tag}
""")
        if part <= 0:
            e(f"""
s_mov_b32 m0, s42
s_add_u32 s42, s42, 4096
buffer_load_dwordx4 v21, s[68:71], 0 offen lds
s_mov_b32 m0, s42
s_mov_b32 s40, {288*1152}
buffer_load_dwordx4 v21, s[68:71], s40 offen lds
s_lshl_b32 s42, s54, 10
""")
            for i in range(4):
                e(f"s_add_u32 m0, s42, {L_XT + 4096*i}\n s_add_u32 s40, s49, {i*32*1152}\n buffer_load_dwordx4 v29, s[28:31], s40 offen lds")
    def sw_calc():
        srd(68, 12, 1152)
        e("v_lshlrev_b32 v2, 2, v1")
        for i in range(5): e(f"buffer_load_dword v{30+i}, v2, s[68:71], 0 offen offset:{256*i}")
        e("v_mov_b32 v3, 0\n s_mov_b32 s57, 0x3f803f80\n s_waitcnt vmcnt(0)")
        e(f"v_add_u32 v2, {L_WR}, v2")
        for i in range(5): e(f"ds_write_b32 v2, v{30+i} offset:{256*i}")
        for i in range(5): e(f"v_dot2c_f32_bf16 v3, s57, v{30+i}")
        rowsum(3); xsum(3, 4, 16); xsum(3, 4, 32)
        e(f"v_mov_b32 v4, {L_SW}\n ds_write_b32 v4, v3")
        e(f"""
s_getreg_b32 s57, hwreg(HW_REG_XCC_ID)
s_and_b32 s57, s57, 15
v_mov_b32 v36, s57
v_mov_b32 v37, 0
s_cmp_ge_u32 s53, 9
s_cselect_b32 s57, 128, 0
s_lshl_b32 s58, s26, 8
s_add_u32 s57, s57, s58
s_lshl_b32 s58, s63, 2
s_add_u32 s57, s57, s58
s_add_u32 s57, s57, {XID}
s_mov_b64 exec, 1
buffer_store_dword v36, v37, s[36:39], s57 offen sc1
s_mov_b64 exec, -1
""")
    def flags_wait(tag, issued, off, fv=27, av=28, nap=0):
        e(f"s_mov_b32 s59, 0")
        if issued: e(f"s_branch L_fl1{tag}")
        a.lab(f"L_fl0{tag}")
        if nap: e(f"s_sleep {nap}")
        e(f"""
buffer_load_dword v{fv}, v{av}, s[64:67], 0 offen offset:{off} sc1
L_fl1{tag}:
s_waitcnt vmcnt(0)
v_cmp_eq_u32 vcc, 0, v{fv}
s_cbranch_vccz L_fl2{tag}
s_add_u32 s59, s59, 1
s_cmp_lt_u32 s59, {SPIN}
s_cbranch_scc1 L_fl0{tag}
L_fl2{tag}:
""")
    def up_prefetch(first, n):
        srd(68, 16, 5308416)
        e(f"""
v_min_u32 v2, 62, v1
v_mul_u32_u24 v3, 57, v2
v_lshrrev_b32 v3, 9, v3
v_mul_u32_u24 v3, {9216-1152}, v3
v_lshl_add_u32 v2, v2, 7, v3
s_sub_u32 s56, s27, {25 if first == 0 else 28}
s_lshl_b32 s56, s56, 3
s_add_u32 s56, s56, s3
s_add_u32 s56, s56, {first}
s_mul_i32 s56, s56, {7*9216}
s_mul_i32 s57, s26, 1152
s_add_u32 s56, s56, s57
""")
        for i in range(n): e(f"buffer_load_dword v100, v2, s[68:71], s56 offen {upfl}\n s_add_u32 s56, s56, {(24 if first == 0 else 32)*7*9216}")
    def code_touch(sidx, v):
        lb = a.new("L_pc")
        e(f"""
s_getpc_b64 s[40:41]
{lb}:
s_sub_u32 s40, s40, {lb}-{NAME}
s_subb_u32 s41, s41, 0
s_lshl_b32 s57, s{sidx}, 13
v_lshl_add_u32 v{v}, v1, 7, s57
v_min_u32 v{v}, L_codeend-{NAME}-4, v{v}
global_load_dword v{v+1}, v{v}, s[40:41]
""")
    def arrive(tag, cnt_off, done_off, n):
        e(f"""
v_mov_b32 v20, 1
v_mov_b32 v21, 0
s_mov_b64 exec, 1
buffer_atomic_add v20, v21, s[64:67], 0 offen offset:{cnt_off} sc0
s_waitcnt vmcnt(0)
v_cmp_eq_u32 vcc, {n-1}, v20
s_cbranch_vccz L_ar{tag}
buffer_store_dword v20, v21, s[64:67], 0 offen offset:{done_off} sc1
L_ar{tag}:
s_mov_b64 exec, -1
""")
    e("s_waitcnt vmcnt(12)\n s_barrier")
    issue()
    wo_setup()
    e(f"""
v_lshrrev_b32 v2, 3, v13           ; head
v_bfe_u32 v3, v13, 2, 1            ; odd
v_and_b32 v4, 3, v13               ; r
v_mul_u32_u24 v5, 18, v2
v_mad_u32_u24 v5, v3, 10, v5
v_add_u32 v5, v5, v4
v_lshl_add_u32 v5, s54, 2, v5
s_mov_b64 s[70:71], -1
s_cmp_lg_u32 s54, 2
s_cbranch_scc1 L_kta
v_add_u32 v6, 36, v2
v_cmp_eq_u32 s[68:69], 2, v4
v_cndmask_b32_e64 v5, v5, v6, s[68:69]
v_lshl_add_u32 v6, v3, 2, v4
v_cmp_gt_u32 s[70:71], 2, v6
s_or_b64 s[70:71], s[70:71], s[68:69]
L_kta:
v_lshlrev_b32 v6, 2, v2
v_sub_u32 v6, v14, v6
v_mov_b32 v7, 190
s_mul_i32 s57, s54, 768
s_add_u32 s57, s57, {L_KTA}
v_lshl_add_u32 v8, v1, 2, s57
s_mov_b32 s57, {L_KT}
""")
    for t in range(3):
        e(f"v_add_u32 v9, {4*t}, v6\n v_cmp_gt_u32 s[68:69], 5, v9\n v_mad_u32_u24 v9, v5, 5, v9\n s_and_b64 s[68:69], s[68:69], s[70:71]\n v_cndmask_b32_e64 v9, v7, v9, s[68:69]\n v_lshl_add_u32 v9, v9, 3, s57\n ds_write_b32 v8, v9 offset:{256*t}")
    e("v_mov_b32 v28, 0")
    srd(36, 24, 0x10000000)
    srd(64, 22, 256)
    if lprio: e(f"s_setprio {lprio}")
    e("s_waitcnt vmcnt(12)\n s_barrier")
    issue()
    e(f"""
v_add_u32 v40, {L_HC}, v18
v_lshlrev_b32 v25, 2, v18
v_lshlrev_b32 v26, 1, v18
v_add_u32 v26, {L_KT}, v26
s_xor_b32 s62, s48, {qswap}
s_mul_i32 s62, s62, {8*3072}
s_lshl_b32 s52, s48, 3
s_add_u32 s52, s52, s50
s_mul_i32 s52, s52, 3072
""")
    wo_setup()
    e(f"s_mul_i32 s58, s3, 4608\n s_add_u32 s58, s58, {L_STAGE}\n s_cmp_ge_u32 s53, 9\n s_cselect_b32 s59, 8, 0\n s_lshl_b32 s57, s26, 4\n s_add_u32 s59, s59, s57\n s_add_u32 s59, s59, s3\n v_lshlrev_b32 v{VST}, 4, v13\n v_lshrrev_b32 v{VOUT}, 3, v1")
    s3_addr1(); s3_addr2(58, 59, 68)
    lines_ = [x.strip() for x in a.L[n0:]]; del a.L[n0:]
    atoms = []
    for x in lines_:
        if x.startswith("s_cselect"): atoms[-1] += "\n" + x
        else: atoms.append(x)
    issue(atoms[:pre0], f0)
    issue(atoms[pre0:])
    e(f"s_setprio {lprio}")
    a.lab("L_hloop1")
    e("s_waitcnt vmcnt(12)\n s_barrier")
    issue()
    e("s_cmp_lg_u32 s44, 7\n s_cbranch_scc1 L_hloop1")
    e("s_waitcnt vmcnt(12)\n s_barrier\n buffer_load_dword v27, v28, s[64:67], 0 offen offset:128 sc1")
    issue()
    e("s_waitcnt vmcnt(12)\n s_barrier")
    stamp(4)
    e("v_cmp_eq_u32 vcc, 0, v27\n s_cbranch_vccz L_fok")
    flags_wait("a", False, 128)
    a.lab("L_fok")
    def statloads():
        e("buffer_load_dword v30, v18, s[36:39], s60 offen sc1\n s_add_u32 s57, s60, 8192\n buffer_load_dword v31, v18, s[36:39], s57 offen sc1\n s_mov_b32 s57, s61")
        for i in range(8):
            e(f"buffer_load_dword v{32+i}, v19, s[36:39], s57 offen sc1")
            if i < 7: e("s_add_u32 s57, s57, 3840")
    statloads()
    e(f"buffer_load_dword v27, v28, s[64:67], 0 offen offset:{F2} sc1")
    e("ds_read_b32 v22, v40\n ds_read_b32 v23, v40 offset:1024\n ds_read_b32 v24, v40 offset:2048\n ds_read_b32 v12, v40 offset:3072")
    if wa: wo_dma("a", wa)
    e(f"s_waitcnt vmcnt({11+wa})\n s_barrier")
    stamp(6)
    e("s_mov_b32 s59, 0\n s_waitcnt vmcnt(%d)\n s_branch L_st1" % wa)
    a.lab("L_st0")
    statloads()
    e(f"""
s_waitcnt vmcnt(0)
L_st1:
v_max3_u32 v2, v30, v31, v32
v_max3_u32 v2, v2, v33, v34
v_max3_u32 v2, v2, v35, v36
v_max3_u32 v2, v2, v37, v38
v_max_u32 v2, v2, v39
v_cmp_eq_u32 vcc, -1, v2
s_cbranch_vccz L_st2
s_add_u32 s59, s59, 1
s_cmp_lt_u32 s59, {SPIN}
s_cbranch_scc1 L_st0
L_st2:
{"s_memrealtime s[98:99]" if stamps else ""}
v_add_u32 v18, {L_RS}, v18
v_add_f32 v32, v32, v36
v_add_f32 v33, v33, v37
v_add_f32 v34, v34, v38
v_add_f32 v35, v35, v39
v_add_f32 v32, v32, v34
v_add_f32 v33, v33, v35
v_add_f32 v32, v32, v33
ds_write_b32 v18, v30
ds_write_b32 v18, v31 offset:1024
ds_write_b32 v18, v32 offset:2048
""")
    if wb_: wo_dma("a2", wa+wb_, wa > 0)
    e("s_waitcnt lgkmcnt(0)\n s_barrier\n s_setprio 0")
    stamp(1)
    wo_dma("b", -1 if wa+wb_ else 0)
    if dec:
        e("v_cmp_eq_u32 vcc, 0, v27\n s_cbranch_vccz L_r2")
        flags_wait("r", False, F2)
        a.lab("L_r2")
    else: flags_wait("r", True, F2)
    e("s_mov_b32 s32, s52\n s_mov_b32 s34, s62\n s_cmp_lg_u32 s54, 3\n s_cbranch_scc1 L_hpub")
    if dec: e("s_barrier")
    sw_calc()
    a.lab("L_hpub")
    s3_scal(False)
    e("s_cmp_lg_u32 s54, 3\n s_cbranch_scc1 L_hpub2\n s_waitcnt lgkmcnt(0)\n s_barrier")
    if dec: e("s_branch L_s3rd")
    else:
        s3_reads(); s3_unpack()
        e("s_barrier\n s_mov_b32 s33, 1\n s_branch L_s3a")
    a.lab("L_hpub2")
    if hprio: e("s_setprio 2")
    e("s_mov_b32 s59, 0\n s_barrier")
    for i in range(4): e(f"ds_read_b128 v[{32+4*i}:{35+4*i}], v22 offset:{8192*i}")
    e("s_waitcnt lgkmcnt(0)")
    e("v_pk_add_f32 v[32:33], v[32:33], v[36:37]\n v_pk_add_f32 v[34:35], v[34:35], v[38:39]\n v_pk_add_f32 v[40:41], v[40:41], v[44:45]\n v_pk_add_f32 v[42:43], v[42:43], v[46:47]")
    e("v_pk_add_f32 v[32:33], v[32:33], v[40:41]\n v_pk_add_f32 v[34:35], v[34:35], v[42:43]")
    e("buffer_store_dwordx4 v[32:35], v25, s[36:39], s32 offen sc1")
    stamp(2)
    if hread:
        e("s_setprio 0"); s3_reads(); e("s_setprio 2")
    e("s_waitcnt vmcnt(0)" if await_ else f"s_sleep {asleep}")
    a.lab("L_hA")
    e("s_mov_b32 s57, s34")
    for i in range(8):
        e(f"buffer_load_dwordx4 v[{64+4*i}:{67+4*i}], v25, s[36:39], s57 offen sc1")
        if i < 7: e("s_add_u32 s57, s57, 3072")
    for i in range(1, 8):
        e(f"s_waitcnt vmcnt({7-i})")
        for h in range(2):
            src = 64 if i == 1 else 32
            e(f"v_pk_add_f32 v[{32+2*h}:{33+2*h}], v[{src+2*h}:{src+1+2*h}], v[{64+4*i+2*h}:{65+4*i+2*h}]")
    e("v_pk_add_f32 v[36:37], v[32:33], v[34:35]\n v_cmp_u_f32 vcc, v36, v37\n s_cbranch_vccnz L_hA1\nL_hA2:")
    e("""
v_pk_mul_f32 v[32:33], v[32:33], v[12:13] op_sel_hi:[1,0]
v_pk_mul_f32 v[34:35], v[34:35], v[12:13] op_sel_hi:[1,0]
v_cvt_pk_bf16_f32 v32, v32, v33
v_cvt_pk_bf16_f32 v33, v34, v35
v_and_b32 v32, v32, v23
v_and_b32 v33, v33, v24
ds_write_b64 v26, v[32:33]
s_waitcnt lgkmcnt(0)
s_barrier
""")
    stamp(3)
    if hprio: e("s_setprio 0")
    e(f"s_branch {'L_s3un' if hread else 'L_s3rd'}")
    a.lab("L_hA1")
    e("v_max3_u32 v2, v64, v65, v66")
    for i in range(67, 95, 2): e(f"v_max3_u32 v2, v2, v{i}, v{i+1}")
    e(f"v_max_u32 v2, v2, v95\n v_cmp_eq_u32 vcc, -1, v2\n s_cbranch_vccz L_hA2\n s_add_u32 s59, s59, 1\n s_cmp_lt_u32 s59, {SPIN}\n s_cbranch_scc1 L_hA\n s_branch L_hA2")

    a.lab("L_compute")
    e(f"""
v_lshrrev_b32 v15, 1, v13
v_xor_b32 v15, v15, v14
v_lshlrev_b32 v15, 4, v15
v_lshl_add_u32 v4, v13, 7, v15
s_lshl_b32 s55, s54, 13
v_add_u32 v4, s55, v4
v_xor_b32 v5, 64, v4
v_lshrrev_b32 v2, 2, v13
v_lshl_add_u32 v2, v14, 2, v2
v_and_b32 v3, 3, v13
v_and_b32 v15, 7, v2
v_lshlrev_b32 v15, 5, v15
v_lshlrev_b32 v2, 8, v2
v_add_u32 v2, {XS}, v2
v_add_u32 v16, 3, v3
v_and_b32 v16, 4, v16
v_lshlrev_b32 v16, 1, v16
v_and_b32 v17, 2, v3
v_lshlrev_b32 v17, 2, v17
v_lshlrev_b32 v3, 3, v3
v_add_u32 v3, s52, v3
s_lshl_b32 s56, s47, 1
s_sub_u32 s57, 2, s56
s_lshl_b32 s58, s47, 4
s_sub_u32 s58, 8, s58
""")
    if qswap: e("v_mul_u32_u24 v16, s57, v16\n v_mul_u32_u24 v17, s56, v17\n v_add_u32 v17, s58, v17")
    for T in range(7):
        secs = [min((4*T+c)//9, 2) for c in range(4)]
        e(f"v_add_u32 v{6+T}, {32*T + 8*secs[0]}, v3")
        if T == 2: e(f"v_add_u32 v{6+T}, v{6+T}, v16")
        if T == 4: e(f"v_add_u32 v{6+T}, v{6+T}, v17")
        if T == 3 and qswap: e(f"v_add_u32 v{6+T}, s58, v{6+T}")
        e(f"v_xor_b32 v{6+T}, v{6+T}, v15\n v_add_u32 v{6+T}, v{6+T}, v2")
    e(f"""
s_lshl_b32 s55, s54, 8
s_add_u32 s55, s55, {L_RS}
v_lshl_add_u32 v249, v14, 4, s55
v_lshlrev_b32 v250, 2, v13
v_add_u32 v250, {L_CS}, v250
v_cmp_le_u32 s[40:41], 12, v13
v_cndmask_b32_e64 v251, 0, -1, s[40:41]
s_mul_i32 s55, s54, 7680
s_add_u32 s55, s55, {L_PQ}
v_mul_u32_u24 v252, 40, v13
v_lshl_add_u32 v252, v14, 3, v252
v_add_u32 v252, s55, v252
v_lshrrev_b32 v254, 2, v13
v_add_u32 v254, v254, v13
v_lshl_add_u32 v254, v254, 3, s55
v_mul_u32_u24 v253, 160, v14
v_add_u32 v253, v253, v254
s_lshl_b32 s55, s54, 13
s_add_u32 s55, s55, {L_KVRED}
v_lshl_add_u32 v255, v1, 4, s55
""")
    ACC = 16; F = [128, 172]
    for i in range(4): e(f"v_mov_b32 v{F[1]+i}, 0")
    for i in range(28): e(f"v_mfma_f32_16x16x32_bf16 v[{ACC+4*i}:{ACC+4*i+3}], v[{F[1]}:{F[1]+3}], v[{F[1]}:{F[1]+3}], 0")
    def reads(fs, kk):
        r = [f"ds_read_b128 v[{F[fs]+4*j}:{F[fs]+4*j+3}], v{4+kk} offset:{j*2048}" for j in range(4)]
        for T in range(7):
            for hf in range(2):
                d = F[fs]+16+4*T+2*hf
                r.append(f"ds_read_b64_tr_b16 v[{d}:{d+1}], v{6+T} offset:{(kk*32+hf*16)*256}")
        return r
    def acc(j, T): return ACC + (j*7+T)*4
    def mfmas(fs):
        m = []
        for T in range(7):
            for j in range(4):
                c = acc(j, T); b = F[fs]+16+4*T
                m.append(f"v_mfma_f32_16x16x32_bf16 v[{c}:{c+3}], v[{F[fs]+4*j}:{F[fs]+4*j+3}], v[{b}:{b+3}], v[{c}:{c+3}]")
        return m
    def weave(m, r, extra):
        out = []
        for i, x in enumerate(m):
            out.append(x)
            if i < len(r): out.append(r[i])
            if i in extra: out.extend(extra[i])
        return out
    e(f"s_mov_b32 s55, 0\n s_mov_b32 s56, 0\n s_mov_b32 s58, {STG}\n s_waitcnt lgkmcnt(0)")
    srd(36, 24, 0x10000000)
    srd(28, 4, 2359296)
    e(f"""
s_movk_i32 s57, 190
v_lshl_add_u32 v212, s54, 6, v1
v_cmp_gt_u32 s[40:41], s57, v212
v_cndmask_b32_e64 v213, 0, v212, s[40:41]
v_cndmask_b32_e64 v233, 0, -1, s[40:41]
v_mov_b32 v234, v233
v_mul_u32_u24 v214, 13108, v213
v_lshrrev_b32 v214, 16, v214           ; col
v_mul_u32_u24 v215, 5, v214
v_sub_u32 v215, v213, v215               ; i
v_cmp_le_u32 s[40:41], 18, v214
v_cndmask_b32_e64 v216, 0, 1, s[40:41]
v_cmp_le_u32 s[40:41], 36, v214
v_subrev_u32 v217, 36, v214
v_cndmask_b32_e64 v216, v216, v217, s[40:41]      ; head
v_cndmask_b32_e64 v214, v214, 36, s[40:41]
v_mov_b32 v222, {f2u(1/LOG2E**2):#x}
v_mov_b32 v221, {f2u(1/LOG2E):#x}
v_cndmask_b32_e64 v222, v222, v221, s[40:41]
v_lshl_add_u32 v217, v216, 2, v215
v_add_u32 v214, 72, v214
v_lshrrev_b32 v218, 4, v214
v_subrev_u32 v218, 4, v218             ; TB-4
v_and_b32 v214, 15, v214
v_lshrrev_b32 v219, 2, v217            ; TA
v_mad_u32_u24 v218, v219, 3, v218
v_lshrrev_b32 v220, 1, v219
v_sub_u32 v218, v218, v220
v_and_b32 v219, 3, v217
v_lshl_add_u32 v214, v219, 4, v214
v_lshlrev_b32 v214, 4, v214
v_lshl_add_u32 v232, v218, 10, v214
v_add_u32 v232, {L_KVRED}, v232
v_cmp_eq_u32 s[40:41], 4, v217
v_cndmask_b32_e64 v218, -1, 0, s[40:41]
v_subrev_u32 v219, 1, v216
v_or_b32 v219, v219, v218
v_and_b32 v233, v233, v219
v_sub_u32 v219, 0, v216
v_or_b32 v219, v219, v218
v_and_b32 v234, v234, v219
v_lshlrev_b32 v212, 2, v212
v_add_u32 v212, {L_HC}, v212
ds_write_b32 v212, v232
ds_write_b32 v212, v233 offset:1024
ds_write_b32 v212, v234 offset:2048
ds_write_b32 v212, v222 offset:3072
""")
    e(f"""
v_lshrrev_b32 v212, 3, v13           ; head
v_bfe_u32 v213, v13, 2, 1            ; odd
v_and_b32 v214, 3, v13               ; r
v_mul_u32_u24 v215, 18, v212
v_mad_u32_u24 v215, v213, 10, v215
v_add_u32 v215, v215, v214
v_lshl_add_u32 v215, s54, 2, v215
s_mov_b64 s[70:71], -1
s_cmp_lg_u32 s54, 2
s_cbranch_scc1 L_kta
v_add_u32 v216, 36, v212
v_cmp_eq_u32 s[68:69], 2, v214
v_cndmask_b32_e64 v215, v215, v216, s[68:69]
v_lshl_add_u32 v216, v213, 2, v214
v_cmp_gt_u32 s[70:71], 2, v216
s_or_b64 s[70:71], s[70:71], s[68:69]
L_kta:
v_lshlrev_b32 v216, 2, v212
v_sub_u32 v216, v14, v216
v_mov_b32 v217, 190
s_mul_i32 s57, s54, 768
s_add_u32 s57, s57, {L_KTA}
v_lshl_add_u32 v218, v1, 2, s57
s_mov_b32 s57, {L_KT}
""")
    for t in range(3):
        e(f"v_add_u32 v219, {4*t}, v216\n v_cmp_gt_u32 s[68:69], 5, v219\n v_mad_u32_u24 v219, v215, 5, v219\n s_and_b64 s[68:69], s[68:69], s[70:71]\n v_cndmask_b32_e64 v219, v217, v219, s[68:69]\n v_lshl_add_u32 v219, v219, 3, s57\n ds_write_b32 v218, v219 offset:{256*t}")
    e("s_waitcnt lgkmcnt(0)")
    stamp(14)
    e("s_barrier")
    if sb: e("s_memrealtime s[92:93]")
    stamp(1)
    for r in reads(0, 0): e(r)
    e("s_waitcnt lgkmcnt(0)\n s_branch L_cloop\n .p2align 3")
    a.lab("L_cloop2")
    for x in weave(mfmas(1)[lb:], reads(0, 0), {}): e(x)
    e(f"s_waitcnt lgkmcnt({6 if lb > 4 else 0})")
    a.lab("L_cloop")
    ex = {0: ["s_add_u32 s56, s56, 1", f"s_cmp_eq_u32 s56, {NBUF}"], 1: [f"s_cselect_b32 s57, {(-(NBUF-1)*STG) & 0xffffffff}, s58", "s_cselect_b32 s56, 0, s56"],
          2: ["v_add_u32 v4, s57, v4"], 4: ["v_add_u32 v5, s57, v5"], 22: ["s_add_u32 s55, s55, 1", "s_cmp_lt_u32 s55, 9"]}
    for T in range(7): ex.setdefault(6+2*T, []).append(f"v_add_u32 v{6+T}, s57, v{6+T}")
    if lb > 4: ex.setdefault(9, []).append("s_waitcnt lgkmcnt(10)")
    for x in weave(mfmas(0), reads(1, 1), ex): e(x)
    e("s_waitcnt lgkmcnt(0)")
    for x in mfmas(1)[:lb]: e(x)
    e("s_barrier")
    if sb:
        e("s_waitcnt lgkmcnt(0)")
        for i in range(1, 10): e(f"s_mov_b32 s{72+2*i}, s{74+2*i}")
        e("s_memrealtime s[92:93]\n s_waitcnt lgkmcnt(0)")
    e("s_cbranch_scc1 L_cloop2")
    RS, MRS = 128, 144
    CSR = [160, 162, 164, 166, 168, 170, 10]
    K = 4
    import math
    C1L = LOG2E*1.000001; E2M = LOG2E*math.exp(-1.000001); E2A = LOG2E*1e-6
    tr = [f"ds_read_b32 v{CSR[T]}, v250 offset:{64*T}" for T in range(7)]
    for j in range(4): tr += [f"ds_read_b128 v[{RS+4*j}:{RS+4*j+3}], v249 offset:{64*j}", f"ds_read_b128 v[{MRS+4*j}:{MRS+4*j+3}], v249 offset:{1024+64*j}"]
    tr += [f"v_mov_b32 v{K}, {f2u(C1L):#x}", f"v_mov_b32 v{K+2}, {f2u(E2M):#x}", f"v_mov_b32 v{K+4}, {f2u(E2A):#x}", "v_mov_b32 v2, 0x3f803f80"]
    for x in interleave(mfmas(1)[lb:], tr, 1): e(x)
    e("s_waitcnt lgkmcnt(0)")
    stamp(2)
    TMP = 204
    def phi(j, T, dst):
        c = acc(j, T); p = f"v[{CSR[T]}:{CSR[T]+1}]"; u = TMP; t = TMP+4
        for h in range(2): e(f"v_pk_fma_f32 v[{u+2*h}:{u+2*h+1}], v[{MRS+4*j+2*h}:{MRS+4*j+2*h+1}], {p}, v[{K}:{K+1}] op_sel_hi:[1,0,0]")
        for h in range(2): e(f"v_pk_fma_f32 v[{u+2*h}:{u+2*h+1}], v[{c+2*h}:{c+2*h+1}], v[{RS+4*j+2*h}:{RS+4*j+2*h+1}], v[{u+2*h}:{u+2*h+1}]")
        for q in range(4): e(f"v_exp_f32 v{t+q}, v{u+q}")
        for h in range(2): e(f"v_pk_fma_f32 v[{t+2*h}:{t+2*h+1}], v[{t+2*h}:{t+2*h+1}], v[{K+2}:{K+3}], v[{K+4}:{K+5}] op_sel_hi:[1,0,0]")
        for q in range(4): e(f"v_med3_f32 v{t+q}, v{u+q}, v{t+q}, v{K}")
        for h in range(2): e(f"v_cvt_pk_bf16_f32 v{dst+h}, v{t+2*h}, v{t+2*h+1}")
    def lin(j, T, dst):
        c = acc(j, T); p = f"v[{CSR[T]}:{CSR[T]+1}]"
        for h in range(2): e(f"v_pk_mul_f32 v[{TMP+8+2*h}:{TMP+9+2*h}], v[{MRS+4*j+2*h}:{MRS+4*j+2*h+1}], {p} op_sel_hi:[1,0]")
        for h in range(2): e(f"v_pk_fma_f32 v[{TMP+8+2*h}:{TMP+9+2*h}], v[{c+2*h}:{c+2*h+1}], v[{RS+4*j+2*h}:{RS+4*j+2*h+1}], v[{TMP+8+2*h}:{TMP+9+2*h}]")
        for h in range(2): e(f"v_cvt_pk_bf16_f32 v{dst+h}, v{TMP+8+2*h}, v{TMP+9+2*h}")
    PK = 216; KVA = 172
    pairs = [(0,0),(0,1),(0,2),(1,0),(1,1),(1,2),(2,1),(2,2)]
    def capture(fn):
        n0 = len(a.L); fn(); r = a.L[n0:]; del a.L[n0:]; return [x.strip() for x in r]
    Bop = lambda tb, jp: PK + 8*tb + 4*jp
    Aop = lambda ta, jp: acc(ta, 5) + 4*jp
    for T in range(3):
        for j in range(4): lin(j, 4+T, Bop(T, j >> 1) + 2*(j & 1))
    for r in range(8): e(f"v_bfi_b32 v{Bop(2, 0)+r}, v251, v2, v{Bop(2, 0)+r}")
    def kvwork(ta):
        m = []; w = []
        for jp in range(2):
            for n, (x, tb) in enumerate(pairs):
                if x != ta: continue
                c = KVA + 4*n
                m.append(f"v_mfma_f32_16x16x32_bf16 v[{c}:{c+3}], v[{Aop(ta, jp)}:{Aop(ta, jp)+3}], v[{Bop(tb, jp)}:{Bop(tb, jp)+3}], " + ("0" if jp == 0 else f"v[{c}:{c+3}]"))
                if jp: w.append(f"ds_write_b128 v255, v[{c}:{c+3}] offset:{n*1024}")
        return m, w
    side = []
    for T in range(3):
        v = capture(lambda: [phi(j, T, Aop(T, j >> 1) + 2*(j & 1)) for j in range(4)])
        k = 0
        for i, x in enumerate(v):
            e(x)
            if ((i % 16 in epos) if epos else i % 6 == 5) and k < len(side): e(side[k]); k += 1
        for x in side[k:]: e(x)
        m, w = kvwork(T); side = m + w
    for x in side: e(x)
    e("s_waitcnt lgkmcnt(0)")
    stamp(13)
    e("s_barrier")
    stamp(3)
    for j in range(4): e(f"ds_write_b64 v252, v[{Aop(2, j >> 1) + 2*(j & 1)}:{Aop(2, j >> 1) + 2*(j & 1) + 1}] offset:{j*1920}")
    for j in range(4):
        for T in (3, 4):
            d = PK + (j*2 + T-3)*2
            phi(j, T, d)
            e(f"ds_write_b64 v252, v[{d}:{d+1}] offset:{j*1920 + (T-2)*640}")
    PQ = 16
    e("s_waitcnt lgkmcnt(0)")
    for j in range(4):
        for t in range(2): e(f"ds_read_b64_tr_b16 v[{PQ+6*j+2*t}:{PQ+6*j+2*t+1}], v253 offset:{j*1920 + (4+16*t)*40}")
        e(f"ds_read_b64_tr_b16 v[{PQ+6*j+4}:{PQ+6*j+5}], v254 offset:{j*1920 + 36*40}")
    KA = 44
    e(f"v_lshlrev_b32 v2, 2, v1\n v_add_u32 v2, {L_KTA}, v2")
    if lf:
        for i in range(9): e(f"ds_read_b32 v{240+i}, v2 offset:{256*i}")
    e(f"v_mov_b32 v{PQ+24}, 0\n v_mov_b32 v{PQ+25}, 0")
    for tau in range(3): e(f"v_mov_b32 v{KA+8*tau+6}, 0\n v_mov_b32 v{KA+8*tau+7}, 0")
    e(f"""
v_lshlrev_b32 v6, 4, v1
v_lshlrev_b32 v7, 4, v13
v_lshl_add_u32 v7, v14, 1, v7
s_xor_b32 s57, s48, {qswap}
s_lshr_b32 s58, s57, 1
s_lshl_b32 s58, s58, 8
s_and_b32 s59, s57, 1
s_lshl_b32 s59, s59, 3
s_add_u32 s58, s58, s59
s_add_u32 s58, s58, 16384
v_add_u32 v7, s58, v7
s_lshl_b32 s57, s57, 10
v_add_u32 v6, s57, v6
v_and_b32 v8, 1, v14
v_lshl_or_b32 v7, v8, 31, v7
v_mov_b32 v9, {f2u(1/LOG2E):#x}
v_mov_b32 v10, {f2u(1e-6):#x}
v_mov_b32 v8, v2
s_lshl_b32 s55, s50, 4
s_lshl_b32 s56, s54, 2
s_add_u32 s55, s55, s56
s_mul_i32 s55, s55, 18432
s_add_u32 s55, s55, {OB}
s_waitcnt lgkmcnt(0)
""")
    s3_scal()
    if not lf:
        s3_addr1(); s3_reads(); s3_addr2(); s3_unpack(); e("s_waitcnt lgkmcnt(0)")
        for i in range(9): e(f"ds_read_b32 v{240+i}, v8 offset:{256*i}")
        e("s_waitcnt lgkmcnt(0)")
    stamp(4)
    e("s_barrier")
    stamp(5)
    for tau in (2, 0, 1):
        for t in range(3): e(f"ds_read_b64 v[{KA+8*tau+2*t}:{KA+8*tau+2*t+1}], v{240+tau*3+t}")
    D = 68
    def s2m(j, tau, half):
        c = D + 12*j + 4*tau
        return f"v_mfma_f32_16x16x32_bf16 v[{c}:{c+3}], v[{KA+8*tau+4*half}:{KA+8*tau+4*half+3}], v[{PQ+6*j+4*half}:{PQ+6*j+4*half+3}], " + ("0" if half == 0 else f"v[{c}:{c+3}]")
    e("s_waitcnt lgkmcnt(6)")
    for half in range(2):
        for j in range(4): e(s2m(j, 2, half))
    e("s_waitcnt lgkmcnt(0)")
    mm = [s2m(j, tau, half) for j in range(4) for half in range(2) for tau in range(2)]
    dv = []
    for op in range(6):
        for j in range(4):
            r = D + 12*j + 10
            dv.append([f"v_mul_f32 v{r}, v9, v{r}", f"v_cvt_pk_bf16_f32 v{r}, v{r}, v{r}", f"v_and_b32 v{r}, 0xffff0000, v{r}", f"v_add_f32 v{r}, v10, v{r}", f"v_rcp_f32 v{r}, v{r}", f"v_mul_f32 v{r}, v9, v{r}"][op])
    for x in interleave(mm, dv, 2, 3): e(x)
    for j in range(4):
        c = D + 12*j; o = c
        for h in range(5): e(f"v_pk_mul_f32 v[{c+2*h}:{c+2*h+1}], v[{c+2*h}:{c+2*h+1}], v[{c+10}:{c+11}] op_sel_hi:[1,0]")
        for h in range(5): e(f"v_cvt_pk_bf16_f32 v{o+h}, v{c+2*h}, v{c+2*h+1}")
        e(f"buffer_store_dwordx4 v[{o}:{o+3}], v6, s[36:39], s55 offen sc1\n buffer_store_dword v{o+4}, v7, s[36:39], s55 offen sc1")
        if j < 3: e(f"s_add_u32 s55, s55, {16*1152}")
    stamp(6)

    e(f"s_mov_b32 s33, {0 if lf else 1}\n s_branch L_s3a")
    a.lab("L_s3pre")
    s3_scal(); s3_addr1(); s3_addr2()
    a.lab("L_s3rd")
    s3_reads()
    a.lab("L_s3un")
    e("s_mov_b32 s33, 1")
    s3_unpack()
    a.lab("L_s3a")
    e(f"v_lshlrev_b32 v6, 4, v1\n s_mov_b32 s35, 0\n s_mul_i32 s56, s63, {rot*1024}")
    e(f"""
{"" if hintall else "s_cmp_lt_u32 s27, 16"}
{"" if hintall else "s_cbranch_scc1 L_oload"}
s_cmp_lg_u32 s3, 7
s_cbranch_scc1 L_oload
v_mov_b32 v2, 0
s_mov_b32 s59, 0
s_add_u32 s57, s62, 1024
L_ohint:
s_sleep {hsleep}
buffer_load_dword v3, v2, s[36:39], s57 offen offset:1020 sc1
s_waitcnt vmcnt(0)
v_cmp_eq_u32 vcc, -1, v3
s_cbranch_vccz L_oload
s_add_u32 s59, s59, 1
s_cmp_lt_u32 s59, {SPIN}
s_cbranch_scc1 L_ohint
L_oload:
{"s_sleep %d" % osleep if osleep else ""}
s_waitcnt {"vmcnt(0) " if owait else ""}lgkmcnt(0)
s_barrier
""")
    stamp(7)
    if s3prio: e(f"s_cmp_lt_u32 s3, 4\n s_cbranch_scc1 L_s3p\n s_setprio {s3prio}\nL_s3p:")
    groups = [[2*i, 2*i+1] for i in range(9)]
    def oreg(k): return OF + 4*(k % (2*ahead+2))
    def oloads(g):
        r = []
        for k in g:
            o = oreg(k)
            if k % 2 == 0:
                if rot and k < 16: r.append(f"s_add_u32 s57, s56, {k*1024}\n s_and_b32 s57, s57, 0x3fff\n s_add_u32 s57, s57, s62")
                else: r.append(f"s_add_u32 s57, s62, {k*1024}")
            r.append(f"buffer_load_dwordx4 v[{o}:{o+3}], v6, s[36:39], s57 offen offset:{1024*(k%2)} {x_fl}")
        return r
    def ocheck(g):
        o = oreg(g[0])
        if lchk and g[0] < 16:
            e(f"v_max_u32 v2, v{o+3}, v{o+7}\n v_cmp_eq_u32 vcc, -1, v2"); return
        e(f"v_max3_u32 v2, v{o}, v{o+1}, v{o+2}\n v_max3_u32 v3, v{o+3}, v{o+4}, v{o+5}\n v_max3_u32 v2, v2, v{o+6}, v{o+7}\n v_max_u32 v2, v2, v3\n v_cmp_eq_u32 vcc, -1, v2")
    cnt = lambda i: 0 if i > 8 else 2
    e(f"""
s_lshr_b32 s57, s60, 3
s_lshl_b32 s57, s57, 7
s_add_u32 s57, s57, {XID}
v_min_u32 v8, 8, v1
v_lshlrev_b32 v8, 2, v8
buffer_load_dword v15, v8, s[36:39], s57 offen sc1
s_getreg_b32 s53, hwreg(HW_REG_XCC_ID)
s_and_b32 s53, s53, 15
""")
    if psetup: e("s_setprio 3")
    a.lab("L_redo")
    for g in groups[:ahead]:
        for x in oloads(g): e(x)
    e("s_cmp_eq_u32 s33, 0\n s_cbranch_scc0 L_s3b")
    s3_addr1(); s3_reads(); s3_addr2(); s3_unpack()
    e("s_waitcnt lgkmcnt(0)")
    a.lab("L_s3b")
    e("s_mov_b32 s59, 0")
    for gi, g in enumerate(groups):
        e(f"s_waitcnt vmcnt({sum(cnt(gi+d) for d in range(1, ahead))})")
        if gi + ahead < 9 and not x_nold:
            for x in oloads(groups[gi+ahead]): e(x)
        if gi == 9 - ahead:
            e(f"""
v_cmp_ne_u32 s[54:55], s53, v15
s_cmp_eq_u64 s[54:55], 0
s_cselect_b32 s53, {fast}, 0
s_cmp_eq_u32 s53, 0
s_cbranch_scc1 L_npt
v_min_u32 v8, 17, v1
v_lshlrev_b32 v8, 7, v8
buffer_load_dword v15, v8, s[36:39], s51 offen
L_npt:
""")
        if not x_nochk:
            ocheck(g)
            e(f"s_cbranch_vccnz L_oretry{gi}")
        a.lab(f"L_ook{gi}")
        if gi in pdec: e(f"s_setprio {3 - pdec.index(gi)}")
        for k in g:
            if k >= NPRE and (NPRE < 9 or k == NPRE): e(f"s_waitcnt lgkmcnt({min(8*(min(k+NPRE-1, 17) - k), 15) if NPRE < 9 else 0})")
            m = []
            for T in range(4):
                b = BR + (k % NPRE)*16 + 4*T
                m.append(f"v_mfma_f32_16x16x32_bf16 v[{AC+4*T}:{AC+4*T+3}], v[{b}:{b+3}], v[{oreg(k)}:{oreg(k)+3}], v[{AC+4*T}:{AC+4*T+3}]")
            if k+NPRE == 16:
                for T in range(4): e(f"v_add_u32 v{BA+T}, 0x10000, v{BA+T}")
            r = bread(k+NPRE) if k+NPRE < 18 and not x_nord else []
            for T in range(4):
                if not x_nomf: e(m[T])
                for x in r[2*T:2*T+2]: e(x)
    stamp(8)
    if lchk: e(f"v_cmp_u_f32 vcc, v{AC}, v{AC}\n s_cbranch_vccnz L_nan\nL_nanok:")
    HP = 64; HF = 72
    for i in range(8): e(f"v_cvt_pk_bf16_f32 v{HP+i}, v{AC+2*i}, v{AC+2*i+1}")
    e(f"""
v_mfma_f32_16x16x32_bf16 v[20:23], v[{HP}:{HP+3}], v[{HP}:{HP+3}], 0
v_mfma_f32_16x16x32_bf16 v[16:19], v[{WR}:{WR+3}], v[{HP}:{HP+3}], 0
v_mfma_f32_16x16x32_bf16 v[20:23], v[{HP+4}:{HP+7}], v[{HP+4}:{HP+7}], v[20:23]
v_mfma_f32_16x16x32_bf16 v[16:19], v[{WR+4}:{WR+7}], v[{HP+4}:{HP+7}], v[16:19]
v_cndmask_b32_e64 v20, v20, v21, s[46:47]
v_cndmask_b32_e64 v22, v22, v23, s[42:43]
v_cndmask_b32_e64 v17, v20, v22, s[48:49]
s_mov_b64 exec, s[44:45]
s_cmp_eq_u32 s53, 0
s_cbranch_scc1 L_ss
buffer_store_dwordx3 v[16:18], v{VST}, s[36:39], s52 offen
L_sb:
s_mov_b64 exec, -1
""")
    stamp(9)
    for i in range(8): e(f"v_lshlrev_b32 v{HF+2*i}, 16, v{HP+i}\n v_and_b32 v{HF+2*i+1}, 0xffff0000, v{HP+i}")
    for T in range(4): e(f"ds_write_b64 v{VSW}, v[{HP+2*T}:{HP+2*T+1}] offset:{2304+32*T}")
    e(f"""
s_mov_b32 s59, 0
{"s_waitcnt vmcnt(0)" if cwait else ""}
L_c1:
buffer_load_dwordx3 v[20:22], v6, s[36:39], s51 offen sc1
buffer_load_dwordx3 v[24:26], v6, s[36:39], s51 offen offset:1024 sc1
buffer_load_dwordx3 v[28:30], v{VST}, s[36:39], s51 offen offset:2048 sc1
s_waitcnt vmcnt(0)
v_max3_u32 v2, v20, v21, v22
v_max3_u32 v3, v24, v25, v26
v_max3_u32 v4, v28, v29, v30
v_max3_u32 v2, v2, v3, v4
v_cmp_eq_u32 vcc, -1, v2
s_cbranch_vccz L_c1ok
s_add_u32 s59, s59, 1
s_cmp_lt_u32 s59, {SPIN}
s_cbranch_scc1 L_c1
L_c1ok:
""")
    stamp(10)
    for q in range(3): e(f"v_add_f32 v{16+q}, v{20+q}, v{24+q}\n v_add_f32 v{20+q}, v{20+q}, v{24+q}")
    for q in range(3): e(f"v_permlane16_swap_b32 v{16+q}, v{20+q}")
    for q in range(3): e(f"v_add_f32 v{24+q}, v{16+q}, v{20+q}\n v_add_f32 v{16+q}, v{16+q}, v{20+q}")
    for q in range(3): e(f"v_permlane32_swap_b32 v{16+q}, v{24+q}")
    for q in range(3): e(f"v_add_f32 v{16+q}, v{16+q}, v{24+q}")
    for q in range(3): e(f"v_add_f32 v{16+q}, v{16+q}, v{28+q}")
    inv = f2u(1.0/576)
    e(f"""
v_mul_f32 v16, {inv:#x}, v16        ; mean
v_mul_f32 v17, {inv:#x}, v17
v_fma_f32 v17, -v16, v16, v17       ; var
v_max_f32 v17, 0, v17
v_cvt_pk_bf16_f32 v20, v16, v17
v_lshlrev_b32 v16, 16, v20
v_and_b32 v17, 0xffff0000, v20
v_add_f32 v17, {f2u(1e-5):#x}, v17
v_cvt_pk_bf16_f32 v17, v17, v17
v_and_b32 v17, 0xffff0000, v17
v_sqrt_f32 v17, v17
v_fma_f32 v18, -v16, v{VSUM}, v18
v_cvt_pk_bf16_f32 v17, v17, v17
v_and_b32 v17, 0xffff0000, v17
v_rcp_f32 v56, v17
v_mul_f32 v18, v18, v56
v_cvt_pk_bf16_f32 v18, v18, v18
v_ashrrev_i32 v20, 31, v18
v_or_b32 v20, 0x80000000, v20
v_xor_b32 v18, v18, v20
s_mov_b32 s57, 0xffff0000
v_and_or_b32 v18, v18, s57, v{VTOK}    ; key
""")
    NP = 32; NF = 40
    def hncalc():
        for i in range(8): e(f"v_pk_add_f32 v[{NF+2*i}:{NF+2*i+1}], v[{HF+2*i}:{HF+2*i+1}], v[16:17] op_sel_hi:[1,0] neg_lo:[0,1] neg_hi:[0,1]")
        for i in range(8): e(f"v_cvt_pk_bf16_f32 v{NP+i}, v{NF+2*i}, v{NF+2*i+1}")
        for i in range(8): e(f"v_lshlrev_b32 v{NF+2*i}, 16, v{NP+i}\n v_and_b32 v{NF+2*i+1}, 0xffff0000, v{NP+i}")
        for i in range(8): e(f"v_pk_mul_f32 v[{NF+2*i}:{NF+2*i+1}], v[{NF+2*i}:{NF+2*i+1}], v[56:57] op_sel_hi:[1,0]")
        for i in range(8): e(f"v_cvt_pk_bf16_f32 v{NP+i}, v{NF+2*i}, v{NF+2*i+1}")
        for T in range(4): e(f"ds_write_b64 v{VSW}, v[{NP+2*T}:{NP+2*T+1}] offset:{32*T}")
    rowmax(20, 18)
    e("v_cmp_eq_u32 s[40:41], v18, v20\n v_cndmask_b32_e64 v22, v18, 0, s[40:41]")
    rowmax(21, 22)
    if hnearly: hncalc()
    e(f"ds_write_b64 v{VKW}, v[20:21]\n s_lshr_b32 s58, s60, 3\n s_lshl_b32 s57, s58, 7\n s_add_u32 s57, s57, {KEY}\n s_lshl_b32 s56, s63, 11\n s_add_u32 s57, s57, s56\n {'s_mov_b32 s56, s3' if krep else 's_or_b32 s56, s63, s3'}\n v_mov_b32 v23, 0\n s_waitcnt lgkmcnt(0)\n s_barrier\n ds_read_b32 v18, v{VKR}\n s_waitcnt lgkmcnt(0)")
    rowmax(20, 18)
    e("v_cmp_eq_u32 s[40:41], v18, v20\n v_cndmask_b32_e64 v22, v18, 0, s[40:41]")
    rowmax(21, 22)
    e(f"""
s_cmp_lg_u32 s56, 0
s_cbranch_scc1 L_nokey
s_mov_b64 exec, 1
buffer_store_dwordx2 v[20:21], v23, s[36:39], s57 offen sc1
s_mov_b64 exec, -1
L_nokey:
""")
    stamp(11)
    e(f"""
s_mov_b64 s[40:41], 0xff
v_cndmask_b32_e64 v20, v21, v20, s[40:41]
v_not_b32 v20, v20
v_bfe_u32 v22, v20, 4, 3
v_cmp_eq_u32 s[46:47], s3, v22
s_and_b64 s[46:47], s[46:47], 0xffff
s_cbranch_scc0 L_noown
s_setprio {3 if oprio else 0}
L_noown:
""")
    if not hnearly: hncalc()
    e(f"""
v_and_b32 v20, 15, v20
v_mul_u32_u24 v20, 144, v20
v_lshl_add_u32 v20, v{VC7}, 4, v20
v_add_u32 v20, s50, v20
v_bfe_u32 v21, v1, 3, 1
v_mul_u32_u24 v21, 2304, v21
v_lshl_add_u32 v21, v{VC7}, 4, v21
s_mul_i32 s62, s58, 4608
s_lshl_b32 s57, s63, 7
s_add_u32 s62, s62, s57
s_add_u32 s62, s62, {CAND}
s_cmp_eq_u64 s[46:47], 0
s_cbranch_scc1 L_nocand
s_waitcnt lgkmcnt(0)
ds_read_b128 v[24:27], v20
ds_read_b128 v[28:31], v20 offset:2304
s_waitcnt lgkmcnt(0)
""")
    e("s_mov_b64 exec, s[46:47]\n buffer_store_dwordx4 v[24:27], v21, s[36:39], s62 offen sc1\n s_mov_b64 exec, -1\nL_nocand:")
    for i in range(8): e(f"v_lshlrev_b32 v{NF+2*i}, 16, v{NP+i}\n v_and_b32 v{NF+2*i+1}, 0xffff0000, v{NP+i}")
    for i in range(8): e(f"v_pk_add_f32 v[{NF+2*i}:{NF+2*i+1}], v[{NF+2*i}:{NF+2*i+1}], v[{HF+2*i}:{HF+2*i+1}]")
    if hscale:
        for i in range(16): e(f"v_mul_f32 v{NF+i}, {f2u(hscale):#x}, v{NF+i}")
    for i in range(8): e(f"v_cvt_pk_bf16_f32 v{NP+i}, v{NF+2*i}, v{NF+2*i+1}")
    for T in range(4): e(f"ds_write_b64 v{VSW}, v[{NP+2*T}:{NP+2*T+1}] offset:{32*T}")
    srd(68, 20, 2359296)
    e(f"""
s_waitcnt lgkmcnt(0)
ds_read_b128 v[40:43], v{VSR}
ds_read_b128 v[44:47], v{VSR} offset:1152
s_add_u32 s57, s61, {8*1152}
s_waitcnt {"vmcnt(0) " if outwait else ""}lgkmcnt(0)
s_barrier
s_cmp_eq_u64 s[46:47], 0
s_cbranch_scc0 L_own
{"s_sleep %d" % outsleep if outsleep else ""}
buffer_store_dwordx4 v[40:43], v{VOUT}, s[68:71], s61 offen {outfl}
buffer_store_dwordx4 v[44:47], v{VOUT}, s[68:71], s57 offen {outfl}
s_branch L_s3end
L_own:
buffer_store_dwordx4 v[40:43], v{VOUT}, s[68:71], s61 offen sc1
buffer_store_dwordx4 v[44:47], v{VOUT}, s[68:71], s57 offen sc1
s_waitcnt vmcnt(0)
s_mov_b64 exec, s[46:47]
buffer_store_dwordx4 v[28:31], v21, s[36:39], s62 offen offset:1152 sc1
L_s3end:
""")
    if wb: e("s_sub_u32 s57, s27, 25\n s_or_b32 s57, s57, s3\n s_cmp_lg_u32 s57, 0\n s_cbranch_scc1 L_nowb\n s_waitcnt vmcnt(0)\n buffer_wbl2 sc1\nL_nowb:")
    stamp(12)
    fin()
    if lchk:
        e(f"L_nan:\n s_add_u32 s35, s35, 1\n s_cmp_ge_u32 s35, 2000\n s_cbranch_scc1 L_nanok\n s_mov_b32 s33, 0\n s_movk_i32 s53, 99\n v_lshrrev_b32 v{VOUT}, 3, v1\n s_branch L_redo")
    e(f"L_ss:\n buffer_store_dwordx3 v[16:18], v{VST}, s[36:39], s52 offen sc1\n s_waitcnt vmcnt(0)\n s_branch L_sb")
    for gi, g in enumerate(groups):
        a.lab(f"L_oretry{gi}")
        e(f"s_add_u32 s59, s59, 1\n s_cmp_ge_u32 s59, {SPIN}\n s_cbranch_scc1 L_ook{gi}")
        for x in oloads(g): e(x)
        e("s_waitcnt vmcnt(0)")
        ocheck(g)
        e(f"s_cbranch_vccnz L_oretry{gi}\n s_branch L_ook{gi}")

    a.lab("L_B")
    e("s_barrier\n s_cmp_ge_u32 s27, 24\n s_cbranch_scc1 L_X")
    def wacc(st_):
        for p in range(2):
            r = 16 + 8*st_ + 4*p
            d = 88 + 8*p if st_ == 0 else 104
            for q in range(4): e(f"v_lshlrev_b32 v{d+2*q}, 16, v{r+q}\n v_and_b32 v{d+2*q+1}, 0xffff0000, v{r+q}")
            if st_:
                for q in range(4): e(f"v_pk_add_f32 v[{88+8*p+2*q}:{89+8*p+2*q}], v[{88+8*p+2*q}:{89+8*p+2*q}], v[{104+2*q}:{105+2*q}]")
    NL = 2; macc = wacc
    for st_ in range(2, 9):
        e(f"buffer_load_dwordx4 v[{16+8*st_}:{19+8*st_}], v2, s[32:35], s56 offen\n buffer_load_dwordx4 v[{20+8*st_}:{23+8*st_}], v5, s[32:35], s56 offen")
        if st_ < 8: e("s_add_u32 s56, s56, s57\n s_barrier")
        if st_ == 2:
            srd(36, 24, 0x10000000); srd(64, 22, 256); e("v_mov_b32 v113, 0")
        if st_ == 8: e("buffer_load_dword v112, v113, s[64:67], 0 offen offset:128 sc1")
        if st_ >= LAG:
            e(f"s_waitcnt vmcnt({NL*LAG + (st_ == 8)})"); macc(st_-LAG)
    for st_ in range(9-LAG, 9):
        e(f"s_waitcnt vmcnt({NL*(8-st_)+1})"); macc(st_)
    stamp(13)
    e(f"""
s_mul_i32 s57, s3, 3840
v_lshl_add_u32 v2, v1, 5, s57
v_lshl_add_u32 v5, v3, 5, s57
ds_write_b128 v2, v[88:91]
ds_write_b128 v2, v[92:95] offset:16
ds_write_b128 v5, v[96:99]
ds_write_b128 v5, v[100:103] offset:16
v_min_u32 v2, 239, v0
v_lshlrev_b32 v2, 4, v2
s_waitcnt lgkmcnt(0)
s_barrier
s_cmp_ge_u32 s3, 4
s_cbranch_scc1 L_W2
""")
    for i_ in range(8): e(f"ds_read_b128 v[{32+4*i_}:{35+4*i_}], v2 offset:{3840*i_}")
    e(f"s_lshl_b32 s57, s26, 3\n s_add_u32 s57, s57, s47\n s_mul_i32 s57, s57, 3840\n s_add_u32 s57, s57, {CS}\n s_waitcnt lgkmcnt(0)")
    for st in (16, 8, 4):
        for i_ in range(0, st, 2): e(f"v_pk_add_f32 v[{32+i_}:{33+i_}], v[{32+i_}:{33+i_}], v[{32+st+i_}:{33+st+i_}]")
    for q in range(4): e(f"v_min_u32 v{32+q}, -2, v{32+q}")
    flags_wait("w", True, 128, 112, 113)
    e("buffer_store_dwordx4 v[32:35], v2, s[36:39], s57 offen sc1")
    a.lab("L_W2")
    if not fearly: e("s_barrier")
    stamp(1)
    e("s_branch L_F")

    a.lab("L_X")
    e("v_mov_b32 v8, 0\n v_mov_b32 v9, 0\n v_mov_b32 v10, 0\n v_mov_b32 v11, 0\n s_mov_b32 s58, 0x3f803f80")
    def xacc(st_):
        for q in range(4):
            for p in range(2):
                r = 16 + 8*st_ + 4*p + q
                e(f"v_dot2c_f32_bf16 v{8+p}, s58, v{r}\n v_dot2c_f32_bf16 v{10+p}, v{r}, v{r}")
    for st_ in range(2, 9):
        e(f"buffer_load_dwordx4 v[{16+8*st_}:{19+8*st_}], v2, s[32:35], s56 offen\n buffer_load_dwordx4 v[{20+8*st_}:{23+8*st_}], v5, s[32:35], s56 offen")
        if st_ < 8: e("s_add_u32 s56, s56, s57\n s_barrier")
        if st_ >= LAG:
            e(f"s_waitcnt vmcnt({2*LAG})"); xacc(st_-LAG)
    for st_ in range(9-LAG, 9):
        e(f"s_waitcnt vmcnt({2*(8-st_)})"); xacc(st_)
    srd(36, 24, 0x10000000); srd(64, 22, 256); srd(28, 4, 2359296)
    e("v_mov_b32 v28, 0\n buffer_load_dword v27, v28, s[64:67], 0 offen offset:128 sc1")
    for m_ in ("quad_perm:[1,0,3,2]", "quad_perm:[2,3,0,1]", "row_half_mirror"):
        for d in range(8, 12): e(f"v_add_f32_dpp v{d}, v{d}, v{d} {m_} row_mask:0xf bank_mask:0xf")
    e(f"""
v_and_b32 v5, 1, v1
v_cmp_eq_u32 vcc, 1, v5
v_cndmask_b32 v16, v8, v9, vcc
v_cndmask_b32 v18, v10, v11, vcc
v_mul_f32 v16, {inv:#x}, v16
v_mul_f32 v18, {inv:#x}, v18
v_fma_f32 v18, -v16, v16, v18
v_max_f32 v18, 0, v18
v_cvt_pk_bf16_f32 v20, v16, v18
v_lshlrev_b32 v16, 16, v20
v_and_b32 v18, 0xffff0000, v20
v_add_f32 v18, {f2u(1e-5):#x}, v18
v_cvt_pk_bf16_f32 v18, v18, v18
v_and_b32 v18, 0xffff0000, v18
v_sqrt_f32 v18, v18
v_cvt_pk_bf16_f32 v18, v18, v18
v_and_b32 v18, 0xffff0000, v18
v_rcp_f32 v18, v18
v_lshl_add_u32 v20, v5, 3, v7
v_lshlrev_b32 v20, 2, v20
v_mul_f32 v18, {f2u(LOG2E):#x}, v18
v_mul_f32_e64 v19, -v16, v18
v_min_u32 v18, -2, v18
v_min_u32 v19, -2, v19
s_lshl_b32 s56, s55, 6
s_lshl_b32 s57, s46, 14
s_add_u32 s56, s56, s57
s_add_u32 s56, s56, {XST}
s_add_u32 s57, s56, 8192
""")
    flags_wait("x", True, 128)
    e(f"""
s_mov_b32 s58, 0x03030303
s_mov_b32 s59, 0x03030303
s_mov_b64 exec, s[58:59]
buffer_store_dword v18, v20, s[36:39], s56 offen sc1
buffer_store_dword v19, v20, s[36:39], s57 offen sc1
s_mov_b64 exec, -1
""")
    stamp(1)
    e("s_cmp_eq_u32 s27, 24\n s_cbranch_scc1 L_F")
    srd(68, 8, 663552)
    e("s_sub_u32 s56, s27, 25\n s_lshl_b32 s56, s56, 3\n s_add_u32 s56, s56, s3\n s_lshl_b32 s56, s56, 13\n v_lshlrev_b32 v2, 7, v1")
    for i in range(4 if wopf == 1 else 0):
        e(f"buffer_load_dword v100, v2, s[68:71], s56 offen\n s_add_u32 s56, s56, {24*8192}\n s_barrier")
    if upf == 1: up_prefetch(0, 2)
    if stamps: e("s_waitcnt vmcnt(0)")
    stamp(2)
    e("s_cmp_lt_u32 s27, 27\n s_cbranch_scc1 L_HS3")
    fin()
    a.lab("L_HS3")
    e("s_sub_u32 s53, s27, 9\n s_cmp_lt_u32 s3, 4\n s_cbranch_scc1 L_HS3b")
    wo_setup(); wo_dma("h")
    e("s_cmp_lg_u32 s54, 3\n s_cbranch_scc1 L_HS3b")
    flags_wait("h", False, F2, nap=4)
    sw_calc()
    a.lab("L_HS3b")
    if cpf & 2:
        e("s_waitcnt vmcnt(0) lgkmcnt(0)\n s_barrier\n s_cmp_ge_u32 s3, 4\n s_cbranch_scc1 L_s3pre")
        code_touch(54, 102)
        e("s_branch L_s3pre")
    e("s_waitcnt vmcnt(0) lgkmcnt(0)\n s_barrier\n s_branch L_s3pre")

    a.lab("L_R")
    e(f"""
v_mov_b32 v8, -1
v_mov_b32 v9, -1
v_mov_b32 v10, -1
v_mov_b32 v11, -1
v_lshlrev_b32 v12, 4, v1
s_lshl_b32 s48, s26, 2
s_add_u32 s48, s48, s47
s_sub_u32 s48, s48, 12
s_lshl_b32 s57, s48, 3
s_add_u32 s57, s57, s3
s_lshl_b32 s56, s57, 11
s_add_u32 s56, s56, {XST}
s_mul_i32 s57, s57, 14336
s_add_u32 s58, s57, 14336
s_waitcnt lgkmcnt(0)
""")
    srd(36, 24, 0x10000000); srd(64, 22, 256)
    e(f"""
buffer_store_dwordx4 v[8:11], v12, s[36:39], s56 offen sc1
buffer_store_dwordx4 v[8:11], v12, s[36:39], s56 offen offset:1024 sc1
""")
    if sweep:
        srd(28, 4, 2359296); srd(32, 6, 1990656); srd(68, 8, 663552)
        e(f"""
s_cmp_ge_u32 s3, 4
s_cbranch_scc1 L_Rw
v_mul_u32_u24 v2, 1152, v1
s_mul_i32 s55, s48, {64*1152}
s_lshl_b32 s59, s3, 7
s_add_u32 s55, s55, s59
{"buffer_load_dword v100, v2, s[28:31], s55 offen offset:640" if sweep & 1 else "s_nop 0"}
v_lshlrev_b32 v2, 7, v1
s_mul_i32 s55, s48, 3
s_add_u32 s55, s55, s3
s_lshl_b32 s55, s55, 13
s_cmp_eq_u32 s3, 3
s_cselect_b32 s55, 0x100000, s55
{"buffer_load_dword v100, v2, s[68:71], s55 offen" if sweep & 4 else "s_nop 0"}
s_waitcnt vmcnt({bin(sweep & 5).count("1")})
s_branch L_Rx
L_Rw:
v_min_u32 v2, 53, v1
v_lshlrev_b32 v2, 7, v2
s_lshl_b32 s55, s3, 5
s_add_u32 s55, s55, s48
s_add_u32 s55, s55, 32
s_mul_i32 s55, s55, 6912
{"buffer_load_dword v100, v2, s[32:35], s55 offen" if sweep & 2 else "s_nop 0"}
s_waitcnt vmcnt({1 if sweep & 2 else 0})
L_Rx:
""")
    else: e("s_waitcnt vmcnt(0)")
    e(f"""
s_barrier
s_cmp_lg_u32 s3, 0
s_cbranch_scc1 L_R21
""")
    arrive("q", 0, 128, 32)
    stamp(1)
    e(f"""
L_R21:
s_barrier
{'s_sleep %d' % rdel if rdel else ''}
L_R2:
buffer_store_dwordx4 v[8:11], v12, s[36:39], s57 offen {rflag}
s_add_u32 s57, s57, 1024
s_cmp_lt_u32 s57, s58
s_cbranch_scc1 L_R2
L_R4:
s_waitcnt vmcnt(0)
s_barrier
s_cmp_lg_u32 s3, 0
s_cbranch_scc1 L_R3
""")
    arrive("r", 4, F2, 32)
    a.lab("L_R3")
    if cpf & 1:
        e("s_cmp_lg_u32 s27, 28\n s_cbranch_scc1 L_nct\n s_cmp_lt_u32 s3, 4\n s_cbranch_scc1 L_nct")
        code_touch(54, 102)
        a.lab("L_nct")
    if upf:
        e("s_barrier")
        up_prefetch(48 if upf == 1 else 19, 2)
        if stamps: e("s_waitcnt vmcnt(0)")
    if wopf == 2:
        srd(68, 8, 663552)
        e("s_sub_u32 s56, s27, 28\n s_lshl_b32 s56, s56, 3\n s_add_u32 s56, s56, s3\n s_lshl_b32 s56, s56, 13\n v_lshlrev_b32 v2, 7, v1")
        for i in range(3):
            e(f"s_barrier\n buffer_load_dword v100, v2, s[68:71], s56 offen\n s_add_u32 s56, s56, {32*8192}")
    stamp(2)
    fin()

    a.lab("L_F")
    if nof: e(f"s_sleep {nof}")
    GW = 16; DW = 160; HB = 232; GA = 248
    srd(32, 18, 5308416); srd(68, 14, 5308416)
    e(f"""
s_mul_i32 s48, s26, 9
s_add_u32 s48, s48, s47            ; fi
s_and_b32 s56, s3, 1
s_lshl_b32 s56, s56, 4
s_bfe_u32 s57, s3, 0x10001
s_lshl_b32 s57, s57, 2
s_add_u32 s56, s56, s57
s_lshr_b32 s57, s3, 2
s_lshl_b32 s57, s57, 5
s_add_u32 s55, s56, s57
s_lshl_b32 s57, s48, 6
s_add_u32 s56, s55, s57
s_mul_i32 s56, s56, 1152
s_mul_i32 s57, s3, 9216
v_lshlrev_b32 v2, 4, v1
v_lshrrev_b32 v3, 5, v1
v_mul_u32_u24 v3, 4608, v3
v_add_u32 v3, v3, v2
""")
    for t in range(9):
        e(f"s_add_u32 m0, s57, {F_WU + t*1024}\n s_add_u32 s58, s56, {t*1024 + (4608 if t > 4 else 0)}\n buffer_load_dwordx4 v{3 if t == 4 else 2}, s[32:35], s58 offen nt lds")
    def gu_dma(tag, base):
        e(f"""
s_lshl_b32 s56, s48, 7
s_lshl_b32 s57, s3, 10
s_add_u32 s57, s57, {base}
s_mov_b32 s58, 0
L_Fl{tag}:
s_mov_b32 m0, s57
s_add_u32 s57, s57, 8192
buffer_load_dwordx4 v4, s[68:71], s56 offen nt lds
s_add_u32 s56, s56, {64*9216}
s_add_u32 s58, s58, 1
s_cmp_lt_u32 s58, 9
s_cbranch_scc1 L_Fl{tag}
""")
    e(f"""
v_lshrrev_b32 v2, 3, v1            ; rr
v_and_b32 v3, 7, v1
v_xor_b32 v3, v3, v2
v_lshlrev_b32 v3, 4, v3
v_lshrrev_b32 v4, 2, v2
v_and_b32 v5, 3, v2
v_lshl_add_u32 v4, v4, 3, v5
v_add_u32 v4, s55, v4              ; k local
v_mul_u32_u24 v4, 9216, v4
v_add_u32 v4, v4, v3
s_barrier
""")
    gu_dma("g", F_WG)
    e(f"""
v_lshrrev_b32 v2, 2, v13
v_lshl_add_u32 v2, v14, 2, v2
v_mul_u32_u24 v2, 1152, v2
v_and_b32 v3, 3, v13
v_lshl_add_u32 v2, v3, 3, v2
s_mul_i32 s56, s54, 288
s_add_u32 s56, s56, {F_WU}
v_add_u32 v5, s56, v2
s_mov_b32 s68, s16
s_mov_b32 s69, s17
s_waitcnt vmcnt(9)
s_barrier
s_cmp_ge_u32 s3, 4
s_cbranch_scc1 L_Fa
""")
    for i in range(9):
        for k in range(2):
            for hf in range(2):
                d = DW + 8*i + 4*k + 2*hf
                e(f"ds_read_b64_tr_b16 v[{d}:{d+1}], v5 offset:{(k*32+hf*16)*1152 + 32*i}")
    e("L_Fa:\n s_waitcnt lgkmcnt(0)\n s_barrier")
    gu_dma("u", F_WU)
    e(f"""
v_lshrrev_b32 v2, 2, v13
v_lshl_add_u32 v2, v14, 2, v2      ; rho
v_and_b32 v3, 7, v2
s_lshl_b32 s56, s54, 1
v_xor_b32 v3, s56, v3
v_lshlrev_b32 v3, 4, v3
v_lshl_add_u32 v3, v2, 7, v3
v_and_b32 v4, 1, v13
v_lshl_add_u32 v3, v4, 3, v3
v_bfe_u32 v4, v13, 1, 1
s_mov_b32 s56, {F_WU}
v_mad_u32_u24 v5, v4, s56, v3
v_xor_b32 v6, 16, v5
v_add_u32 v7, 0x9000, v5
v_add_u32 v8, 0x9000, v6
v_mov_b32 v249, 0
""")
    flags_wait("f", False, F2, 250, 249, nap=4)
    e("s_waitcnt vmcnt(0)\n s_barrier\n s_cmp_ge_u32 s3, 4\n s_cbranch_scc1 L_Fb")
    for k in range(18):
        for t in range(2):
            for hf in range(2):
                off = (k*32+hf*16)*128; reg = 5+t
                if k >= 9: off -= 0x9000; reg = 7+t
                d = GW + 8*k + 4*t + 2*hf
                e(f"ds_read_b64_tr_b16 v[{d}:{d+1}], v{reg} offset:{off}")
    e(f"""
L_Fb:
s_waitcnt lgkmcnt(0)
s_cmp_lt_u32 s3, 4
s_cbranch_scc1 L_Fd
s_sub_u32 s49, s2, 128
s_cmp_lg_u32 s3, 7
s_cbranch_scc1 L_fin
s_cmp_ge_u32 s49, 36
s_cbranch_scc1 L_fin
L_Fd:
v_lshlrev_b32 v7, 4, v0            ; tid*16
v_and_b32 v2, 1, v13
v_mul_u32_u24 v8, 1168, v2
v_lshl_add_u32 v8, v14, 4, v8
v_add_u32 v8, {F_HN}, v8
v_lshlrev_b32 v9, 7, v2
v_lshl_add_u32 v10, v14, 4, v9
v_add_u32 v10, {F_ACT}, v10
v_lshl_add_u32 v9, v14, 3, v9
s_lshl_b32 s56, s54, 5
s_add_u32 s56, s56, {F_ACT}
v_add_u32 v9, s56, v9
v_and_b32 v3, 6, v13
v_add_u32 v9, v9, v3
v_lshrrev_b32 v3, 3, v13
v_lshl_add_u32 v9, v3, 4, v9
s_mov_b32 s46, 0xcccccccc
s_mov_b32 s47, 0xcccccccc
s_mov_b32 s52, 0xf0f0f0f0
s_mov_b32 s53, 0xf0f0f0f0
s_mov_b32 s34, 0xff00ff00
s_mov_b32 s35, 0xff00ff00
v_mul_u32_u24 v11, 2304, v2
v_lshl_add_u32 v11, v14, 4, v11    ; y voffset
v_bfe_u32 v3, v13, 1, 2
v_lshl_add_u32 v15, v3, 6, v11
v_lshrrev_b32 v3, 3, v13
v_lshl_or_b32 v15, v3, 31, v15
v_cmp_lt_u32 s[40:41], 1, v13
v_cndmask_b32_e64 v3, 0, 1, s[40:41]
v_lshl_or_b32 v11, v3, 31, v11
v_lshlrev_b32 v12, 7, v13
s_movk_i32 s58, 72
v_cmp_le_u32 s[44:45], s58, v0
v_cndmask_b32_e64 v4, 0, 1, s[44:45]
v_mul_u32_u24 v5, 1152, v4
v_sub_u32 v5, v7, v5
v_lshl_add_u32 v6, v4, 4, v7
v_add_u32 v6, {F_HN}, v6
s_mul_i32 s60, s48, 4608
s_mul_i32 s56, s54, 576
s_add_u32 s60, s60, s56
s_add_u32 s60, s60, {YP}
s_lshl_b32 s57, s26, 11
s_add_u32 s57, s57, {KEY}
s_mov_b32 s59, 0
s_movk_i32 s58, 144
s_movk_i32 s55, 2304
v_cmp_gt_u32 s[42:43], s58, v0
""")
    stamp(2)
    e(f"""
s_cmp_lg_u32 s3, 3
s_cbranch_scc1 L_k0
s_getpc_b64 s[40:41]
L_pc1:
v_lshlrev_b32 v2, 7, v1
v_min_u32 v2, L_codeend-L_pc1-4, v2
{"global_load_dword v2, v2, s[40:41]" if ftouch else ""}
s_waitcnt vmcnt(0)
s_branch L_f2
L_k0:
buffer_load_dwordx2 v[{HB}:{HB+1}], v12, s[36:39], s57 offen sc1
s_waitcnt vmcnt(0)
v_max_u32 v2, v{HB}, v{HB+1}
v_cmp_eq_u32 vcc, -1, v2
s_cbranch_vccz L_k1
{'s_sleep %d' % ksleep if ksleep else ''}
s_add_u32 s59, s59, 1
s_cmp_lt_u32 s59, {SPIN}
s_cbranch_scc1 L_k0
L_k1:
""")
    stamp(3)
    rowmax(HB+4, HB)
    e(f"v_cmp_eq_u32 s[40:41], v{HB}, v{HB+4}\n v_cndmask_b32_e64 v2, v{HB}, v{HB+1}, s[40:41]")
    rowmax(HB+5, 2)
    e(f"""
v_not_b32 v2, v{HB+4}
v_not_b32 v3, v{HB+5}
v_bfe_u32 v2, v2, 7, 4
v_bfe_u32 v3, v3, 7, 4
v_cmp_eq_u32 s[40:41], v2, v3
v_lshlrev_b32 v2, 1, v2
v_lshlrev_b32 v3, 1, v3
v_addc_co_u32_e64 v3, s[40:41], 0, v3, s[40:41]
s_cmp_eq_u32 s3, 7
s_cbranch_scc1 L_fz
v_cndmask_b32_e64 v2, v2, v3, s[44:45]
v_mad_u32_u24 v2, v2, s55, v5
s_mov_b64 exec, s[42:43]
s_mov_b32 s57, {CAND}
s_mov_b32 s59, 0
L_f0:
buffer_load_dwordx4 v[{HB}:{HB+3}], v2, s[36:39], s57 offen sc1
s_waitcnt vmcnt(0)
v_max3_u32 v3, v{HB}, v{HB+1}, v{HB+2}
v_max_u32 v3, v3, v{HB+3}
v_cmp_eq_u32 vcc, -1, v3
s_cbranch_vccz L_f1
s_add_u32 s59, s59, 1
s_cmp_lt_u32 s59, {SPIN}
s_cbranch_scc1 L_f0
L_f1:
ds_write_b128 v6, v[{HB}:{HB+3}]
s_mov_b64 exec, -1
s_waitcnt lgkmcnt(0)
L_f2:
s_barrier
""")
    stamp(4)
    hreg = lambda k: HB + 4*k if k < 4 else GW + 8*((k-4)//2) + 4*(k % 2)
    for k in range(4): e(f"ds_read_b128 v[{hreg(k)}:{hreg(k)+3}], v8 offset:{64*k}")
    issued = 4
    for k in range(18):
        e(f"s_waitcnt lgkmcnt({issued-1-k})")
        for t in range(2):
            e(f"v_mfma_f32_16x16x32_bf16 v[{GA+4*t}:{GA+4*t+3}], v[{GW+8*k+4*t}:{GW+8*k+4*t+3}], v[{hreg(k)}:{hreg(k)+3}], " + ("0" if k == 0 else f"v[{GA+4*t}:{GA+4*t+3}]"))
        for j in (4+2*k, 5+2*k):
            if j < 18: e(f"ds_read_b128 v[{hreg(j)}:{hreg(j)+3}], v8 offset:{64*j}"); issued += 1
    for i in range(4): e(f"v_cndmask_b32_e64 v{GA+2*i}, v{GA+2*i}, v{GA+2*i+1}, s[46:47]")
    e(f"""
v_cndmask_b32_e64 v{GA}, v{GA}, v{GA+2}, s[52:53]
v_cndmask_b32_e64 v{GA+4}, v{GA+4}, v{GA+6}, s[52:53]
v_cndmask_b32_e64 v2, v{GA}, v{GA+4}, s[34:35]
v_cvt_pk_bf16_f32 v2, v2, v2
v_and_b32 v3, 0xffff0000, v2
v_and_b32 v4, 0xffff0000, v2
v_permlane32_swap_b32 v3, v4
v_mul_f32 v2, {f2u(-LOG2E):#x}, v3
v_exp_f32 v2, v2
v_add_f32 v2, 1.0, v2
v_rcp_f32 v2, v2
v_mul_f32 v3, v3, v2
v_cvt_pk_bf16_f32 v3, v3, v3
v_and_b32 v3, 0xffff0000, v3
v_mul_f32 v3, v3, v4
v_cvt_pk_bf16_f32 v3, v3, v3
s_mov_b32 exec_hi, 0
ds_write_b16 v9, v3
s_mov_b32 exec_hi, -1
s_waitcnt lgkmcnt(0)
s_barrier
ds_read_b128 v[{HB}:{HB+3}], v10
ds_read_b128 v[{HB+4}:{HB+7}], v10 offset:64
s_mov_b32 s56, 0x30003
s_mov_b32 s57, 0x30003
s_waitcnt lgkmcnt(0)
""")
    def dm(i, k):
        c = 16 + 4*i
        return f"v_mfma_f32_16x16x32_bf16 v[{c}:{c+3}], v[{DW+8*i+4*k}:{DW+8*i+4*k+3}], v[{HB+4*k}:{HB+4*k+3}], " + ("0" if k == 0 else f"v[{c}:{c+3}]")
    if not ypk:
        for i in range(9):
            for k in range(2): e(dm(i, k))
        e("s_mov_b64 exec, s[56:57]")
        for i in range(9): e(f"buffer_store_dwordx4 v[{16+4*i}:{19+4*i}], v11, s[36:39], s60 offen offset:{64*i} sc1")
    else:
        def quad(b):
            c = 16 + 16*b; r = []
            for q in range(4): r += [f"v_cndmask_b32_e64 v{c+q}, v{c+q}, v{c+4+q}, s[46:47]", f"v_cndmask_b32_e64 v{c+8+q}, v{c+8+q}, v{c+12+q}, s[46:47]"]
            for q in range(4): r.append(f"v_cndmask_b32_e64 v{c+q}, v{c+q}, v{c+8+q}, s[52:53]")
            r.append(f"buffer_store_dwordx4 v[{c}:{c+3}], v15, s[36:39], s60 offen offset:{256*b} sc1")
            return r
        m = [dm(i, k) for i in (8, 0, 1, 2, 3, 4, 5, 6, 7) for k in range(2)]
        for x in m[:10]: e(x)
        e(f"buffer_store_dwordx4 v[48:51], v11, s[36:39], s60 offen offset:512 sc1")
        for x in interleave(m[10:], quad(0), 2, 2): e(x)
        for x in quad(1): e(x)
        dn = 2
    stamp(5)
    e(f"s_waitcnt vmcnt({dn})\n s_barrier")
    a.lab("L_fin")
    fin()
    e(f"""
L_fz:
v_readfirstlane_b32 s50, v{HB+4}
v_readfirstlane_b32 s51, v{HB+5}
v_readfirstlane_b32 s61, v2
v_readfirstlane_b32 s62, v3
s_cmp_ge_u32 s49, 18
s_cselect_b32 s50, s51, s50
s_cselect_b32 s61, s62, s61
s_cselect_b32 s56, 18, 0
s_mul_i32 s61, s61, 2304
s_andn2_b32 s52, 0x7ff, s50
s_sub_u32 s56, s49, s56
s_lshl_b32 s56, s56, 6
s_add_u32 s61, s61, s56
s_add_u32 s61, s61, {CAND}
s_mul_i32 s52, s52, 1152
s_add_u32 s52, s52, s56
s_lshl_b32 s62, s49, 7
s_add_u32 s62, s62, {YP}
v_and_b32 v2, 7, v1
v_lshlrev_b32 v4, 3, v2
v_lshrrev_b32 v3, 3, v1
v_mul_u32_u24 v3, 4608, v3
v_lshl_add_u32 v3, v2, 4, v3
s_ashr_i32 s56, s50, 31
s_not_b32 s56, s56
s_or_b32 s56, s56, 0x80000000
s_xor_b32 s56, s56, s50
s_and_b32 s56, s56, 0xffff0000
v_mov_b32 v5, {f2u(-LOG2E):#x}
v_mul_f32 v5, s56, v5
v_exp_f32 v5, v5
v_add_f32 v5, 1.0, v5
v_rcp_f32 v5, v5
v_cvt_pk_bf16_f32 v5, v5, v5
v_and_b32 v5, 0xffff0000, v5
s_mov_b32 s59, 0
""")
    srd(68, 20, 2359296)
    e(f"""
s_barrier
s_barrier
L_h0:
buffer_load_dwordx2 v[52:53], v4, s[36:39], s61 offen sc1
buffer_load_dwordx2 v[54:55], v4, s[36:39], s61 offen offset:1152 sc1
s_waitcnt vmcnt(0)
v_max3_u32 v2, v52, v53, v54
v_max_u32 v2, v2, v55
v_cmp_eq_u32 vcc, -1, v2
s_cbranch_vccz L_h1
s_add_u32 s59, s59, 1
s_cmp_lt_u32 s59, {SPIN}
s_cbranch_scc1 L_h0
L_h1:
""")
    for h in range(4): e(f"v_lshlrev_b32 v{56+2*h}, 16, v{52+h}\n v_and_b32 v{57+2*h}, 0xffff0000, v{52+h}")
    e("s_mov_b32 s59, -1\nL_d2:\n v_max3_u32 v2, v16, v17, v18")
    for i in range(19, 51, 2): e(f"v_max3_u32 v2, v2, v{i}, v{i+1}")
    e(f"v_max_u32 v2, v2, v51\n v_cmp_eq_u32 vcc, -1, v2\n s_add_u32 s59, s59, 1\n s_cbranch_scc1 L_dw\n s_cbranch_vccz L_d1\n s_cmp_ge_u32 s59, {SPIN}\n s_cbranch_scc1 L_d1\n s_branch L_d0\nL_dw:\n s_barrier")
    stamp(8)
    e("L_d0:\n s_mov_b32 s57, s62")
    for i in range(9):
        e(f"buffer_load_dwordx4 v[{16+4*i}:{19+4*i}], v3, s[36:39], s57 offen sc1")
        if i < 8: e(f"s_add_u32 s57, s57, {8*4608}")
    for i in range(1, 9):
        e(f"s_waitcnt vmcnt({8-i})")
        for h in range(2):
            src = 16 if i == 1 else 8
            e(f"v_pk_add_f32 v[{8+2*h}:{9+2*h}], v[{src+2*h}:{src+1+2*h}], v[{16+4*i+2*h}:{17+4*i+2*h}]")
    e("v_pk_add_f32 v[6:7], v[8:9], v[10:11]\n v_cmp_u_f32 vcc, v6, v7\n s_cbranch_vccnz L_d2\nL_d1:")
    stamp(6)
    for q in range(4): e(f"v_add_f32_dpp v{16+q}, v{8+q}, v{8+q} row_ror:8 row_mask:0xf bank_mask:0xf\n v_add_f32_dpp v{20+q}, v{8+q}, v{8+q} row_ror:8 row_mask:0xf bank_mask:0xf")
    for q in range(4): e(f"v_permlane16_swap_b32 v{16+q}, v{20+q}")
    for h in range(2): e(f"v_pk_add_f32 v[{24+2*h}:{25+2*h}], v[{16+2*h}:{17+2*h}], v[{20+2*h}:{21+2*h}]\n v_pk_add_f32 v[{16+2*h}:{17+2*h}], v[{16+2*h}:{17+2*h}], v[{20+2*h}:{21+2*h}]")
    for q in range(4): e(f"v_permlane32_swap_b32 v{16+q}, v{24+q}")
    for h in range(2): e(f"v_pk_add_f32 v[{16+2*h}:{17+2*h}], v[{16+2*h}:{17+2*h}], v[{24+2*h}:{25+2*h}]")
    def rnd4():
        for h in range(2): e(f"v_cvt_pk_bf16_f32 v{24+h}, v{16+2*h}, v{17+2*h}")
        for h in range(2): e(f"v_lshlrev_b32 v{16+2*h}, 16, v{24+h}\n v_and_b32 v{17+2*h}, 0xffff0000, v{24+h}")
    rnd4()
    for q in range(4): e(f"v_mul_f32 v{16+q}, v{16+q}, v5")
    for src in (56, 60):
        rnd4()
        for h in range(2): e(f"v_pk_add_f32 v[{16+2*h}:{17+2*h}], v[{16+2*h}:{17+2*h}], v[{src+2*h}:{src+1+2*h}]")
    for h in range(2): e(f"v_cvt_pk_bf16_f32 v{24+h}, v{16+2*h}, v{17+2*h}")
    e("s_mov_b64 exec, 0xff\n buffer_store_dwordx2 v[24:25], v4, s[68:71], s52 offen sc1")
    stamp(7)
    fin()
    a.lab("L_end")
    e("s_endpgm")
    for _ in range(96): e("s_endpgm")
    a.lab("L_codeend")

    assert not any('op_sel:' in l for l in a.L)
    if cyc: a.L = [l.replace('s_memrealtime', 's_memtime') for l in a.L]
    lines, n = hazard.fix(a.L)
    if doalign: lines, nw, npad = align.run(lines)
    import os
    ref = "sequential_preLN__linear_attn_block__moe_arch_mod__prompt.s.ref"
    hdr = open(ref).read().split("; @launch")[0] if os.path.exists(ref) else ""
    hdr += f"""; @launch grid=(256,1,1) block=(512,1,1) lds=163840
.amdgcn_target "amdgcn-amd-amdhsa--gfx950"
.text
.globl {NAME}
.p2align 8
.type {NAME},@function
"""
    tail = f"""
.section .rodata,"a"
.p2align 6
.amdhsa_kernel {NAME}
  .amdhsa_next_free_vgpr 256
  .amdhsa_next_free_sgpr 102
  .amdhsa_accum_offset 256
  .amdhsa_group_segment_fixed_size 0
  .amdhsa_kernarg_size 88
  .amdhsa_user_sgpr_count 2
  .amdhsa_user_sgpr_kernarg_segment_ptr 1
  .amdhsa_system_sgpr_workgroup_id_x 1
.end_amdhsa_kernel
"""
    return hdr + "\n".join(lines) + "\n" + tail

if __name__ == "__main__":
    assert all((n*1821)>>16 == n//36 for n in range(108))
    assert all((n*13108)>>16 == n//5 for n in range(192))
    assert all((n*57)>>9 == n//9 for n in range(63))
    print(gen(stamps=len(sys.argv) > 1))
```
